```python
import torch

def _softmax(x, axis=-1):
    return torch.softmax(x, dim=axis)
def _gelu(x):
    return torch.nn.functional.gelu(x, approximate="tanh")
def _silu(x):
    return torch.nn.functional.silu(x)
def _sigmoid(x):
    return torch.sigmoid(x)
def _layernorm(x, axis=-1, eps=1e-5):
    m = x.mean(dim=axis, keepdim=True)
    v = x.var(dim=axis, keepdim=True, unbiased=False)
    return (x - m) / torch.sqrt(v + eps)
def _scatter_add(tgt, idx, src, axis=0):
    return tgt.clone().index_add_(axis, idx, src)
def _segment_sum(src, seg, n):
    out = torch.zeros((n,) + src.shape[1:], dtype=src.dtype)
    return out.index_add_(0, seg, src)
def _pad(x, pw):
    flat = tuple(v for pair in reversed(pw) for v in pair)
    return torch.nn.functional.pad(x, flat)

kernel_name = 'gated_mix__linear_attn_block__linear_attn_block__prompt'

def setup_inputs():

    _w = (lambda a: (lambda t: t.to(torch.bfloat16) if t.is_floating_point() else t)(torch.as_tensor(a)))
    def _A_setup():
        B, S, D = 1, 2048, 1024
        return {
            "x": _w((lambda *s: torch.randn(*s, dtype=torch.bfloat16) * 0.05)(B, S, D)),
            "wqkv": _w((lambda *s: torch.randn(*s, dtype=torch.bfloat16) * 0.8)(D, 3 * D)),
            "wo": _w((lambda *s: torch.randn(*s, dtype=torch.bfloat16) * 0.05)(D, D)),
        }
    _A_in = _A_setup()

    def _B_setup():
        B, S, D = 1, 2048, 1024
        return {
            "x": _w((lambda *s: torch.randn(*s, dtype=torch.bfloat16) * 0.05)(B, S, D)),
            "wqkv": _w((lambda *s: torch.randn(*s, dtype=torch.bfloat16) * 0.8)(D, 3 * D)),
            "wo": _w((lambda *s: torch.randn(*s, dtype=torch.bfloat16) * 0.05)(D, D)),
        }
    _B_in = _B_setup()

    return {
        "A_x": _A_in["x"],
        "A_wqkv": _A_in["wqkv"],
        "A_wo": _A_in["wo"],
        "B_x": _B_in["x"],
        "B_wqkv": _B_in["wqkv"],
        "B_wo": _B_in["wo"],
        "gate_w": _w((lambda *s: torch.randn(*s, dtype=torch.bfloat16) * 0.05)(1024) * 16.0),
    }

def reference(A_x, A_wqkv, A_wo, B_x, B_wqkv, B_wo, gate_w):
    def _A_ref(x, wqkv, wo):
        B, S, D = x.shape
        H = 32; Dh = D // H
        qkv = (lambda x, *d: x.permute(*d))((x @ wqkv).reshape(B, S, 3, H, Dh), 2, 0, 3, 1, 4)
        q, k, v = qkv[0], qkv[1], qkv[2]
        phi = lambda t: torch.where(t > 0, t + 1, torch.exp(t)) + 1e-6
        pq, pk = phi(q), phi(k)
        kv = torch.einsum("bhsd,bhse->bhde", pk, v)
        z = torch.einsum("bhsd->bhd", pk)
        num = torch.einsum("bhqd,bhde->bhqe", pq, kv)
        den = torch.einsum("bhqd,bhd->bhq", pq, z)[..., None] + 1e-6
        o = num / den
        return (lambda x, *d: x.permute(*d))(o, 0, 2, 1, 3).reshape(B, S, D) @ wo

    def _B_ref(x, wqkv, wo):
        B, S, D = x.shape
        H = 32; Dh = D // H
        qkv = (lambda x, *d: x.permute(*d))((x @ wqkv).reshape(B, S, 3, H, Dh), 2, 0, 3, 1, 4)
        q, k, v = qkv[0], qkv[1], qkv[2]
        phi = lambda t: torch.where(t > 0, t + 1, torch.exp(t)) + 1e-6
        pq, pk = phi(q), phi(k)
        kv = torch.einsum("bhsd,bhse->bhde", pk, v)
        z = torch.einsum("bhsd->bhd", pk)
        num = torch.einsum("bhqd,bhde->bhqe", pq, kv)
        den = torch.einsum("bhqd,bhd->bhq", pq, z)[..., None] + 1e-6
        o = num / den
        return (lambda x, *d: x.permute(*d))(o, 0, 2, 1, 3).reshape(B, S, D) @ wo

    x = A_x
    g = _sigmoid((x * gate_w).sum(-1, keepdims=True))
    a = _A_ref(x, A_wqkv, A_wo)
    b = _B_ref(x, B_wqkv, B_wo)
    return g * a + (1 - g) * b
```

```python
import re

REG_RE = re.compile(r"^(-?)(?:abs\()?([vas])(?:(\d+)|\[(\d+):(\d+)\])\)?$")
TRANS = ("v_exp_f32", "v_log_f32", "v_rcp_f32", "v_rsq_f32", "v_sqrt_f32", "v_sin_f32", "v_cos_f32")


def regs_of(tok):
    tok = tok.strip()
    if tok in ("vcc",):
        return {("s", 106), ("s", 107)}
    if tok == "vcc_lo":
        return {("s", 106)}
    if tok == "vcc_hi":
        return {("s", 107)}
    if tok == "exec":
        return {("s", 126), ("s", 127)}
    if tok == "m0":
        return {("s", 124)}
    m = REG_RE.match(tok)
    if not m:
        return set()
    f = m.group(2)
    if m.group(3) is not None:
        return {(f, int(m.group(3)))}
    return {(f, i) for i in range(int(m.group(4)), int(m.group(5)) + 1)}


class Ins:
    __slots__ = ("text", "op", "dst", "src", "kind", "srcC", "srcAB", "passes", "ws", "storedata", "dpp")

    def __init__(self, text):
        self.text = text
        t = text.split(";")[0].strip()
        parts = t.split(None, 1)
        self.op = op = parts[0]
        rest = parts[1] if len(parts) > 1 else ""
        ops = [o.strip() for o in re.split(r",(?![^\[]*\])", rest)] if rest else []
        mods = []
        if ops:
            sp = ops[-1].split()
            ops[-1] = sp[0] if sp else ""
            mods = sp[1:]
        self.dst, self.src = set(), set()
        self.srcC, self.srcAB = set(), set()
        self.storedata = set()
        self.passes = 0
        self.ws = 1
        self.dpp = any(m.startswith(("quad_perm", "row_", "wave_", "dpp")) for m in mods) or op.endswith("_dpp")
        base = re.sub(r"_(e32|e64|dpp|sdwa)$", "", op)
        if op.startswith("v_mfma"):
            self.kind = "mfma"
            self.dst = regs_of(ops[0])
            self.srcAB = regs_of(ops[1]) | regs_of(ops[2])
            self.srcC = regs_of(ops[3])
            self.src = self.srcAB | self.srcC
            self.passes = 8 if "32x32" in op else 4
        elif op.startswith("v_"):
            self.kind = "trans" if base in TRANS else "valu"
            if base.startswith("v_cmp"):
                self.dst = regs_of(ops[0])
                if base.startswith("v_cmpx"):
                    self.dst |= regs_of("exec")
                for o in ops[1:]:
                    self.src |= regs_of(o)
            elif base in ("v_swap_b32", "v_permlane32_swap_b32", "v_permlane16_swap_b32"):
                self.dst = regs_of(ops[0]) | regs_of(ops[1])
                self.src = set(self.dst)
            elif base in ("v_add_co_u32", "v_sub_co_u32", "v_addc_co_u32", "v_subb_co_u32", "v_mad_u64_u32", "v_div_scale_f32"):
                self.dst = regs_of(ops[0]) | regs_of(ops[1])
                for o in ops[2:]:
                    self.src |= regs_of(o)
            elif base == "v_nop":
                pass
            else:
                self.dst = regs_of(ops[0])
                for o in ops[1:]:
                    self.src |= regs_of(o)
                if base in ("v_fmac_f32", "v_dot2c_f32_bf16", "v_pk_fmac_f16", "v_writelane_b32") or self.dpp:
                    self.src |= self.dst
                if base == "v_cndmask_b32" and len(ops) == 3:
                    self.src |= regs_of("vcc")
        elif op.startswith(("buffer_", "global_")):
            self.kind = "vmem"
            lds = "lds" in mods or "_lds_" in op
            if "store" in op or ("atomic" in op):
                if op.startswith("buffer_"):
                    self.storedata = regs_of(ops[0])
                    for o in ops:
                        self.src |= regs_of(o)
                    if "atomic" in op and "sc0" in mods:
                        self.dst = regs_of(ops[0])
                else:
                    for o in ops:
                        self.src |= regs_of(o)
                    self.storedata = regs_of(ops[1])
                if not op.endswith(("x3", "x4")):
                    self.storedata = set()
            elif op.startswith(("buffer_wbl2", "buffer_inv")):
                pass
            elif lds:
                for o in ops:
                    self.src |= regs_of(o)
                self.src |= regs_of("m0")
                self.kind = "dma"
            else:
                self.dst = regs_of(ops[0])
                for o in ops[1:]:
                    self.src |= regs_of(o)
        elif op.startswith("ds_"):
            self.kind = "ds"
            if op.startswith(("ds_read", "ds_bpermute", "ds_permute", "ds_swizzle")):
                self.dst = regs_of(ops[0])
                for o in ops[1:]:
                    self.src |= regs_of(o)
            else:
                for o in ops:
                    self.src |= regs_of(o)
        elif op == "s_nop":
            self.kind = "nop"
            self.ws = int(ops[0], 0) + 1
        elif op.startswith("s_"):
            self.kind = "salu"
            if op.startswith(("s_cmp", "s_cbranch", "s_branch", "s_waitcnt", "s_barrier", "s_endpgm", "s_sleep", "s_setprio", "s_bitcmp")):
                for o in ops:
                    self.src |= regs_of(o)
            else:
                if ops:
                    self.dst = regs_of(ops[0])
                for o in ops[1:]:
                    self.src |= regs_of(o)
                if "saveexec" in op:
                    self.dst |= regs_of("exec")
        else:
            raise ValueError("unknown instr " + text)


def need_ws(p, c):
    n = 0
    pv = p.kind in ("valu", "trans")
    cv = c.kind in ("valu", "trans")
    vdst = {r for r in p.dst if r[0] in "va"}
    sdst = {r for r in p.dst if r[0] == "s"}
    cbase = re.sub(r"_(e32|e64|dpp|sdwa)$", "", c.op)
    if pv:
        if c.kind == "mfma" and vdst & c.src:
            n = max(n, 2)
        if c.kind == "mfma" and (sdst & regs_of("exec")):
            n = max(n, 4)
        if p.kind == "trans" and c.kind != "trans" and c.kind in ("valu", "mfma", "vmem", "ds", "dma") and vdst & c.src:
            n = max(n, 1 if c.kind != "mfma" else 2)
        if p.kind == "trans" and c.kind == "trans" and vdst & c.src:
            n = max(n, 1)
        if cv and c.dpp and vdst & c.src:
            n = max(n, 2)
        if cv and c.dpp and (sdst & regs_of("exec")):
            n = max(n, 5)
        if cbase.startswith("v_permlane") and vdst & c.src:
            n = max(n, 2)
        if cbase.startswith("v_permlane") and (sdst & regs_of("exec")):
            n = max(n, 4)
        if cbase in ("v_readlane_b32", "v_readfirstlane_b32") and vdst & c.src:
            n = max(n, 1)
        if cbase in ("v_readlane_b32", "v_readfirstlane_b32", "v_writelane_b32") and (sdst & regs_of("exec")):
            n = max(n, 4)
        if cbase in ("v_readlane_b32", "v_writelane_b32") and sdst & c.src:
            n = max(n, 4)
        if c.kind in ("vmem", "dma") and sdst & c.src:
            n = max(n, 5)
        if cv and sdst & c.src:
            n = max(n, 2)
        if c.kind == "salu" and sdst & c.src:
            n = max(n, 2)
        if c.op.startswith("s_cbranch_vcc") and (sdst & regs_of("vcc")):
            n = max(n, 5)
        if c.op.startswith("s_cbranch_exec") and (sdst & regs_of("exec")):
            n = max(n, 5)
        if cbase == "v_div_fmas_f32" and (sdst & regs_of("vcc")):
            n = max(n, 4)
        if p.op.startswith("v_dot") and (vdst & (c.src | c.dst)) and not (c.op == p.op and not (vdst & (c.src - c.dst))):
            n = max(n, 3)
    if p.kind == "mfma":
        big = p.passes == 8
        if c.kind == "mfma":
            if p.dst & c.srcAB:
                n = max(n, 12 if big else 8)
            if p.dst & c.srcC and not (p.dst == c.srcC and p.passes == c.passes):
                n = max(n, 10 if big else 6)
            if p.dst & c.dst and not (p.dst == c.srcC and p.passes == c.passes):
                n = max(n, 12 if big else 8)
        elif c.kind in ("valu", "trans", "vmem", "ds", "dma"):
            if p.dst & (c.src | c.dst):
                n = max(n, 12 if big else 8)
            if cv and p.srcC & c.dst:
                n = max(n, 7 if big else 3)
    if p.kind == "salu" and (regs_of("m0") & p.dst) and c.kind == "dma":
        n = max(n, 1)
    if p.kind == "vmem" and p.storedata and (p.storedata & c.dst):
        n = max(n, 2 if cv else 1)
    return n


class Asm:
    def __init__(self):
        self.items = []
        self.nops_added = 0

    def raw(self, s):
        self.items.append(s)

    def label(self, name):
        self.items.append(name + ":")

    def __call__(self, text):
        for line in text.strip().split("\n"):
            line = line.strip()
            if not line or line.startswith(";"):
                continue
            if line.endswith(":"):
                self.items.append(line)
                continue
            ins = Ins(line)
            dist = 0
            pad = 0
            for prev in reversed(self.items):
                if isinstance(prev, str):
                    if prev.startswith("."):
                        break
                    continue
                nw = need_ws(prev, ins)
                if nw > dist:
                    pad = max(pad, nw - dist)
                dist += prev.ws
                if dist >= 20:
                    break
            while pad > 0:
                k = min(pad, 16)
                self.items.append(Ins(f"s_nop {k - 1}"))
                self.nops_added += 1
                pad -= k
            self.items.append(ins)

    def check_edge(self, from_idx, to_idx):
        pre = [x for x in self.items[max(0, from_idx - 40):from_idx + 1] if not isinstance(x, str)]
        post = [x for x in self.items[to_idx:to_idx + 40] if not isinstance(x, str)]
        d0 = 0
        for c in post:
            dist = d0
            for p in reversed(pre):
                nw = need_ws(p, c)
                if nw > dist:
                    raise RuntimeError(f"hazard across jump: {p.text} -> {c.text} need {nw} have {dist}")
                dist += p.ws
                if dist >= 20:
                    break
            d0 += c.ws
            if d0 >= 20:
                break

    def check_branches(self):
        labels = {x[:-1]: i for i, x in enumerate(self.items) if isinstance(x, str) and x.endswith(":")}
        for i, x in enumerate(self.items):
            if not isinstance(x, str) and x.op.startswith(("s_cbranch", "s_branch")):
                tgt = x.text.split(";")[0].split()[-1]
                self.check_edge(i, labels[tgt])

    def text(self):
        self.check_branches()
        out = []
        for x in self.items:
            if isinstance(x, str):
                out.append(x)
            else:
                out.append("    " + x.text)
        return "\n".join(out) + "\n"
```

```python
import sys, struct
from asmlib import Asm, Ins, regs_of

def f2u(x):
    return struct.unpack("<I", struct.pack("<f", x))[0]

LOG2E = 1.4426950408889634
EPS = 1e-6

WS_OP = 0
WS_SLOT = 8 << 20
WS_G = 12 << 20
WS_DIAG = (12 << 20) + 16384
WS_SIZE = (12 << 20) + 16384 + 2*256*8*128

class LdsQ:
    def __init__(self, a):
        self.a = a
        self.q = []
    def issue(self, text):
        self.a(text)
        self.q.append(Ins(text).dst)
    def need(self, regs):
        idx = -1
        for i, d in enumerate(self.q):
            if d & regs:
                idx = i
        if idx >= 0:
            n = len(self.q) - idx - 1
            assert n <= 15
            self.a(f"s_waitcnt lgkmcnt({n})")
            self.q = self.q[idx + 1:]
    def drained(self):
        self.q = []

def kd(name, vgpr, sgpr, accum):
    return f""".p2align 6
.amdhsa_kernel {name}
  .amdhsa_next_free_vgpr {vgpr}
  .amdhsa_next_free_sgpr {sgpr}
  .amdhsa_accum_offset {accum}
  .amdhsa_group_segment_fixed_size 0
  .amdhsa_kernarg_size 80
  .amdhsa_user_sgpr_count 2
  .amdhsa_user_sgpr_kernarg_segment_ptr 1
  .amdhsa_system_sgpr_workgroup_id_x 1
  .amdhsa_float_denorm_mode_32 3
.end_amdhsa_kernel
"""

def srd(a, d, lo, size):
    a(f"s_mov_b32 s{d}, s{lo}")
    a(f"s_and_b32 s{d+1}, s{lo+1}, 0xffff")
    a(f"s_mov_b32 s{d+2}, {size}")
    a(f"s_mov_b32 s{d+3}, 0x00020000")

def stamp(a, opt, slot, sreg=90, real=False):
    if not opt.get("stamps"):
        return
    a(f"{'s_memrealtime' if real else 's_memtime'} s[{sreg}:{sreg + 1}]")
    a("s_waitcnt lgkmcnt(0)")
    a(f"v_writelane_b32 v31, s{sreg}, {slot}")

def stamp_out(a, opt, kidx, srd_ws=24):
    if not opt.get("stamps"):
        return
    a("s_waitcnt vmcnt(0)")
    stamp(a, opt, 29)
    stamp(a, opt, 31, real=True)
    a("s_getreg_b32 s90, hwreg(HW_REG_XCC_ID)")
    a("v_writelane_b32 v31, s90, 28")
    a("s_getreg_b32 s90, hwreg(HW_REG_HW_ID)")
    a("v_writelane_b32 v31, s90, 27")
    a("s_lshl_b32 s90, s2, 10")
    a("s_lshl_b32 s91, s38, 7")
    a("s_add_u32 s90, s90, s91")
    a(f"s_add_u32 s90, s90, {WS_DIAG + kidx * 256 * 1024}")
    a("s_mov_b64 exec, 0xffffffff")
    a("v_lshlrev_b32 v27, 2, v1")
    a(f"buffer_store_dword v31, v27, s[{srd_ws}:{srd_ws+3}], s90 offen")

def gen_k1(a, opt):
    XB = [0, 32768]
    WB = [65536, 65536 + 24576]
    EX = 114688
    ACC = 64
    def accQ(rt): return ACC + rt * 48
    def accK(rt): return ACC + rt * 48 + 16
    def accV(rt): return ACC + rt * 48 + 32
    def fX(s, rt): return 28 * s + 4 * rt
    def fW(s, seg): return 28 * s + 16 + 4 * seg
    GX = 56
    a.raw(".globl k1_kernel\n.p2align 8\n.type k1_kernel,@function")
    a.label("k1_kernel")
    a("s_cmp_ge_u32 s2, 256")
    a("s_cbranch_scc1 K1_END")
    a("s_load_dwordx4 s[4:7], s[0:1], 0")
    a("s_load_dwordx2 s[8:9], s[0:1], 32")
    a("s_load_dwordx2 s[10:11], s[0:1], 48")
    a("s_load_dwordx4 s[12:15], s[0:1], 64")
    if opt.get("stamps"):
        a("v_mov_b32 v31, 0")
    stamp(a, opt, 30, real=True)
    stamp(a, opt, 0)
    a("v_lshrrev_b32 v21, 6, v0")
    a("v_and_b32 v1, 63, v0")
    a("v_readfirstlane_b32 s38, v21")
    a("s_and_b32 s56, s2, 7")
    a("s_lshr_b32 s57, s2, 3")
    if opt.get("k1map", "A") == "A":
        a("s_and_b32 s36, s57, 7")
        a("s_lshr_b32 s58, s57, 3")
        a("s_lshl_b32 s37, s56, 2")
        a("s_add_u32 s37, s37, s58")
    else:
        a("s_and_b32 s36, s56, 1")
        a("s_lshl_b32 s36, s36, 2")
        a("s_and_b32 s58, s57, 3")
        a("s_add_u32 s36, s36, s58")
        a("s_lshr_b32 s37, s56, 1")
        a("s_lshl_b32 s37, s37, 3")
        a("s_lshr_b32 s58, s57, 2")
        a("s_add_u32 s37, s37, s58")
    a("s_and_b32 s39, s38, 1")
    a("s_lshr_b32 s40, s38, 1")
    a("s_and_b32 s41, s37, 15")
    a("s_lshr_b32 s42, s37, 4")
    a("v_lshrrev_b32 v21, 3, v1")
    a("v_and_b32 v22, 7, v1")
    a("v_lshrrev_b32 v23, 4, v1")
    a("v_xor_b32 v24, v22, v23")
    a("v_lshlrev_b32 v24, 4, v24")
    a("v_lshl_add_u32 v24, v21, 11, v24")
    a("s_lshl_b32 s56, s36, 19")
    a("s_lshl_b32 s57, s38, 17")
    a("s_add_u32 s56, s56, s57")
    a("v_add_u32 v2, s56, v24")
    a("v_xor_b32 v25, 64, v2")
    for i in range(1, 8):
        src = "v2" if i % 2 == 0 else "v25"
        a(f"v_add_u32 v{2+i}, {i*16384 - (i % 4) * 1024}, {src}")
    a("v_and_b32 v23, 1, v23")
    a("v_lshlrev_b32 v23, 2, v23")
    a("v_xor_b32 v24, v22, v23")
    a("v_lshlrev_b32 v24, 4, v24")
    a("v_mul_u32_u24 v25, 6144, v21")
    a("v_add_u32 v24, v24, v25")
    a("s_mul_i32 s56, s38, 6")
    a("s_lshl_b32 s59, s41, 7")
    for i in range(6):
        a(f"s_add_u32 s57, s56, {i}")
        a("s_lshr_b32 s58, s57, 3")
        a("s_and_b32 s57, s57, 7")
        a(f"s_mul_i32 s57, s57, {8*6144}")
        a("s_lshl_b32 s58, s58, 11")
        a("s_add_u32 s57, s57, s58")
        a("s_add_u32 s57, s57, s59")
        if i % 4:
            a(f"s_sub_u32 s57, s57, {(i % 4) * 1024}")
        a(f"v_add_u32 v{10+i}, s57, v24")
    a("s_lshl_b32 s56, s38, 13")
    a("s_mul_i32 s57, s38, 6144")
    for b in range(2):
        a(f"s_add_u32 s{48+4*b}, s56, {XB[b]}")
        a(f"s_add_u32 s{49+4*b}, s56, {XB[b] + 4096}")
        a(f"s_add_u32 s{50+4*b}, s57, {WB[b]}")
        a(f"s_add_u32 s{51+4*b}, s57, {WB[b] + 4096}")
    a("s_waitcnt lgkmcnt(0)")
    srd(a, 16, 4, 2048 * 1024 * 2)
    a("s_cmp_eq_u32 s42, 0")
    a("s_cselect_b32 s6, s6, s8")
    a("s_cselect_b32 s7, s7, s9")
    srd(a, 20, 6, 1024 * 3072 * 2)
    a("s_mov_b32 s43, 0")
    a("s_mov_b32 s44, 0")

    def dma_ops(b):
        ops = []
        for i in range(8):
            pre = [f"s_mov_b32 m0, s{48 + 4*b + i // 4}"] if i % 4 == 0 else []
            off = f" offset:{(i % 4) * 1024}" if i % 4 else ""
            ops.append(pre + [f"buffer_load_dwordx4 v{2+i}, s[16:19], s43 offen{off} lds"])
        for i in range(6):
            pre = [f"s_mov_b32 m0, s{50 + 4*b + i // 4}"] if i % 4 == 0 else []
            off = f" offset:{(i % 4) * 1024}" if i % 4 else ""
            ops.append(pre + [f"buffer_load_dwordx4 v{10+i}, s[20:23], s44 offen{off} lds"])
        ops[7].append("s_add_u32 s43, s43, 128")
        ops[13].append(f"s_add_u32 s44, s44, {64*6144}")
        return ops
    for b in range(2):
        for op in dma_ops(b):
            for x in op:
                a(x)
    srd(a, 24, 14, WS_SIZE)
    srd(a, 28, 12, 256)
    srd(a, 32, 10, 2048)
    a("v_lshlrev_b32 v26, 4, v1")
    a("s_lshl_b32 s56, s2, 14")
    a("s_lshl_b32 s57, s38, 12")
    a("s_add_u32 s60, s56, s57")
    a(f"buffer_load_dwordx4 a[{GX}:{GX+3}], v26, s[16:19], s60 offen")
    a(f"buffer_load_dwordx4 a[{GX+4}:{GX+7}], v26, s[16:19], s60 offen offset:1024")
    a(f"buffer_load_dwordx4 a[{GX+8}:{GX+11}], v26, s[16:19], s60 offen offset:2048")
    a(f"buffer_load_dwordx4 a[{GX+12}:{GX+15}], v26, s[16:19], s60 offen offset:3072")
    a(f"buffer_load_dwordx4 a[{GX+16}:{GX+19}], v26, s[32:35], 0 offen")
    a(f"buffer_load_dwordx4 a[{GX+20}:{GX+23}], v26, s[32:35], 0 offen offset:1024")
    a("s_lshl_b32 s56, s37, 17")
    a("s_lshl_b32 s57, s38, 12")
    a("s_add_u32 s61, s56, s57")
    a(f"s_add_u32 s61, s61, {WS_SLOT}")
    a("s_lshl_b32 s57, s36, 14")
    a("s_add_u32 s62, s61, s57")
    a("v_lshlrev_b32 v27, 2, v1")
    for i in range(4):
        a(f"v_mov_b32 v{32+i}, -1")
    a("buffer_store_dwordx4 v[32:35], v26, s[24:27], s62 offen sc1")
    a("buffer_store_dwordx4 v[32:35], v26, s[24:27], s62 offen offset:1024 sc1")
    a("buffer_store_dword v32, v27, s[24:27], s62 offen offset:2048 sc1")
    NPOST = 14 + 6 + 3
    a("v_and_b32 v21, 31, v1")
    a("v_lshrrev_b32 v22, 5, v1")
    a("v_bfe_u32 v23, v1, 1, 3")
    a("v_xor_b32 v23, v23, v22")
    a("v_lshlrev_b32 v23, 4, v23")
    a("v_lshl_add_u32 v23, v21, 7, v23")
    a("s_lshl_b32 s56, s39, 14")
    a("v_add_u32 v16, s56, v23")
    for ks in range(1, 4):
        a(f"v_xor_b32 v{16+ks}, {32*ks}, v16")
    a("v_bfe_u32 v23, v1, 2, 2")
    a("v_lshl_add_u32 v24, v22, 3, v23")
    a("v_lshlrev_b32 v24, 7, v24")
    a("v_bfe_u32 v25, v1, 4, 1")
    a("v_lshlrev_b32 v25, 1, v25")
    a("v_bfe_u32 v28, v1, 1, 1")
    a("v_or_b32 v25, v25, v28")
    a("s_lshl_b32 s56, s40, 2")
    a("v_or_b32 v25, s56, v25")
    a("v_and_b32 v28, 2, v23")
    a("v_lshlrev_b32 v28, 1, v28")
    a("v_xor_b32 v25, v25, v28")
    a("v_lshl_add_u32 v24, v25, 4, v24")
    a("v_and_b32 v28, 1, v1")
    a("v_lshl_add_u32 v24, v28, 3, v24")
    a(f"v_add_u32 v20, {WB[0]}, v24")
    for rt in range(4):
        for r in range(16):
            a(f"v_mov_b32 v{accQ(rt)+r}, 0x{f2u(EPS):08x}" if r == 0 and rt == 0 else f"v_mov_b32 v{accQ(rt)+r}, v{accQ(0)}")
        for r in range(16):
            a(f"v_mov_b32 v{accK(rt)+r}, v{accQ(0)}")
        for r in range(16):
            a(f"v_mov_b32 v{accV(rt)+r}, 0")
    stamp(a, opt, 1)
    lq = LdsQ(a)

    def read_ops(b, ks, s):
        ops = []
        def w(seg, sub):
            r = fW(s, seg) + 2 * sub
            return f"ds_read_b64_tr_b16 a[{r}:{r+1}], v20 offset:{b*24576 + seg*8192 + ks*2048 + sub*512}"
        def x(rt):
            r = fX(s, rt)
            return f"ds_read_b128 a[{r}:{r+3}], v{16+ks} offset:{b*32768 + rt*4096}"
        return [w(0, 0), w(0, 1), x(0), w(1, 0), w(1, 1), w(2, 0), w(2, 1), x(1), x(2), x(3)]

    def mfmas(s):
        out = []
        for rt in range(4):
            X = f"a[{fX(s, rt)}:{fX(s, rt)+3}]"
            for seg, acc in enumerate((accQ(rt), accK(rt), accV(rt))):
                W = f"a[{fW(s, seg)}:{fW(s, seg)+3}]"
                A, B = (W, X) if seg == 0 else (X, W)
                out.append(f"v_mfma_f32_32x32x16_bf16 v[{acc}:{acc+15}], {A}, {B}, v[{acc}:{acc+15}]")
        return out

    def step(s, reads, extra):
        ms = mfmas(s)
        for g, m in enumerate(ms):
            lq.need(Ins(m).srcAB)
            a(m)
            if g < len(reads):
                lq.issue(reads[g])
            for x in extra.get(g, []):
                a(x)

    a(f"s_waitcnt vmcnt({NPOST})")
    a("s_barrier")
    stamp(a, opt, 2)
    for r in read_ops(0, 0, 0):
        lq.issue(r)
    step(0, read_ops(0, 1, 1), {})
    step(1, read_ops(0, 2, 0), {})
    step(0, read_ops(0, 3, 1), {})

    dma_gaps = opt.get("dma_gaps", [(0, g) for g in (1, 3, 5, 7, 9, 10, 11)] + [(1, g) for g in (1, 3, 5, 7, 9, 10, 11)])
    def block(b, dma, pre=None):
        a("s_waitcnt vmcnt(0) lgkmcnt(0)")
        lq.drained()
        a("s_barrier")
        ex = [{}, {}, {}, {}]
        if dma:
            for op, (st, g) in zip(dma_ops(b), dma_gaps):
                ex[st].setdefault(g, []).extend(op)
        if pre:
            ex[0].setdefault(0, []).extend(pre)
        step(1, read_ops(1 - b, 0, 0), ex[0])
        step(0, read_ops(1 - b, 1, 1), ex[1])
        step(1, read_ops(1 - b, 2, 0), ex[2])
        step(0, read_ops(1 - b, 3, 1), ex[3])

    a("s_mov_b32 s45, 0")
    a("s_lshl_b32 s63, s37, 3")
    a("v_mov_b32 v28, 1")
    a("v_mov_b32 v29, 0")
    a.label("K1_LOOP")
    pre = ["s_or_b32 s56, s45, s38",
           "s_cbranch_scc1 K1_NOATOM",
           "s_mov_b64 exec, 1",
           "buffer_atomic_add v28, v29, s[28:31], s63 offen sc1",
           "s_mov_b64 exec, -1",
           "K1_NOATOM:"]
    block(0, True, pre)
    block(1, True)
    a("s_add_u32 s45, s45, 1")
    a("s_cmp_lt_u32 s45, 7")
    a("s_cbranch_scc1 K1_LOOP")
    block(0, False, ["buffer_load_dword v30, v29, s[28:31], s63 offen sc1"])
    step(1, [], {})
    stamp(a, opt, 3)

    a(f"s_mov_b32 s64, 0x{f2u(LOG2E):08x}")
    a(f"v_mov_b32 v21, 0x{f2u(-EPS * LOG2E):08x}")
    for i in range(4):
        a(f"v_mov_b32 v{22+i}, 0x3f803f80")
    KV, ZT = 32, 48
    def phi(base, t0):
        for r in range(0, 16, 4):
            for i in range(4):
                a(f"v_fma_f32 v{t0+i}, v{base+r+i}, s64, v21")
            for i in range(4):
                a(f"v_exp_f32_e64 v{t0+i}, v{t0+i} clamp")
            for i in range(4):
                a(f"v_max_f32 v{base+r+i}, 0x{f2u(EPS):08x}, v{base+r+i}")
            for i in range(4):
                a(f"v_add_f32 v{base+r+i}, v{base+r+i}, v{t0+i}")
            a(f"v_cvt_pk_bf16_f32 v{base+r//2}, v{base+r}, v{base+r+1}")
            a(f"v_cvt_pk_bf16_f32 v{base+r//2+1}, v{base+r+2}, v{base+r+3}")
    T0 = 2
    for rt in range(4):
        phi(accK(rt), T0)
        for r in range(0, 16, 2):
            a(f"v_cvt_pk_bf16_f32 v{accV(rt)+r//2}, v{accV(rt)+r}, v{accV(rt)+r+1}")
        for p in range(2):
            c_kv = "0" if rt == 0 and p == 0 else f"v[{KV}:{KV+15}]"
            c_z = "0" if rt == 0 and p == 0 else f"v[{ZT}:{ZT+15}]"
            k0, v0_ = accK(rt) + 4 * p, accV(rt) + 4 * p
            a(f"v_mfma_f32_32x32x16_bf16 v[{KV}:{KV+15}], v[{k0}:{k0+3}], v[{v0_}:{v0_+3}], {c_kv}")
            a(f"v_mfma_f32_32x32x16_bf16 v[{ZT}:{ZT+15}], v[22:25], v[{k0}:{k0+3}], {c_z}")
    a("s_lshl_b32 s56, s38, 12")
    a(f"s_add_u32 s56, s56, {EX}")
    a("v_add_u32 v6, s56, v26")
    a("v_xor_b32 v7, 4096, v6")
    a("v_add_u32 v8, s56, v27")
    a("v_xor_b32 v9, 4096, v8")
    a("s_cmp_eq_u32 s39, 0")
    a("s_cbranch_scc1 K1_EXW0")
    a(f"ds_write_b128 v6, v[{KV}:{KV+3}]")
    a(f"ds_write_b128 v6, v[{KV+4}:{KV+7}] offset:1024")
    a("s_waitcnt lgkmcnt(0)")
    for i in range(8):
        a(f"v_mov_b32 v{KV+i}, v{KV+8+i}")
    a("s_branch K1_EXW1")
    a.label("K1_EXW0")
    a("s_nop 7")
    a(f"ds_write_b128 v6, v[{KV+8}:{KV+11}]")
    a(f"ds_write_b128 v6, v[{KV+12}:{KV+15}] offset:1024")
    a.label("K1_EXW1")
    a(f"ds_write_b32 v8, v{ZT} offset:2048")
    a("s_waitcnt lgkmcnt(0)")
    a("s_barrier")
    a(f"ds_read_b128 v[{KV+8}:{KV+11}], v7")
    a(f"ds_read_b128 v[{KV+12}:{KV+15}], v7 offset:1024")
    a(f"ds_read_b32 v{ZT+1}, v9 offset:2048")
    a("s_waitcnt lgkmcnt(0)")
    for i in range(8):
        a(f"v_add_f32 v{KV+i}, v{KV+i}, v{KV+8+i}")
    a(f"v_add_f32 v{ZT}, v{ZT}, v{ZT+1}")
    for i in range(8):
        a(f"v_min_u32 v{KV+i}, -2, v{KV+i}")
    a(f"v_min_u32 v{ZT}, -2, v{ZT}")
    a(f"buffer_store_dwordx4 v[{KV}:{KV+3}], v26, s[24:27], s62 offen sc1")
    a(f"buffer_store_dwordx4 v[{KV+4}:{KV+7}], v26, s[24:27], s62 offen offset:1024 sc1")
    a(f"buffer_store_dword v{ZT}, v27, s[24:27], s62 offen offset:2048 sc1")
    stamp(a, opt, 4)
    for rt in range(4):
        phi(accQ(rt), T0)
    G = accK(0)
    for i in range(24):
        a(f"v_accvgpr_read_b32 v{G+i}, a{GX+i}")
    a("v_mov_b32 v10, 0")
    a("v_mov_b32 v11, 0")
    for i in range(8):
        a(f"v_dot2_f32_bf16 v10, v{G+i}, v{G+16+i}, v10")
        a(f"v_dot2_f32_bf16 v11, v{G+8+i}, v{G+16+i}, v11")
    for r in (10, 11):
        pass
    for ctrl in ("quad_perm:[1,0,3,2]", "quad_perm:[2,3,0,1]", "row_half_mirror", "row_mirror"):
        for r in (10, 11):
            a(f"v_add_f32_dpp v{r}, v{r}, v{r} {ctrl} row_mask:0xf bank_mask:0xf")
    for r in (10, 11):
        for k, ln in enumerate((0, 16, 32, 48)):
            a(f"v_readlane_b32 s{66 + (r-10)*4 + k}, v{r}, {ln}")
    a("v_mov_b32 v10, s66")
    a("v_add_f32 v10, s67, v10")
    a("v_add_f32 v10, s68, v10")
    a("v_add_f32 v10, s69, v10")
    a("v_mov_b32 v11, s70")
    a("v_add_f32 v11, s71, v11")
    a("v_add_f32 v11, s72, v11")
    a("v_add_f32 v11, s73, v11")
    a("v_cmp_eq_u32 vcc, 0, v1")
    a("v_cndmask_b32 v10, v11, v10, vcc")
    a("v_cvt_pk_bf16_f32 v10, v10, v10")
    a("v_and_b32 v10, 0xffff0000, v10")
    a(f"v_mul_f32 v10, 0x{f2u(-LOG2E):08x}, v10")
    a("v_exp_f32 v10, v10")
    a("v_add_f32 v10, 1.0, v10")
    a("v_rcp_f32 v10, v10")
    a("v_cvt_pk_bf16_f32 v10, v10, v10")
    a("v_and_b32 v10, 0xffff0000, v10")
    a("v_sub_f32 v11, 1.0, v10")
    a("v_cvt_pk_bf16_f32 v11, v11, v11")
    a("v_and_b32 v11, 0xffff0000, v11")
    a("v_lshlrev_b32 v12, 3, v1")
    a("s_lshr_b32 s56, s60, 8")
    a(f"s_add_u32 s56, s56, {WS_G}")
    a("s_mov_b64 exec, 3")
    a("buffer_store_dwordx2 v[10:11], v12, s[24:27], s56 offen")
    a("s_mov_b64 exec, -1")
    stamp(a, opt, 5)
    a.label("K1_HS")
    a("s_waitcnt vmcnt(0)")
    a("v_readfirstlane_b32 s56, v30")
    a("s_cmp_eq_u32 s56, 8")
    a("s_cbranch_scc1 K1_HSOK")
    a("s_sleep 2")
    a("buffer_load_dword v30, v29, s[28:31], s63 offen sc1")
    a("s_branch K1_HS")
    a.label("K1_HSOK")
    PB = [accK(0), accK(0) + 12, accK(1), accK(1) + 12, accK(2), accK(2) + 12, accK(3), accK(3) + 12]
    a.label("K1_GATHER")
    for p in range(8):
        a(f"s_add_u32 s56, s61, {p * 16384}")
        a(f"buffer_load_dwordx4 v[{PB[p]}:{PB[p]+3}], v26, s[24:27], s56 offen sc1")
        a(f"buffer_load_dwordx4 v[{PB[p]+4}:{PB[p]+7}], v26, s[24:27], s56 offen offset:1024 sc1")
        a(f"buffer_load_dword v{PB[p]+8}, v27, s[24:27], s56 offen offset:2048 sc1")
    for p in range(8):
        a(f"s_waitcnt vmcnt({3 * (7 - p)})")
        b = PB[p]
        a(f"v_max3_u32 v10, v{b}, v{b+1}, v{b+2}" if p == 0 else f"v_max3_u32 v10, v10, v{b}, v{b+1}")
        if p == 0:
            rest = list(range(3, 9))
        else:
            rest = list(range(2, 9))
        while rest:
            if len(rest) >= 2:
                a(f"v_max3_u32 v10, v10, v{b+rest[0]}, v{b+rest[1]}"); rest = rest[2:]
            else:
                a(f"v_max_u32 v10, v10, v{b+rest[0]}"); rest = rest[1:]
        if p == 0:
            for i in range(9):
                a(f"v_mov_b32 v{KV+i}, v{b+i}")
        else:
            for i in range(9):
                a(f"v_add_f32 v{KV+i}, v{KV+i}, v{b+i}")
    a("v_cmp_eq_u32 vcc, -1, v10")
    a("s_cbranch_vccz K1_GOK")
    a("s_sleep 4")
    a("s_branch K1_GATHER")
    a.label("K1_GOK")
    stamp(a, opt, 6)
    for i in range(4):
        a(f"v_cvt_pk_bf16_f32 v{KV+12+i}, v{KV+2*i}, v{KV+2*i+1}")
    a(f"v_cvt_pk_bf16_f32 v{KV+8}, v{KV+8}, v{KV+8}")
    a("s_lshl_b32 s56, s38, 11")
    a(f"s_add_u32 s56, s56, {EX + 16384}")
    a("v_add_u32 v6, s56, v26")
    a(f"ds_write_b128 v6, v[{KV+12}:{KV+15}]")
    a("v_bfe_u32 v7, v1, 4, 1")
    a("v_lshlrev_b32 v7, 5, v7")
    a("v_bfe_u32 v8, v1, 2, 1")
    a("v_lshl_add_u32 v7, v8, 4, v7")
    a("v_bfe_u32 v8, v1, 3, 1")
    a("v_lshl_add_u32 v7, v8, 3, v7")
    a("v_and_b32 v8, 3, v1")
    a("v_lshl_add_u32 v7, v8, 1, v7")
    a("v_add_u32 v7, s56, v7")
    a(f"ds_write_b16 v7, v{KV+8} offset:1024")
    a("v_lshrrev_b32 v8, 5, v1")
    a("v_lshlrev_b32 v8, 4, v8")
    a("v_add_u32 v8, s56, v8")
    a("s_and_b32 s57, s56, 0xfffff7ff")
    a("v_add_u32 v9, s57, v26")
    a("s_waitcnt lgkmcnt(0)")
    a("s_barrier")
    KVOP, ZOP = 32, 40
    a(f"ds_read_b128 v[{KVOP}:{KVOP+3}], v9")
    a(f"ds_read_b128 v[{KVOP+4}:{KVOP+7}], v9 offset:2048")
    a(f"ds_read_b128 v[{ZOP}:{ZOP+3}], v8 offset:1024")
    a(f"ds_read_b128 v[{ZOP+4}:{ZOP+7}], v8 offset:1056")
    a("s_lshl_b32 s56, s36, 3")
    a("s_lshl_b32 s57, s39, 2")
    a("s_add_u32 s56, s56, s57")
    a("s_lshl_b32 s56, s56, 17")
    a("s_lshl_b32 s57, s37, 1")
    a("s_add_u32 s57, s57, s40")
    a("s_lshl_b32 s57, s57, 11")
    a("s_add_u32 s65, s56, s57")
    a("s_waitcnt lgkmcnt(0)")
    for rt in range(4):
        N, D, Q = accK(rt), accV(rt), accQ(rt)
        a(f"v_mfma_f32_32x32x16_bf16 v[{D}:{D+15}], v[{ZOP}:{ZOP+3}], v[{Q}:{Q+3}], 0")
        a(f"v_mfma_f32_32x32x16_bf16 v[{D}:{D+15}], v[{ZOP+4}:{ZOP+7}], v[{Q+4}:{Q+7}], v[{D}:{D+15}]")
        a(f"v_mfma_f32_32x32x16_bf16 v[{N}:{N+15}], v[{KVOP}:{KVOP+3}], v[{Q}:{Q+3}], 0")
        a(f"v_mfma_f32_32x32x16_bf16 v[{N}:{N+15}], v[{KVOP+4}:{KVOP+7}], v[{Q+4}:{Q+7}], v[{N}:{N+15}]")
    for rt in range(4):
        N, D = accK(rt), accV(rt)
        a(f"v_add_f32 v{D}, 0x{f2u(EPS):08x}, v{D}")
        a(f"v_rcp_f32 v{D}, v{D}")
        for r in range(16):
            a(f"v_mul_f32 v{N+r}, v{N+r}, v{D}")
        for r in range(0, 16, 2):
            a(f"v_cvt_pk_bf16_f32 v{D+4+r//2}, v{N+r}, v{N+r+1}")
        a(f"buffer_store_dwordx4 v[{D+4}:{D+7}], v26, s[24:27], s65 offen")
        a(f"buffer_store_dwordx4 v[{D+8}:{D+11}], v26, s[24:27], s65 offen offset:1024")
        if rt < 3:
            a("s_add_u32 s65, s65, 131072")
    stamp_out(a, opt, 0)
    a.label("K1_END")
    a("s_endpgm")
    return dict(name="k1_kernel", vgpr=256 + 80, sgpr=96, accum=256, lds=EX + 16384 + 8192, block=256, grid=256)

def gen_k3(a, opt):
    D = opt.get("k3_depth", 8)
    ACC = 128
    def acc(rt, ct): return ACC + (rt * 2 + ct) * 16
    def fA(slot, rt): return slot * 16 + rt * 4
    def fB(s, ct): return 32 + s * 8 + ct * 4
    a.raw(".globl k3_kernel\n.p2align 8\n.type k3_kernel,@function")
    a.label("k3_kernel")
    a("s_cmp_ge_u32 s2, 256")
    a("s_cbranch_scc1 K3_END")
    a("s_load_dwordx2 s[4:5], s[0:1], 16")
    a("s_load_dwordx2 s[6:7], s[0:1], 40")
    a("s_load_dwordx2 s[8:9], s[0:1], 56")
    a("s_load_dwordx4 s[12:15], s[0:1], 64")
    if opt.get("stamps"):
        a("v_mov_b32 v31, 0")
    stamp(a, opt, 30, real=True)
    stamp(a, opt, 0)
    a("v_lshrrev_b32 v21, 6, v0")
    a("v_and_b32 v1, 63, v0")
    a("v_readfirstlane_b32 s38, v21")
    a("s_and_b32 s56, s2, 7")
    a("s_lshr_b32 s57, s2, 3")
    a("s_and_b32 s36, s56, 3")
    a("s_lshl_b32 s36, s36, 2")
    a("s_and_b32 s58, s57, 3")
    a("s_add_u32 s36, s36, s58")
    a("s_lshr_b32 s37, s56, 2")
    a("s_lshl_b32 s37, s37, 3")
    a("s_lshr_b32 s58, s57, 2")
    a("s_add_u32 s37, s37, s58")
    a("v_lshlrev_b32 v26, 4, v1")
    a("s_lshl_b32 s56, s36, 19")
    a("v_add_u32 v2, s56, v26")
    for rt in range(1, 4):
        a(f"v_add_u32 v{2+rt}, {rt*131072}, v2")
    a("s_lshl_b32 s43, s38, 15")
    a("v_lshrrev_b32 v21, 3, v1")
    a("v_and_b32 v22, 7, v1")
    a("v_bfe_u32 v23, v1, 4, 1")
    a("v_lshlrev_b32 v23, 2, v23")
    a("v_xor_b32 v24, v22, v23")
    a("v_lshlrev_b32 v24, 4, v24")
    a("v_lshl_add_u32 v24, v21, 11, v24")
    a("s_lshl_b32 s56, s37, 7")
    a("v_add_u32 v6, s56, v24")
    a(f"v_add_u32 v7, {8*2048 - 1024}, v6")
    a("s_and_b32 s44, s38, 1")
    a("s_lshl_b32 s44, s44, 20")
    a(f"s_mul_i32 s46, s38, {D*2048}")
    a("v_lshrrev_b32 v22, 5, v1")
    a("v_bfe_u32 v23, v1, 2, 2")
    a("v_lshl_add_u32 v24, v22, 2, v23")
    a("v_lshlrev_b32 v24, 7, v24")
    a("v_bfe_u32 v25, v1, 4, 1")
    a("v_lshlrev_b32 v25, 1, v25")
    a("v_bfe_u32 v28, v1, 1, 1")
    a("v_or_b32 v25, v25, v28")
    a("v_and_b32 v28, 2, v23")
    a("v_lshlrev_b32 v28, 1, v28")
    a("v_xor_b32 v25, v25, v28")
    a("v_lshl_add_u32 v24, v25, 4, v24")
    a("v_and_b32 v28, 1, v1")
    a("v_lshl_add_u32 v24, v28, 3, v24")
    a("v_add_u32 v8, s46, v24")
    a("v_xor_b32 v9, 64, v8")
    a("s_waitcnt lgkmcnt(0)")
    srd(a, 24, 14, WS_SIZE)
    a("s_cmp_lt_u32 s38, 2")
    a("s_cselect_b32 s4, s4, s6")
    a("s_cselect_b32 s5, s5, s7")
    srd(a, 20, 4, 1024 * 1024 * 2)

    def loads(slot):
        ops = [[f"s_add_u32 m0, s46, {slot*2048}", "buffer_load_dwordx4 v6, s[20:23], s44 offen lds"],
               ["buffer_load_dwordx4 v7, s[20:23], s44 offen offset:1024 lds", "s_add_u32 s44, s44, 32768"]]
        for rt in range(4):
            r = fA(slot, rt)
            ops.append([f"buffer_load_dwordx4 a[{r}:{r+3}], v{2+rt}, s[24:27], s43 offen"])
        ops[-1].append("s_add_u32 s43, s43, 1024")
        return ops
    def breads(slot, s):
        out = []
        for ct in range(2):
            for sub in range(2):
                r = fB(s, ct) + 2 * sub
                out.append(f"ds_read_b64_tr_b16 v[{r}:{r+1}], v{8+ct} offset:{slot*2048 + sub*1024}")
        return out
    for slot in range(D):
        for op in loads(slot):
            for x in op:
                a(x)
    srd(a, 16, 8, 2048 * 1024 * 2)
    srd(a, 28, 12, 256)
    a("v_and_b32 v21, 31, v1")
    a("v_lshlrev_b32 v10, 3, v21")
    a("s_lshl_b32 s56, s36, 10")
    a("s_lshl_b32 s57, s38, 8")
    a("s_add_u32 s56, s56, s57")
    a(f"s_add_u32 s60, s56, {WS_G}")
    for i in range(128):
        a(f"v_mov_b32 v{ACC+i}, 0")
    stamp(a, opt, 1)
    lq = LdsQ(a)
    a(f"s_waitcnt vmcnt({6*(D-1)})")
    stamp(a, opt, 2)
    for r in breads(0, 0):
        lq.issue(r)

    def step(i, load, last=False, vm_after=None):
        slot, s = i % D, i % 2
        ms = []
        for rt in range(4):
            for ct in range(2):
                A = f"v[{fB(s, ct)}:{fB(s, ct)+3}]"
                B = f"a[{fA(slot, rt)}:{fA(slot, rt)+3}]"
                c = acc(rt, ct)
                ms.append(f"v_mfma_f32_32x32x16_bf16 v[{c}:{c+15}], {A}, {B}, v[{c}:{c+15}]")
        lops = loads(slot) if load else []
        for g, m in enumerate(ms):
            lq.need(Ins(m).srcAB)
            a(m)
            if g == 1 and not last:
                a(f"s_waitcnt vmcnt({vm_after})")
                for r in breads((i + 1) % D, 1 - s):
                    lq.issue(r)
            if load:
                if g == 2:
                    for x in lops[0]: a(x)
                if g == 3:
                    for x in lops[1]: a(x)
                if g in (3, 5, 7):
                    rt = (g - 1) // 2
                    if g == 3:
                        for x in lops[2]: a(x)
                    for x in lops[2 + rt]: a(x)
    nloop = (32 - D) // D
    a("s_mov_b32 s45, 0")
    a.label("K3_LOOP")
    q0 = list(lq.q)
    for i in range(D):
        step(i, True, vm_after=6 * (D - 2))
    assert lq.q == q0, (lq.q, q0)
    a("s_add_u32 s45, s45, 1")
    a(f"s_cmp_lt_u32 s45, {nloop}")
    a("s_cbranch_scc1 K3_LOOP")
    a("buffer_load_dwordx2 v[12:13], v10, s[24:27], s60 offen")
    for i in range(D):
        step(i, False, last=(i == D - 1), vm_after=max(0, 6 * (D - 2 - i)) + (1 if i < D - 1 else 0))
    stamp(a, opt, 3)
    a("s_barrier")
    a("s_lshl_b32 s56, s38, 13")
    a("v_add_u32 v2, s56, v26")
    a("v_add_u32 v3, 65536, v2")
    for rt in range(4):
        for ct in range(2):
            for q in range(4):
                c = acc(rt, ct) + 4 * q
                base = "v2" if rt < 2 else "v3"
                a(f"ds_write_b128 {base}, v[{c}:{c+3}] offset:{(rt % 2)*32768 + ct*4096 + q*1024}")
    a("s_waitcnt lgkmcnt(0)")
    a("s_barrier")
    a("s_lshl_b32 s56, s38, 15")
    a("v_add_u32 v2, s56, v26")
    for src in range(4):
        for ct in range(2):
            for q in range(4):
                c = ACC + src * 32 + ct * 16 + 4 * q
                a(f"ds_read_b128 v[{c}:{c+3}], v2 offset:{src*8192 + ct*4096 + q*1024}")
    a("v_and_b32 v21, 31, v1")
    a("v_lshrrev_b32 v22, 5, v1")
    a("v_lshlrev_b32 v22, 4, v22")
    a("v_lshl_add_u32 v14, v21, 11, v22")
    a("s_lshl_b32 s56, s36, 18")
    a("s_lshl_b32 s57, s38, 16")
    a("s_add_u32 s56, s56, s57")
    a("s_lshl_b32 s57, s37, 7")
    a("s_add_u32 s61, s56, s57")
    a("s_waitcnt vmcnt(0) lgkmcnt(0)")
    for i in range(32):
        a(f"v_add_f32 v{ACC+i}, v{ACC+i}, v{ACC+32+i}")
        a(f"v_add_f32 v{ACC+64+i}, v{ACC+64+i}, v{ACC+96+i}")
    for i in range(32):
        a(f"v_mul_f32 v{ACC+i}, v{ACC+i}, v12")
        a(f"v_fmac_f32 v{ACC+i}, v{ACC+64+i}, v13")
    for i in range(16):
        a(f"v_cvt_pk_bf16_f32 v{48+i}, v{ACC+2*i}, v{ACC+2*i+1}")
    for pr in range(4):
        b = 48 + 4 * pr
        a(f"v_permlane32_swap_b32 v{b}, v{b+2}")
        a(f"v_permlane32_swap_b32 v{b+1}, v{b+3}")
        a(f"buffer_store_dwordx4 v[{b}:{b+3}], v14, s[16:19], s61 offen offset:{pr*32}")
    stamp_out(a, opt, 1)
    a.label("K3_END")
    a("s_endpgm")
    return dict(name="k3_kernel", vgpr=256 + 16 * D, sgpr=96, accum=256, lds=131072, block=256, grid=256)

HEADER = open("gated_mix__linear_attn_block__linear_attn_block__prompt.s.ref").read().split("; Override launch")[0]

def build(opt):
    a = Asm()
    ks = [gen_k1(a, opt), gen_k3(a, opt)]
    out = HEADER
    for k in ks:
        out += f"; @launch kernel={k['name']} grid=({k['grid']},1,1) block=({k['block']},1,1) lds={k['lds']}\n"
    out += '.amdgcn_target "amdgcn-amd-amdhsa--gfx950"\n.text\n'
    out += a.text()
    out += '.section .rodata,"a"\n'
    for k in ks:
        out += kd(k["name"], k["vgpr"], k["sgpr"], k["accum"])
    return out

if __name__ == "__main__":
    opt = {}
    outp = sys.argv[1]
    for kv in sys.argv[2:]:
        k, v = kv.split("=")
        try:
            v = eval(v)
        except Exception:
            pass
        opt[k] = v
    open(outp, "w").write(build(opt))
```

```python
import re

REG_RE = re.compile(r"^(-?)(?:abs\()?([vas])(?:(\d+)|\[(\d+):(\d+)\])\)?$")
TRANS = ("v_exp_f32", "v_log_f32", "v_rcp_f32", "v_rsq_f32", "v_sqrt_f32", "v_sin_f32", "v_cos_f32")


def regs_of(tok):
    tok = tok.strip()
    if tok in ("vcc",):
        return {("s", 106), ("s", 107)}
    if tok == "vcc_lo":
        return {("s", 106)}
    if tok == "vcc_hi":
        return {("s", 107)}
    if tok == "exec":
        return {("s", 126), ("s", 127)}
    if tok == "exec_lo":
        return {("s", 126)}
    if tok == "exec_hi":
        return {("s", 127)}
    if tok == "m0":
        return {("s", 124)}
    m = REG_RE.match(tok)
    if not m:
        return set()
    f = m.group(2)
    if m.group(3) is not None:
        return {(f, int(m.group(3)))}
    return {(f, i) for i in range(int(m.group(4)), int(m.group(5)) + 1)}


class Ins:
    __slots__ = ("text", "op", "dst", "src", "kind", "srcC", "srcAB", "passes", "ws", "storedata", "dpp")

    def __init__(self, text):
        self.text = text
        t = text.split(";")[0].strip()
        parts = t.split(None, 1)
        self.op = op = parts[0]
        rest = parts[1] if len(parts) > 1 else ""
        ops = [o.strip() for o in re.split(r",(?![^\[]*\])", rest)] if rest else []
        mods = []
        if ops:
            sp = ops[-1].split()
            ops[-1] = sp[0] if sp else ""
            mods = sp[1:]
        self.dst, self.src = set(), set()
        self.srcC, self.srcAB = set(), set()
        self.storedata = set()
        self.passes = 0
        self.ws = 1
        self.dpp = any(m.startswith(("quad_perm", "row_", "wave_", "dpp")) for m in mods) or op.endswith("_dpp")
        base = re.sub(r"_(e32|e64|dpp|sdwa)$", "", op)
        if op.startswith("v_mfma"):
            self.kind = "mfma"
            self.dst = regs_of(ops[0])
            self.srcAB = regs_of(ops[1]) | regs_of(ops[2])
            self.srcC = regs_of(ops[3])
            self.src = self.srcAB | self.srcC
            self.passes = 8 if "32x32" in op else 4
        elif op.startswith("v_"):
            self.kind = "trans" if base in TRANS else "valu"
            if base.startswith("v_cmp"):
                self.dst = regs_of(ops[0])
                if base.startswith("v_cmpx"):
                    self.dst |= regs_of("exec")
                for o in ops[1:]:
                    self.src |= regs_of(o)
            elif base in ("v_swap_b32", "v_permlane32_swap_b32", "v_permlane16_swap_b32"):
                self.dst = regs_of(ops[0]) | regs_of(ops[1])
                self.src = set(self.dst)
            elif base in ("v_add_co_u32", "v_sub_co_u32", "v_addc_co_u32", "v_subb_co_u32", "v_mad_u64_u32", "v_div_scale_f32"):
                self.dst = regs_of(ops[0]) | regs_of(ops[1])
                for o in ops[2:]:
                    self.src |= regs_of(o)
            elif base == "v_nop":
                pass
            else:
                self.dst = regs_of(ops[0])
                for o in ops[1:]:
                    self.src |= regs_of(o)
                if base in ("v_fmac_f32", "v_dot2c_f32_bf16", "v_pk_fmac_f16", "v_writelane_b32") or self.dpp:
                    self.src |= self.dst
                if base == "v_cndmask_b32" and len(ops) == 3:
                    self.src |= regs_of("vcc")
        elif op.startswith(("buffer_", "global_")):
            self.kind = "vmem"
            lds = "lds" in mods or "_lds_" in op
            if "store" in op or ("atomic" in op):
                if op.startswith("buffer_"):
                    self.storedata = regs_of(ops[0])
                    for o in ops:
                        self.src |= regs_of(o)
                    if "atomic" in op and "sc0" in mods:
                        self.dst = regs_of(ops[0])
                else:
                    for o in ops:
                        self.src |= regs_of(o)
                    self.storedata = regs_of(ops[1])
                if not op.endswith(("x3", "x4")):
                    self.storedata = set()
            elif op.startswith(("buffer_wbl2", "buffer_inv")):
                pass
            elif lds:
                for o in ops:
                    self.src |= regs_of(o)
                self.src |= regs_of("m0")
                self.kind = "dma"
            else:
                self.dst = regs_of(ops[0])
                for o in ops[1:]:
                    self.src |= regs_of(o)
        elif op.startswith("ds_"):
            self.kind = "ds"
            if op.startswith(("ds_read", "ds_bpermute", "ds_permute", "ds_swizzle")):
                self.dst = regs_of(ops[0])
                for o in ops[1:]:
                    self.src |= regs_of(o)
            else:
                for o in ops:
                    self.src |= regs_of(o)
        elif op == "s_nop":
            self.kind = "nop"
            self.ws = int(ops[0], 0) + 1
        elif op.startswith("s_"):
            self.kind = "salu"
            if op.startswith(("s_cmp", "s_cbranch", "s_branch", "s_waitcnt", "s_barrier", "s_endpgm", "s_sleep", "s_setprio", "s_bitcmp")):
                for o in ops:
                    self.src |= regs_of(o)
            else:
                if ops:
                    self.dst = regs_of(ops[0])
                for o in ops[1:]:
                    self.src |= regs_of(o)
                if "saveexec" in op:
                    self.dst |= regs_of("exec")
        else:
            raise ValueError("unknown instr " + text)


def need_ws(p, c):
    n = 0
    pv = p.kind in ("valu", "trans")
    cv = c.kind in ("valu", "trans")
    vdst = {r for r in p.dst if r[0] in "va"}
    sdst = {r for r in p.dst if r[0] == "s"}
    cbase = re.sub(r"_(e32|e64|dpp|sdwa)$", "", c.op)
    if pv:
        if c.kind == "mfma" and vdst & c.src:
            n = max(n, 2)
        if c.kind == "mfma" and (sdst & regs_of("exec")):
            n = max(n, 4)
        if p.kind == "trans" and c.kind != "trans" and c.kind in ("valu", "mfma", "vmem", "ds", "dma") and vdst & c.src:
            n = max(n, 1 if c.kind != "mfma" else 2)
        if p.kind == "trans" and c.kind == "trans" and vdst & c.src:
            n = max(n, 1)
        if cv and c.dpp and vdst & c.src:
            n = max(n, 2)
        if cv and c.dpp and (sdst & regs_of("exec")):
            n = max(n, 5)
        if cbase.startswith("v_permlane") and vdst & c.src:
            n = max(n, 2)
        if cbase.startswith("v_permlane") and (sdst & regs_of("exec")):
            n = max(n, 4)
        if cbase in ("v_readlane_b32", "v_readfirstlane_b32") and vdst & c.src:
            n = max(n, 1)
        if cbase in ("v_readlane_b32", "v_readfirstlane_b32", "v_writelane_b32") and (sdst & regs_of("exec")):
            n = max(n, 4)
        if cbase in ("v_readlane_b32", "v_writelane_b32") and sdst & c.src:
            n = max(n, 4)
        if c.kind in ("vmem", "dma") and sdst & c.src:
            n = max(n, 5)
        if cv and sdst & c.src:
            n = max(n, 2)
        if c.kind == "salu" and sdst & c.src:
            n = max(n, 2)
        if c.op.startswith("s_cbranch_vcc") and (sdst & regs_of("vcc")):
            n = max(n, 5)
        if c.op.startswith("s_cbranch_exec") and (sdst & regs_of("exec")):
            n = max(n, 5)
        if cbase == "v_div_fmas_f32" and (sdst & regs_of("vcc")):
            n = max(n, 4)
        if p.op.startswith("v_dot") and (vdst & (c.src | c.dst)) and not (c.op == p.op and not (vdst & (c.src - c.dst))):
            n = max(n, 3)
    if p.kind == "mfma":
        big = p.passes == 8
        if c.kind == "mfma":
            if p.dst & c.srcAB:
                n = max(n, 12 if big else 8)
            if p.dst & c.srcC and not (p.dst == c.srcC and p.passes == c.passes):
                n = max(n, 10 if big else 6)
            if p.dst & c.dst and not (p.dst == c.srcC and p.passes == c.passes):
                n = max(n, 12 if big else 8)
        elif c.kind in ("valu", "trans", "vmem", "ds", "dma"):
            if p.dst & (c.src | c.dst):
                n = max(n, 12 if big else 8)
            if cv and p.srcC & c.dst:
                n = max(n, 7 if big else 3)
    if p.kind == "salu" and (regs_of("m0") & p.dst) and c.kind == "dma":
        n = max(n, 1)
    if p.kind == "vmem" and p.storedata and (p.storedata & c.dst):
        n = max(n, 2 if cv else 1)
    return n


class Asm:
    def __init__(self):
        self.items = []
        self.nops_added = 0

    def raw(self, s):
        self.items.append(s)

    def label(self, name):
        self.items.append(name + ":")

    def __call__(self, text):
        for line in text.strip().split("\n"):
            line = line.strip()
            if not line or line.startswith(";"):
                continue
            if line.endswith(":"):
                self.items.append(line)
                continue
            ins = Ins(line)
            dist = 0
            pad = 0
            for prev in reversed(self.items):
                if isinstance(prev, str):
                    if prev.startswith("."):
                        break
                    continue
                nw = need_ws(prev, ins)
                if nw > dist:
                    pad = max(pad, nw - dist)
                dist += prev.ws
                if dist >= 20:
                    break
            while pad > 0:
                k = min(pad, 16)
                self.items.append(Ins(f"s_nop {k - 1}"))
                self.nops_added += 1
                pad -= k
            self.items.append(ins)

    def check_edge(self, from_idx, to_idx):
        pre = [x for x in self.items[max(0, from_idx - 40):from_idx + 1] if not isinstance(x, str)]
        post = [x for x in self.items[to_idx:to_idx + 40] if not isinstance(x, str)]
        d0 = 0
        for c in post:
            dist = d0
            for p in reversed(pre):
                nw = need_ws(p, c)
                if nw > dist:
                    raise RuntimeError(f"hazard across jump: {p.text} -> {c.text} need {nw} have {dist}")
                dist += p.ws
                if dist >= 20:
                    break
            d0 += c.ws
            if d0 >= 20:
                break

    def check_branches(self):
        labels = {x[:-1]: i for i, x in enumerate(self.items) if isinstance(x, str) and x.endswith(":")}
        for i, x in enumerate(self.items):
            if not isinstance(x, str) and x.op.startswith(("s_cbranch", "s_branch")):
                tgt = x.text.split(";")[0].split()[-1]
                self.check_edge(i, labels[tgt])

    def text(self):
        self.check_branches()
        out = []
        for x in self.items:
            if isinstance(x, str):
                out.append(x)
            else:
                out.append("    " + x.text)
        return "\n".join(out) + "\n"
```

```python
import sys, struct
from asmlib import Asm, Ins, regs_of

def f2u(x):
    return struct.unpack("<I", struct.pack("<f", x))[0]

LOG2E = 1.4426950408889634
EPS = 1e-6

WS_OP = 0
WS_SLOT = 8 << 20
WS_G = 12 << 20
WS_DIAG = (12 << 20) + 16384
WS_SIZE = (12 << 20) + 16384 + 2*256*8*128

class LdsQ:
    def __init__(self, a):
        self.a = a
        self.q = []
    def issue(self, text):
        self.a(text)
        self.q.append(Ins(text).dst)
    def need(self, regs):
        idx = -1
        for i, d in enumerate(self.q):
            if d & regs:
                idx = i
        if idx >= 0:
            n = len(self.q) - idx - 1
            n = min(n, 15)
            self.a(f"s_waitcnt lgkmcnt({n})")
            self.q = self.q[len(self.q) - n:] if n else []
    def drained(self):
        self.q = []

def kd(name, vgpr, sgpr, accum):
    return f""".p2align 6
.amdhsa_kernel {name}
  .amdhsa_next_free_vgpr {vgpr}
  .amdhsa_next_free_sgpr {sgpr}
  .amdhsa_accum_offset {accum}
  .amdhsa_group_segment_fixed_size 0
  .amdhsa_kernarg_size 80
  .amdhsa_user_sgpr_count 2
  .amdhsa_user_sgpr_kernarg_segment_ptr 1
  .amdhsa_system_sgpr_workgroup_id_x 1
  .amdhsa_float_denorm_mode_32 3
.end_amdhsa_kernel
"""

def srd(a, d, lo, size):
    a(f"s_mov_b32 s{d}, s{lo}")
    a(f"s_and_b32 s{d+1}, s{lo+1}, 0xffff")
    a(f"s_mov_b32 s{d+2}, {size}")
    a(f"s_mov_b32 s{d+3}, 0x00020000")

def stamp(a, opt, slot, sreg=90, real=False):
    if not opt.get("stamps"):
        return
    if opt.get("rstamps"):
        if real:
            if slot not in (30, 31):
                return
        else:
            real = True
    a(f"{'s_memrealtime' if real else 's_memtime'} s[{sreg}:{sreg + 1}]")
    a("s_waitcnt lgkmcnt(0)")
    a(f"v_writelane_b32 v31, s{sreg}, {slot}")

def stamp_out(a, opt, kidx, srd_ws=24):
    if not opt.get("stamps"):
        return
    a("s_waitcnt vmcnt(0)")
    stamp(a, opt, 29)
    stamp(a, opt, 31, real=True)
    a("s_getreg_b32 s90, hwreg(HW_REG_XCC_ID)")
    a("v_writelane_b32 v31, s90, 28")
    a("s_getreg_b32 s90, hwreg(HW_REG_HW_ID)")
    a("v_writelane_b32 v31, s90, 27")
    a("s_lshl_b32 s90, s2, 10")
    a("s_lshl_b32 s91, s38, 8")
    a("s_add_u32 s90, s90, s91")
    a(f"s_add_u32 s90, s90, {WS_DIAG + kidx * 256 * 1024}")
    a("v_lshlrev_b32 v27, 2, v1")
    a(f"buffer_store_dword v31, v27, s[{srd_ws}:{srd_ws+3}], s90 offen")

def gen_k1(a, opt):
    XB = [0, 32768]
    WB = [65536, 65536 + 24576]
    EX = 114688
    ACC = 64
    def accQ(rt): return ACC + rt * 48
    def accK(rt): return ACC + rt * 48 + 16
    def accV(rt): return ACC + rt * 48 + 32
    def fX(s, rt): return 28 * s + 4 * rt
    def fW(s, seg): return 28 * s + 16 + 4 * seg
    GX = 56
    a.raw(".globl k1_kernel\n.p2align 8\n.type k1_kernel,@function")
    a.label("k1_kernel")
    a("s_cmp_ge_u32 s2, 256")
    a("s_cbranch_scc1 K1_END")
    a("s_load_dwordx4 s[4:7], s[0:1], 0")
    a("s_load_dwordx2 s[8:9], s[0:1], 32")
    a("s_load_dwordx2 s[10:11], s[0:1], 48")
    a("s_load_dwordx4 s[12:15], s[0:1], 64")
    if opt.get("stamps"):
        a("v_mov_b32 v31, 0")
    stamp(a, opt, 30, real=True)
    stamp(a, opt, 0)
    a("v_lshrrev_b32 v21, 6, v0")
    a("v_and_b32 v1, 63, v0")
    a("v_readfirstlane_b32 s38, v21")
    a("s_and_b32 s56, s2, 7")
    a("s_lshr_b32 s57, s2, 3")
    if opt.get("k1map", "A") == "A":
        a("s_and_b32 s36, s57, 7")
        a("s_lshr_b32 s58, s57, 3")
        a("s_lshl_b32 s37, s56, 2")
        a("s_add_u32 s37, s37, s58")
    else:
        a("s_and_b32 s36, s56, 1")
        a("s_lshl_b32 s36, s36, 2")
        a("s_and_b32 s58, s57, 3")
        a("s_add_u32 s36, s36, s58")
        a("s_lshr_b32 s37, s56, 1")
        a("s_lshl_b32 s37, s37, 3")
        a("s_lshr_b32 s58, s57, 2")
        a("s_add_u32 s37, s37, s58")
    a("s_and_b32 s39, s38, 1")
    a("s_lshr_b32 s40, s38, 1")
    a("s_and_b32 s41, s37, 15")
    a("s_lshr_b32 s42, s37, 4")
    a("v_lshrrev_b32 v21, 3, v1")
    a("v_and_b32 v22, 7, v1")
    a("v_lshrrev_b32 v23, 4, v1")
    a("v_xor_b32 v24, v22, v23")
    a("v_lshlrev_b32 v24, 4, v24")
    a("v_lshl_add_u32 v24, v21, 11, v24")
    a("s_lshl_b32 s56, s36, 19")
    a("s_lshl_b32 s57, s38, 17")
    a("s_add_u32 s56, s56, s57")
    a("v_add_u32 v2, s56, v24")
    a("v_xor_b32 v25, 64, v2")
    for i in range(1, 8):
        src = "v2" if i % 2 == 0 else "v25"
        a(f"v_add_u32 v{2+i}, {i*16384 - (i % 4) * 1024}, {src}")
    a("v_and_b32 v23, 1, v23")
    a("v_lshlrev_b32 v23, 2, v23")
    a("v_xor_b32 v24, v22, v23")
    a("v_lshlrev_b32 v24, 4, v24")
    a("v_mul_u32_u24 v25, 6144, v21")
    a("v_add_u32 v24, v24, v25")
    a("s_mul_i32 s56, s38, 6")
    a("s_lshl_b32 s59, s41, 7")
    for i in range(6):
        a(f"s_add_u32 s57, s56, {i}")
        a("s_lshr_b32 s58, s57, 3")
        a("s_and_b32 s57, s57, 7")
        a(f"s_mul_i32 s57, s57, {8*6144}")
        a("s_lshl_b32 s58, s58, 11")
        a("s_add_u32 s57, s57, s58")
        a("s_add_u32 s57, s57, s59")
        if i % 4:
            a(f"s_sub_u32 s57, s57, {(i % 4) * 1024}")
        a(f"v_add_u32 v{10+i}, s57, v24")
    a("s_lshl_b32 s56, s38, 13")
    a("s_mul_i32 s57, s38, 6144")
    for b in range(2):
        a(f"s_add_u32 s{48+4*b}, s56, {XB[b]}")
        a(f"s_add_u32 s{49+4*b}, s56, {XB[b] + 4096}")
        a(f"s_add_u32 s{50+4*b}, s57, {WB[b]}")
        a(f"s_add_u32 s{51+4*b}, s57, {WB[b] + 4096}")
    a("s_waitcnt lgkmcnt(0)")
    srd(a, 16, 4, 2048 * 1024 * 2)
    a("s_cmp_eq_u32 s42, 0")
    a("s_cselect_b32 s6, s6, s8")
    a("s_cselect_b32 s7, s7, s9")
    srd(a, 20, 6, 1024 * 3072 * 2)
    a("s_mov_b32 s43, 0")
    a("s_mov_b32 s44, 0")
    stamp(a, opt, 10)

    def dma_ops(b):
        ops = []
        for i in range(8):
            pre = [f"s_mov_b32 m0, s{48 + 4*b + i // 4}"] if i % 4 == 0 else []
            off = f" offset:{(i % 4) * 1024}" if i % 4 else ""
            ops.append(pre + [f"buffer_load_dwordx4 v{2+i}, s[16:19], s43 offen{off} lds"])
        for i in range(6):
            pre = [f"s_mov_b32 m0, s{50 + 4*b + i // 4}"] if i % 4 == 0 else []
            off = f" offset:{(i % 4) * 1024}" if i % 4 else ""
            ops.append(pre + [f"buffer_load_dwordx4 v{10+i}, s[20:23], s44 offen{off} lds"])
        ops[7].append("s_add_u32 s43, s43, 128")
        ops[13].append(f"s_add_u32 s44, s44, {64*6144}")
        return ops
    for b in range(2):
        for op in dma_ops(b):
            for x in op:
                a(x)
    stamp(a, opt, 11)
    srd(a, 24, 14, WS_SIZE)
    srd(a, 28, 12, 256)
    srd(a, 32, 10, 2048)
    a("v_lshlrev_b32 v26, 4, v1")
    a("s_lshl_b32 s56, s2, 14")
    a("s_lshl_b32 s57, s38, 12")
    a("s_add_u32 s60, s56, s57")
    a(f"buffer_load_dwordx4 a[{GX}:{GX+3}], v26, s[16:19], s60 offen")
    a(f"buffer_load_dwordx4 a[{GX+4}:{GX+7}], v26, s[16:19], s60 offen offset:1024")
    a(f"buffer_load_dwordx4 a[{GX+8}:{GX+11}], v26, s[16:19], s60 offen offset:2048")
    a(f"buffer_load_dwordx4 a[{GX+12}:{GX+15}], v26, s[16:19], s60 offen offset:3072")
    a(f"buffer_load_dwordx4 a[{GX+16}:{GX+19}], v26, s[32:35], 0 offen")
    a(f"buffer_load_dwordx4 a[{GX+20}:{GX+23}], v26, s[32:35], 0 offen offset:1024")
    a("s_lshl_b32 s56, s37, 17")
    a("s_lshl_b32 s57, s38, 12")
    a("s_add_u32 s61, s56, s57")
    a(f"s_add_u32 s61, s61, {WS_SLOT}")
    a("s_lshl_b32 s57, s36, 14")
    a("s_add_u32 s62, s61, s57")
    a("v_lshlrev_b32 v27, 2, v1")
    for i in range(4):
        a(f"v_mov_b32 v{32+i}, -1")
    a("buffer_store_dwordx4 v[32:35], v26, s[24:27], s62 offen sc1")
    a("buffer_store_dwordx4 v[32:35], v26, s[24:27], s62 offen offset:1024 sc1")
    a("buffer_store_dword v32, v27, s[24:27], s62 offen offset:2048 sc1")
    NPOST = 14 + 6 + 3
    stamp(a, opt, 12)
    a("v_and_b32 v21, 31, v1")
    a("v_lshrrev_b32 v22, 5, v1")
    a("v_bfe_u32 v23, v1, 1, 3")
    a("v_xor_b32 v23, v23, v22")
    a("v_lshlrev_b32 v23, 4, v23")
    a("v_lshl_add_u32 v23, v21, 7, v23")
    a("s_lshl_b32 s56, s39, 14")
    a("v_add_u32 v16, s56, v23")
    for ks in range(1, 4):
        a(f"v_xor_b32 v{16+ks}, {32*ks}, v16")
    a("v_bfe_u32 v23, v1, 2, 2")
    a("v_lshl_add_u32 v24, v22, 3, v23")
    a("v_lshlrev_b32 v24, 7, v24")
    a("v_bfe_u32 v25, v1, 4, 1")
    a("v_lshlrev_b32 v25, 1, v25")
    a("v_bfe_u32 v28, v1, 1, 1")
    a("v_or_b32 v25, v25, v28")
    a("s_lshl_b32 s56, s40, 2")
    a("v_or_b32 v25, s56, v25")
    a("v_and_b32 v28, 2, v23")
    a("v_lshlrev_b32 v28, 1, v28")
    a("v_xor_b32 v25, v25, v28")
    a("v_lshl_add_u32 v24, v25, 4, v24")
    a("v_and_b32 v28, 1, v1")
    a("v_lshl_add_u32 v24, v28, 3, v24")
    a(f"v_add_u32 v20, {WB[0]}, v24")
    for rt in range(4):
        for r in range(16):
            a(f"v_mov_b32 v{accQ(rt)+r}, 0x{f2u(EPS):08x}" if r == 0 and rt == 0 else f"v_mov_b32 v{accQ(rt)+r}, v{accQ(0)}")
        for r in range(16):
            a(f"v_mov_b32 v{accK(rt)+r}, v{accQ(0)}")
        for r in range(16):
            a(f"v_mov_b32 v{accV(rt)+r}, 0")
    stamp(a, opt, 1)
    lq = LdsQ(a)

    def read_ops(b, ks, s):
        ops = []
        def w(seg, sub):
            r = fW(s, seg) + 2 * sub
            return f"ds_read_b64_tr_b16 a[{r}:{r+1}], v20 offset:{b*24576 + seg*8192 + ks*2048 + sub*512}"
        def x(rt):
            r = fX(s, rt)
            return f"ds_read_b128 a[{r}:{r+3}], v{16+ks} offset:{b*32768 + rt*4096}"
        return [w(0, 0), w(0, 1), x(0), w(1, 0), w(1, 1), w(2, 0), w(2, 1), x(1), x(2), x(3)]

    def mfmas(s):
        out = []
        for rt in range(4):
            X = f"a[{fX(s, rt)}:{fX(s, rt)+3}]"
            for seg, acc in enumerate((accQ(rt), accK(rt), accV(rt))):
                W = f"a[{fW(s, seg)}:{fW(s, seg)+3}]"
                A, B = (W, X) if seg == 0 else (X, W)
                out.append(f"v_mfma_f32_32x32x16_bf16 v[{acc}:{acc+15}], {A}, {B}, v[{acc}:{acc+15}]")
        return out

    def step(s, reads, extra):
        ms = mfmas(s)
        if opt.get("exp16"):
            import re
            def conv(m, k):
                mm = re.match(r"v_mfma_f32_32x32x16_bf16 v\[(\d+):\d+\], (\S+), (\S+), ", m)
                c = int(mm.group(1)) + 4 * k + 8 * s
                return f"v_mfma_f32_16x16x32_bf16 v[{c}:{c+3}], {mm.group(2)}, {mm.group(3)}, v[{c}:{c+3}]"
            seq = [conv(m, 0) for m in ms] + [conv(m, 1) for m in ms]
            for g in range(12):
                for m in seq[2*g:2*g+2]:
                    lq.need(Ins(m).srcAB)
                    a(m)
                    if m is seq[2*g] and g < len(reads):
                        lq.issue(reads[g])
                for x in extra.get(g, []):
                    a(x)
            return
        for g, m in enumerate(ms):
            lq.need(Ins(m).srcAB)
            a(m)
            if g < len(reads) and not opt.get("exp_noread"):
                lq.issue(reads[g])
            for x in extra.get(g, []):
                if opt.get("exp_nodma") and "lds" in x:
                    continue
                a(x)

    a(f"s_waitcnt vmcnt({NPOST})")
    a("s_barrier")
    stamp(a, opt, 2)
    stamp(a, opt, 25, real=True)
    for r in read_ops(0, 0, 0):
        lq.issue(r)
    step(0, read_ops(0, 1, 1), {})
    step(1, read_ops(0, 2, 0), {})
    step(0, read_ops(0, 3, 1), {})

    dma_gaps = opt.get("dma_gaps", [(0, g) for g in (1, 3, 5, 7, 9, 10, 11)] + [(1, g) for g in (1, 3, 5, 7, 9, 10, 11)])
    def block(b, dma, pre=None):
        a("s_waitcnt vmcnt(0) lgkmcnt(0)")
        lq.drained()
        a("s_barrier")
        ex = [{}, {}, {}, {}]
        if dma:
            for op, (st, g) in zip(dma_ops(b), dma_gaps):
                ex[st].setdefault(g, []).extend(op)
        if pre:
            ex[0].setdefault(0, []).extend(pre)
        step(1, read_ops(1 - b, 0, 0), ex[0])
        step(0, read_ops(1 - b, 1, 1), ex[1])
        step(1, read_ops(1 - b, 2, 0), ex[2])
        step(0, read_ops(1 - b, 3, 1), ex[3])

    a("s_mov_b32 s45, 0")
    a("s_lshl_b32 s63, s37, 3")
    a("v_mov_b32 v28, 1")
    a("v_mov_b32 v29, 0")
    a.label("K1_LOOP")
    pre = ["s_or_b32 s56, s45, s38",
           "s_cbranch_scc1 K1_NOATOM",
           "s_mov_b64 exec, 1",
           "buffer_atomic_add v28, v29, s[28:31], s63 offen sc1",
           "s_mov_b64 exec, -1",
           "K1_NOATOM:"]
    block(0, True, pre)
    block(1, True)
    a("s_add_u32 s45, s45, 1")
    a("s_cmp_lt_u32 s45, 7")
    a("s_cbranch_scc1 K1_LOOP")
    block(0, False, ["buffer_load_dword v30, v29, s[28:31], s63 offen sc1"])
    step(1, [], {})
    stamp(a, opt, 3)
    stamp(a, opt, 26, real=True)

    a(f"s_mov_b32 s64, 0x{f2u(LOG2E):08x}")
    a(f"v_mov_b32 v21, 0x{f2u(-EPS * LOG2E):08x}")
    for i in range(4):
        a(f"v_mov_b32 v{22+i}, 0x3f803f80")
    KV, ZT = 32, 48
    def phi(base, t0):
        for r in range(0, 16, 4):
            for i in range(4):
                a(f"v_fma_f32 v{t0+i}, v{base+r+i}, s64, v21")
            for i in range(4):
                a(f"v_exp_f32_e64 v{t0+i}, v{t0+i} clamp")
            for i in range(4):
                a(f"v_max_f32 v{base+r+i}, 0x{f2u(EPS):08x}, v{base+r+i}")
            for i in range(4):
                a(f"v_add_f32 v{base+r+i}, v{base+r+i}, v{t0+i}")
            a(f"v_cvt_pk_bf16_f32 v{base+r//2}, v{base+r}, v{base+r+1}")
            a(f"v_cvt_pk_bf16_f32 v{base+r//2+1}, v{base+r+2}, v{base+r+3}")
    T0 = 2
    for rt in range(4):
        phi(accK(rt), T0)
        for r in range(0, 16, 2):
            a(f"v_cvt_pk_bf16_f32 v{accV(rt)+r//2}, v{accV(rt)+r}, v{accV(rt)+r+1}")
        for p in range(2):
            c_kv = "0" if rt == 0 and p == 0 else f"v[{KV}:{KV+15}]"
            c_z = "0" if rt == 0 and p == 0 else f"v[{ZT}:{ZT+15}]"
            k0, v0_ = accK(rt) + 4 * p, accV(rt) + 4 * p
            a(f"v_mfma_f32_32x32x16_bf16 v[{KV}:{KV+15}], v[{k0}:{k0+3}], v[{v0_}:{v0_+3}], {c_kv}")
            a(f"v_mfma_f32_32x32x16_bf16 v[{ZT}:{ZT+15}], v[22:25], v[{k0}:{k0+3}], {c_z}")
    a("s_lshl_b32 s56, s38, 12")
    a(f"s_add_u32 s56, s56, {EX}")
    a("v_add_u32 v6, s56, v26")
    a("v_xor_b32 v7, 4096, v6")
    a("v_add_u32 v8, s56, v27")
    a("v_xor_b32 v9, 4096, v8")
    a("s_cmp_eq_u32 s39, 0")
    a("s_cbranch_scc1 K1_EXW0")
    a(f"ds_write_b128 v6, v[{KV}:{KV+3}]")
    a(f"ds_write_b128 v6, v[{KV+4}:{KV+7}] offset:1024")
    a("s_waitcnt lgkmcnt(0)")
    for i in range(8):
        a(f"v_mov_b32 v{KV+i}, v{KV+8+i}")
    a("s_branch K1_EXW1")
    a.label("K1_EXW0")
    a("s_nop 7")
    a(f"ds_write_b128 v6, v[{KV+8}:{KV+11}]")
    a(f"ds_write_b128 v6, v[{KV+12}:{KV+15}] offset:1024")
    a.label("K1_EXW1")
    a(f"ds_write_b32 v8, v{ZT} offset:2048")
    a("s_waitcnt lgkmcnt(0)")
    a("s_barrier")
    a(f"ds_read_b128 v[{KV+8}:{KV+11}], v7")
    a(f"ds_read_b128 v[{KV+12}:{KV+15}], v7 offset:1024")
    a(f"ds_read_b32 v{ZT+1}, v9 offset:2048")
    a("s_waitcnt lgkmcnt(0)")
    for i in range(8):
        a(f"v_add_f32 v{KV+i}, v{KV+i}, v{KV+8+i}")
    a(f"v_add_f32 v{ZT}, v{ZT}, v{ZT+1}")
    for i in range(8):
        a(f"v_min_u32 v{KV+i}, -2, v{KV+i}")
    a(f"v_min_u32 v{ZT}, -2, v{ZT}")
    a(f"buffer_store_dwordx4 v[{KV}:{KV+3}], v26, s[24:27], s62 offen sc1")
    a(f"buffer_store_dwordx4 v[{KV+4}:{KV+7}], v26, s[24:27], s62 offen offset:1024 sc1")
    a(f"buffer_store_dword v{ZT}, v27, s[24:27], s62 offen offset:2048 sc1")
    stamp(a, opt, 4)
    for rt in range(4):
        phi(accQ(rt), T0)
    G = accK(0)
    for i in range(24):
        a(f"v_accvgpr_read_b32 v{G+i}, a{GX+i}")
    a("v_mov_b32 v10, 0")
    a("v_mov_b32 v11, 0")
    for i in range(8):
        a(f"v_dot2_f32_bf16 v10, v{G+i}, v{G+16+i}, v10")
        a(f"v_dot2_f32_bf16 v11, v{G+8+i}, v{G+16+i}, v11")
    for r in (10, 11):
        pass
    for ctrl in ("quad_perm:[1,0,3,2]", "quad_perm:[2,3,0,1]", "row_half_mirror", "row_mirror"):
        for r in (10, 11):
            a(f"v_add_f32_dpp v{r}, v{r}, v{r} {ctrl} row_mask:0xf bank_mask:0xf")
    for r in (10, 11):
        for k, ln in enumerate((0, 16, 32, 48)):
            a(f"v_readlane_b32 s{66 + (r-10)*4 + k}, v{r}, {ln}")
    a("v_mov_b32 v10, s66")
    a("v_add_f32 v10, s67, v10")
    a("v_add_f32 v10, s68, v10")
    a("v_add_f32 v10, s69, v10")
    a("v_mov_b32 v11, s70")
    a("v_add_f32 v11, s71, v11")
    a("v_add_f32 v11, s72, v11")
    a("v_add_f32 v11, s73, v11")
    a("v_cmp_eq_u32 vcc, 0, v1")
    a("v_cndmask_b32 v10, v11, v10, vcc")
    a("v_cvt_pk_bf16_f32 v10, v10, v10")
    a("v_and_b32 v10, 0xffff0000, v10")
    a(f"v_mul_f32 v10, 0x{f2u(-LOG2E):08x}, v10")
    a("v_exp_f32 v10, v10")
    a("v_add_f32 v10, 1.0, v10")
    a("v_rcp_f32 v10, v10")
    a("v_cvt_pk_bf16_f32 v10, v10, v10")
    a("v_and_b32 v10, 0xffff0000, v10")
    a("v_sub_f32 v11, 1.0, v10")
    a("v_cvt_pk_bf16_f32 v11, v11, v11")
    a("v_and_b32 v11, 0xffff0000, v11")
    a("v_lshlrev_b32 v12, 3, v1")
    a("s_lshr_b32 s56, s60, 8")
    a(f"s_add_u32 s56, s56, {WS_G}")
    a("s_mov_b64 exec, 3")
    a("buffer_store_dwordx2 v[10:11], v12, s[24:27], s56 offen")
    a("s_mov_b64 exec, -1")
    stamp(a, opt, 5)
    a.label("K1_HS")
    a("s_waitcnt vmcnt(0)")
    a("v_readfirstlane_b32 s56, v30")
    a("s_cmp_eq_u32 s56, 8")
    a("s_cbranch_scc1 K1_HSOK")
    a("s_sleep 2")
    a("buffer_load_dword v30, v29, s[28:31], s63 offen sc1")
    a("s_branch K1_HS")
    a.label("K1_HSOK")
    PB = [accK(0), accK(0) + 12, accK(1), accK(1) + 12, accK(2), accK(2) + 12, accK(3), accK(3) + 12]
    a.label("K1_GATHER")
    for p in range(8):
        a(f"s_add_u32 s56, s61, {p * 16384}")
        a(f"buffer_load_dwordx4 v[{PB[p]}:{PB[p]+3}], v26, s[24:27], s56 offen sc1")
        a(f"buffer_load_dwordx4 v[{PB[p]+4}:{PB[p]+7}], v26, s[24:27], s56 offen offset:1024 sc1")
        a(f"buffer_load_dword v{PB[p]+8}, v27, s[24:27], s56 offen offset:2048 sc1")
    for p in range(8):
        a(f"s_waitcnt vmcnt({3 * (7 - p)})")
        b = PB[p]
        a(f"v_max3_u32 v10, v{b}, v{b+1}, v{b+2}" if p == 0 else f"v_max3_u32 v10, v10, v{b}, v{b+1}")
        if p == 0:
            rest = list(range(3, 9))
        else:
            rest = list(range(2, 9))
        while rest:
            if len(rest) >= 2:
                a(f"v_max3_u32 v10, v10, v{b+rest[0]}, v{b+rest[1]}"); rest = rest[2:]
            else:
                a(f"v_max_u32 v10, v10, v{b+rest[0]}"); rest = rest[1:]
        if p == 0:
            for i in range(9):
                a(f"v_mov_b32 v{KV+i}, v{b+i}")
        else:
            for i in range(9):
                a(f"v_add_f32 v{KV+i}, v{KV+i}, v{b+i}")
    a("v_cmp_eq_u32 vcc, -1, v10")
    a("s_cbranch_vccz K1_GOK")
    a("s_sleep 4")
    a("s_branch K1_GATHER")
    a.label("K1_GOK")
    stamp(a, opt, 6)
    for i in range(4):
        a(f"v_cvt_pk_bf16_f32 v{KV+12+i}, v{KV+2*i}, v{KV+2*i+1}")
    a(f"v_cvt_pk_bf16_f32 v{KV+8}, v{KV+8}, v{KV+8}")
    a("s_lshl_b32 s56, s38, 11")
    a(f"s_add_u32 s56, s56, {EX + 16384}")
    a("v_add_u32 v6, s56, v26")
    a(f"ds_write_b128 v6, v[{KV+12}:{KV+15}]")
    a("v_bfe_u32 v7, v1, 4, 1")
    a("v_lshlrev_b32 v7, 5, v7")
    a("v_bfe_u32 v8, v1, 2, 1")
    a("v_lshl_add_u32 v7, v8, 4, v7")
    a("v_bfe_u32 v8, v1, 3, 1")
    a("v_lshl_add_u32 v7, v8, 3, v7")
    a("v_and_b32 v8, 3, v1")
    a("v_lshl_add_u32 v7, v8, 1, v7")
    a("v_add_u32 v7, s56, v7")
    a(f"ds_write_b16 v7, v{KV+8} offset:1024")
    a("v_lshrrev_b32 v8, 5, v1")
    a("v_lshlrev_b32 v8, 4, v8")
    a("v_add_u32 v8, s56, v8")
    a("s_and_b32 s57, s56, 0xfffff7ff")
    a("v_add_u32 v9, s57, v26")
    a("s_waitcnt lgkmcnt(0)")
    a("s_barrier")
    KVOP, ZOP = 32, 40
    a(f"ds_read_b128 v[{KVOP}:{KVOP+3}], v9")
    a(f"ds_read_b128 v[{KVOP+4}:{KVOP+7}], v9 offset:2048")
    a(f"ds_read_b128 v[{ZOP}:{ZOP+3}], v8 offset:1024")
    a(f"ds_read_b128 v[{ZOP+4}:{ZOP+7}], v8 offset:1056")
    a("s_lshl_b32 s56, s36, 3")
    a("s_lshl_b32 s57, s39, 2")
    a("s_add_u32 s56, s56, s57")
    a("s_lshl_b32 s56, s56, 17")
    a("s_lshl_b32 s57, s37, 1")
    a("s_add_u32 s57, s57, s40")
    a("s_lshl_b32 s57, s57, 11")
    a("s_add_u32 s65, s56, s57")
    a("s_waitcnt lgkmcnt(0)")
    for rt in range(4):
        N, D, Q = accK(rt), accV(rt), accQ(rt)
        a(f"v_mfma_f32_32x32x16_bf16 v[{D}:{D+15}], v[{ZOP}:{ZOP+3}], v[{Q}:{Q+3}], 0")
        a(f"v_mfma_f32_32x32x16_bf16 v[{D}:{D+15}], v[{ZOP+4}:{ZOP+7}], v[{Q+4}:{Q+7}], v[{D}:{D+15}]")
        a(f"v_mfma_f32_32x32x16_bf16 v[{N}:{N+15}], v[{KVOP}:{KVOP+3}], v[{Q}:{Q+3}], 0")
        a(f"v_mfma_f32_32x32x16_bf16 v[{N}:{N+15}], v[{KVOP+4}:{KVOP+7}], v[{Q+4}:{Q+7}], v[{N}:{N+15}]")
    for rt in range(4):
        N, D = accK(rt), accV(rt)
        a(f"v_add_f32 v{D}, 0x{f2u(EPS):08x}, v{D}")
        a(f"v_rcp_f32 v{D}, v{D}")
        for r in range(16):
            a(f"v_mul_f32 v{N+r}, v{N+r}, v{D}")
        for r in range(0, 16, 2):
            a(f"v_cvt_pk_bf16_f32 v{D+4+r//2}, v{N+r}, v{N+r+1}")
        a(f"buffer_store_dwordx4 v[{D+4}:{D+7}], v26, s[24:27], s65 offen")
        a(f"buffer_store_dwordx4 v[{D+8}:{D+11}], v26, s[24:27], s65 offen offset:1024")
        if rt < 3:
            a("s_add_u32 s65, s65, 131072")
    stamp_out(a, opt, 0)
    a.label("K1_END")
    a("s_endpgm")
    return dict(name="k1_kernel", vgpr=256 + 80, sgpr=96, accum=256, lds=EX + 16384 + 8192, block=256, grid=256)

def gen_k3(a, opt):
    D = opt.get("k3_depth", 8)
    ACC = 128
    def acc(rt, ct): return ACC + (rt * 2 + ct) * 16
    def fA(slot, rt): return slot * 16 + rt * 4
    def fB(s, ct): return 32 + s * 8 + ct * 4
    a.raw(".globl k3_kernel\n.p2align 8\n.type k3_kernel,@function")
    a.label("k3_kernel")
    a("s_cmp_ge_u32 s2, 256")
    a("s_cbranch_scc1 K3_END")
    a("s_load_dwordx2 s[4:5], s[0:1], 16")
    a("s_load_dwordx2 s[6:7], s[0:1], 40")
    a("s_load_dwordx2 s[8:9], s[0:1], 56")
    a("s_load_dwordx4 s[12:15], s[0:1], 64")
    if opt.get("stamps"):
        a("v_mov_b32 v31, 0")
    stamp(a, opt, 30, real=True)
    stamp(a, opt, 0)
    a("v_lshrrev_b32 v21, 6, v0")
    a("v_and_b32 v1, 63, v0")
    a("v_readfirstlane_b32 s38, v21")
    a("s_and_b32 s56, s2, 7")
    a("s_lshr_b32 s57, s2, 3")
    a("s_and_b32 s36, s56, 3")
    a("s_lshl_b32 s36, s36, 2")
    a("s_and_b32 s58, s57, 3")
    a("s_add_u32 s36, s36, s58")
    a("s_lshr_b32 s37, s56, 2")
    a("s_lshl_b32 s37, s37, 3")
    a("s_lshr_b32 s58, s57, 2")
    a("s_add_u32 s37, s37, s58")
    a("v_lshlrev_b32 v26, 4, v1")
    a("s_lshl_b32 s56, s36, 19")
    a("v_add_u32 v2, s56, v26")
    for rt in range(1, 4):
        a(f"v_add_u32 v{2+rt}, {rt*131072}, v2")
    a("s_lshl_b32 s43, s38, 15")
    a("v_lshrrev_b32 v21, 3, v1")
    a("v_and_b32 v22, 7, v1")
    a("v_bfe_u32 v23, v1, 4, 1")
    a("v_lshlrev_b32 v23, 2, v23")
    a("v_xor_b32 v24, v22, v23")
    a("v_lshlrev_b32 v24, 4, v24")
    a("v_lshl_add_u32 v24, v21, 11, v24")
    a("s_lshl_b32 s56, s37, 7")
    a("v_add_u32 v6, s56, v24")
    a(f"v_add_u32 v7, {8*2048 - 1024}, v6")
    a("s_and_b32 s44, s38, 1")
    a("s_lshl_b32 s44, s44, 20")
    a(f"s_mul_i32 s46, s38, {D*2048}")
    a("v_lshrrev_b32 v22, 5, v1")
    a("v_bfe_u32 v23, v1, 2, 2")
    a("v_lshl_add_u32 v24, v22, 2, v23")
    a("v_lshlrev_b32 v24, 7, v24")
    a("v_bfe_u32 v25, v1, 4, 1")
    a("v_lshlrev_b32 v25, 1, v25")
    a("v_bfe_u32 v28, v1, 1, 1")
    a("v_or_b32 v25, v25, v28")
    a("v_and_b32 v28, 2, v23")
    a("v_lshlrev_b32 v28, 1, v28")
    a("v_xor_b32 v25, v25, v28")
    a("v_lshl_add_u32 v24, v25, 4, v24")
    a("v_and_b32 v28, 1, v1")
    a("v_lshl_add_u32 v24, v28, 3, v24")
    a("v_add_u32 v8, s46, v24")
    a("v_xor_b32 v9, 64, v8")
    a("s_waitcnt lgkmcnt(0)")
    srd(a, 24, 14, WS_SIZE)
    a("s_cmp_lt_u32 s38, 2")
    a("s_cselect_b32 s4, s4, s6")
    a("s_cselect_b32 s5, s5, s7")
    srd(a, 20, 4, 1024 * 1024 * 2)

    def loads(slot):
        ops = [[f"s_add_u32 m0, s46, {slot*2048}", "buffer_load_dwordx4 v6, s[20:23], s44 offen lds"],
               ["buffer_load_dwordx4 v7, s[20:23], s44 offen offset:1024 lds", "s_add_u32 s44, s44, 32768"]]
        for rt in range(4):
            r = fA(slot, rt)
            ops.append([f"buffer_load_dwordx4 a[{r}:{r+3}], v{2+rt}, s[24:27], s43 offen"])
        ops[-1].append("s_add_u32 s43, s43, 1024")
        return ops
    def breads(slot, s):
        out = []
        for ct in range(2):
            for sub in range(2):
                r = fB(s, ct) + 2 * sub
                out.append(f"ds_read_b64_tr_b16 v[{r}:{r+1}], v{8+ct} offset:{slot*2048 + sub*1024}")
        return out
    for slot in range(D):
        for op in loads(slot):
            for x in op:
                a(x)
    srd(a, 16, 8, 2048 * 1024 * 2)
    srd(a, 28, 12, 256)
    a("v_and_b32 v21, 31, v1")
    a("v_lshlrev_b32 v10, 3, v21")
    a("s_lshl_b32 s56, s36, 10")
    a("s_lshl_b32 s57, s38, 8")
    a("s_add_u32 s56, s56, s57")
    a(f"s_add_u32 s60, s56, {WS_G}")
    for i in range(128):
        a(f"v_mov_b32 v{ACC+i}, 0")
    stamp(a, opt, 1)
    lq = LdsQ(a)
    a(f"s_waitcnt vmcnt({6*(D-1)})")
    stamp(a, opt, 2)
    stamp(a, opt, 25, real=True)
    for r in breads(0, 0):
        lq.issue(r)

    def step(i, load, last=False, vm_after=None):
        slot, s = i % D, i % 2
        ms = []
        for rt in range(4):
            for ct in range(2):
                A = f"v[{fB(s, ct)}:{fB(s, ct)+3}]"
                B = f"a[{fA(slot, rt)}:{fA(slot, rt)+3}]"
                c = acc(rt, ct)
                ms.append(f"v_mfma_f32_32x32x16_bf16 v[{c}:{c+15}], {A}, {B}, v[{c}:{c+15}]")
        lops = loads(slot) if load else []
        for g, m in enumerate(ms):
            lq.need(Ins(m).srcAB)
            a(m)
            if g == 1 and not last:
                a(f"s_waitcnt vmcnt({vm_after})")
                for r in breads((i + 1) % D, 1 - s):
                    lq.issue(r)
            if load:
                if g == 2:
                    for x in lops[0]: a(x)
                if g == 3:
                    for x in lops[1]: a(x)
                if g in (3, 5, 7):
                    rt = (g - 1) // 2
                    if g == 3:
                        for x in lops[2]: a(x)
                    for x in lops[2 + rt]: a(x)
    nloop = (32 - D) // D
    a("s_mov_b32 s45, 0")
    a.label("K3_LOOP")
    q0 = list(lq.q)
    for i in range(D):
        step(i, True, vm_after=6 * (D - 2))
    assert lq.q == q0, (lq.q, q0)
    a("s_add_u32 s45, s45, 1")
    a(f"s_cmp_lt_u32 s45, {nloop}")
    a("s_cbranch_scc1 K3_LOOP")
    a("buffer_load_dwordx2 v[12:13], v10, s[24:27], s60 offen")
    for i in range(D):
        step(i, False, last=(i == D - 1), vm_after=max(0, 6 * (D - 2 - i)) + (1 if i < D - 1 else 0))
    stamp(a, opt, 3)
    stamp(a, opt, 26, real=True)
    a("s_barrier")
    a("s_lshl_b32 s56, s38, 13")
    a("v_add_u32 v2, s56, v26")
    a("v_add_u32 v3, 65536, v2")
    for rt in range(4):
        for ct in range(2):
            for q in range(4):
                c = acc(rt, ct) + 4 * q
                base = "v2" if rt < 2 else "v3"
                a(f"ds_write_b128 {base}, v[{c}:{c+3}] offset:{(rt % 2)*32768 + ct*4096 + q*1024}")
    a("s_waitcnt lgkmcnt(0)")
    a("s_barrier")
    a("s_lshl_b32 s56, s38, 15")
    a("v_add_u32 v2, s56, v26")
    for src in range(4):
        for ct in range(2):
            for q in range(4):
                c = ACC + src * 32 + ct * 16 + 4 * q
                a(f"ds_read_b128 v[{c}:{c+3}], v2 offset:{src*8192 + ct*4096 + q*1024}")
    a("v_and_b32 v21, 31, v1")
    a("v_lshrrev_b32 v22, 5, v1")
    a("v_lshlrev_b32 v22, 4, v22")
    a("v_lshl_add_u32 v14, v21, 11, v22")
    a("s_lshl_b32 s56, s36, 18")
    a("s_lshl_b32 s57, s38, 16")
    a("s_add_u32 s56, s56, s57")
    a("s_lshl_b32 s57, s37, 7")
    a("s_add_u32 s61, s56, s57")
    a("s_waitcnt vmcnt(0) lgkmcnt(0)")
    for i in range(32):
        a(f"v_add_f32 v{ACC+i}, v{ACC+i}, v{ACC+32+i}")
        a(f"v_add_f32 v{ACC+64+i}, v{ACC+64+i}, v{ACC+96+i}")
    for i in range(32):
        a(f"v_mul_f32 v{ACC+i}, v{ACC+i}, v12")
        a(f"v_fmac_f32 v{ACC+i}, v{ACC+64+i}, v13")
    for i in range(16):
        a(f"v_cvt_pk_bf16_f32 v{48+i}, v{ACC+2*i}, v{ACC+2*i+1}")
    for pr in range(4):
        b = 48 + 4 * pr
        a(f"v_permlane32_swap_b32 v{b}, v{b+2}")
        a(f"v_permlane32_swap_b32 v{b+1}, v{b+3}")
        a(f"buffer_store_dwordx4 v[{b}:{b+3}], v14, s[16:19], s61 offen offset:{pr*32}")
    stamp_out(a, opt, 1)
    a.label("K3_END")
    a("s_endpgm")
    return dict(name="k3_kernel", vgpr=256 + 16 * D, sgpr=96, accum=256, lds=131072, block=256, grid=256)

HEADER = open("gated_mix__linear_attn_block__linear_attn_block__prompt.s.ref").read().split("; Override launch")[0]

def build(opt):
    a = Asm()
    ks = [gen_k1(a, opt), gen_k3(a, opt)]
    out = HEADER
    for k in ks:
        out += f"; @launch kernel={k['name']} grid=({k['grid']},1,1) block=({k['block']},1,1) lds={k['lds']}\n"
    out += '.amdgcn_target "amdgcn-amd-amdhsa--gfx950"\n.text\n'
    out += a.text()
    out += '.section .rodata,"a"\n'
    for k in ks:
        out += kd(k["name"], k["vgpr"], k["sgpr"], k["accum"])
    return out

if __name__ == "__main__":
    opt = {}
    outp = sys.argv[1]
    for kv in sys.argv[2:]:
        k, v = kv.split("=")
        try:
            v = eval(v)
        except Exception:
            pass
        opt[k] = v
    open(outp, "w").write(build(opt))
```

```python
import sys, struct
from asmlib import Asm, Ins, regs_of
from gen import f2u, LdsQ, kd, srd, stamp, stamp_out, HEADER, WS_DIAG, WS_SIZE, WS_SLOT, WS_G, LOG2E, EPS

MF = "v_mfma_f32_16x16x32_bf16"
WS_WOF = 16 << 20
WS_TOT = 20 << 20
KNAME = "gated_mix__linear_attn_block__linear_attn_block__prompt_kernel"
def vr(b, n=4): return f"v[{b}:{b+n-1}]"
def ar(b, n=4): return f"a[{b}:{b+n-1}]"

class VmQ:
    def __init__(self, a):
        self.a = a; self.q = []
    def issue(self, text, tag):
        self.a(text); self.q.append(tag)
    def count(self, tags):
        idx = -1
        for i, t in enumerate(self.q):
            if t in tags:
                idx = i
        if idx < 0:
            return None
        return min(len(self.q) - idx - 1, 63)
    def need(self, *tags, extra=""):
        n = self.count(tags)
        if n is None:
            if extra:
                self.a(f"s_waitcnt {extra}")
            return
        self.a(f"s_waitcnt vmcnt({n}) {extra}".rstrip())
        self.q = self.q[len(self.q) - n:] if n else []
    def drained(self):
        self.q = []

def gen(a, opt):
    lq = LdsQ(a); vq = VmQ(a)
    def put(x):
        if isinstance(x, tuple):
            if x[0] == "ds":
                lq.issue(x[1])
            elif x[0] == "vm":
                vq.issue(x[1], x[2])
            elif x[0] == "needvm":
                vq.need(*x[1])
            elif x[0] == "needds":
                lq.need(x[1])
        else:
            a(x)
    def weave(mf, fill):
        for g, m in enumerate(mf):
            lq.need(Ins(m).srcAB)
            a(m)
            for x in fill.get(g, []):
                put(x)
    def spread(fill, items, start, end):
        n = len(items)
        for i, it in enumerate(items):
            fill.setdefault(start + (i * (end - start)) // n, []).extend(it)

    XB = [0, 32768]
    WB = [65536 + 24576 * s for s in range(3)]
    EX = 139264
    EX2 = EX + 16384
    ACC = 64
    def acc(rt, ct): return ACC + (rt * 6 + ct) * 4
    def fW(st, ct, ks): return 48 * (st % 2) + (ct * 2 + ks) * 4
    def fX(e, ks): return 96 + e * 8 + ks * 4
    def fXR(rt, ks): return 112 + rt * 8 + ks * 4
    a.raw(f".globl {KNAME}\n.p2align 8\n.type {KNAME},@function")
    a.label(KNAME)
    a("s_cmp_ge_u32 s2, 256")
    a("s_cbranch_scc1 K_END")
    a("s_load_dwordx4 s[4:7], s[0:1], 0")
    a("s_load_dwordx2 s[8:9], s[0:1], 32")
    a("s_load_dwordx4 s[68:71], s[0:1], 48")
    a("s_load_dwordx4 s[12:15], s[0:1], 64")
    a("s_load_dwordx2 s[74:75], s[0:1], 16")
    a("s_load_dwordx2 s[76:77], s[0:1], 40")
    if opt.get("stamps"):
        a("v_mov_b32 v31, 0")
    stamp(a, opt, 30, real=True)
    stamp(a, opt, 0)
    a("v_lshrrev_b32 v21, 6, v0")
    a("v_and_b32 v1, 63, v0")
    a("v_readfirstlane_b32 s38, v21")
    a("s_and_b32 s56, s2, 7")
    a("s_lshr_b32 s57, s2, 3")
    if opt.get("k1map", "A") == "A":
        a("s_and_b32 s36, s57, 7")
        a("s_lshr_b32 s58, s57, 3")
        a("s_lshl_b32 s37, s56, 2")
        a("s_add_u32 s37, s37, s58")
    else:
        a("s_and_b32 s36, s56, 1")
        a("s_lshl_b32 s36, s36, 2")
        a("s_and_b32 s58, s57, 3")
        a("s_add_u32 s36, s36, s58")
        a("s_lshr_b32 s37, s56, 1")
        a("s_lshl_b32 s37, s37, 3")
        a("s_lshr_b32 s58, s57, 2")
        a("s_add_u32 s37, s37, s58")
    a("s_and_b32 s39, s38, 1")
    a("s_lshr_b32 s40, s38, 1")
    a("s_and_b32 s41, s37, 15")
    a("s_lshr_b32 s42, s37, 4")
    a("v_lshrrev_b32 v21, 3, v1")
    a("v_and_b32 v22, 7, v1")
    a("v_lshrrev_b32 v23, 4, v1")
    a("v_and_b32 v24, 1, v23")
    a("v_lshlrev_b32 v24, 2, v24")
    a("v_xor_b32 v24, v22, v24")
    a("v_lshlrev_b32 v24, 4, v24")
    a("v_mul_u32_u24 v25, 6144, v21")
    a("v_add_u32 v24, v24, v25")
    a("v_xor_b32 v25, 32, v24")
    a("s_mul_i32 s56, s38, 6")
    a("s_lshl_b32 s59, s41, 7")
    for i in range(6):
        a(f"s_add_u32 s57, s56, {i}")
        a("s_lshr_b32 s58, s57, 3")
        a("s_and_b32 s57, s57, 7")
        a(f"s_mul_i32 s57, s57, {8*6144}")
        a("s_lshl_b32 s58, s58, 11")
        a("s_add_u32 s57, s57, s58")
        a("s_add_u32 s57, s57, s59")
        if i % 4:
            a(f"s_sub_u32 s57, s57, {(i % 4) * 1024}")
        a(f"v_add_u32 v{10+i}, s57, {'v24' if i % 2 == 0 else 'v25'}")
    a("v_xor_b32 v24, v22, v23")
    a("v_lshlrev_b32 v24, 4, v24")
    a("v_lshl_add_u32 v24, v21, 11, v24")
    a("s_lshl_b32 s56, s36, 19")
    a("s_lshl_b32 s57, s40, 18")
    a("s_add_u32 s56, s56, s57")
    a("s_lshl_b32 s57, s39, 16")
    a("s_add_u32 s56, s56, s57")
    a("v_add_u32 v2, s56, v24")
    a("v_xor_b32 v25, 64, v2")
    for i in range(1, 8):
        src = "v2" if i % 2 == 0 else "v25"
        a(f"v_add_u32 v{2+i}, {(i % 4)*16384 + (i // 4)*131072 - (i % 4) * 1024}, {src}")
    a("s_lshl_b32 s48, s38, 13")
    a("s_lshl_b32 s45, s40, 14")
    a("s_lshl_b32 s57, s39, 12")
    a("s_add_u32 s45, s45, s57")
    a("s_mov_b32 s72, 0")
    a("s_mul_i32 s49, s38, 6144")
    a("s_mov_b32 s43, 0")
    a("s_mov_b32 s44, 0")
    a("s_waitcnt lgkmcnt(0)")
    srd(a, 16, 4, 2048 * 1024 * 2)
    a("s_cmp_eq_u32 s42, 0")
    a("s_cselect_b32 s56, s6, s8")
    a("s_cselect_b32 s57, s7, s9")
    srd(a, 20, 56, 1024 * 3072 * 2)
    stamp(a, opt, 10)

    def dmaXh(t, h):
        ops = []
        so = "s43" if h == 0 else "s72"
        for i in range(4 * h, 4 * h + 4):
            pre = [f"s_add_u32 m0, s45, {XB[t % 2] + h * 8192}"] if i % 4 == 0 else []
            off = f" offset:{(i % 4) * 1024}" if i % 4 else ""
            ops.append(pre + [("vm", f"buffer_load_dwordx4 v{2+i}, s[16:19], {so} offen{off} lds", f"X{t}{'ab'[h]}")])
        ops[3].append(f"s_add_u32 {so}, {so}, 128")
        return ops
    def dmaX(t):
        return dmaXh(t, 0) + dmaXh(t, 1)
    def dmaW(t):
        ops = []
        for i in range(6):
            pre = [f"s_add_u32 m0, s49, {WB[t % 3] + (i // 4) * 4096}"] if i % 4 == 0 else []
            off = f" offset:{(i % 4) * 1024}" if i % 4 else ""
            ops.append(pre + [("vm", f"buffer_load_dwordx4 v{10+i}, s[20:23], s44 offen{off} lds", f"W{t}")])
        ops[5].append(f"s_add_u32 s44, s44, {64*6144}")
        return ops
    def emit(groups):
        for op in groups:
            for x in op:
                put(x)
    emit(dmaW(0) + dmaX(0))
    stamp(a, opt, 11)
    srd(a, 24, 14, WS_TOT)
    srd(a, 28, 12, 256)
    srd(a, 32, 68, 2048)
    a("v_lshlrev_b32 v26, 4, v1")
    a("s_lshl_b32 s46, s37, 1")
    a("s_add_u32 s46, s46, s40")
    a("s_lshl_b32 s47, s36, 1")
    a("s_add_u32 s47, s47, s39")
    a("s_lshl_b32 s56, s47, 7")
    a("s_lshl_b32 s57, s46, 1")
    a("s_add_u32 s56, s56, s57")
    a("s_lshl_b32 s60, s56, 11")
    a("s_lshl_b32 s55, s56, 2")
    a(f"s_add_u32 s55, s55, {WS_G}")
    a("s_lshl_b32 s56, s47, 19")
    a("s_lshl_b32 s57, s46, 13")
    a("s_add_u32 s65, s56, s57")
    a("s_lshl_b32 s56, s37, 17")
    a("s_lshl_b32 s57, s38, 12")
    a("s_add_u32 s61, s56, s57")
    a(f"s_add_u32 s61, s61, {WS_SLOT}")
    a("s_lshl_b32 s57, s36, 14")
    a("s_add_u32 s62, s61, s57")
    a("v_lshrrev_b32 v27, 4, v1")
    a("v_lshlrev_b32 v27, 4, v27")
    a("v_and_b32 v30, 7, v1")
    a("v_lshl_add_u32 v30, v30, 14, v27")
    a("s_lshl_b32 s63, s37, 3")
    for i in range(4):
        a(f"v_mov_b32 v{32+i}, -1")
    a("v_lshlrev_b32 v38, 7, v1")
    a("v_mov_b32 v28, 1")
    a("v_mov_b32 v29, 0")
    a("v_and_b32 v21, 15, v1")
    a("v_lshrrev_b32 v22, 4, v1")
    a("v_bfe_u32 v23, v1, 1, 3")
    a("v_xor_b32 v23, v23, v22")
    a("v_lshlrev_b32 v23, 4, v23")
    a("v_lshl_add_u32 v23, v21, 7, v23")
    a("s_lshl_b32 s56, s39, 14")
    a("v_add_u32 v16, s56, v23")
    a("v_xor_b32 v17, 64, v16")
    a("v_bfe_u32 v23, v1, 2, 2")
    a("v_lshl_add_u32 v24, v22, 3, v23")
    a("v_lshlrev_b32 v24, 7, v24")
    a("v_bfe_u32 v25, v1, 1, 1")
    a("s_lshl_b32 s56, s40, 2")
    a("v_or_b32 v25, s56, v25")
    a("v_and_b32 v36, 2, v23")
    a("v_lshlrev_b32 v36, 1, v36")
    a("v_xor_b32 v25, v25, v36")
    a("v_and_b32 v36, 1, v22")
    a("v_lshlrev_b32 v36, 1, v36")
    a("v_xor_b32 v25, v25, v36")
    a("v_lshl_add_u32 v24, v25, 4, v24")
    a("v_and_b32 v36, 1, v1")
    a("v_lshl_add_u32 v24, v36, 3, v24")
    a("v_xor_b32 v25, 32, v24")
    for s in range(3):
        a(f"v_add_u32 v{18+2*s}, {WB[s]}, v24")
        a(f"v_add_u32 v{19+2*s}, {WB[s]}, v25")
    a(f"v_mov_b32 v36, 0x{f2u(EPS):08x}")
    a(f"v_mov_b32 v37, v36")
    for rt in range(8):
        for r in range(0, 16, 2):
            a(f"v_pk_mov_b32 {vr(acc(rt, 0) + r, 2)}, v[36:37], v[36:37]")
    if opt.get("wpace", 6):
        a("s_lshl_b32 s56, s2, 2")
        a("s_add_u32 s56, s56, s38")
        a("s_bitcmp1_b32 s56, 3")
        a("s_cselect_b32 s84, s8, s6")
        a("s_cselect_b32 s85, s9, s7")
        a("s_and_b32 s85, s85, 0xffff")
        a(f"s_mov_b32 s86, {1024*3072*2}")
        a("s_mov_b32 s87, 0x00020000")
        a("s_lshr_b32 s57, s56, 4")
        a(f"s_add_u32 s57, s57, {64*opt.get('wpace', 6)}")
        a("s_mul_i32 s73, s57, 6144")
        a("s_and_b32 s57, s56, 7")
        a("s_mul_i32 s57, s57, 768")
        a("s_add_u32 s73, s73, s57")
        pass
    PRE = opt.get("pre", "W1")
    pre_list = {"none": [], "W1": dmaW(1), "W1X1": dmaW(1) + dmaX(1)}[PRE]
    emit(pre_list)
    if opt.get("xsp"):
        m = opt["xsp"]
        emit([[f"s_mov_b32 exec_lo, 0x{m | (m << 16):x}", "s_mov_b32 exec_hi, 0", ("vm", "buffer_load_dword v39, v38, s[16:19], s60 offen", "T"), "s_mov_b64 exec, -1"]])
    stamp(a, opt, 1)

    def rdW(t):
        ops = []
        for ct in range(6):
            for ks in range(2):
                for sub in range(2):
                    r = fW(t, ct, ks) + 2 * sub
                    ops.append(("ds", f"ds_read_b64_tr_b16 {ar(r, 2)}, v{18 + 2*(t % 3) + (ct & 1)} offset:{(ct >> 1)*8192 + ks*4096 + sub*512}"))
        return ops
    def rdX(t, rt, dst):
        return [("ds", f"ds_read_b128 {ar(dst(ks))}, v{16+ks} offset:{XB[t % 2] + rt*2048}") for ks in range(2)]
    def mf(t, rt, cts, X):
        out = []
        for ct in cts:
            for ks in range(2):
                W = ar(fW(t, ct, ks))
                A, B = (W, ar(X(ks))) if ct < 2 else (ar(X(ks)), W)
                c = vr(acc(rt, ct))
                cin = "0" if (t == 0 and ks == 0 and ct >= 4) else c
                out.append(f"{MF} {c}, {A}, {B}, {cin}")
        return out
    DEFER = opt.get("defer", 2)
    HST = opt.get("hst", 5)
    DSP = opt.get("dma_per_block", 3)
    def cts_of(t): return [2, 3, 4, 5] if t >= 16 - DEFER else [0, 1, 2, 3, 4, 5]
    def Xreg(t, rt): return (lambda ks: fXR(rt, ks)) if t == 15 else (lambda ks: fX(rt % 2, ks))
    def blocks(seq, pend, wreads, front=None, valu=()):
        pend = list(pend); wreads = list(wreads); valu = list(valu)
        for n, (t, rt) in enumerate(seq):
            cts = cts_of(t)
            nb = len(cts) * 2
            fill = {}
            if rt < 7:
                nx = rdX(t, rt + 1, Xreg(t, rt + 1))
            elif t < 15:
                nx = rdX(t + 1, 0, Xreg(t + 1, 0))
            else:
                nx = []
            items = [[x] for x in nx]
            left_w = len([1 for (_, r) in seq[n:] if r < 7])
            if rt < 7 and wreads:
                k = -(-len(wreads) // left_w)
                items += [[x] for x in wreads[:k]]
                wreads = wreads[k:]
            if n == 0 and front:
                fill[0] = list(front)
            spread(fill, items, 0, nb - 1)
            k = min(len(pend), max(DSP, -(-len(pend) // (len(seq) - n))))
            spread(fill, pend[:k], 1, nb)
            pend = pend[k:]
            k = -(-len(valu) // (len(seq) - n))
            spread(fill, [x if isinstance(x, list) else [x] for x in valu[:k]], 0, nb)
            valu = valu[k:]
            weave(mf(t, rt, cts, Xreg(t, rt)), fill)
        assert not pend and not wreads and not valu

    vq.need("W0", "X0a")
    a("s_barrier")
    stamp(a, opt, 2)
    stamp(a, opt, 25, real=True)
    w0 = rdW(0)
    for x in w0[:4] + rdX(0, 0, lambda ks: fX(0, ks)) + w0[4:13]:
        put(x)
    sent = [[("vm", "buffer_store_dwordx4 v[32:35], v26, s[24:27], s62 offen sc1", "S")],
            [("vm", "buffer_store_dwordx4 v[32:35], v26, s[24:27], s62 offen offset:1024 sc1", "S")],
            [("vm", "buffer_store_dwordx4 v[32:35], v27, s[24:27], s62 offen offset:2048 sc1", "S")],
            [("vm", "buffer_store_dwordx2 v[32:33], v29, s[24:27], s55 offen sc1", "S")]]
    rest0 = ([] if PRE != "none" else dmaW(1)) + ([] if PRE == "W1X1" else dmaXh(1, 0)) + dmaW(2) + ([] if PRE == "W1X1" else dmaXh(1, 1))
    k0 = min(len(rest0), opt.get("k0", 10))
    blocks([(0, r) for r in range(3)], rest0[:k0], [], front=w0[13:])
    vq.need("W1", "X0b", extra="lgkmcnt(0)")
    lq.drained()
    a("s_barrier")
    x0 = []
    if opt.get("xs0"):
        m = opt["xs0"]
        x0 = [[f"s_mov_b32 exec_lo, 0x{m | (m << 16):x}", "s_mov_b32 exec_hi, 0", ("vm", "buffer_load_dword v39, v38, s[16:19], s60 offen", "T"), "s_mov_b64 exec, -1"]]
    blocks([(0, r) for r in range(3, 7)], rest0[k0:] + dmaXh(2, 0) + dmaW(3) + x0, rdW(1))

    def window1(t, extra=(), last=False, valu=(), first=()):
        vq.need(f"X{t+1}a", f"X{t+1}b", f"W{t+2}", *( ["S"] if t == HST else []), extra="lgkmcnt(0)")
        lq.drained()
        a("s_barrier")
        if opt.get("wstamps"):
            stamp(a, opt, 32 + t)
        pend = list(first)
        if t + 2 <= 15:
            pend += dmaX(t + 2) if t > 0 else dmaXh(2, 1)
        if t + 4 <= 15:
            pend += dmaW(t + 4)
        pend += list(extra)
        seq = [(t, 7)] + [(t + 1, r) for r in range(8 if last else 7)]
        blocks(seq, pend, rdW(t + 2) if t + 2 <= 15 else [], valu=valu)

    def window(t, extra=(), last=False, valu=(), first=()):
        if not opt.get("mid", 0):
            return window1(t, extra, last, valu, first)
        vq.need(f"X{t+1}a", f"W{t+2}", *( ["S"] if t == HST else []), extra="lgkmcnt(0)")
        lq.drained()
        a("s_barrier")
        if opt.get("wstamps"):
            stamp(a, opt, 32 + t)
        pend = list(first)
        if t + 2 <= 15:
            pend += dmaXh(t + 2, 1)
        wd = dmaW(t + 4) if t + 4 <= 15 else []
        pend += wd[:4]
        wr = rdW(t + 2) if t + 2 <= 15 else []
        valu = list(valu); extra = list(extra)
        nv = len(valu) // 2
        ne = len(extra) // 2 if last else 0
        blocks([(t, 7)] + [(t + 1, r) for r in range(3)], pend + extra[:ne], wr[:10], valu=valu[:nv])
        vq.need(f"X{t+1}b")
        lq.need(regs_of(ar(Xreg(t + 1, 3)(0), 8)))
        a("s_barrier")
        pend = []
        if t + 3 <= 15:
            pend += dmaXh(t + 3, 0)
        if wd:
            wd[4] = [f"s_add_u32 m0, s49, {WB[(t + 4) % 3] + 4096}"] + wd[4][1:]
        pend += wd[4:] + extra[ne:]
        blocks([(t + 1, r) for r in range(3, 8 if last else 7)], pend, wr[10:], valu=valu[nv:])

    hs = ["s_cmp_lg_u32 s38, 0", "s_cbranch_scc1 K_NOATOM", "s_mov_b64 exec, 1",
          "buffer_atomic_add v28, v29, s[28:31], s63 offen sc1", "s_mov_b64 exec, -1", "K_NOATOM:"]
    G = 64
    gate = [("needvm", ["G"]), "v_mov_b32 v38, 0", "v_mov_b32 v39, 0"]
    for i in range(8):
        gr = lambda j: acc(j // 4, 1) + j % 4
        gate.append(f"v_dot2_f32_bf16 v38, v{gr(i)}, v{gr(16+i)}, v38")
        gate.append(f"v_dot2_f32_bf16 v39, v{gr(8+i)}, v{gr(16+i)}, v39")
    for ctrl in ("quad_perm:[1,0,3,2]", "quad_perm:[2,3,0,1]", "row_half_mirror", "row_mirror"):
        for r in (38, 39):
            gate.append(f"v_add_f32_dpp v{r}, v{r}, v{r} {ctrl} row_mask:0xf bank_mask:0xf")
    gate2 = []
    for r in (38, 39):
        for k, ln in enumerate((0, 16, 32, 48)):
            gate2.append(f"v_readlane_b32 s{4 + (r-38)*4 + k}, v{r}, {ln}")
    for r, s0 in ((38, 4), (39, 8)):
        gate2 += [f"v_mov_b32 v{r}, s{s0}", f"v_add_f32 v{r}, s{s0+1}, v{r}", f"v_add_f32 v{r}, s{s0+2}, v{r}", f"v_add_f32 v{r}, s{s0+3}, v{r}"]
    for ops in (["v_cvt_pk_bf16_f32 v{r}, v{r}, v{r}", "v_and_b32 v{r}, 0xffff0000, v{r}", "v_mul_f32 v{r}, 0x%08x, v{r}" % f2u(-LOG2E),
                 "v_exp_f32 v{r}, v{r}", "v_add_f32 v{r}, 1.0, v{r}", "v_rcp_f32 v{r}, v{r}", "v_cvt_pk_bf16_f32 v{r}, v{r}, v{r}",
                 "v_and_b32 v{r}, 0xffff0000, v{r}"]):
        for r in (38, 39):
            gate2.append(ops.format(r=r))

    p2 = ["s_and_b32 s56, s2, 7", "s_lshr_b32 s57, s2, 3",
          "s_and_b32 s50, s56, 3", "s_lshl_b32 s50, s50, 2", "s_and_b32 s58, s57, 3", "s_add_u32 s50, s50, s58",
          "s_lshr_b32 s51, s56, 2", "s_lshl_b32 s51, s51, 3", "s_lshr_b32 s58, s57, 2", "s_add_u32 s51, s51, s58",
          ["s_cmp_lt_u32 s38, 2", "s_cselect_b32 s80, s74, s76", "s_cselect_b32 s81, s75, s77"],
          "s_and_b32 s81, s81, 0xffff", f"s_mov_b32 s82, {1024*1024*2}", "s_mov_b32 s83, 0x00020000",
          "s_lshl_b32 s52, s39, 20", "s_lshl_b32 s56, s51, 7", "s_add_u32 s52, s52, s56",
          "s_lshl_b32 s53, s50, 19", "s_lshl_b32 s56, s38, 17", "s_add_u32 s53, s53, s56",
          "s_lshl_b32 s56, s50, 9", "s_lshl_b32 s57, s38, 7", "s_add_u32 s56, s56, s57", f"s_add_u32 s54, s56, {WS_G}",
          "v_lshrrev_b32 v48, 3, v1", "v_and_b32 v49, 7, v1", "v_bfe_u32 v50, v1, 4, 1", "v_lshlrev_b32 v50, 2, v50",
          "v_xor_b32 v49, v49, v50", "v_bfe_u32 v50, v1, 5, 1", "v_lshlrev_b32 v50, 1, v50", "v_xor_b32 v49, v49, v50",
          "v_lshlrev_b32 v49, 4, v49", "v_lshl_add_u32 v40, v48, 11, v49"]
    p2 += [f"v_add_u32 v{40+i}, {i*(8*2048 - 1024)}, v40" for i in range(1, 4)]
    p2 += ["s_lshl_b32 s64, s38, 12", f"s_add_u32 s64, s64, {EX}"]
    p2b = ["v_lshrrev_b32 v48, 4, v1", "v_bfe_u32 v49, v1, 2, 2", "v_lshl_add_u32 v50, v48, 2, v49", "v_lshlrev_b32 v50, 7, v50",
           "v_bfe_u32 v51, v1, 1, 1", "v_and_b32 v52, 2, v49", "v_lshlrev_b32 v52, 1, v52", "v_xor_b32 v51, v51, v52",
           "v_and_b32 v52, 1, v48", "v_lshlrev_b32 v52, 1, v52", "v_xor_b32 v51, v51, v52", "v_lshl_add_u32 v50, v51, 4, v50",
           "v_and_b32 v52, 1, v1", "v_lshl_add_u32 v50, v52, 3, v50", "v_add_u32 v44, s64, v50"]
    p2b += [f"v_xor_b32 v{44+ct}, {ct*32}, v44" for ct in range(1, 4)]
    p2b += ["v_lshlrev_b32 v53, 3, v1"]
    p2c = [f"v_mov_b32 v{12+i}, v{40+i}" for i in range(4)] + ["s_add_u32 s56, s48, 0x10000", "v_add_u32 v32, s56, v50"]
    p2c += [f"v_xor_b32 v{32+ct}, {ct*32}, v32" for ct in range(1, 4)]
    SLOT = {}
    RES = {0: 176, 1: 192, 2: 208, 3: 224, 4: 240, 5: 16, 6: 32, 7: 64}
    AQ = [q for q in range(0, 256, 4) if not any(r <= q < r + 16 for r in RES.values())]
    assert len(AQ) == 32
    def dmaB(b, slot):
        SLOT[b] = slot
        ops = []
        for j in range(4):
            off = f" offset:{j*1024}" if j else ""
            m0 = "s_mov_b32 m0, s64" if slot is None else f"s_add_u32 m0, s48, {slot}"
            ops.append(([m0] if j == 0 else []) +
                       [("vm", f"buffer_load_dwordx4 v{(40 if slot is None else 12)+j}, s[80:83], s52 offen{off} lds", f"B{b}")])
        ops[-1].append("s_add_u32 s52, s52, 65536")
        return ops
    def breads(b, dst, agpr):
        sl = SLOT[b]
        base = 44 if sl is None else (32 if sl >= 65536 else 16)
        o = 0 if sl is None else sl % 65536
        return [("ds", f"ds_read_b64_tr_b16 {(ar if agpr else vr)(dst + ct*4 + 2*sub, 2)}, v{base+ct} offset:{o + sub*2048}")
                for ct in range(4) for sub in range(2)]
    PD = opt.get("wpace", 6)
    def wp():
        return ["s_mov_b64 exec, 0x3f", ("vm", "buffer_load_dword v39, v38, s[84:87], s73 offen", "T"), "s_mov_b64 exec, -1",
                f"s_add_u32 s73, s73, {64*6144}"]
    wt_setup = [["s_bitcmp1_b32 s38, 0", "s_cselect_b32 s92, s76, s74", "s_cselect_b32 s93, s77, s75"], "s_and_b32 s93, s93, 0xffff",
                f"s_mov_b32 s94, {1024*1024*2}", "s_mov_b32 s95, 0x00020000",
                "s_lshl_b32 s78, s2, 1", "s_add_u32 s78, s78, s40", "s_lshl_b32 s78, s78, 12"]
    WTN, WT0 = opt.get("wtn", 4), opt.get("wt0", 9)
    def wt(k):
        n = 32 // WTN
        return [f"s_mov_b64 exec, 0x{(1 << n) - 1:x}",
                ("vm", f"buffer_load_dword v39, v38, s[92:95], s78 offen offset:{k*n*128}", "T"), "s_mov_b64 exec, -1"]
    xs = opt.get("xsplit", {0: 0x0030, 1: 0x00c0, 2: 0x0300, 3: 0x0c00, 4: 0x3000, 5: 0xc000})
    ST0 = opt.get("st0", 3)
    sw = opt.get("sent_w", [1, 2, 3, 3])
    for t in range(15):
        kw = {"extra": [], "valu": []}
        if xs and t in xs:
            m = xs[t]
            kw["extra"] += [[f"s_mov_b32 exec_lo, 0x{m | (m << 16):x}", "s_mov_b32 exec_hi, 0", ("vm", "buffer_load_dword v39, v38, s[16:19], s60 offen", "T"), "s_mov_b64 exec, -1"]]
        if PD and t + PD <= 15: kw["extra"] += [wp()]
        if t == ST0 - 2: kw["valu"] += p2
        if t == ST0 - 1: kw["valu"] += p2b
        for k in range(4):
            if sw[k] == t: kw["extra"] += [sent[k]]
        if t == HST: kw["extra"] += [hs]
        if t == WT0 - 1: kw["valu"] += wt_setup
        if WT0 <= t < WT0 + WTN: kw["extra"] += [wt(t - WT0)]
        if ST0 <= t < ST0 + 10:
            b = (t - ST0) // 2
            if (t - ST0) % 2 == 0:
                kw["extra"] += dmaB(b, None)
            else:
                kw["valu"] += [[]] * 12 + [("needvm", [f"B{b}"])] + breads(b, RES[b], True)
        if t == 13:
            kw["valu"] += p2c
            kw["extra"] += [[("vm", "buffer_load_dword v28, v53, s[28:31], 0 offen sc1", "C")]]
        if t == 14:
            kw["extra"] += dmaB(5, 65536) + dmaB(6, 65536 + 4096) + dmaB(7, 98304) + dmaB(8, 98304 + 4096)
            kw["last"] = True
        window(t, **kw)
    stamp(a, opt, 3)
    stamp(a, opt, 26, real=True)

    a(f"s_mov_b32 s66, 0x{f2u(LOG2E):08x}")
    a(f"s_mov_b32 s67, 0x{f2u(LOG2E):08x}")
    a(f"v_mov_b32 v20, 0x{f2u(-EPS * LOG2E):08x}")
    a("v_mov_b32 v21, v20")
    for i in range(4):
        a(f"v_mov_b32 v{22+i}, 0x3f803f80")
    KV, ZC = 40, 56
    T0 = 2
    def phi8(b0, b1, dst, inter=()):
        src = [b0, b0 + 2, b1, b1 + 2]
        L = []
        for i, s in enumerate(src):
            L.append(f"v_pk_fma_f32 {vr(T0 + 2*i, 2)}, {vr(s, 2)}, s[66:67], v[20:21]")
        for i in range(8):
            L.append(f"v_exp_f32_e64 v{T0+i}, v{T0+i} clamp")
        for s in src:
            L.append(f"v_max_f32 v{s}, v36, v{s}")
            L.append(f"v_max_f32 v{s+1}, v36, v{s+1}")
        for i, s in enumerate(src):
            L.append(f"v_pk_add_f32 {vr(T0 + 2*i, 2)}, {vr(s, 2)}, {vr(T0 + 2*i, 2)}")
        for i in range(4):
            L.append(f"v_cvt_pk_bf16_f32 v{dst+i}, v{T0+2*i}, v{T0+2*i+1}")
        pos = {0: [], 8: [], 18: []}
        for n, it in enumerate(inter):
            pos[(0, 8, 18)[n % 3] if len(inter) > 2 else (0, 10)[n % 2] if False else (0, 8, 18)[(n * 3) // max(len(inter), 1)]].append(it)
        for n, x in enumerate(L):
            if n in pos:
                emit(pos[n])
            a(x)
    def pack8(b0, b1, dst):
        for i, s in enumerate([b0, b0 + 2, b1, b1 + 2]):
            a(f"v_cvt_pk_bf16_f32 v{dst+i}, v{s}, v{s+1}")
    t1 = {2: [[("needvm", ["B7"])] + breads(5, RES[5], True), breads(6, RES[6], True), breads(7, RES[7], True)]}
    rf = dmaB(9, SLOT[5]) + dmaB(10, SLOT[6]) + dmaB(11, SLOT[7])
    rf[0] = ["s_waitcnt lgkmcnt(0)"] + rf[0]
    for k in range(4):
        t1[3 + k] = rf[3*k:3*k+3]
    for m in range(4):
        for dt in range(2):
            phi8(acc(2*m, 2 + dt), acc(2*m + 1, 2 + dt), acc(2*m, 2 + dt), inter=t1.get(m*2 + dt, []))
    lq.drained()
    kvm = []
    for m in range(4):
        for dt in range(2):
            c = vr(ZC + dt*4)
            kvm.append(f"{MF} {c}, {vr(acc(2*m, 2+dt))}, v[22:25], {'0' if m == 0 else c}")
    for m in range(4):
        for et in range(2):
            pack8(acc(2*m, 4 + et), acc(2*m + 1, 4 + et), acc(2*m, 4 + et))
            a(kvm.pop(0))
    for m in range(4):
        for dt in range(2):
            for et in range(2):
                c = vr(KV + dt*8 + et*4)
                a(f"{MF} {c}, {vr(acc(2*m, 2+dt))}, {vr(acc(2*m, 4+et))}, {'0' if m == 0 else c}")
    a("s_lshl_b32 s56, s38, 12")
    a(f"s_add_u32 s56, s56, {EX}")
    a("v_add_u32 v10, s56, v26")
    a("v_xor_b32 v11, 4096, v10")
    a("s_cmp_eq_u32 s39, 0")
    a("s_cbranch_scc1 K_EXW0")
    a(f"ds_write_b128 v10, {vr(ZC)} offset:2048")
    a(f"ds_write_b128 v10, {vr(KV)}")
    a(f"ds_write_b128 v10, {vr(KV+4)} offset:1024")
    a("s_waitcnt lgkmcnt(0)")
    for i in range(0, 8, 2):
        a(f"v_pk_mov_b32 {vr(KV+i, 2)}, {vr(KV+8+i, 2)}, {vr(KV+8+i, 2)} op_sel:[0,1]")
    for i in range(0, 4, 2):
        a(f"v_pk_mov_b32 {vr(ZC+i, 2)}, {vr(ZC+4+i, 2)}, {vr(ZC+4+i, 2)} op_sel:[0,1]")
    a("s_branch K_EXW1")
    a.label("K_EXW0")
    a(f"ds_write_b128 v10, {vr(ZC+4)} offset:2048")
    a("s_nop 2")
    a(f"ds_write_b128 v10, {vr(KV+8)}")
    a(f"ds_write_b128 v10, {vr(KV+12)} offset:1024")
    a("s_waitcnt lgkmcnt(0)")
    a.label("K_EXW1")
    lq.drained()
    a("s_barrier")
    a(f"ds_read_b128 {vr(KV+8)}, v11")
    a(f"ds_read_b128 {vr(KV+12)}, v11 offset:1024")
    a(f"ds_read_b128 {vr(ZC+4)}, v11 offset:2048")
    a("s_mov_b32 s56, 0x00010001")
    a("s_mov_b32 s57, 0x00010001")
    a("s_waitcnt lgkmcnt(0)")
    for i in range(0, 8, 2):
        a(f"v_pk_add_f32 {vr(KV+i, 2)}, {vr(KV+i, 2)}, {vr(KV+8+i, 2)}")
    for i in range(0, 4, 2):
        a(f"v_pk_add_f32 {vr(ZC+i, 2)}, {vr(ZC+i, 2)}, {vr(ZC+4+i, 2)}")
    for r in list(range(KV, KV + 8)) + list(range(ZC, ZC + 4)):
        a(f"v_min_u32 v{r}, -2, v{r}")
    vq.issue(f"buffer_store_dwordx4 {vr(KV)}, v26, s[24:27], s62 offen sc1", "P")
    vq.issue(f"buffer_store_dwordx4 {vr(KV+4)}, v26, s[24:27], s62 offen offset:1024 sc1", "P")
    a("s_mov_b64 exec, s[56:57]")
    vq.issue(f"buffer_store_dwordx4 {vr(ZC)}, v27, s[24:27], s62 offen offset:2048 sc1", "P")
    a("s_mov_b64 exec, -1")
    stamp(a, opt, 4)
    vq.need("C")
    a("s_mov_b32 s58, -1")
    a("s_mov_b32 s59, 0")
    a.label("K_HS")
    a("v_cmp_eq_u32 vcc, 8, v28")
    a("s_cmp_eq_u64 vcc, s[58:59]")
    a("s_cbranch_scc1 K_HSOK")
    a("s_sleep 2")
    a("v_lshlrev_b32 v10, 3, v1")
    a("buffer_load_dword v28, v10, s[28:31], 0 offen sc1")
    a("s_waitcnt vmcnt(0)")
    a("s_branch K_HS")
    a.label("K_HSOK")
    PB = [acc(p, 2) for p in range(8)]
    ZG = 48
    def gather_ops():
        ops = []
        for p in range(8):
            for k in range(2):
                ops.append(([f"s_add_u32 s56, s61, {p * 16384}"] if k == 0 else []) +
                           [("vm", f"buffer_load_dwordx4 {vr(PB[p] + 4*k)}, v26, s[24:27], s56 offen offset:{k*1024} sc1", "H")])
        ops.append([("vm", f"buffer_load_dwordx4 {vr(ZG)}, v30, s[24:27], s61 offen offset:2048 sc1", "H")])
        return ops
    def gather(track):
        for op in gather_ops():
            for x in op:
                a(x[1] if isinstance(x, tuple) else x)
    gops = gather_ops()
    qb = dmaB(12, 32768) + dmaB(13, 32768 + 4096)
    GQ = opt.get("gather_in_q", 0)
    if DEFER >= 2:
        for x in rdX(14, 0, lambda ks: fX(0, ks)):
            put(x)
    for rt in range(8):
        fill = {}
        ms = mf(15, rt, [0, 1], lambda ks: fXR(rt, ks)) if DEFER >= 1 else []
        if DEFER >= 2:
            ms += mf(14, rt, [0, 1], lambda ks: fX(rt % 2, ks))
            if rt < 7:
                fill[1] = rdX(14, rt + 1, lambda ks: fX((rt + 1) % 2, ks))
        fill.setdefault(2, []).extend(qb[rt])
        per = len(ms) // 4
        first_rt = 8 - -(-GQ // max(per, 1))
        if GQ and rt >= first_rt:
            k = min(per, GQ - (17 - len(gops)))
            spread(fill, gops[:k], 0, len(ms)); gops = gops[k:]
        weave(ms, fill)
    stamp(a, opt, 13)
    GSP = opt.get("gather_span", 7)
    for rt in range(8):
        k = -(-len(gops) // (GSP - rt)) if rt < GSP else 0
        phi8(acc(rt, 0), acc(rt, 1), acc(rt, 0), inter=gops[:k]); gops = gops[k:]
    gate_ld = [[("vm", f"buffer_load_dwordx4 {vr(acc(i, 1))}, v26, s[16:19], s60 offen offset:{i*1024}", "G")] for i in range(4)]
    gate_ld += [[("vm", f"buffer_load_dwordx4 {vr(acc(4 + i, 1))}, v26, s[32:35], 0 offen offset:{i*1024}", "G")] for i in range(2)]
    emit(gate_ld)
    stamp(a, opt, 5)
    S = 40
    vq.need("H")
    a.label("K_SUM")
    for i in range(0, 8, 2):
        a(f"v_pk_add_f32 {vr(S+i, 2)}, {vr(PB[0]+i, 2)}, {vr(PB[1]+i, 2)}")
    for i in range(4):
        a(f"v_add_f32_dpp v{52+i}, v{ZG+i}, v{ZG+i} quad_perm:[1,0,3,2] row_mask:0xf bank_mask:0xf")
    for p in range(2, 8):
        for i in range(0, 8, 2):
            a(f"v_pk_add_f32 {vr(S+i, 2)}, {vr(S+i, 2)}, {vr(PB[p]+i, 2)}")
        if p in (2, 3):
            ctrl = "quad_perm:[2,3,0,1]" if p == 2 else "row_half_mirror"
            for i in range(4):
                a(f"v_add_f32_dpp v{52+i}, v{52+i}, v{52+i} {ctrl} row_mask:0xf bank_mask:0xf")
    a(f"v_pk_add_f32 v[2:3], {vr(S, 2)}, {vr(S+2, 2)}")
    a(f"v_pk_add_f32 v[4:5], {vr(S+4, 2)}, {vr(S+6, 2)}")
    a(f"v_pk_add_f32 v[6:7], v[52:53], v[54:55]")
    a("v_pk_add_f32 v[2:3], v[2:3], v[4:5]")
    a("v_pk_add_f32 v[2:3], v[2:3], v[6:7]")
    a("v_cmp_u_f32 vcc, v2, v3")
    a("s_cbranch_vccz K_GOK")
    regs = [PB[p] + i for p in range(8) for i in range(8)] + [ZG + i for i in range(4)]
    a(f"v_max3_u32 v2, v{regs[0]}, v{regs[1]}, v{regs[2]}")
    regs = regs[3:]
    while regs:
        if len(regs) >= 2:
            a(f"v_max3_u32 v2, v2, v{regs[0]}, v{regs[1]}"); regs = regs[2:]
        else:
            a(f"v_max_u32 v2, v2, v{regs[0]}"); regs = regs[1:]
    a("v_cmp_eq_u32 vcc, -1, v2")
    a("s_cbranch_vccz K_GOK")
    if opt.get("stamps"):
        a("v_readlane_b32 s56, v31, 24")
        a("s_add_u32 s56, s56, 1")
        a("v_writelane_b32 v31, s56, 24")
    gather(False)
    a("s_waitcnt vmcnt(0)")
    a("s_branch K_SUM")
    a.label("K_GOK")
    stamp(a, opt, 6)
    for i in range(4):
        a(f"v_cvt_pk_bf16_f32 v{2+i}, v{S+2*i}, v{S+2*i+1}")
    a("v_cvt_pk_bf16_f32 v6, v52, v53")
    a("v_cvt_pk_bf16_f32 v7, v54, v55")
    a("s_mul_i32 s56, s40, 3072")
    a(f"s_add_u32 s56, s56, {EX2}")
    a("v_add_u32 v11, s56, v26")
    a("s_lshl_b32 s57, s39, 3")
    a("v_add_u32 v10, s57, v11")
    a("ds_write_b64 v10, v[6:7] offset:2048")
    a("ds_write_b64 v10, v[2:3]")
    a("ds_write_b64 v10, v[4:5] offset:1024")
    a("s_waitcnt lgkmcnt(0)")
    lq.drained()
    a("s_barrier")
    OPR = 40
    a(f"ds_read_b128 {vr(OPR+8)}, v11 offset:2048")
    a(f"ds_read_b128 {vr(OPR)}, v11")
    a(f"ds_read_b128 {vr(OPR+4)}, v11 offset:1024")
    a("s_waitcnt lgkmcnt(2)")
    for rt in range(8):
        a(f"{MF} {vr(acc(rt, 4))}, {vr(OPR+8)}, {vr(acc(rt, 0))}, 0")
    a("s_waitcnt lgkmcnt(0)")
    for rt in range(8):
        a(f"{MF} {vr(acc(rt, 2))}, {vr(OPR)}, {vr(acc(rt, 0))}, 0")
        a(f"{MF} {vr(acc(rt, 3))}, {vr(OPR+4)}, {vr(acc(rt, 0))}, 0")
        D = acc(rt, 4)
        a(f"v_add_f32 v{D}, v36, v{D}")
        a(f"v_rcp_f32 v{D}, v{D}")
    a("s_add_u32 s63, s65, 4096")
    for rt in range(8):
        N, D = acc(rt, 2), acc(rt, 4)
        for r in range(0, 8, 2):
            a(f"v_pk_mul_f32 {vr(N+r, 2)}, {vr(N+r, 2)}, {vr(D, 2)} op_sel_hi:[1,0]")
        for r in range(0, 8, 2):
            a(f"v_cvt_pk_bf16_f32 v{D+4+r//2}, v{N+r}, v{N+r+1}")
        vq.issue(f"buffer_store_dwordx4 {vr(D+4)}, v26, s[24:27], {'s65' if rt < 4 else 's63'} offen offset:{(rt % 4)*1024} sc1", "O")
    stamp(a, opt, 7)
    emit(dmaB(14, 0) + dmaB(15, 4096))
    for k in range(4):
        a(f"s_add_u32 s56, s38, {k + 1}")
        a("s_and_b32 s56, s56, 3")
        a("s_lshl_b32 s56, s56, 11")
        a(f"v_add_u32 v{2+k}, s56, v26")
    a("v_and_b32 v6, 31, v1")
    a("v_lshlrev_b32 v6, 2, v6")
    vq.need("G")
    for x in gate[1:] + gate2:
        a(x)
    srd(a, 16, 70, 2048 * 1024 * 2)
    a("v_add_u32 v7, s48, v26")
    a("v_add_u32 v8, 0x10000, v7")
    for j in range(3):
        a(f"s_xor_b32 s56, s38, {j + 1}")
        a("s_sub_u32 s57, s38, s56")
        a("s_sub_u32 s57, s57, 1")
        a("s_and_b32 s57, s57, 3")
        a("s_lshl_b32 s57, s57, 15")
        a("s_lshl_b32 s56, s56, 13")
        a("s_add_u32 s56, s56, s57")
        a(f"v_add_u32 v{9+j}, s56, v26")
    a("v_and_b32 v24, 15, v1")
    a("v_lshrrev_b32 v25, 4, v1")
    a("v_and_b32 v28, 1, v25")
    a("v_lshlrev_b32 v28, 5, v28")
    a("v_lshrrev_b32 v25, 1, v25")
    a("v_lshl_add_u32 v28, v25, 4, v28")
    a("v_lshl_add_u32 v14, v24, 11, v28")
    a("s_lshl_b32 s56, s50, 18")
    a("s_lshl_b32 s57, s38, 16")
    a("s_add_u32 s56, s56, s57")
    a("s_lshl_b32 s57, s51, 7")
    a("s_add_u32 s61, s56, s57")
    a(f"s_add_u32 s62, s61, {16*2048}")
    a("s_mov_b32 s60, 0")
    a("s_getpc_b64 s[66:67]")
    a.label("K_PC")
    a("s_add_u32 s66, s66, K_WAIT-K_PC")
    a("s_addc_u32 s67, s67, 0")
    D = 4
    P2 = 128
    def acc2(i, ct): return P2 + (i * 4 + ct) * 4
    def fA(slot, i): return AQ[slot * 8 + i]
    def fB(s_, ct): return 64 + s_ * 16 + ct * 4
    order = list(range(8, 16)) + list(range(8))
    for ct in range(4):
        a(f"v_subrev_u32 v{16+ct}, 0x10000, v{32+ct}")
    vq.need("B8")
    for x in breads(order[0], fB(0, 0), False):
        put(x)
    EP = opt.get("early_poll", 1)
    if EP:
        vq.issue("buffer_load_dword v44, v6, s[24:27], s54 offen sc1", "E")
    vq.need("O")
    a("s_mov_b64 exec, 1")
    vq.issue("buffer_store_dwordx2 v[38:39], v29, s[24:27], s55 offen sc1", "F")
    a("s_mov_b64 exec, -1")
    stamp(a, opt, 8)
    if EP:
        vq.need("E")
        a("v_cmp_ne_u32 vcc, -1, v44")
        a("s_lshr_b32 s57, vcc_lo, 1"); a("s_and_b32 s57, s57, vcc_lo"); a("s_or_b32 s60, s60, s57")
    SC = " sc1" if opt.get("a_sc1", 1) else ""
    def loadsA(n):
        b = order[n]
        ops = []
        for i in range(8):
            pre = [f"s_add_u32 s43, s53, {b*8192}"] if i == 0 else []
            off = " offset:1024" if i % 2 else ""
            ops.append(pre + [("vm", f"buffer_load_dwordx4 {ar(fA(n % D, i))}, v{2 + i // 2}, s[24:27], s43 offen{off}{SC}", f"A{n}")])
        return ops
    def check(n):
        b = order[n]
        a(f"s_bitcmp1_b32 s60, {2*b}")
        a(f"s_cbranch_scc1 K_RDY{n}")
        a(f"s_mov_b32 s59, {2*b}")
        a("s_swappc_b64 s[68:69], s[66:67]")
        a.label(f"K_RDY{n}")
        if n < 12:
            vq.issue(f"buffer_load_dword v{40 + n % 4}, v6, s[24:27], s54 offen sc1", f"P{n}")
        if n == 15:
            vq.issue("buffer_load_dword v20, v6, s[24:27], s54 offen sc1", "GF")
    for n in range(D):
        check(n)
        if n == 0:
            stamp(a, opt, 9)
        emit(loadsA(n))
    def redw(i):
        k = i // 2
        return [f"ds_write_b128 {'v7' if k < 2 else 'v8'}, {vr(acc2(i, ct))} offset:{(k % 2)*32768 + (i % 2)*4096 + ct*1024}" for ct in range(4)]
    for n in range(16):
        b = order[n]
        vq.need(f"A{n}")
        if n == 0:
            stamp(a, opt, 12)
        if n + D < 16:
            a(f"v_cmp_ne_u32 vcc, -1, v{40 + n % 4}")
            a("s_lshr_b32 s57, vcc_lo, 1"); a("s_and_b32 s57, s57, vcc_lo"); a("s_or_b32 s60, s60, s57")
            check(n + D)
        ms = []
        for i in range(8):
            for ct in range(4):
                c = vr(acc2(i, ct))
                Bop = vr(fB(n % 2, ct)) if b >= 8 else ar(RES[b] + ct * 4)
                ms.append(f"{MF} {c}, {Bop}, {ar(fA(n % D, i))}, {'0' if n == 0 else c}")
        fill = {}
        if n + 1 < 8:
            spread(fill, [[x] for x in breads(order[n + 1], fB((n + 1) % 2, 0), False)], 4, 20)
        if n + D < 16:
            la = loadsA(n + D)
            for i in range(8):
                fill.setdefault(4 * i + 3, []).extend(la[i])
        if n == 15:
            gf = ["v_mov_b32 v22, v20", "v_permlane16_swap_b32 v20, v22"]
            for r in (20, 22):
                gf += [f"v_sub_f32 v{r+1}, 1.0, v{r}", f"v_cvt_pk_bf16_f32 v{r+1}, v{r+1}, v{r+1}", f"v_and_b32 v{r+1}, 0xffff0000, v{r+1}"]
            gf += [["s_cmp_lt_u32 s38, 2", "s_cbranch_scc1 K_NOSWAP", "v_swap_b32 v20, v21", "v_swap_b32 v22, v23", "K_NOSWAP:"]]
            for k, x in enumerate(gf):
                fill.setdefault(k, []).extend(x if isinstance(x, list) else [x])
            for i in range(6):
                w = redw(i)
                for ct in range(4):
                    fill.setdefault(min(31, 4 * i + 9 + ct), []).append(w[ct])
        weave(ms, fill)
    stamp(a, opt, 14)
    a("s_waitcnt lgkmcnt(0)")
    a("s_barrier")
    R = 128
    for k in range(3):
        for j in range(8):
            a(f"ds_read_b128 {vr(R + k*32 + j*4)}, v{9+k} offset:{j*1024}")
    OWN = acc2(6, 0)
    a("s_waitcnt lgkmcnt(15)")
    for j in range(0, 32, 2):
        a(f"v_pk_add_f32 {vr(OWN+j, 2)}, {vr(OWN+j, 2)}, {vr(R+j, 2)}")
    for j in range(0, 32, 2):
        gsel = 20 if j < 16 else 22
        a(f"v_pk_mul_f32 {vr(OWN+j, 2)}, {vr(OWN+j, 2)}, {vr(gsel, 2)} op_sel_hi:[1,0]")
    a("s_waitcnt lgkmcnt(0)")
    for pr in range(4):
        for j in range(8 * pr, 8 * pr + 8, 2):
            a(f"v_pk_add_f32 {vr(R+32+j, 2)}, {vr(R+32+j, 2)}, {vr(R+64+j, 2)}")
        for j in range(8 * pr, 8 * pr + 8, 2):
            gsel = 20 if j < 16 else 22
            a(f"v_pk_fma_f32 {vr(OWN+j, 2)}, {vr(R+32+j, 2)}, {vr(gsel, 2)}, {vr(OWN+j, 2)} op_sel:[0,1,0] op_sel_hi:[1,1,1]")
        b = 64 + 4 * pr
        for j in range(4):
            a(f"v_cvt_pk_bf16_f32 v{b+j}, v{OWN+8*pr+2*j}, v{OWN+8*pr+2*j+1}")
        a(f"v_permlane16_swap_b32 v{b}, v{b+2}")
        a(f"v_permlane16_swap_b32 v{b+1}, v{b+3}")
        a(f"buffer_store_dwordx4 {vr(b)}, v14, s[16:19], {'s61' if pr < 2 else 's62'} offen offset:{(pr % 2)*64}")
    stamp(a, opt, 15)
    stamp_out(a, opt, 0)
    a.label("K_END")
    a("s_endpgm")
    a.label("K_WAIT")
    a("buffer_load_dword v44, v6, s[24:27], s54 offen sc1")
    if opt.get("stamps"):
        a("v_readlane_b32 s56, v31, 23")
        a("s_add_u32 s56, s56, 1")
        a("v_writelane_b32 v31, s56, 23")
    a("s_waitcnt vmcnt(0)")
    a("v_cmp_ne_u32 vcc, -1, v44")
    a("s_lshr_b32 s57, vcc_lo, 1"); a("s_and_b32 s57, s57, vcc_lo"); a("s_or_b32 s60, s60, s57")
    a("s_bitcmp1_b32 s60, s59")
    a("s_cbranch_scc0 K_WAIT")
    a("s_setpc_b64 s[68:69]")

def build(opt):
    a = Asm()
    gen(a, opt)
    out = HEADER + "; @launch grid=(256,1,1) block=(256,1,1) lds=163840\n"
    out += '.amdgcn_target "amdgcn-amd-amdhsa--gfx950"\n.text\n' + a.text() + '.section .rodata,"a"\n' + kd(KNAME, 512, 96, 256)
    return out

if __name__ == "__main__":
    opt = {}
    for kv in sys.argv[2:]:
        k, v = kv.split("=")
        try:
            v = eval(v)
        except Exception:
            pass
        opt[k] = v
    open(sys.argv[1], "w").write(build(opt))
```

```python
import sys, struct
from asmlib import Asm, Ins, regs_of
from gen import f2u, LdsQ, kd, srd, stamp, stamp_out, HEADER, WS_DIAG, WS_SIZE, WS_SLOT, WS_G, LOG2E, EPS

MF = "v_mfma_f32_16x16x32_bf16"
WS_WOF = 16 << 20
WS_TOT = 20 << 20
KNAME = "gated_mix__linear_attn_block__linear_attn_block__prompt_kernel"
def vr(b, n=4): return f"v[{b}:{b+n-1}]"
def ar(b, n=4): return f"a[{b}:{b+n-1}]"

class VmQ:
    def __init__(self, a):
        self.a = a; self.q = []
    def issue(self, text, tag):
        self.a(text); self.q.append(tag)
    def count(self, tags):
        idx = -1
        for i, t in enumerate(self.q):
            if t in tags:
                idx = i
        if idx < 0:
            return None
        return min(len(self.q) - idx - 1, 63)
    def need(self, *tags, extra=""):
        n = self.count(tags)
        if n is None:
            if extra:
                self.a(f"s_waitcnt {extra}")
            return
        self.a(f"s_waitcnt vmcnt({n}) {extra}".rstrip())
        self.q = self.q[len(self.q) - n:] if n else []
    def drained(self):
        self.q = []

def gen(a, opt):
    lq = LdsQ(a); vq = VmQ(a)
    def put(x):
        if isinstance(x, tuple):
            if x[0] == "ds":
                lq.issue(x[1])
            elif x[0] == "vm":
                vq.issue(x[1], x[2])
            elif x[0] == "needvm":
                vq.need(*x[1])
            elif x[0] == "needds":
                lq.need(x[1])
        else:
            a(x)
    def weave(mf, fill):
        for g, m in enumerate(mf):
            lq.need(Ins(m).srcAB)
            a(m)
            for x in fill.get(g, []):
                put(x)
    def spread(fill, items, start, end):
        n = len(items)
        for i, it in enumerate(items):
            fill.setdefault(start + (i * (end - start)) // n, []).extend(it)

    XB = [0, 32768]
    WB = [65536 + 24576 * s for s in range(3)]
    EX = 139264
    EX2 = EX + 16384
    ACC = 64
    def acc(rt, ct): return ACC + (rt * 6 + ct) * 4
    def fW(st, ct, ks): return 48 * (st % 2) + (ct * 2 + ks) * 4
    def fX(e, ks): return 96 + e * 8 + ks * 4
    def fXR(rt, ks): return 112 + rt * 8 + ks * 4
    a.raw(f".globl {KNAME}\n.p2align 8\n.type {KNAME},@function")
    a.label(KNAME)
    a("s_cmp_ge_u32 s2, 256")
    a("s_cbranch_scc1 K_END")
    a("s_load_dwordx4 s[4:7], s[0:1], 0")
    a("s_load_dwordx2 s[8:9], s[0:1], 32")
    a("s_load_dwordx4 s[68:71], s[0:1], 48")
    a("s_load_dwordx4 s[12:15], s[0:1], 64")
    a("s_load_dwordx2 s[74:75], s[0:1], 16")
    a("s_load_dwordx2 s[76:77], s[0:1], 40")
    if opt.get("stamps"):
        a("v_mov_b32 v31, 0")
    stamp(a, opt, 30, real=True)
    stamp(a, opt, 0)
    a("v_lshrrev_b32 v21, 6, v0")
    a("v_and_b32 v1, 63, v0")
    a("v_readfirstlane_b32 s38, v21")
    a("s_and_b32 s56, s2, 7")
    a("s_lshr_b32 s57, s2, 3")
    if opt.get("k1map", "A") == "A":
        a("s_and_b32 s36, s57, 7")
        a("s_lshr_b32 s58, s57, 3")
        a("s_lshl_b32 s37, s56, 2")
        a("s_add_u32 s37, s37, s58")
    else:
        a("s_and_b32 s36, s56, 1")
        a("s_lshl_b32 s36, s36, 2")
        a("s_and_b32 s58, s57, 3")
        a("s_add_u32 s36, s36, s58")
        a("s_lshr_b32 s37, s56, 1")
        a("s_lshl_b32 s37, s37, 3")
        a("s_lshr_b32 s58, s57, 2")
        a("s_add_u32 s37, s37, s58")
    a("s_and_b32 s39, s38, 1")
    a("s_lshr_b32 s40, s38, 1")
    a("s_and_b32 s41, s37, 15")
    a("s_lshr_b32 s42, s37, 4")
    a("v_lshrrev_b32 v21, 3, v1")
    a("v_and_b32 v22, 7, v1")
    a("v_lshrrev_b32 v23, 4, v1")
    a("v_and_b32 v24, 1, v23")
    a("v_lshlrev_b32 v24, 2, v24")
    a("v_xor_b32 v24, v22, v24")
    a("v_lshlrev_b32 v24, 4, v24")
    a("v_mul_u32_u24 v25, 6144, v21")
    a("v_add_u32 v24, v24, v25")
    a("v_xor_b32 v25, 32, v24")
    a("s_mul_i32 s56, s38, 6")
    a("s_lshl_b32 s59, s41, 7")
    for i in range(6):
        a(f"s_add_u32 s57, s56, {i}")
        a("s_lshr_b32 s58, s57, 3")
        a("s_and_b32 s57, s57, 7")
        a(f"s_mul_i32 s57, s57, {8*6144}")
        a("s_lshl_b32 s58, s58, 11")
        a("s_add_u32 s57, s57, s58")
        a("s_add_u32 s57, s57, s59")
        if i % 4:
            a(f"s_sub_u32 s57, s57, {(i % 4) * 1024}")
        a(f"v_add_u32 v{10+i}, s57, {'v24' if i % 2 == 0 else 'v25'}")
    a("v_xor_b32 v24, v22, v23")
    a("v_lshlrev_b32 v24, 4, v24")
    a("v_lshl_add_u32 v24, v21, 11, v24")
    a("s_lshl_b32 s56, s36, 19")
    a("s_lshl_b32 s57, s40, 18")
    a("s_add_u32 s56, s56, s57")
    a("s_lshl_b32 s57, s39, 16")
    a("s_add_u32 s56, s56, s57")
    a("v_add_u32 v2, s56, v24")
    a("v_xor_b32 v25, 64, v2")
    for i in range(1, 8):
        src = "v2" if i % 2 == 0 else "v25"
        a(f"v_add_u32 v{2+i}, {(i % 4)*16384 + (i // 4)*131072 - (i % 4) * 1024}, {src}")
    a("s_lshl_b32 s48, s38, 13")
    a("s_lshl_b32 s45, s40, 14")
    a("s_lshl_b32 s57, s39, 12")
    a("s_add_u32 s45, s45, s57")
    a("s_mov_b32 s72, 0")
    a("s_mul_i32 s49, s38, 6144")
    a("s_mov_b32 s43, 0")
    a("s_mov_b32 s44, 0")
    a("s_waitcnt lgkmcnt(0)")
    srd(a, 16, 4, 2048 * 1024 * 2)
    a("s_cmp_eq_u32 s42, 0")
    a("s_cselect_b32 s56, s6, s8")
    a("s_cselect_b32 s57, s7, s9")
    srd(a, 20, 56, 1024 * 3072 * 2)
    stamp(a, opt, 10)

    def dmaXh(t, h):
        ops = []
        so = "s43" if h == 0 else "s72"
        for i in range(4 * h, 4 * h + 4):
            pre = [f"s_add_u32 m0, s45, {XB[t % 2] + h * 8192}"] if i % 4 == 0 else []
            off = f" offset:{(i % 4) * 1024}" if i % 4 else ""
            ops.append(pre + [("vm", f"buffer_load_dwordx4 v{2+i}, s[16:19], {so} offen{off} lds", f"X{t}{'ab'[h]}")])
        ops[3].append(f"s_add_u32 {so}, {so}, 128")
        return ops
    def dmaX(t):
        return dmaXh(t, 0) + dmaXh(t, 1)
    def dmaW(t):
        ops = []
        for i in range(6):
            pre = [f"s_add_u32 m0, s49, {WB[t % 3] + (i // 4) * 4096}"] if i % 4 == 0 else []
            off = f" offset:{(i % 4) * 1024}" if i % 4 else ""
            ops.append(pre + [("vm", f"buffer_load_dwordx4 v{10+i}, s[20:23], s44 offen{off} lds", f"W{t}")])
        ops[5].append(f"s_add_u32 s44, s44, {64*6144}")
        return ops
    def emit(groups):
        for op in groups:
            for x in op:
                put(x)
    emit(dmaW(0) + dmaX(0))
    stamp(a, opt, 11)
    srd(a, 24, 14, WS_TOT)
    srd(a, 28, 12, 256)
    srd(a, 32, 68, 2048)
    a("v_lshlrev_b32 v26, 4, v1")
    a("s_lshl_b32 s46, s37, 1")
    a("s_add_u32 s46, s46, s40")
    a("s_lshl_b32 s47, s36, 1")
    a("s_add_u32 s47, s47, s39")
    a("s_lshl_b32 s56, s47, 7")
    a("s_lshl_b32 s57, s46, 1")
    a("s_add_u32 s56, s56, s57")
    a("s_lshl_b32 s60, s56, 11")
    a("s_lshl_b32 s55, s56, 2")
    a(f"s_add_u32 s55, s55, {WS_G}")
    a("s_lshl_b32 s56, s47, 19")
    a("s_lshl_b32 s57, s46, 13")
    a("s_add_u32 s65, s56, s57")
    a("s_lshl_b32 s56, s37, 17")
    a("s_lshl_b32 s57, s38, 12")
    a("s_add_u32 s61, s56, s57")
    a(f"s_add_u32 s61, s61, {WS_SLOT}")
    a("s_lshl_b32 s57, s36, 14")
    a("s_add_u32 s62, s61, s57")
    a("v_lshrrev_b32 v27, 4, v1")
    a("v_lshlrev_b32 v27, 4, v27")
    a("v_and_b32 v30, 7, v1")
    a("v_lshl_add_u32 v30, v30, 14, v27")
    a("s_lshl_b32 s63, s37, 3")
    for i in range(4):
        a(f"v_mov_b32 v{32+i}, -1")
    a("v_lshlrev_b32 v38, 7, v1")
    a("v_mov_b32 v28, 1")
    a("v_mov_b32 v29, 0")
    a("v_and_b32 v21, 15, v1")
    a("v_lshrrev_b32 v22, 4, v1")
    a("v_bfe_u32 v23, v1, 1, 3")
    a("v_xor_b32 v23, v23, v22")
    a("v_lshlrev_b32 v23, 4, v23")
    a("v_lshl_add_u32 v23, v21, 7, v23")
    a("s_lshl_b32 s56, s39, 14")
    a("v_add_u32 v16, s56, v23")
    a("v_xor_b32 v17, 64, v16")
    a("v_bfe_u32 v23, v1, 2, 2")
    a("v_lshl_add_u32 v24, v22, 3, v23")
    a("v_lshlrev_b32 v24, 7, v24")
    a("v_bfe_u32 v25, v1, 1, 1")
    a("s_lshl_b32 s56, s40, 2")
    a("v_or_b32 v25, s56, v25")
    a("v_and_b32 v36, 2, v23")
    a("v_lshlrev_b32 v36, 1, v36")
    a("v_xor_b32 v25, v25, v36")
    a("v_and_b32 v36, 1, v22")
    a("v_lshlrev_b32 v36, 1, v36")
    a("v_xor_b32 v25, v25, v36")
    a("v_lshl_add_u32 v24, v25, 4, v24")
    a("v_and_b32 v36, 1, v1")
    a("v_lshl_add_u32 v24, v36, 3, v24")
    a("v_xor_b32 v25, 32, v24")
    for s in range(3):
        a(f"v_add_u32 v{18+2*s}, {WB[s]}, v24")
        a(f"v_add_u32 v{19+2*s}, {WB[s]}, v25")
    a(f"v_mov_b32 v36, 0x{f2u(EPS):08x}")
    a(f"v_mov_b32 v37, v36")
    for rt in range(8):
        for r in range(0, 16, 2):
            a(f"v_pk_mov_b32 {vr(acc(rt, 0) + r, 2)}, v[36:37], v[36:37]")
    if opt.get("wpace", 6):
        a("s_lshl_b32 s56, s2, 2")
        a("s_add_u32 s56, s56, s38")
        a("s_bitcmp1_b32 s56, 3")
        a("s_cselect_b32 s84, s8, s6")
        a("s_cselect_b32 s85, s9, s7")
        a("s_and_b32 s85, s85, 0xffff")
        a(f"s_mov_b32 s86, {1024*3072*2}")
        a("s_mov_b32 s87, 0x00020000")
        a("s_lshr_b32 s57, s56, 4")
        a(f"s_add_u32 s57, s57, {64*opt.get('wpace', 6)}")
        a("s_mul_i32 s73, s57, 6144")
        a("s_and_b32 s57, s56, 7")
        a("s_mul_i32 s57, s57, 768")
        a("s_add_u32 s73, s73, s57")
        pass
    if opt.get("ctouch", 1):
        a("s_getpc_b64 s[56:57]")
        a.label("K_CT")
        a(f"s_sub_u32 s56, s56, K_CT-{KNAME}")
        a("s_subb_u32 s57, s57, 0")
        a("s_lshr_b32 s58, s2, 3")
        a("s_lshl_b32 s58, s58, 2")
        a("s_add_u32 s58, s58, s38")
        a("s_mul_i32 s58, s58, 384")
        a("v_add_u32 v40, s58, v38")
        a(f"v_min_u32 v40, K_LAST-{KNAME}, v40")
        a("s_mov_b64 exec, 7")
        vq.issue("global_load_dword v39, v40, s[56:57]", "T")
        a("s_mov_b64 exec, -1")
    PRE = opt.get("pre", "W1")
    pre_list = {"none": [], "W1": dmaW(1), "W1X1": dmaW(1) + dmaX(1)}[PRE]
    emit(pre_list)
    if opt.get("xsp"):
        m = opt["xsp"]
        emit([[f"s_mov_b32 exec_lo, 0x{m | (m << 16):x}", "s_mov_b32 exec_hi, 0", ("vm", "buffer_load_dword v39, v38, s[16:19], s60 offen", "T"), "s_mov_b64 exec, -1"]])
    stamp(a, opt, 1)

    def rdW(t):
        ops = []
        for ct in range(6):
            for ks in range(2):
                for sub in range(2):
                    r = fW(t, ct, ks) + 2 * sub
                    ops.append(("ds", f"ds_read_b64_tr_b16 {ar(r, 2)}, v{18 + 2*(t % 3) + (ct & 1)} offset:{(ct >> 1)*8192 + ks*4096 + sub*512}"))
        return ops
    def rdX(t, rt, dst):
        return [("ds", f"ds_read_b128 {ar(dst(ks))}, v{16+ks} offset:{XB[t % 2] + rt*2048}") for ks in range(2)]
    def mf(t, rt, cts, X):
        out = []
        for ct in cts:
            for ks in range(2):
                W = ar(fW(t, ct, ks))
                A, B = (W, ar(X(ks))) if ct < 2 else (ar(X(ks)), W)
                c = vr(acc(rt, ct))
                cin = "0" if (t == 0 and ks == 0 and ct >= 4) else c
                out.append(f"{MF} {c}, {A}, {B}, {cin}")
        return out
    DEFER = opt.get("defer", 2)
    HST = opt.get("hst", 5)
    DSP = opt.get("dma_per_block", 3)
    def cts_of(t): return [2, 3, 4, 5] if t >= 16 - DEFER else [0, 1, 2, 3, 4, 5]
    def Xreg(t, rt): return (lambda ks: fXR(rt, ks)) if t == 15 else (lambda ks: fX(rt % 2, ks))
    def blocks(seq, pend, wreads, front=None, valu=()):
        pend = list(pend); wreads = list(wreads); valu = list(valu)
        for n, (t, rt) in enumerate(seq):
            cts = cts_of(t)
            nb = len(cts) * 2
            fill = {}
            if rt < 7:
                nx = rdX(t, rt + 1, Xreg(t, rt + 1))
            elif t < 15:
                nx = rdX(t + 1, 0, Xreg(t + 1, 0))
            else:
                nx = []
            items = [[x] for x in nx]
            left_w = len([1 for (_, r) in seq[n:] if r < 7])
            if rt < 7 and wreads:
                k = -(-len(wreads) // left_w)
                items += [[x] for x in wreads[:k]]
                wreads = wreads[k:]
            if n == 0 and front:
                fill[0] = list(front)
            spread(fill, items, 0, nb - 1)
            k = min(len(pend), max(DSP, -(-len(pend) // (len(seq) - n))))
            spread(fill, pend[:k], 1, nb)
            pend = pend[k:]
            k = -(-len(valu) // (len(seq) - n))
            spread(fill, [x if isinstance(x, list) else [x] for x in valu[:k]], 0, nb)
            valu = valu[k:]
            weave(mf(t, rt, cts, Xreg(t, rt)), fill)
        assert not pend and not wreads and not valu

    vq.need("W0", "X0a")
    a("s_barrier")
    stamp(a, opt, 2)
    stamp(a, opt, 25, real=True)
    w0 = rdW(0)
    for x in w0[:4] + rdX(0, 0, lambda ks: fX(0, ks)) + w0[4:13]:
        put(x)
    sent = [[("vm", "buffer_store_dwordx4 v[32:35], v26, s[24:27], s62 offen sc1", "S")],
            [("vm", "buffer_store_dwordx4 v[32:35], v26, s[24:27], s62 offen offset:1024 sc1", "S")],
            [("vm", "buffer_store_dwordx4 v[32:35], v27, s[24:27], s62 offen offset:2048 sc1", "S")],
            [("vm", "buffer_store_dwordx2 v[32:33], v29, s[24:27], s55 offen sc1", "S")]]
    rest0 = ([] if PRE != "none" else dmaW(1)) + ([] if PRE == "W1X1" else dmaXh(1, 0)) + dmaW(2) + ([] if PRE == "W1X1" else dmaXh(1, 1))
    k0 = min(len(rest0), opt.get("k0", 10))
    blocks([(0, r) for r in range(3)], rest0[:k0], [], front=w0[13:])
    vq.need("W1", "X0b", extra="lgkmcnt(0)")
    lq.drained()
    a("s_barrier")
    x0 = []
    if opt.get("xs0"):
        m = opt["xs0"]
        x0 = [[f"s_mov_b32 exec_lo, 0x{m | (m << 16):x}", "s_mov_b32 exec_hi, 0", ("vm", "buffer_load_dword v39, v38, s[16:19], s60 offen", "T"), "s_mov_b64 exec, -1"]]
    blocks([(0, r) for r in range(3, 7)], rest0[k0:] + dmaXh(2, 0) + dmaW(3) + x0, rdW(1))

    def window1(t, extra=(), last=False, valu=(), first=()):
        vq.need(f"X{t+1}a", f"X{t+1}b", f"W{t+2}", *( ["S"] if t == HST else []), extra="lgkmcnt(0)")
        lq.drained()
        a("s_barrier")
        if opt.get("wstamps"):
            stamp(a, opt, 32 + t)
        pend = list(first)
        if t + 2 <= 15:
            pend += dmaX(t + 2) if t > 0 else dmaXh(2, 1)
        if t + 4 <= 15:
            pend += dmaW(t + 4)
        pend += list(extra)
        seq = [(t, 7)] + [(t + 1, r) for r in range(8 if last else 7)]
        blocks(seq, pend, rdW(t + 2) if t + 2 <= 15 else [], valu=valu)

    def window(t, extra=(), last=False, valu=(), first=()):
        if not opt.get("mid", 0):
            return window1(t, extra, last, valu, first)
        vq.need(f"X{t+1}a", f"W{t+2}", *( ["S"] if t == HST else []), extra="lgkmcnt(0)")
        lq.drained()
        a("s_barrier")
        if opt.get("wstamps"):
            stamp(a, opt, 32 + t)
        pend = list(first)
        if t + 2 <= 15:
            pend += dmaXh(t + 2, 1)
        wd = dmaW(t + 4) if t + 4 <= 15 else []
        pend += wd[:4]
        wr = rdW(t + 2) if t + 2 <= 15 else []
        valu = list(valu); extra = list(extra)
        nv = len(valu) // 2
        ne = len(extra) // 2 if last else 0
        blocks([(t, 7)] + [(t + 1, r) for r in range(3)], pend + extra[:ne], wr[:10], valu=valu[:nv])
        vq.need(f"X{t+1}b")
        lq.need(regs_of(ar(Xreg(t + 1, 3)(0), 8)))
        a("s_barrier")
        pend = []
        if t + 3 <= 15:
            pend += dmaXh(t + 3, 0)
        if wd:
            wd[4] = [f"s_add_u32 m0, s49, {WB[(t + 4) % 3] + 4096}"] + wd[4][1:]
        pend += wd[4:] + extra[ne:]
        blocks([(t + 1, r) for r in range(3, 8 if last else 7)], pend, wr[10:], valu=valu[nv:])

    hs = ["s_cmp_lg_u32 s38, 0", "s_cbranch_scc1 K_NOATOM", "s_mov_b64 exec, 1",
          "buffer_atomic_add v28, v29, s[28:31], s63 offen sc1", "s_mov_b64 exec, -1", "K_NOATOM:"]
    G = 64
    gate = [("needvm", ["G"]), "v_mov_b32 v38, 0", "v_mov_b32 v39, 0"]
    for i in range(8):
        gr = lambda j: acc(j // 4, 1) + j % 4
        gate.append(f"v_dot2_f32_bf16 v38, v{gr(i)}, v{gr(16+i)}, v38")
        gate.append(f"v_dot2_f32_bf16 v39, v{gr(8+i)}, v{gr(16+i)}, v39")
    for ctrl in ("quad_perm:[1,0,3,2]", "quad_perm:[2,3,0,1]", "row_half_mirror", "row_mirror"):
        for r in (38, 39):
            gate.append(f"v_add_f32_dpp v{r}, v{r}, v{r} {ctrl} row_mask:0xf bank_mask:0xf")
    gate2 = []
    for r in (38, 39):
        for k, ln in enumerate((0, 16, 32, 48)):
            gate2.append(f"v_readlane_b32 s{4 + (r-38)*4 + k}, v{r}, {ln}")
    for r, s0 in ((38, 4), (39, 8)):
        gate2 += [f"v_mov_b32 v{r}, s{s0}", f"v_add_f32 v{r}, s{s0+1}, v{r}", f"v_add_f32 v{r}, s{s0+2}, v{r}", f"v_add_f32 v{r}, s{s0+3}, v{r}"]
    for ops in (["v_cvt_pk_bf16_f32 v{r}, v{r}, v{r}", "v_and_b32 v{r}, 0xffff0000, v{r}", "v_mul_f32 v{r}, 0x%08x, v{r}" % f2u(-LOG2E),
                 "v_exp_f32 v{r}, v{r}", "v_add_f32 v{r}, 1.0, v{r}", "v_rcp_f32 v{r}, v{r}", "v_cvt_pk_bf16_f32 v{r}, v{r}, v{r}",
                 "v_and_b32 v{r}, 0xffff0000, v{r}"]):
        for r in (38, 39):
            gate2.append(ops.format(r=r))

    p2 = ["s_and_b32 s56, s2, 7", "s_lshr_b32 s57, s2, 3",
          "s_and_b32 s50, s56, 3", "s_lshl_b32 s50, s50, 2", "s_and_b32 s58, s57, 3", "s_add_u32 s50, s50, s58",
          "s_lshr_b32 s51, s56, 2", "s_lshl_b32 s51, s51, 3", "s_lshr_b32 s58, s57, 2", "s_add_u32 s51, s51, s58",
          ["s_cmp_lt_u32 s38, 2", "s_cselect_b32 s80, s74, s76", "s_cselect_b32 s81, s75, s77"],
          "s_and_b32 s81, s81, 0xffff", f"s_mov_b32 s82, {1024*1024*2}", "s_mov_b32 s83, 0x00020000",
          "s_lshl_b32 s52, s39, 20", "s_lshl_b32 s56, s51, 7", "s_add_u32 s52, s52, s56",
          "s_lshl_b32 s53, s50, 19", "s_lshl_b32 s56, s38, 17", "s_add_u32 s53, s53, s56",
          "s_lshl_b32 s56, s50, 9", "s_lshl_b32 s57, s38, 7", "s_add_u32 s56, s56, s57", f"s_add_u32 s54, s56, {WS_G}",
          "v_lshrrev_b32 v48, 3, v1", "v_and_b32 v49, 7, v1", "v_bfe_u32 v50, v1, 4, 1", "v_lshlrev_b32 v50, 2, v50",
          "v_xor_b32 v49, v49, v50", "v_bfe_u32 v50, v1, 5, 1", "v_lshlrev_b32 v50, 1, v50", "v_xor_b32 v49, v49, v50",
          "v_lshlrev_b32 v49, 4, v49", "v_lshl_add_u32 v40, v48, 11, v49"]
    p2 += [f"v_add_u32 v{40+i}, {i*(8*2048 - 1024)}, v40" for i in range(1, 4)]
    p2 += ["s_lshl_b32 s64, s38, 12", f"s_add_u32 s64, s64, {EX}"]
    p2b = ["v_lshrrev_b32 v48, 4, v1", "v_bfe_u32 v49, v1, 2, 2", "v_lshl_add_u32 v50, v48, 2, v49", "v_lshlrev_b32 v50, 7, v50",
           "v_bfe_u32 v51, v1, 1, 1", "v_and_b32 v52, 2, v49", "v_lshlrev_b32 v52, 1, v52", "v_xor_b32 v51, v51, v52",
           "v_and_b32 v52, 1, v48", "v_lshlrev_b32 v52, 1, v52", "v_xor_b32 v51, v51, v52", "v_lshl_add_u32 v50, v51, 4, v50",
           "v_and_b32 v52, 1, v1", "v_lshl_add_u32 v50, v52, 3, v50", "v_add_u32 v44, s64, v50"]
    p2b += [f"v_xor_b32 v{44+ct}, {ct*32}, v44" for ct in range(1, 4)]
    p2b += ["v_lshlrev_b32 v53, 3, v1"]
    p2c = [f"v_mov_b32 v{12+i}, v{40+i}" for i in range(4)] + ["s_add_u32 s56, s48, 0x10000", "v_add_u32 v32, s56, v50"]
    p2c += [f"v_xor_b32 v{32+ct}, {ct*32}, v32" for ct in range(1, 4)]
    SLOT = {}
    RES = {0: 176, 1: 192, 2: 208, 3: 224, 4: 240, 5: 16, 6: 32, 7: 64}
    AQ = [q for q in range(0, 256, 4) if not any(r <= q < r + 16 for r in RES.values())]
    assert len(AQ) == 32
    def dmaB(b, slot):
        SLOT[b] = slot
        ops = []
        for j in range(4):
            off = f" offset:{j*1024}" if j else ""
            m0 = "s_mov_b32 m0, s64" if slot is None else f"s_add_u32 m0, s48, {slot}"
            ops.append(([m0] if j == 0 else []) +
                       [("vm", f"buffer_load_dwordx4 v{(40 if slot is None else 12)+j}, s[80:83], s52 offen{off} lds", f"B{b}")])
        ops[-1].append("s_add_u32 s52, s52, 65536")
        return ops
    def breads(b, dst, agpr):
        sl = SLOT[b]
        base = 44 if sl is None else (32 if sl >= 65536 else 16)
        o = 0 if sl is None else sl % 65536
        return [("ds", f"ds_read_b64_tr_b16 {(ar if agpr else vr)(dst + ct*4 + 2*sub, 2)}, v{base+ct} offset:{o + sub*2048}")
                for ct in range(4) for sub in range(2)]
    PD = opt.get("wpace", 6)
    def wp():
        return ["s_mov_b64 exec, 0x3f", ("vm", "buffer_load_dword v39, v38, s[84:87], s73 offen", "T"), "s_mov_b64 exec, -1",
                f"s_add_u32 s73, s73, {64*6144}"]
    wt_setup = [["s_bitcmp1_b32 s38, 0", "s_cselect_b32 s92, s76, s74", "s_cselect_b32 s93, s77, s75"], "s_and_b32 s93, s93, 0xffff",
                f"s_mov_b32 s94, {1024*1024*2}", "s_mov_b32 s95, 0x00020000",
                "s_lshl_b32 s78, s2, 1", "s_add_u32 s78, s78, s40", "s_lshl_b32 s78, s78, 12"]
    WTN, WT0 = opt.get("wtn", 4), opt.get("wt0", 9)
    def wt(k):
        n = 32 // WTN
        return [f"s_mov_b64 exec, 0x{(1 << n) - 1:x}",
                ("vm", f"buffer_load_dword v39, v38, s[92:95], s78 offen offset:{k*n*128}", "T"), "s_mov_b64 exec, -1"]
    xs = opt.get("xsplit", {0: 0x0030, 1: 0x00c0, 2: 0x0300, 3: 0x0c00, 4: 0x3000, 5: 0xc000})
    ST0 = opt.get("st0", 3)
    sw = opt.get("sent_w", [1, 2, 3, 3])
    for t in range(15):
        kw = {"extra": [], "valu": []}
        if xs and t in xs:
            m = xs[t]
            kw["extra"] += [[f"s_mov_b32 exec_lo, 0x{m | (m << 16):x}", "s_mov_b32 exec_hi, 0", ("vm", "buffer_load_dword v39, v38, s[16:19], s60 offen", "T"), "s_mov_b64 exec, -1"]]
        if PD and t + PD <= 15: kw["extra"] += [wp()]
        if t == ST0 - 2: kw["valu"] += p2
        if t == ST0 - 1: kw["valu"] += p2b
        for k in range(4):
            if sw[k] == t: kw["extra"] += [sent[k]]
        if t == HST: kw["extra"] += [hs]
        if t == WT0 - 1: kw["valu"] += wt_setup
        if WT0 <= t < WT0 + WTN: kw["extra"] += [wt(t - WT0)]
        if ST0 <= t < ST0 + 10:
            b = (t - ST0) // 2
            if (t - ST0) % 2 == 0:
                kw["extra"] += dmaB(b, None)
            else:
                kw["valu"] += [[]] * 12 + [("needvm", [f"B{b}"])] + breads(b, RES[b], True)
        if t == 13:
            kw["valu"] += p2c
            kw["extra"] += [[("vm", "buffer_load_dword v28, v53, s[28:31], 0 offen sc1", "C")]]
        if t == 14:
            kw["extra"] += dmaB(5, 65536) + dmaB(6, 65536 + 4096) + dmaB(7, 98304) + dmaB(8, 98304 + 4096)
            kw["last"] = True
        window(t, **kw)
    stamp(a, opt, 3)
    stamp(a, opt, 26, real=True)

    a(f"s_mov_b32 s66, 0x{f2u(LOG2E):08x}")
    a(f"s_mov_b32 s67, 0x{f2u(LOG2E):08x}")
    a(f"v_mov_b32 v20, 0x{f2u(-EPS * LOG2E):08x}")
    a("v_mov_b32 v21, v20")
    for i in range(4):
        a(f"v_mov_b32 v{22+i}, 0x3f803f80")
    KV, ZC = 40, 56
    T0 = 2
    def phi8(b0, b1, dst, inter=()):
        src = [b0, b0 + 2, b1, b1 + 2]
        L = []
        for i, s in enumerate(src):
            L.append(f"v_pk_fma_f32 {vr(T0 + 2*i, 2)}, {vr(s, 2)}, s[66:67], v[20:21]")
        for i in range(8):
            L.append(f"v_exp_f32_e64 v{T0+i}, v{T0+i} clamp")
        for s in src:
            L.append(f"v_max_f32 v{s}, v36, v{s}")
            L.append(f"v_max_f32 v{s+1}, v36, v{s+1}")
        for i, s in enumerate(src):
            L.append(f"v_pk_add_f32 {vr(T0 + 2*i, 2)}, {vr(s, 2)}, {vr(T0 + 2*i, 2)}")
        for i in range(4):
            L.append(f"v_cvt_pk_bf16_f32 v{dst+i}, v{T0+2*i}, v{T0+2*i+1}")
        pos = {0: [], 8: [], 18: []}
        for n, it in enumerate(inter):
            pos[(0, 8, 18)[n % 3] if len(inter) > 2 else (0, 10)[n % 2] if False else (0, 8, 18)[(n * 3) // max(len(inter), 1)]].append(it)
        for n, x in enumerate(L):
            if n in pos:
                emit(pos[n])
            a(x)
    def pack8(b0, b1, dst):
        for i, s in enumerate([b0, b0 + 2, b1, b1 + 2]):
            a(f"v_cvt_pk_bf16_f32 v{dst+i}, v{s}, v{s+1}")
    t1 = {2: [[("needvm", ["B7"])] + breads(5, RES[5], True), breads(6, RES[6], True), breads(7, RES[7], True)]}
    rf = dmaB(9, SLOT[5]) + dmaB(10, SLOT[6]) + dmaB(11, SLOT[7])
    rf[0] = ["s_waitcnt lgkmcnt(0)"] + rf[0]
    for k in range(4):
        t1[3 + k] = rf[3*k:3*k+3]
    for m in range(4):
        for dt in range(2):
            phi8(acc(2*m, 2 + dt), acc(2*m + 1, 2 + dt), acc(2*m, 2 + dt), inter=t1.get(m*2 + dt, []))
    lq.drained()
    kvm = []
    for m in range(4):
        for dt in range(2):
            c = vr(ZC + dt*4)
            kvm.append(f"{MF} {c}, {vr(acc(2*m, 2+dt))}, v[22:25], {'0' if m == 0 else c}")
    for m in range(4):
        for et in range(2):
            pack8(acc(2*m, 4 + et), acc(2*m + 1, 4 + et), acc(2*m, 4 + et))
            a(kvm.pop(0))
    for m in range(4):
        for dt in range(2):
            for et in range(2):
                c = vr(KV + dt*8 + et*4)
                a(f"{MF} {c}, {vr(acc(2*m, 2+dt))}, {vr(acc(2*m, 4+et))}, {'0' if m == 0 else c}")
    a("s_lshl_b32 s56, s38, 12")
    a(f"s_add_u32 s56, s56, {EX}")
    a("v_add_u32 v10, s56, v26")
    a("v_xor_b32 v11, 4096, v10")
    a("s_cmp_eq_u32 s39, 0")
    a("s_cbranch_scc1 K_EXW0")
    a(f"ds_write_b128 v10, {vr(ZC)} offset:2048")
    a(f"ds_write_b128 v10, {vr(KV)}")
    a(f"ds_write_b128 v10, {vr(KV+4)} offset:1024")
    a("s_waitcnt lgkmcnt(0)")
    for i in range(0, 8, 2):
        a(f"v_pk_mov_b32 {vr(KV+i, 2)}, {vr(KV+8+i, 2)}, {vr(KV+8+i, 2)} op_sel:[0,1]")
    for i in range(0, 4, 2):
        a(f"v_pk_mov_b32 {vr(ZC+i, 2)}, {vr(ZC+4+i, 2)}, {vr(ZC+4+i, 2)} op_sel:[0,1]")
    a("s_branch K_EXW1")
    a.label("K_EXW0")
    a(f"ds_write_b128 v10, {vr(ZC+4)} offset:2048")
    a("s_nop 2")
    a(f"ds_write_b128 v10, {vr(KV+8)}")
    a(f"ds_write_b128 v10, {vr(KV+12)} offset:1024")
    a("s_waitcnt lgkmcnt(0)")
    a.label("K_EXW1")
    lq.drained()
    a("s_barrier")
    a(f"ds_read_b128 {vr(KV+8)}, v11")
    a(f"ds_read_b128 {vr(KV+12)}, v11 offset:1024")
    a(f"ds_read_b128 {vr(ZC+4)}, v11 offset:2048")
    a("s_mov_b32 s56, 0x00010001")
    a("s_mov_b32 s57, 0x00010001")
    a("s_waitcnt lgkmcnt(0)")
    for i in range(0, 8, 2):
        a(f"v_pk_add_f32 {vr(KV+i, 2)}, {vr(KV+i, 2)}, {vr(KV+8+i, 2)}")
    for i in range(0, 4, 2):
        a(f"v_pk_add_f32 {vr(ZC+i, 2)}, {vr(ZC+i, 2)}, {vr(ZC+4+i, 2)}")
    for r in list(range(KV, KV + 8)) + list(range(ZC, ZC + 4)):
        a(f"v_min_u32 v{r}, -2, v{r}")
    vq.issue(f"buffer_store_dwordx4 {vr(KV)}, v26, s[24:27], s62 offen sc1", "P")
    vq.issue(f"buffer_store_dwordx4 {vr(KV+4)}, v26, s[24:27], s62 offen offset:1024 sc1", "P")
    a("s_mov_b64 exec, s[56:57]")
    vq.issue(f"buffer_store_dwordx4 {vr(ZC)}, v27, s[24:27], s62 offen offset:2048 sc1", "P")
    a("s_mov_b64 exec, -1")
    stamp(a, opt, 4)
    vq.need("C")
    a("s_mov_b32 s58, -1")
    a("s_mov_b32 s59, 0")
    a.label("K_HS")
    a("v_cmp_eq_u32 vcc, 8, v28")
    a("s_cmp_eq_u64 vcc, s[58:59]")
    a("s_cbranch_scc1 K_HSOK")
    a("s_sleep 2")
    a("v_lshlrev_b32 v10, 3, v1")
    a("buffer_load_dword v28, v10, s[28:31], 0 offen sc1")
    a("s_waitcnt vmcnt(0)")
    a("s_branch K_HS")
    a.label("K_HSOK")
    PB = [acc(p, 2) for p in range(8)]
    ZG = 48
    def gather_ops():
        ops = []
        for p in range(8):
            for k in range(2):
                ops.append(([f"s_add_u32 s56, s61, {p * 16384}"] if k == 0 else []) +
                           [("vm", f"buffer_load_dwordx4 {vr(PB[p] + 4*k)}, v26, s[24:27], s56 offen offset:{k*1024} sc1", "H")])
        ops.append([("vm", f"buffer_load_dwordx4 {vr(ZG)}, v30, s[24:27], s61 offen offset:2048 sc1", "H")])
        return ops
    def gather(track):
        for op in gather_ops():
            for x in op:
                a(x[1] if isinstance(x, tuple) else x)
    gops = gather_ops()
    qb = dmaB(12, 32768) + dmaB(13, 32768 + 4096)
    GQ = opt.get("gather_in_q", 0)
    if DEFER >= 2:
        for x in rdX(14, 0, lambda ks: fX(0, ks)):
            put(x)
    for rt in range(8):
        fill = {}
        ms = mf(15, rt, [0, 1], lambda ks: fXR(rt, ks)) if DEFER >= 1 else []
        if DEFER >= 2:
            ms += mf(14, rt, [0, 1], lambda ks: fX(rt % 2, ks))
            if rt < 7:
                fill[1] = rdX(14, rt + 1, lambda ks: fX((rt + 1) % 2, ks))
        fill.setdefault(2, []).extend(qb[rt])
        per = len(ms) // 4
        first_rt = 8 - -(-GQ // max(per, 1))
        if GQ and rt >= first_rt:
            k = min(per, GQ - (17 - len(gops)))
            spread(fill, gops[:k], 0, len(ms)); gops = gops[k:]
        weave(ms, fill)
    stamp(a, opt, 13)
    GSP = opt.get("gather_span", 7)
    for rt in range(8):
        k = -(-len(gops) // (GSP - rt)) if rt < GSP else 0
        phi8(acc(rt, 0), acc(rt, 1), acc(rt, 0), inter=gops[:k]); gops = gops[k:]
    gate_ld = [[("vm", f"buffer_load_dwordx4 {vr(acc(i, 1))}, v26, s[16:19], s60 offen offset:{i*1024}", "G")] for i in range(4)]
    gate_ld += [[("vm", f"buffer_load_dwordx4 {vr(acc(4 + i, 1))}, v26, s[32:35], 0 offen offset:{i*1024}", "G")] for i in range(2)]
    emit(gate_ld)
    stamp(a, opt, 5)
    S = 40
    vq.need("H")
    a.label("K_SUM")
    for i in range(0, 8, 2):
        a(f"v_pk_add_f32 {vr(S+i, 2)}, {vr(PB[0]+i, 2)}, {vr(PB[1]+i, 2)}")
    for i in range(4):
        a(f"v_add_f32_dpp v{52+i}, v{ZG+i}, v{ZG+i} quad_perm:[1,0,3,2] row_mask:0xf bank_mask:0xf")
    for p in range(2, 8):
        for i in range(0, 8, 2):
            a(f"v_pk_add_f32 {vr(S+i, 2)}, {vr(S+i, 2)}, {vr(PB[p]+i, 2)}")
        if p in (2, 3):
            ctrl = "quad_perm:[2,3,0,1]" if p == 2 else "row_half_mirror"
            for i in range(4):
                a(f"v_add_f32_dpp v{52+i}, v{52+i}, v{52+i} {ctrl} row_mask:0xf bank_mask:0xf")
    a(f"v_pk_add_f32 v[2:3], {vr(S, 2)}, {vr(S+2, 2)}")
    a(f"v_pk_add_f32 v[4:5], {vr(S+4, 2)}, {vr(S+6, 2)}")
    a(f"v_pk_add_f32 v[6:7], v[52:53], v[54:55]")
    a("v_pk_add_f32 v[2:3], v[2:3], v[4:5]")
    a("v_pk_add_f32 v[2:3], v[2:3], v[6:7]")
    a("v_cmp_u_f32 vcc, v2, v3")
    a("s_cbranch_vccz K_GOK")
    regs = [PB[p] + i for p in range(8) for i in range(8)] + [ZG + i for i in range(4)]
    a(f"v_max3_u32 v2, v{regs[0]}, v{regs[1]}, v{regs[2]}")
    regs = regs[3:]
    while regs:
        if len(regs) >= 2:
            a(f"v_max3_u32 v2, v2, v{regs[0]}, v{regs[1]}"); regs = regs[2:]
        else:
            a(f"v_max_u32 v2, v2, v{regs[0]}"); regs = regs[1:]
    a("v_cmp_eq_u32 vcc, -1, v2")
    a("s_cbranch_vccz K_GOK")
    if opt.get("stamps"):
        a("v_readlane_b32 s56, v31, 24")
        a("s_add_u32 s56, s56, 1")
        a("v_writelane_b32 v31, s56, 24")
    gather(False)
    a("s_waitcnt vmcnt(0)")
    a("s_branch K_SUM")
    a.label("K_GOK")
    stamp(a, opt, 6)
    for i in range(4):
        a(f"v_cvt_pk_bf16_f32 v{2+i}, v{S+2*i}, v{S+2*i+1}")
    a("v_cvt_pk_bf16_f32 v6, v52, v53")
    a("v_cvt_pk_bf16_f32 v7, v54, v55")
    a("s_mul_i32 s56, s40, 3072")
    a(f"s_add_u32 s56, s56, {EX2}")
    a("v_add_u32 v11, s56, v26")
    a("s_lshl_b32 s57, s39, 3")
    a("v_add_u32 v10, s57, v11")
    a("ds_write_b64 v10, v[6:7] offset:2048")
    a("ds_write_b64 v10, v[2:3]")
    a("ds_write_b64 v10, v[4:5] offset:1024")
    a("s_waitcnt lgkmcnt(0)")
    lq.drained()
    a("s_barrier")
    OPR = 40
    a(f"ds_read_b128 {vr(OPR+8)}, v11 offset:2048")
    a(f"ds_read_b128 {vr(OPR)}, v11")
    a(f"ds_read_b128 {vr(OPR+4)}, v11 offset:1024")
    a("s_waitcnt lgkmcnt(2)")
    for rt in range(8):
        a(f"{MF} {vr(acc(rt, 4))}, {vr(OPR+8)}, {vr(acc(rt, 0))}, 0")
    a("s_waitcnt lgkmcnt(0)")
    for rt in range(8):
        a(f"{MF} {vr(acc(rt, 2))}, {vr(OPR)}, {vr(acc(rt, 0))}, 0")
        a(f"{MF} {vr(acc(rt, 3))}, {vr(OPR+4)}, {vr(acc(rt, 0))}, 0")
        D = acc(rt, 4)
        a(f"v_add_f32 v{D}, v36, v{D}")
        a(f"v_rcp_f32 v{D}, v{D}")
    a("s_add_u32 s63, s65, 4096")
    for rt in range(8):
        N, D = acc(rt, 2), acc(rt, 4)
        for r in range(0, 8, 2):
            a(f"v_pk_mul_f32 {vr(N+r, 2)}, {vr(N+r, 2)}, {vr(D, 2)} op_sel_hi:[1,0]")
        for r in range(0, 8, 2):
            a(f"v_cvt_pk_bf16_f32 v{D+4+r//2}, v{N+r}, v{N+r+1}")
        vq.issue(f"buffer_store_dwordx4 {vr(D+4)}, v26, s[24:27], {'s65' if rt < 4 else 's63'} offen offset:{(rt % 4)*1024} sc1", "O")
    stamp(a, opt, 7)
    emit(dmaB(14, 0) + dmaB(15, 4096))
    for k in range(4):
        a(f"s_add_u32 s56, s38, {k + 1}")
        a("s_and_b32 s56, s56, 3")
        a("s_lshl_b32 s56, s56, 11")
        a(f"v_add_u32 v{2+k}, s56, v26")
    a("v_and_b32 v6, 31, v1")
    a("v_lshlrev_b32 v6, 2, v6")
    vq.need("G")
    for x in gate[1:] + gate2:
        a(x)
    srd(a, 16, 70, 2048 * 1024 * 2)
    a("v_add_u32 v7, s48, v26")
    a("v_add_u32 v8, 0x10000, v7")
    for j in range(3):
        a(f"s_xor_b32 s56, s38, {j + 1}")
        a("s_sub_u32 s57, s38, s56")
        a("s_sub_u32 s57, s57, 1")
        a("s_and_b32 s57, s57, 3")
        a("s_lshl_b32 s57, s57, 15")
        a("s_lshl_b32 s56, s56, 13")
        a("s_add_u32 s56, s56, s57")
        a(f"v_add_u32 v{9+j}, s56, v26")
    a("v_and_b32 v24, 15, v1")
    a("v_lshrrev_b32 v25, 4, v1")
    a("v_and_b32 v28, 1, v25")
    a("v_lshlrev_b32 v28, 5, v28")
    a("v_lshrrev_b32 v25, 1, v25")
    a("v_lshl_add_u32 v28, v25, 4, v28")
    a("v_lshl_add_u32 v14, v24, 11, v28")
    a("s_lshl_b32 s56, s50, 18")
    a("s_lshl_b32 s57, s38, 16")
    a("s_add_u32 s56, s56, s57")
    a("s_lshl_b32 s57, s51, 7")
    a("s_add_u32 s61, s56, s57")
    a(f"s_add_u32 s62, s61, {16*2048}")
    a("s_mov_b32 s60, 0")
    a("s_getpc_b64 s[66:67]")
    a.label("K_PC")
    a("s_add_u32 s66, s66, K_WAIT-K_PC")
    a("s_addc_u32 s67, s67, 0")
    D = opt.get("depth", 4)
    P2 = 128
    def acc2(i, ct): return P2 + (i * 4 + ct) * 4
    def fA(slot, i): return AQ[slot * 8 + i]
    def fB(s_, ct): return 64 + s_ * 16 + ct * 4
    order = list(range(8, 16)) + list(range(8))
    for ct in range(4):
        a(f"v_subrev_u32 v{16+ct}, 0x10000, v{32+ct}")
    vq.need("B8")
    for x in breads(order[0], fB(0, 0), False):
        put(x)
    if opt.get("atouch", 0):
        a("v_lshrrev_b32 v46, 3, v1")
        a("v_lshlrev_b32 v46, 13, v46")
        a("v_and_b32 v47, 7, v1")
        a("v_lshl_add_u32 v46, v47, 7, v46")
        a("s_and_b32 s56, s51, 7")
        a("s_lshl_b32 s56, s56, 10")
        a("v_add_u32 v46, s56, v46")
    EP = opt.get("early_poll", 1)
    if EP:
        vq.issue("buffer_load_dword v44, v6, s[24:27], s54 offen sc1", "E")
    vq.need("O")
    a("s_mov_b64 exec, 1")
    vq.issue("buffer_store_dwordx2 v[38:39], v29, s[24:27], s55 offen sc1", "F")
    a("s_mov_b64 exec, -1")
    stamp(a, opt, 8)
    if EP:
        vq.need("E")
        a("v_cmp_ne_u32 vcc, -1, v44")
        a("s_lshr_b32 s57, vcc_lo, 1"); a("s_and_b32 s57, s57, vcc_lo"); a("s_or_b32 s60, s60, s57")
    SC = " sc1" if opt.get("a_sc1", 1) else ""
    NT = opt.get("ntail", 3)
    N0 = 16 - NT
    FR = {}
    for n in range(N0):
        for i in range(8):
            FR[(n, i)] = (n, i)
    seq = [(n, i) for i in range(8) for n in range(N0, 16)]
    for k, f in enumerate(seq):
        FR[f] = (N0 + k // 8, k % 8)
    GRP = {}
    for f, (g, j) in FR.items():
        GRP.setdefault(g, {})[j] = f
    def areg(n, i):
        g, j = FR[(n, i)]
        return AQ[(g % 4) * 8 + j]
    def loadsA(g):
        ops = []
        for j in range(8):
            n, i = GRP[g][j]
            b = order[n]
            if g < N0:
                pre = [f"s_add_u32 s43, s53, {b*8192}"] if j == 0 else []
                so = "s43"
            else:
                pre = [f"s_add_u32 s{4 + m - N0}, s53, {order[m]*8192}" for m in range(N0, 16)] if (g == N0 and j == 0) else []
                so = f"s{4 + n - N0}"
            off = " offset:1024" if i % 2 else ""
            ops.append(pre + [("vm", f"buffer_load_dwordx4 {ar(areg(n, i))}, v{2 + i // 2}, s[24:27], {so} offen{off}{SC}", f"A{n}_{i}")])
        return ops
    def check(n):
        b = order[n]
        out = [f"s_bitcmp1_b32 s60, {2*b}", f"s_cbranch_scc1 K_RDY{n}", f"s_mov_b32 s59, {2*b}", "s_swappc_b64 s[68:69], s[66:67]", f"K_RDY{n}:"]
        return out
    def poll(g):
        return [("vm", f"buffer_load_dword v{40 + g % 4}, v6, s[24:27], s54 offen sc1", f"P{g}")]
    def upd(g):
        return [f"v_cmp_ne_u32 vcc, -1, v{40 + g % 4}"], ["s_lshr_b32 s57, vcc_lo, 1", "s_and_b32 s57, s57, vcc_lo", "s_or_b32 s60, s60, s57"]
    def gate_grp(g):
        out = []
        if g < N0:
            out += check(g)
        elif g == N0:
            for m in range(N0, 16):
                out += check(m)
            out += [("vm", "buffer_load_dword v20, v6, s[24:27], s54 offen sc1", "GF")]
        if g + 3 <= N0:
            out += poll(g)
        return out
    TA = opt.get("atouch", 0)
    def touchA(n0, n1):
        b0 = order[n0]
        cnt = (n1 - n0) * 8
        return [f"s_add_u32 s56, s53, {b0*8192}", f"s_mov_b64 exec, 0x{(1 << cnt) - 1:x}" if cnt < 32 else "s_mov_b32 exec_hi, 0",
                ("vm", "buffer_load_dword v45, v46, s[24:27], s56 offen sc1", "T"), "s_mov_b64 exec, -1"]
    for g in range(2):
        emit([gate_grp(g)])
        if g == 0:
            stamp(a, opt, 9)
        emit(loadsA(g))
    def redw(i):
        k = i // 2
        return [f"ds_write_b128 {'v7' if k < 2 else 'v8'}, {vr(acc2(i, ct))} offset:{(k % 2)*32768 + (i % 2)*4096 + ct*1024}" for ct in range(4)]
    def Bop(n, ct):
        b = order[n]
        return vr(fB(n % 2, ct)) if b >= 8 else ar(RES[b] + ct * 4)
    for n in range(N0):
        FINE = n < opt.get("fine", 2)
        if not FINE:
            vq.need(f"A{n}_7")
        else:
            vq.need(f"A{n}_0")
        if n == 0:
            stamp(a, opt, 12)
        if opt.get("pstamps"):
            stamp(a, opt, 32 + n)
        ms = []
        for i in range(8):
            for ct in range(4):
                c = vr(acc2(i, ct))
                ms.append(f"{MF} {c}, {Bop(n, ct)}, {ar(areg(n, i))}, {'0' if n == 0 else c}")
        fill = {}
        if n + 3 <= N0:
            u1, u2 = upd(n)
            fill[0] = u1; fill[1] = u2
        if n + 1 < 8:
            spread(fill, [[x] for x in breads(order[n + 1], fB((n + 1) % 2, 0), False)], 4, 20)
        if n == 0:
            spread(fill, [gate_grp(2)] + loadsA(2), 2, 16)
            spread(fill, [gate_grp(3)] + loadsA(3), 16, 31)
            if TA:
                fill.setdefault(31, []).extend(touchA(4, TA))
        else:
            spread(fill, [gate_grp(n + 3)] + loadsA(n + 3), 2, opt.get("lspan", 28))
        if TA and n + TA < 16:
            fill.setdefault(31, []).extend(touchA(n + TA, n + TA + 1))
        if FINE:
            for i in range(1, 8):
                fill.setdefault(4 * i - 1, []).append(("needvm", [f"A{n}_{i}"]))
        weave(ms, fill)
    if opt.get("pstamps"):
        stamp(a, opt, 32 + N0)
    gf = [("needvm", ["GF"]), "v_mov_b32 v22, v20", "v_permlane16_swap_b32 v20, v22"]
    for r in (20, 22):
        gf += [f"v_sub_f32 v{r+1}, 1.0, v{r}", f"v_cvt_pk_bf16_f32 v{r+1}, v{r+1}, v{r+1}", f"v_and_b32 v{r+1}, 0xffff0000, v{r+1}"]
    gf += [["s_cmp_lt_u32 s38, 2", "s_cbranch_scc1 K_NOSWAP", "v_swap_b32 v20, v21", "v_swap_b32 v22, v23", "K_NOSWAP:"]]
    R = 128
    rds = [f"ds_read_b128 {vr(R + k*32 + j*4)}, v{9+k} offset:{j*1024}" for k in range(3) for j in range(8)]
    for i in range(8):
        vq.need(*[f"A{n}_{i}" for n in range(N0, 16)])
        ms = [f"{MF} {vr(acc2(i, ct))}, {Bop(n, ct)}, {ar(areg(n, i))}, {vr(acc2(i, ct))}" for ct in range(4) for n in range(N0, 16)]
        fill = {}
        if i == 0:
            spread(fill, [x if isinstance(x, list) else [x] for x in gf], 0, len(ms))
        if 1 <= i <= 6:
            spread(fill, [[w] for w in redw(i - 1)], min(2, len(ms) - 4), len(ms))
        if i == 7:
            stamp(a, opt, 14)
            a("s_waitcnt lgkmcnt(0)")
            a("s_barrier")
            spread(fill, [[r] for r in rds], 0, len(ms))
        weave(ms, fill)
    OWN = acc2(6, 0)
    a("s_waitcnt lgkmcnt(15)")
    for j in range(0, 32, 2):
        a(f"v_pk_add_f32 {vr(OWN+j, 2)}, {vr(OWN+j, 2)}, {vr(R+j, 2)}")
    for j in range(0, 32, 2):
        gsel = 20 if j < 16 else 22
        a(f"v_pk_mul_f32 {vr(OWN+j, 2)}, {vr(OWN+j, 2)}, {vr(gsel, 2)} op_sel_hi:[1,0]")
    a("s_waitcnt lgkmcnt(0)")
    for pr in range(4):
        for j in range(8 * pr, 8 * pr + 8, 2):
            a(f"v_pk_add_f32 {vr(R+32+j, 2)}, {vr(R+32+j, 2)}, {vr(R+64+j, 2)}")
        for j in range(8 * pr, 8 * pr + 8, 2):
            gsel = 20 if j < 16 else 22
            a(f"v_pk_fma_f32 {vr(OWN+j, 2)}, {vr(R+32+j, 2)}, {vr(gsel, 2)}, {vr(OWN+j, 2)} op_sel:[0,1,0] op_sel_hi:[1,1,1]")
        b = 64 + 4 * pr
        for j in range(4):
            a(f"v_cvt_pk_bf16_f32 v{b+j}, v{OWN+8*pr+2*j}, v{OWN+8*pr+2*j+1}")
        a(f"v_permlane16_swap_b32 v{b}, v{b+2}")
        a(f"v_permlane16_swap_b32 v{b+1}, v{b+3}")
        a(f"buffer_store_dwordx4 {vr(b)}, v14, s[16:19], {'s61' if pr < 2 else 's62'} offen offset:{(pr % 2)*64}")
    stamp(a, opt, 15)
    stamp_out(a, opt, 0)
    a.label("K_END")
    a("s_endpgm")
    a.label("K_WAIT")
    a("buffer_load_dword v44, v6, s[24:27], s54 offen sc1")
    if opt.get("stamps"):
        a("v_readlane_b32 s56, v31, 23")
        a("s_add_u32 s56, s56, 1")
        a("v_writelane_b32 v31, s56, 23")
    a("s_waitcnt vmcnt(0)")
    a("v_cmp_ne_u32 vcc, -1, v44")
    a("s_lshr_b32 s57, vcc_lo, 1"); a("s_and_b32 s57, s57, vcc_lo"); a("s_or_b32 s60, s60, s57")
    a("s_bitcmp1_b32 s60, s59")
    a("s_cbranch_scc0 K_WAIT")
    a.label("K_LAST")
    a("s_setpc_b64 s[68:69]")

def build(opt):
    a = Asm()
    gen(a, opt)
    out = HEADER + "; @launch grid=(256,1,1) block=(256,1,1) lds=163840\n"
    out += '.amdgcn_target "amdgcn-amd-amdhsa--gfx950"\n.text\n' + a.text() + '.section .rodata,"a"\n' + kd(KNAME, 512, 96, 256)
    return out

if __name__ == "__main__":
    opt = {}
    for kv in sys.argv[2:]:
        k, v = kv.split("=")
        try:
            v = eval(v)
        except Exception:
            pass
        opt[k] = v
    open(sys.argv[1], "w").write(build(opt))
```

```python
import sys, struct
from asmlib import Asm, Ins, regs_of
from gen import f2u, LdsQ, kd, srd, stamp, stamp_out, HEADER, WS_DIAG, WS_SIZE, WS_SLOT, WS_G, LOG2E, EPS

MF = "v_mfma_f32_16x16x32_bf16"
WS_WOF = 16 << 20
WS_TOT = 20 << 20
KNAME = "gated_mix__linear_attn_block__linear_attn_block__prompt_kernel"
def vr(b, n=4): return f"v[{b}:{b+n-1}]"
def ar(b, n=4): return f"a[{b}:{b+n-1}]"

class VmQ:
    def __init__(self, a):
        self.a = a; self.q = []
    def issue(self, text, tag):
        self.a(text); self.q.append(tag)
    def count(self, tags):
        idx = -1
        for i, t in enumerate(self.q):
            if t in tags:
                idx = i
        if idx < 0:
            return None
        return min(len(self.q) - idx - 1, 63)
    def need(self, *tags, extra=""):
        n = self.count(tags)
        if n is None:
            if extra:
                self.a(f"s_waitcnt {extra}")
            return
        self.a(f"s_waitcnt vmcnt({n}) {extra}".rstrip())
        self.q = self.q[len(self.q) - n:] if n else []
    def drained(self):
        self.q = []

def gen(a, opt):
    lq = LdsQ(a); vq = VmQ(a)
    def put(x):
        if isinstance(x, tuple):
            if x[0] == "ds":
                lq.issue(x[1])
            elif x[0] == "vm":
                vq.issue(x[1], x[2])
            elif x[0] == "needvm":
                vq.need(*x[1])
            elif x[0] == "needds":
                lq.need(x[1])
        else:
            a(x)
    def weave(mf, fill):
        for g, m in enumerate(mf):
            lq.need(Ins(m).srcAB)
            a(m)
            for x in fill.get(g, []):
                put(x)
    def spread(fill, items, start, end):
        n = len(items)
        for i, it in enumerate(items):
            fill.setdefault(start + (i * (end - start)) // n, []).extend(it)

    XB = [0, 32768]
    WB = [65536 + 24576 * s for s in range(3)]
    EX = 139264
    EX2 = EX + 16384
    ACC = 64
    def acc(rt, ct): return ACC + (rt * 6 + ct) * 4
    def fW(st, ct, ks): return 48 * (st % 2) + (ct * 2 + ks) * 4
    def fX(e, ks): return 96 + e * 8 + ks * 4
    def fXR(rt, ks): return 112 + rt * 8 + ks * 4
    a.raw(f".globl {KNAME}\n.p2align 8\n.type {KNAME},@function")
    a.label(KNAME)
    a("s_cmp_ge_u32 s2, 256")
    a("s_cbranch_scc1 K_END")
    a("s_load_dwordx4 s[4:7], s[0:1], 0")
    a("s_load_dwordx2 s[8:9], s[0:1], 32")
    a("s_load_dwordx4 s[68:71], s[0:1], 48")
    a("s_load_dwordx4 s[12:15], s[0:1], 64")
    a("s_load_dwordx2 s[74:75], s[0:1], 16")
    a("s_load_dwordx2 s[76:77], s[0:1], 40")
    if opt.get("stamps"):
        a("v_mov_b32 v31, 0")
    stamp(a, opt, 30, real=True)
    stamp(a, opt, 0)
    a("v_lshrrev_b32 v21, 6, v0")
    a("v_and_b32 v1, 63, v0")
    a("v_readfirstlane_b32 s38, v21")
    a("s_and_b32 s56, s2, 7")
    a("s_lshr_b32 s57, s2, 3")
    if opt.get("k1map", "A") == "A":
        a("s_and_b32 s36, s57, 7")
        a("s_lshr_b32 s58, s57, 3")
        a("s_lshl_b32 s37, s56, 2")
        a("s_add_u32 s37, s37, s58")
    else:
        a("s_and_b32 s36, s56, 1")
        a("s_lshl_b32 s36, s36, 2")
        a("s_and_b32 s58, s57, 3")
        a("s_add_u32 s36, s36, s58")
        a("s_lshr_b32 s37, s56, 1")
        a("s_lshl_b32 s37, s37, 3")
        a("s_lshr_b32 s58, s57, 2")
        a("s_add_u32 s37, s37, s58")
    a("s_and_b32 s39, s38, 1")
    a("s_lshr_b32 s40, s38, 1")
    a("s_and_b32 s41, s37, 15")
    a("s_lshr_b32 s42, s37, 4")
    a("v_lshrrev_b32 v21, 3, v1")
    a("v_and_b32 v22, 7, v1")
    a("v_lshrrev_b32 v23, 4, v1")
    a("v_and_b32 v24, 1, v23")
    a("v_lshlrev_b32 v24, 2, v24")
    a("v_xor_b32 v24, v22, v24")
    a("v_lshlrev_b32 v24, 4, v24")
    a("v_mul_u32_u24 v25, 6144, v21")
    a("v_add_u32 v24, v24, v25")
    a("v_xor_b32 v25, 32, v24")
    a("s_mul_i32 s56, s38, 6")
    a("s_lshl_b32 s59, s41, 7")
    for i in range(6):
        a(f"s_add_u32 s57, s56, {i}")
        a("s_lshr_b32 s58, s57, 3")
        a("s_and_b32 s57, s57, 7")
        a(f"s_mul_i32 s57, s57, {8*6144}")
        a("s_lshl_b32 s58, s58, 11")
        a("s_add_u32 s57, s57, s58")
        a("s_add_u32 s57, s57, s59")
        if i % 4:
            a(f"s_sub_u32 s57, s57, {(i % 4) * 1024}")
        a(f"v_add_u32 v{10+i}, s57, {'v24' if i % 2 == 0 else 'v25'}")
    a("v_xor_b32 v24, v22, v23")
    a("v_lshlrev_b32 v24, 4, v24")
    a("v_lshl_add_u32 v24, v21, 11, v24")
    a("s_lshl_b32 s56, s36, 19")
    a("s_lshl_b32 s57, s40, 18")
    a("s_add_u32 s56, s56, s57")
    a("s_lshl_b32 s57, s39, 16")
    a("s_add_u32 s56, s56, s57")
    a("v_add_u32 v2, s56, v24")
    a("v_xor_b32 v25, 64, v2")
    for i in range(1, 8):
        src = "v2" if i % 2 == 0 else "v25"
        a(f"v_add_u32 v{2+i}, {(i % 4)*16384 + (i // 4)*131072 - (i % 4) * 1024}, {src}")
    a("s_lshl_b32 s48, s38, 13")
    a("s_lshl_b32 s45, s40, 14")
    a("s_lshl_b32 s57, s39, 12")
    a("s_add_u32 s45, s45, s57")
    a("s_mov_b32 s72, 0")
    a("s_mul_i32 s49, s38, 6144")
    a("s_mov_b32 s43, 0")
    a("s_mov_b32 s44, 0")
    a("s_waitcnt lgkmcnt(0)")
    srd(a, 16, 4, 2048 * 1024 * 2)
    a("s_cmp_eq_u32 s42, 0")
    a("s_cselect_b32 s56, s6, s8")
    a("s_cselect_b32 s57, s7, s9")
    srd(a, 20, 56, 1024 * 3072 * 2)
    stamp(a, opt, 10)

    def dmaXh(t, h):
        ops = []
        so = "s43" if h == 0 else "s72"
        for i in range(4 * h, 4 * h + 4):
            pre = [f"s_add_u32 m0, s45, {XB[t % 2] + h * 8192}"] if i % 4 == 0 else []
            off = f" offset:{(i % 4) * 1024}" if i % 4 else ""
            ops.append(pre + [("vm", f"buffer_load_dwordx4 v{2+i}, s[16:19], {so} offen{off} lds", f"X{t}{'ab'[h]}")])
        ops[3].append(f"s_add_u32 {so}, {so}, 128")
        return ops
    def dmaX(t):
        return dmaXh(t, 0) + dmaXh(t, 1)
    def dmaW(t):
        ops = []
        for i in range(6):
            pre = [f"s_add_u32 m0, s49, {WB[t % 3] + (i // 4) * 4096}"] if i % 4 == 0 else []
            off = f" offset:{(i % 4) * 1024}" if i % 4 else ""
            ops.append(pre + [("vm", f"buffer_load_dwordx4 v{10+i}, s[20:23], s44 offen{off} lds", f"W{t}")])
        ops[5].append(f"s_add_u32 s44, s44, {64*6144}")
        return ops
    def emit(groups):
        for op in groups:
            for x in op:
                put(x)
    emit(dmaW(0) + dmaX(0))
    stamp(a, opt, 11)
    srd(a, 24, 14, WS_TOT)
    srd(a, 28, 12, 256)
    srd(a, 32, 68, 2048)
    a("v_lshlrev_b32 v26, 4, v1")
    a("s_lshl_b32 s46, s37, 1")
    a("s_add_u32 s46, s46, s40")
    a("s_lshl_b32 s47, s36, 1")
    a("s_add_u32 s47, s47, s39")
    a("s_lshl_b32 s56, s47, 7")
    a("s_lshl_b32 s57, s46, 1")
    a("s_add_u32 s56, s56, s57")
    a("s_lshl_b32 s60, s56, 11")
    a("s_lshl_b32 s55, s56, 2")
    a(f"s_add_u32 s55, s55, {WS_G}")
    a("s_lshl_b32 s56, s47, 19")
    a("s_lshl_b32 s57, s46, 13")
    a("s_add_u32 s65, s56, s57")
    a("s_lshl_b32 s56, s37, 17")
    a("s_lshl_b32 s57, s38, 12")
    a("s_add_u32 s61, s56, s57")
    a(f"s_add_u32 s61, s61, {WS_SLOT}")
    a("s_lshl_b32 s57, s36, 14")
    a("s_add_u32 s62, s61, s57")
    a("v_lshrrev_b32 v27, 4, v1")
    a("v_lshlrev_b32 v27, 4, v27")
    a("v_and_b32 v30, 7, v1")
    a("v_lshl_add_u32 v30, v30, 14, v27")
    a("s_lshl_b32 s63, s37, 3")
    for i in range(4):
        a(f"v_mov_b32 v{32+i}, -1")
    a("v_lshlrev_b32 v38, 7, v1")
    a("v_mov_b32 v28, 1")
    a("v_mov_b32 v29, 0")
    sent = [[("vm", "buffer_store_dwordx4 v[32:35], v26, s[24:27], s62 offen sc1", "S")],
            [("vm", "buffer_store_dwordx4 v[32:35], v26, s[24:27], s62 offen offset:1024 sc1", "S")],
            [("vm", "buffer_store_dwordx4 v[32:35], v27, s[24:27], s62 offen offset:2048 sc1", "S")],
            [("vm", "buffer_store_dwordx2 v[32:33], v29, s[24:27], s55 offen sc1", "S")]]
    if opt.get("sent_pro"):
        emit(sent)
    a("v_and_b32 v21, 15, v1")
    a("v_lshrrev_b32 v22, 4, v1")
    a("v_bfe_u32 v23, v1, 1, 3")
    a("v_xor_b32 v23, v23, v22")
    a("v_lshlrev_b32 v23, 4, v23")
    a("v_lshl_add_u32 v23, v21, 7, v23")
    a("s_lshl_b32 s56, s39, 14")
    a("v_add_u32 v16, s56, v23")
    a("v_xor_b32 v17, 64, v16")
    a("v_bfe_u32 v23, v1, 2, 2")
    a("v_lshl_add_u32 v24, v22, 3, v23")
    a("v_lshlrev_b32 v24, 7, v24")
    a("v_bfe_u32 v25, v1, 1, 1")
    a("s_lshl_b32 s56, s40, 2")
    a("v_or_b32 v25, s56, v25")
    a("v_and_b32 v36, 2, v23")
    a("v_lshlrev_b32 v36, 1, v36")
    a("v_xor_b32 v25, v25, v36")
    a("v_and_b32 v36, 1, v22")
    a("v_lshlrev_b32 v36, 1, v36")
    a("v_xor_b32 v25, v25, v36")
    a("v_lshl_add_u32 v24, v25, 4, v24")
    a("v_and_b32 v36, 1, v1")
    a("v_lshl_add_u32 v24, v36, 3, v24")
    a("v_xor_b32 v25, 32, v24")
    for s in range(3):
        a(f"v_add_u32 v{18+2*s}, {WB[s]}, v24")
        a(f"v_add_u32 v{19+2*s}, {WB[s]}, v25")
    a(f"v_mov_b32 v36, 0x{f2u(EPS):08x}")
    a(f"v_mov_b32 v37, v36")
    for rt in range(8):
        for r in range(0, 16, 2):
            a(f"v_pk_mov_b32 {vr(acc(rt, 0) + r, 2)}, v[36:37], v[36:37]")
    if opt.get("wpace", 6):
        a("s_lshl_b32 s56, s2, 2")
        a("s_add_u32 s56, s56, s38")
        a("s_bitcmp1_b32 s56, 3")
        a("s_cselect_b32 s84, s8, s6")
        a("s_cselect_b32 s85, s9, s7")
        a("s_and_b32 s85, s85, 0xffff")
        a(f"s_mov_b32 s86, {1024*3072*2}")
        a("s_mov_b32 s87, 0x00020000")
        a("s_lshr_b32 s57, s56, 4")
        a(f"s_add_u32 s57, s57, {64*opt.get('wpace', 6)}")
        a("s_mul_i32 s73, s57, 6144")
        a("s_and_b32 s57, s56, 7")
        a("s_mul_i32 s57, s57, 768")
        a("s_add_u32 s73, s73, s57")
        pass
    ET = opt.get("etouch", 1)
    if ET == 1:
        a("s_lshl_b32 s56, s2, 2")
        a("s_add_u32 s56, s56, s38")
        a("s_lshr_b32 s57, s56, 4")
        a("s_lshl_b32 s57, s57, 3")
        a("s_and_b32 s58, s56, 7")
        a("s_add_u32 s57, s57, s58")
        a(f"s_add_u32 s57, s57, {opt.get('et_row0', 0)}")
        a(f"s_cmp_lt_u32 s57, {64*opt.get('wpace', 6)}")
        a("s_cselect_b32 s57, s57, 1024")
        a("s_mul_i32 s57, s57, 6144")
        a("v_lshlrev_b32 v40, 10, v1")
        a("s_mov_b64 exec, 0x3f")
        vq.issue("buffer_load_dword v39, v40, s[84:87], s57 offen offset:384", "T")
        a("s_mov_b64 exec, -1")
    if ET == 2:
        for st in range(opt.get("et0", 2), opt.get("wpace", 6)):
            a(f"s_sub_u32 s57, s73, {(opt.get('wpace', 6) - st)*64*6144}")
            a("s_mov_b64 exec, 0x3f")
            vq.issue("buffer_load_dword v39, v38, s[84:87], s57 offen", "T")
            a("s_mov_b64 exec, -1")
    if opt.get("ctouch", 1):
        a("s_getpc_b64 s[56:57]")
        a.label("K_CT")
        a(f"s_sub_u32 s56, s56, K_CT-{KNAME}")
        a("s_subb_u32 s57, s57, 0")
        a("s_mov_b64 s[88:89], s[56:57]")
        a("s_lshr_b32 s58, s2, 3")
        a("s_lshl_b32 s58, s58, 2")
        a("s_add_u32 s58, s58, s38")
        a("s_lshl_b32 s79, s58, 7")
        a("s_mul_i32 s58, s58, 384")
        a("v_add_u32 v40, s58, v38")
        a(f"v_min_u32 v40, K_LAST-{KNAME}, v40")
        a("s_mov_b64 exec, 7")
        vq.issue("global_load_dword v39, v40, s[56:57]", "T")
        a("s_mov_b64 exec, -1")
    PRE = opt.get("pre", "W1")
    pre_list = {"none": [], "W1": dmaW(1), "W1X1": dmaW(1) + dmaX(1)}[PRE]
    emit(pre_list)
    if opt.get("xsp", 0x3c):
        m = opt.get("xsp", 0x3c)
        emit([[f"s_mov_b32 exec_lo, 0x{m | (m << 16):x}", "s_mov_b32 exec_hi, 0", ("vm", "buffer_load_dword v39, v38, s[16:19], s60 offen", "T"), "s_mov_b64 exec, -1"]])
    stamp(a, opt, 1)

    def rdW(t):
        ops = []
        for ct in range(6):
            for ks in range(2):
                for sub in range(2):
                    r = fW(t, ct, ks) + 2 * sub
                    ops.append(("ds", f"ds_read_b64_tr_b16 {ar(r, 2)}, v{18 + 2*(t % 3) + (ct & 1)} offset:{(ct >> 1)*8192 + ks*4096 + sub*512}"))
        return ops
    def rdX(t, rt, dst):
        return [("ds", f"ds_read_b128 {ar(dst(ks))}, v{16+ks} offset:{XB[t % 2] + rt*2048}") for ks in range(2)]
    def mf(t, rt, cts, X):
        out = []
        for ct in cts:
            for ks in range(2):
                W = ar(fW(t, ct, ks))
                A, B = (W, ar(X(ks))) if ct < 2 else (ar(X(ks)), W)
                c = vr(acc(rt, ct))
                cin = "0" if (t == 0 and ks == 0 and ct >= 4) else c
                out.append(f"{MF} {c}, {A}, {B}, {cin}")
        return out
    DEFER = opt.get("defer", 2)
    HST = opt.get("hst", 5)
    DSP = opt.get("dma_per_block", 3)
    def cts_of(t): return [2, 3, 4, 5] if t >= 16 - DEFER else [0, 1, 2, 3, 4, 5]
    def Xreg(t, rt): return (lambda ks: fXR(rt, ks)) if t == 15 else (lambda ks: fX(rt % 2, ks))
    def blocks(seq, pend, wreads, front=None, valu=()):
        pend = list(pend); wreads = list(wreads); valu = list(valu)
        for n, (t, rt) in enumerate(seq):
            cts = cts_of(t)
            nb = len(cts) * 2
            fill = {}
            if rt < 7:
                nx = rdX(t, rt + 1, Xreg(t, rt + 1))
            elif t < 15:
                nx = rdX(t + 1, 0, Xreg(t + 1, 0))
            else:
                nx = []
            items = [[x] for x in nx]
            left_w = len([1 for (_, r) in seq[n:] if r < 7])
            if rt < 7 and wreads:
                k = -(-len(wreads) // left_w)
                items += [[x] for x in wreads[:k]]
                wreads = wreads[k:]
            if n == 0 and front:
                fill[0] = list(front)
            spread(fill, items, 0, nb - 1)
            k = min(len(pend), max(DSP, -(-len(pend) // (len(seq) - n))))
            spread(fill, pend[:k], 1, nb)
            pend = pend[k:]
            k = -(-len(valu) // (len(seq) - n))
            spread(fill, [x if isinstance(x, list) else [x] for x in valu[:k]], 0, nb)
            valu = valu[k:]
            weave(mf(t, rt, cts, Xreg(t, rt)), fill)
        assert not pend and not wreads and not valu

    vq.need("W0", "X0a")
    a("s_barrier")
    stamp(a, opt, 2)
    stamp(a, opt, 25, real=True)
    w0 = rdW(0)
    for x in w0[:4] + rdX(0, 0, lambda ks: fX(0, ks)) + w0[4:13]:
        put(x)
    rest0 = ([] if PRE != "none" else dmaW(1)) + ([] if PRE == "W1X1" else dmaXh(1, 0)) + dmaW(2) + ([] if PRE == "W1X1" else dmaXh(1, 1))
    k0 = min(len(rest0), opt.get("k0", 10))
    blocks([(0, r) for r in range(3)], rest0[:k0], [], front=w0[13:])
    vq.need("W1", "X0b", extra="lgkmcnt(0)")
    lq.drained()
    a("s_barrier")
    x0 = []
    if opt.get("xs0"):
        m = opt["xs0"]
        x0 = [[f"s_mov_b32 exec_lo, 0x{m | (m << 16):x}", "s_mov_b32 exec_hi, 0", ("vm", "buffer_load_dword v39, v38, s[16:19], s60 offen", "T"), "s_mov_b64 exec, -1"]]
    blocks([(0, r) for r in range(3, 7)], rest0[k0:] + dmaXh(2, 0) + dmaW(3) + x0, rdW(1))

    def window1(t, extra=(), last=False, valu=(), first=()):
        vq.need(f"X{t+1}a", f"X{t+1}b", f"W{t+2}", *( ["S"] if t == HST else []), extra="lgkmcnt(0)")
        lq.drained()
        a("s_barrier")
        if opt.get("wstamps"):
            stamp(a, opt, 32 + t)
        pend = list(first)
        if t + 2 <= 15:
            pend += dmaX(t + 2) if t > 0 else dmaXh(2, 1)
        if t + 4 <= 15:
            pend += dmaW(t + 4)
        pend += list(extra)
        seq = [(t, 7)] + [(t + 1, r) for r in range(8 if last else 7)]
        blocks(seq, pend, rdW(t + 2) if t + 2 <= 15 else [], valu=valu)

    def window(t, extra=(), last=False, valu=(), first=()):
        if not opt.get("mid", 0):
            return window1(t, extra, last, valu, first)
        vq.need(f"X{t+1}a", f"W{t+2}", *( ["S"] if t == HST else []), extra="lgkmcnt(0)")
        lq.drained()
        a("s_barrier")
        if opt.get("wstamps"):
            stamp(a, opt, 32 + t)
        pend = list(first)
        if t + 2 <= 15:
            pend += dmaXh(t + 2, 1)
        wd = dmaW(t + 4) if t + 4 <= 15 else []
        pend += wd[:4]
        wr = rdW(t + 2) if t + 2 <= 15 else []
        valu = list(valu); extra = list(extra)
        nv = len(valu) // 2
        ne = len(extra) // 2 if last else 0
        blocks([(t, 7)] + [(t + 1, r) for r in range(3)], pend + extra[:ne], wr[:10], valu=valu[:nv])
        vq.need(f"X{t+1}b")
        lq.need(regs_of(ar(Xreg(t + 1, 3)(0), 8)))
        a("s_barrier")
        pend = []
        if t + 3 <= 15:
            pend += dmaXh(t + 3, 0)
        if wd:
            wd[4] = [f"s_add_u32 m0, s49, {WB[(t + 4) % 3] + 4096}"] + wd[4][1:]
        pend += wd[4:] + extra[ne:]
        blocks([(t + 1, r) for r in range(3, 8 if last else 7)], pend, wr[10:], valu=valu[nv:])

    hs = ["s_cmp_lg_u32 s38, 0", "s_cbranch_scc1 K_NOATOM", "s_mov_b64 exec, 1",
          "buffer_atomic_add v28, v29, s[28:31], s63 offen sc1", "s_mov_b64 exec, -1", "K_NOATOM:"]
    G = 64
    gate = [("needvm", ["G"]), "v_mov_b32 v38, 0", "v_mov_b32 v39, 0"]
    for i in range(8):
        gr = lambda j: acc(j // 4, 1) + j % 4
        gate.append(f"v_dot2_f32_bf16 v38, v{gr(i)}, v{gr(16+i)}, v38")
        gate.append(f"v_dot2_f32_bf16 v39, v{gr(8+i)}, v{gr(16+i)}, v39")
    for ctrl in ("quad_perm:[1,0,3,2]", "quad_perm:[2,3,0,1]", "row_half_mirror", "row_mirror"):
        for r in (38, 39):
            gate.append(f"v_add_f32_dpp v{r}, v{r}, v{r} {ctrl} row_mask:0xf bank_mask:0xf")
    gate2 = []
    for r in (38, 39):
        for k, ln in enumerate((0, 16, 32, 48)):
            gate2.append(f"v_readlane_b32 s{4 + (r-38)*4 + k}, v{r}, {ln}")
    for r, s0 in ((38, 4), (39, 8)):
        gate2 += [f"v_mov_b32 v{r}, s{s0}", f"v_add_f32 v{r}, s{s0+1}, v{r}", f"v_add_f32 v{r}, s{s0+2}, v{r}", f"v_add_f32 v{r}, s{s0+3}, v{r}"]
    for ops in (["v_cvt_pk_bf16_f32 v{r}, v{r}, v{r}", "v_and_b32 v{r}, 0xffff0000, v{r}", "v_mul_f32 v{r}, 0x%08x, v{r}" % f2u(-LOG2E),
                 "v_exp_f32 v{r}, v{r}", "v_add_f32 v{r}, 1.0, v{r}", "v_rcp_f32 v{r}, v{r}", "v_cvt_pk_bf16_f32 v{r}, v{r}, v{r}",
                 "v_and_b32 v{r}, 0xffff0000, v{r}"]):
        for r in (38, 39):
            gate2.append(ops.format(r=r))

    p2 = ["s_and_b32 s56, s2, 7", "s_lshr_b32 s57, s2, 3",
          "s_and_b32 s50, s56, 3", "s_lshl_b32 s50, s50, 2", "s_and_b32 s58, s57, 3", "s_add_u32 s50, s50, s58",
          "s_lshr_b32 s51, s56, 2", "s_lshl_b32 s51, s51, 3", "s_lshr_b32 s58, s57, 2", "s_add_u32 s51, s51, s58",
          ["s_cmp_lt_u32 s38, 2", "s_cselect_b32 s80, s74, s76", "s_cselect_b32 s81, s75, s77"],
          "s_and_b32 s81, s81, 0xffff", f"s_mov_b32 s82, {1024*1024*2}", "s_mov_b32 s83, 0x00020000",
          "s_lshl_b32 s52, s39, 20", "s_lshl_b32 s56, s51, 7", "s_add_u32 s52, s52, s56",
          "s_lshl_b32 s53, s50, 19", "s_lshl_b32 s56, s38, 17", "s_add_u32 s53, s53, s56",
          "s_lshl_b32 s56, s50, 9", "s_lshl_b32 s57, s38, 7", "s_add_u32 s56, s56, s57", f"s_add_u32 s54, s56, {WS_G}",
          "v_lshrrev_b32 v48, 3, v1", "v_and_b32 v49, 7, v1", "v_bfe_u32 v50, v1, 4, 1", "v_lshlrev_b32 v50, 2, v50",
          "v_xor_b32 v49, v49, v50", "v_bfe_u32 v50, v1, 5, 1", "v_lshlrev_b32 v50, 1, v50", "v_xor_b32 v49, v49, v50",
          "v_lshlrev_b32 v49, 4, v49", "v_lshl_add_u32 v40, v48, 11, v49"]
    p2 += [f"v_add_u32 v{40+i}, {i*(8*2048 - 1024)}, v40" for i in range(1, 4)]
    HS = opt.get("halfst", 1)
    p2 += ["s_mul_i32 s64, s38, 6144" if HS else "s_lshl_b32 s64, s38, 12", f"s_add_u32 s64, s64, {EX}"]
    p2b = ["v_lshrrev_b32 v48, 4, v1", "v_bfe_u32 v49, v1, 2, 2", "v_lshl_add_u32 v50, v48, 2, v49", "v_lshlrev_b32 v50, 7, v50",
           "v_bfe_u32 v51, v1, 1, 1", "v_and_b32 v52, 2, v49", "v_lshlrev_b32 v52, 1, v52", "v_xor_b32 v51, v51, v52",
           "v_and_b32 v52, 1, v48", "v_lshlrev_b32 v52, 1, v52", "v_xor_b32 v51, v51, v52", "v_lshl_add_u32 v50, v51, 4, v50",
           "v_and_b32 v52, 1, v1", "v_lshl_add_u32 v50, v52, 3, v50", "v_add_u32 v44, s64, v50"]
    p2b += [f"v_xor_b32 v{44+ct}, {ct*32}, v44" for ct in range(1, 4)]
    p2b += ["v_lshlrev_b32 v53, 3, v1"]
    p2c = [f"v_mov_b32 v{12+i}, v{40+i}" for i in range(4)] + ["s_add_u32 s56, s48, 0x10000", "v_add_u32 v32, s56, v50"]
    p2c += [f"v_xor_b32 v{32+ct}, {ct*32}, v32" for ct in range(1, 4)]
    SLOT = {}
    RES = {0: 176, 1: 192, 2: 208, 3: 224, 4: 240, 5: 16, 6: 32, 7: 64}
    AQ = [q for q in range(0, 256, 4) if not any(r <= q < r + 16 for r in RES.values())]
    assert len(AQ) == 32
    def dmaB(b, slot):
        SLOT[b] = slot
        ops = []
        for j in range(4):
            off = f" offset:{j*1024}" if j else ""
            m0 = "s_mov_b32 m0, s64" if slot is None else f"s_add_u32 m0, s48, {slot}"
            ops.append(([m0] if j == 0 else []) +
                       [("vm", f"buffer_load_dwordx4 v{(40 if slot is None else 12)+j}, s[80:83], s52 offen{off} lds", f"B{b}")])
        ops[-1].append("s_add_u32 s52, s52, 65536")
        return ops
    def breads(b, dst, agpr):
        sl = SLOT[b]
        base = 44 if sl is None else (32 if sl >= 65536 else 16)
        o = 0 if sl is None else sl % 65536
        return [("ds", f"ds_read_b64_tr_b16 {(ar if agpr else vr)(dst + ct*4 + 2*sub, 2)}, v{base+ct} offset:{o + sub*2048}")
                for ct in range(4) for sub in range(2)]
    PD = opt.get("wpace", 6)
    def wp():
        return ["s_mov_b64 exec, 0x3f", ("vm", "buffer_load_dword v39, v38, s[84:87], s73 offen", "T"), "s_mov_b64 exec, -1",
                f"s_add_u32 s73, s73, {64*6144}"]
    wt_setup = [["s_bitcmp1_b32 s38, 0", "s_cselect_b32 s92, s76, s74", "s_cselect_b32 s93, s77, s75"], "s_and_b32 s93, s93, 0xffff",
                f"s_mov_b32 s94, {1024*1024*2}", "s_mov_b32 s95, 0x00020000",
                "s_lshl_b32 s78, s2, 1", "s_add_u32 s78, s78, s40", "s_lshl_b32 s78, s78, 12"]
    WTN, WT0 = opt.get("wtn", 4), opt.get("wt0", 9)
    def wt(k):
        n = 32 // WTN
        return [f"s_mov_b64 exec, 0x{(1 << n) - 1:x}",
                ("vm", f"buffer_load_dword v39, v38, s[92:95], s78 offen offset:{k*n*128}", "T"), "s_mov_b64 exec, -1"]
    xs = opt.get("xsplit", {0: 0xc0, 1: 0x300, 2: 0xc00, 3: 0x3000, 4: 0xc000})
    ST0 = opt.get("st0", 2 if HS else 3)
    sw = opt.get("sent_w", [1, 2, 3, 3]) if not opt.get("sent_pro") else [-1] * 4
    for t in range(15):
        kw = {"extra": [], "valu": []}
        if xs and t in xs:
            m = xs[t]
            kw["extra"] += [[f"s_mov_b32 exec_lo, 0x{m | (m << 16):x}", "s_mov_b32 exec_hi, 0", ("vm", "buffer_load_dword v39, v38, s[16:19], s60 offen", "T"), "s_mov_b64 exec, -1"]]
        if PD and t + PD <= 15: kw["extra"] += [wp()]
        if t == ST0 - 2: kw["valu"] += p2
        if t == ST0 - 1: kw["valu"] += p2b
        for k in range(4):
            if sw[k] == t: kw["extra"] += [sent[k]]
        if t == HST: kw["extra"] += [hs]
        for (tw, lab, nl) in opt.get("ct2", [(12, "K_TAIL", 2)]):
            if t == tw:
                kw["extra"] += [[f"s_add_u32 s56, s79, {lab}-{KNAME}", "v_lshlrev_b32 v54, 14, v1", "v_add_u32 v54, s56, v54",
                                 f"v_min_u32 v54, K_LAST-{KNAME}, v54", f"s_mov_b64 exec, {(1 << nl) - 1}",
                                 ("vm", "global_load_dword v39, v54, s[88:89]", "T"), "s_mov_b64 exec, -1"]]
        a.label(f"K_W{t}")
        if t == WT0 - 1: kw["valu"] += wt_setup
        if WT0 <= t < WT0 + WTN: kw["extra"] += [wt(t - WT0)]
        if HS:
            h = t - ST0
            if 0 <= h < 10:
                sub = h % 2
                grp = []
                for j in (2*sub, 2*sub + 1):
                    off = f" offset:{j*1024}" if j else ""
                    grp.append(([f"s_add_u32 m0, s64, {(h % 3)*2048 - sub*2048}"] if j % 2 == 0 else []) +
                               [("vm", f"buffer_load_dwordx4 v{40+j}, s[80:83], s52 offen{off} lds", f"H{h}")])
                if sub:
                    grp[-1].append("s_add_u32 s52, s52, 65536")
                kw["extra"] += grp
            h = t - ST0 - 2
            if 0 <= h < 10:
                kw["valu"] += [("needvm", [f"H{h}"])] + [("ds", f"ds_read_b64_tr_b16 {ar(RES[h // 2] + ct*4 + 2*(h % 2), 2)}, v{44+ct} offset:{(h % 3)*2048}") for ct in range(4)]
        elif ST0 <= t < ST0 + 10:
            b = (t - ST0) // 2
            if (t - ST0) % 2 == 0:
                kw["extra"] += dmaB(b, None)
            else:
                kw["valu"] += [[]] * 12 + [("needvm", [f"B{b}"])] + breads(b, RES[b], True)
        if t == 13:
            kw["valu"] += p2c
            kw["extra"] += [[("vm", "buffer_load_dword v28, v53, s[28:31], 0 offen sc1", "C")]]
        if t == 14:
            kw["extra"] += dmaB(5, 65536) + dmaB(6, 65536 + 4096) + dmaB(7, 98304) + dmaB(8, 98304 + 4096)
            kw["last"] = True
        window(t, **kw)
    stamp(a, opt, 3)
    stamp(a, opt, 26, real=True)

    a.label("K_TAIL")
    a(f"s_mov_b32 s66, 0x{f2u(LOG2E):08x}")
    a(f"s_mov_b32 s67, 0x{f2u(LOG2E):08x}")
    a(f"v_mov_b32 v20, 0x{f2u(-EPS * LOG2E):08x}")
    a("v_mov_b32 v21, v20")
    for i in range(4):
        a(f"v_mov_b32 v{22+i}, 0x3f803f80")
    KV, ZC = 40, 56
    T0 = 2
    def phi8(b0, b1, dst, inter=()):
        src = [b0, b0 + 2, b1, b1 + 2]
        L = []
        for i, s in enumerate(src):
            L.append(f"v_pk_fma_f32 {vr(T0 + 2*i, 2)}, {vr(s, 2)}, s[66:67], v[20:21]")
        for i in range(8):
            L.append(f"v_exp_f32_e64 v{T0+i}, v{T0+i} clamp")
        for s in src:
            L.append(f"v_max_f32 v{s}, v36, v{s}")
            L.append(f"v_max_f32 v{s+1}, v36, v{s+1}")
        for i, s in enumerate(src):
            L.append(f"v_pk_add_f32 {vr(T0 + 2*i, 2)}, {vr(s, 2)}, {vr(T0 + 2*i, 2)}")
        for i in range(4):
            L.append(f"v_cvt_pk_bf16_f32 v{dst+i}, v{T0+2*i}, v{T0+2*i+1}")
        pos = {0: [], 8: [], 18: []}
        for n, it in enumerate(inter):
            pos[(0, 8, 18)[(n * 3) // max(len(inter), 1)]].append(it)
        for n, x in enumerate(L):
            if n in pos:
                emit(pos[n])
            a(x)
    def pack8(b0, b1, dst):
        for i, s in enumerate([b0, b0 + 2, b1, b1 + 2]):
            a(f"v_cvt_pk_bf16_f32 v{dst+i}, v{s}, v{s+1}")
    t1 = {2: [[("needvm", ["B7"])] + breads(5, RES[5], True), breads(6, RES[6], True), breads(7, RES[7], True)]}
    rf = dmaB(9, SLOT[5]) + dmaB(10, SLOT[6]) + dmaB(11, SLOT[7])
    rf[0] = ["s_waitcnt lgkmcnt(0)"] + rf[0]
    for k in range(4):
        t1[3 + k] = rf[3*k:3*k+3]
    BQ = opt.get("bq", 0)
    if BQ:
        t1 = {}
    for m in range(4):
        for dt in range(2):
            phi8(acc(2*m, 2 + dt), acc(2*m + 1, 2 + dt), acc(2*m, 2 + dt), inter=t1.get(m*2 + dt, []))
    lq.drained()
    kvm = []
    for m in range(4):
        for dt in range(2):
            c = vr(ZC + dt*4)
            kvm.append(f"{MF} {c}, {vr(acc(2*m, 2+dt))}, v[22:25], {'0' if m == 0 else c}")
    for m in range(4):
        for et in range(2):
            pack8(acc(2*m, 4 + et), acc(2*m + 1, 4 + et), acc(2*m, 4 + et))
            a(kvm.pop(0))
    for m in range(4):
        for dt in range(2):
            for et in range(2):
                c = vr(KV + dt*8 + et*4)
                a(f"{MF} {c}, {vr(acc(2*m, 2+dt))}, {vr(acc(2*m, 4+et))}, {'0' if m == 0 else c}")
    a("s_lshl_b32 s56, s38, 12")
    a(f"s_add_u32 s56, s56, {EX}")
    a("v_add_u32 v10, s56, v26")
    a("v_xor_b32 v11, 4096, v10")
    a("s_cmp_eq_u32 s39, 0")
    a("s_cbranch_scc1 K_EXW0")
    a(f"ds_write_b128 v10, {vr(ZC)} offset:2048")
    a(f"ds_write_b128 v10, {vr(KV)}")
    a(f"ds_write_b128 v10, {vr(KV+4)} offset:1024")
    a("s_waitcnt lgkmcnt(0)")
    for i in range(0, 8, 2):
        a(f"v_pk_mov_b32 {vr(KV+i, 2)}, {vr(KV+8+i, 2)}, {vr(KV+8+i, 2)} op_sel:[0,1]")
    for i in range(0, 4, 2):
        a(f"v_pk_mov_b32 {vr(ZC+i, 2)}, {vr(ZC+4+i, 2)}, {vr(ZC+4+i, 2)} op_sel:[0,1]")
    a("s_branch K_EXW1")
    a.label("K_EXW0")
    a(f"ds_write_b128 v10, {vr(ZC+4)} offset:2048")
    a("s_nop 2")
    a(f"ds_write_b128 v10, {vr(KV+8)}")
    a(f"ds_write_b128 v10, {vr(KV+12)} offset:1024")
    a("s_waitcnt lgkmcnt(0)")
    a.label("K_EXW1")
    lq.drained()
    a("s_barrier")
    a(f"ds_read_b128 {vr(KV+8)}, v11")
    a(f"ds_read_b128 {vr(KV+12)}, v11 offset:1024")
    a(f"ds_read_b128 {vr(ZC+4)}, v11 offset:2048")
    a("s_mov_b32 s56, 0x00010001")
    a("s_mov_b32 s57, 0x00010001")
    a("s_waitcnt lgkmcnt(0)")
    for i in range(0, 8, 2):
        a(f"v_pk_add_f32 {vr(KV+i, 2)}, {vr(KV+i, 2)}, {vr(KV+8+i, 2)}")
    for i in range(0, 4, 2):
        a(f"v_pk_add_f32 {vr(ZC+i, 2)}, {vr(ZC+i, 2)}, {vr(ZC+4+i, 2)}")
    for r in list(range(KV, KV + 8)) + list(range(ZC, ZC + 4)):
        a(f"v_min_u32 v{r}, -2, v{r}")
    vq.issue(f"buffer_store_dwordx4 {vr(KV)}, v26, s[24:27], s62 offen sc1", "P")
    vq.issue(f"buffer_store_dwordx4 {vr(KV+4)}, v26, s[24:27], s62 offen offset:1024 sc1", "P")
    a("s_mov_b64 exec, s[56:57]")
    vq.issue(f"buffer_store_dwordx4 {vr(ZC)}, v27, s[24:27], s62 offen offset:2048 sc1", "P")
    a("s_mov_b64 exec, -1")
    stamp(a, opt, 4)
    vq.need("C")
    a("s_mov_b32 s58, -1")
    a("s_mov_b32 s59, 0")
    a.label("K_HS")
    a("v_cmp_eq_u32 vcc, 8, v28")
    a("s_cmp_eq_u64 vcc, s[58:59]")
    a("s_cbranch_scc1 K_HSOK")
    a("s_sleep 2")
    a("v_lshlrev_b32 v10, 3, v1")
    a("buffer_load_dword v28, v10, s[28:31], 0 offen sc1")
    a("s_waitcnt vmcnt(0)")
    a("s_branch K_HS")
    a.label("K_HSOK")
    PB = [acc(p, 2) for p in range(8)]
    ZG = 48
    def gather_ops():
        ops = []
        for p in range(8):
            for k in range(2):
                ops.append(([f"s_add_u32 s56, s61, {p * 16384}"] if k == 0 else []) +
                           [("vm", f"buffer_load_dwordx4 {vr(PB[p] + 4*k)}, v26, s[24:27], s56 offen offset:{k*1024} sc1", "H")])
        ops.append([("vm", f"buffer_load_dwordx4 {vr(ZG)}, v30, s[24:27], s61 offen offset:2048 sc1", "H")])
        return ops
    def gather(track):
        for op in gather_ops():
            for x in op:
                a(x[1] if isinstance(x, tuple) else x)
    gops = gather_ops()
    if BQ:
        rd = breads(5, RES[5], True) + breads(6, RES[6], True) + breads(7, RES[7], True)
        rf[0] = rf[0][1:]
        rf[0] = [("needds", regs_of(ar(RES[5], 16)))] + rf[0]
        rf[4] = [("needds", regs_of(ar(RES[6], 16)))] + rf[4]
        rf[8] = [("needds", regs_of(ar(RES[7], 16)))] + rf[8]
        qfill = [[("needvm", ["B7"])] + rd[:1]] + [[x] for x in rd[1:]]
        qb = None
    else:
        qb = dmaB(12, 32768) + dmaB(13, 32768 + 4096)
    GQ = opt.get("gather_in_q", 0)
    if DEFER >= 2:
        for x in rdX(14, 0, lambda ks: fX(0, ks)):
            put(x)
    for rt in range(8):
        fill = {}
        ms = mf(15, rt, [0, 1], lambda ks: fXR(rt, ks)) if DEFER >= 1 else []
        if DEFER >= 2:
            ms += mf(14, rt, [0, 1], lambda ks: fX(rt % 2, ks))
            if rt < 7:
                fill[1] = rdX(14, rt + 1, lambda ks: fX((rt + 1) % 2, ks))
        if BQ:
            if rt < 3:
                spread(fill, qfill[8*rt:8*rt+8], 0, len(ms))
            if rt >= 2:
                spread(fill, rf[2*(rt-2):2*(rt-2)+2], 2, len(ms))
        else:
            fill.setdefault(2, []).extend(qb[rt])
        per = len(ms) // 4
        first_rt = 8 - -(-GQ // max(per, 1))
        if GQ and rt >= first_rt:
            k = min(per, GQ - (17 - len(gops)))
            spread(fill, gops[:k], 0, len(ms)); gops = gops[k:]
        weave(ms, fill)
    stamp(a, opt, 13)
    GSP = opt.get("gather_span", 7)
    for rt in range(8):
        k = -(-len(gops) // (GSP - rt)) if rt < GSP else 0
        phi8(acc(rt, 0), acc(rt, 1), acc(rt, 0), inter=gops[:k]); gops = gops[k:]
    gate_ld = [[("vm", f"buffer_load_dwordx4 {vr(acc(i, 1))}, v26, s[16:19], s60 offen offset:{i*1024}", "G")] for i in range(4)]
    gate_ld += [[("vm", f"buffer_load_dwordx4 {vr(acc(4 + i, 1))}, v26, s[32:35], 0 offen offset:{i*1024}", "G")] for i in range(2)]
    emit(gate_ld)
    stamp(a, opt, 5)
    S = 40
    vq.need("H")
    a.label("K_SUM")
    for i in range(0, 8, 2):
        a(f"v_pk_add_f32 {vr(S+i, 2)}, {vr(PB[0]+i, 2)}, {vr(PB[1]+i, 2)}")
    for i in range(4):
        a(f"v_add_f32_dpp v{52+i}, v{ZG+i}, v{ZG+i} quad_perm:[1,0,3,2] row_mask:0xf bank_mask:0xf")
    for p in range(2, 8):
        for i in range(0, 8, 2):
            a(f"v_pk_add_f32 {vr(S+i, 2)}, {vr(S+i, 2)}, {vr(PB[p]+i, 2)}")
        if p in (2, 3):
            ctrl = "quad_perm:[2,3,0,1]" if p == 2 else "row_half_mirror"
            for i in range(4):
                a(f"v_add_f32_dpp v{52+i}, v{52+i}, v{52+i} {ctrl} row_mask:0xf bank_mask:0xf")
    a(f"v_pk_add_f32 v[2:3], {vr(S, 2)}, {vr(S+2, 2)}")
    a(f"v_pk_add_f32 v[4:5], {vr(S+4, 2)}, {vr(S+6, 2)}")
    a(f"v_pk_add_f32 v[6:7], v[52:53], v[54:55]")
    a("v_pk_add_f32 v[2:3], v[2:3], v[4:5]")
    a("v_pk_add_f32 v[2:3], v[2:3], v[6:7]")
    a("v_cmp_u_f32 vcc, v2, v3")
    a("s_cbranch_vccz K_GOK")
    regs = [PB[p] + i for p in range(8) for i in range(8)] + [ZG + i for i in range(4)]
    a(f"v_max3_u32 v2, v{regs[0]}, v{regs[1]}, v{regs[2]}")
    regs = regs[3:]
    while regs:
        if len(regs) >= 2:
            a(f"v_max3_u32 v2, v2, v{regs[0]}, v{regs[1]}"); regs = regs[2:]
        else:
            a(f"v_max_u32 v2, v2, v{regs[0]}"); regs = regs[1:]
    a("v_cmp_eq_u32 vcc, -1, v2")
    a("s_cbranch_vccz K_GOK")
    if opt.get("stamps"):
        a("v_readlane_b32 s56, v31, 24")
        a("s_add_u32 s56, s56, 1")
        a("v_writelane_b32 v31, s56, 24")
    gather(False)
    a("s_waitcnt vmcnt(0)")
    a("s_branch K_SUM")
    a.label("K_GOK")
    stamp(a, opt, 6)
    for i in range(4):
        a(f"v_cvt_pk_bf16_f32 v{2+i}, v{S+2*i}, v{S+2*i+1}")
    a("v_cvt_pk_bf16_f32 v6, v52, v53")
    a("v_cvt_pk_bf16_f32 v7, v54, v55")
    a("s_mul_i32 s56, s40, 3072")
    a(f"s_add_u32 s56, s56, {EX2}")
    a("v_add_u32 v11, s56, v26")
    a("s_lshl_b32 s57, s39, 3")
    a("v_add_u32 v10, s57, v11")
    a("ds_write_b64 v10, v[6:7] offset:2048")
    a("ds_write_b64 v10, v[2:3]")
    a("ds_write_b64 v10, v[4:5] offset:1024")
    a("s_waitcnt lgkmcnt(0)")
    lq.drained()
    a("s_barrier")
    OPR = 40
    a(f"ds_read_b128 {vr(OPR+8)}, v11 offset:2048")
    a(f"ds_read_b128 {vr(OPR)}, v11")
    a(f"ds_read_b128 {vr(OPR+4)}, v11 offset:1024")
    a("s_waitcnt lgkmcnt(2)")
    eb = dmaB(14, 0) + dmaB(15, 4096) if opt.get("early14", 0) else []
    for rt in range(8):
        a(f"{MF} {vr(acc(rt, 4))}, {vr(OPR+8)}, {vr(acc(rt, 0))}, 0")
        if eb and rt % 2 == 0:
            emit(eb[:1]); eb = eb[1:]
    a("s_waitcnt lgkmcnt(0)")
    for rt in range(8):
        a(f"{MF} {vr(acc(rt, 2))}, {vr(OPR)}, {vr(acc(rt, 0))}, 0")
        a(f"{MF} {vr(acc(rt, 3))}, {vr(OPR+4)}, {vr(acc(rt, 0))}, 0")
        D = acc(rt, 4)
        a(f"v_add_f32 v{D}, v36, v{D}")
        a(f"v_rcp_f32 v{D}, v{D}")
        if eb and rt % 2 == 0:
            emit(eb[:1]); eb = eb[1:]
    a("s_add_u32 s63, s65, 4096")
    for rt in range(8):
        N, D = acc(rt, 2), acc(rt, 4)
        for r in range(0, 8, 2):
            a(f"v_pk_mul_f32 {vr(N+r, 2)}, {vr(N+r, 2)}, {vr(D, 2)} op_sel_hi:[1,0]")
        for r in range(0, 8, 2):
            a(f"v_cvt_pk_bf16_f32 v{D+4+r//2}, v{N+r}, v{N+r+1}")
        vq.issue(f"buffer_store_dwordx4 {vr(D+4)}, v26, s[24:27], {'s65' if rt < 4 else 's63'} offen offset:{(rt % 4)*1024} sc1", "O")
    stamp(a, opt, 7)
    if BQ:
        emit(dmaB(12, 32768) + dmaB(13, 32768 + 4096))
    if not opt.get("early14", 0):
        emit(dmaB(14, 0) + dmaB(15, 4096))
    for k in range(4):
        a(f"s_add_u32 s56, s38, {k + 1}")
        a("s_and_b32 s56, s56, 3")
        a("s_lshl_b32 s56, s56, 11")
        a(f"v_add_u32 v{2+k}, s56, v26")
    a("v_and_b32 v6, 31, v1")
    a("v_lshlrev_b32 v6, 2, v6")
    vq.need("G")
    for x in gate[1:] + gate2:
        a(x)
    srd(a, 16, 70, 2048 * 1024 * 2)
    a("v_add_u32 v7, s48, v26")
    a("v_add_u32 v8, 0x10000, v7")
    for j in range(3):
        a(f"s_xor_b32 s56, s38, {j + 1}")
        a("s_sub_u32 s57, s38, s56")
        a("s_sub_u32 s57, s57, 1")
        a("s_and_b32 s57, s57, 3")
        a("s_lshl_b32 s57, s57, 15")
        a("s_lshl_b32 s56, s56, 13")
        a("s_add_u32 s56, s56, s57")
        a(f"v_add_u32 v{9+j}, s56, v26")
    a("v_and_b32 v24, 15, v1")
    a("v_lshrrev_b32 v25, 4, v1")
    a("v_and_b32 v28, 1, v25")
    a("v_lshlrev_b32 v28, 5, v28")
    a("v_lshrrev_b32 v25, 1, v25")
    a("v_lshl_add_u32 v28, v25, 4, v28")
    a("v_lshl_add_u32 v14, v24, 11, v28")
    a("s_lshl_b32 s56, s50, 18")
    a("s_lshl_b32 s57, s38, 16")
    a("s_add_u32 s56, s56, s57")
    a("s_lshl_b32 s57, s51, 7")
    a("s_add_u32 s61, s56, s57")
    a(f"s_add_u32 s62, s61, {16*2048}")
    a("s_mov_b32 s60, 0")
    a("s_getpc_b64 s[66:67]")
    a.label("K_PC")
    a("s_add_u32 s66, s66, K_WAIT-K_PC")
    a("s_addc_u32 s67, s67, 0")
    D = opt.get("depth", 4)
    P2 = 128
    def acc2(i, ct): return P2 + (i * 4 + ct) * 4
    def fA(slot, i): return AQ[slot * 8 + i]
    def fB(s_, ct): return 64 + s_ * 16 + ct * 4
    order = list(range(8, 16)) + list(range(8))
    for ct in range(4):
        a(f"v_subrev_u32 v{16+ct}, 0x10000, v{32+ct}")
    vq.need("B8")
    for x in breads(order[0], fB(0, 0), False):
        put(x)
    if opt.get("atouch", 0):
        a("v_lshrrev_b32 v46, 3, v1")
        a("v_lshlrev_b32 v46, 13, v46")
        a("v_and_b32 v47, 7, v1")
        a("v_lshl_add_u32 v46, v47, 7, v46")
        a("s_and_b32 s56, s51, 7")
        a("s_lshl_b32 s56, s56, 10")
        a("v_add_u32 v46, s56, v46")
    EP = opt.get("early_poll", 1)
    if EP:
        vq.issue("buffer_load_dword v44, v6, s[24:27], s54 offen sc1", "E")
    def flag():
        a("s_mov_b64 exec, 1")
        a("buffer_store_dwordx2 v[38:39], v29, s[24:27], s55 offen sc1")
        a("s_mov_b64 exec, -1")
    FAST = opt.get("fast", 0)
    if not FAST:
        vq.need("O")
        flag()
        stamp(a, opt, 8)
        if EP:
            a("s_waitcnt vmcnt(1)"); vq.drained()
            a("v_cmp_ne_u32 vcc, -1, v44")
            a("s_lshr_b32 s57, vcc_lo, 1"); a("s_and_b32 s57, s57, vcc_lo"); a("s_or_b32 s60, s60, s57")
    SC = " sc1" if opt.get("a_sc1", 1) else ""
    NT = opt.get("ntail", 3)
    N0 = 16 - NT
    FR = {}
    for n in range(N0):
        for i in range(8):
            FR[(n, i)] = (n, i)
    seq = [(n, i) for i in range(8) for n in range(N0, 16)]
    for k, f in enumerate(seq):
        FR[f] = (N0 + k // 8, k % 8)
    GRP = {}
    for f, (g, j) in FR.items():
        GRP.setdefault(g, {})[j] = f
    def areg(n, i):
        g, j = FR[(n, i)]
        return AQ[(g % 4) * 8 + j]
    def loadsA(g):
        ops = []
        for j in range(8):
            n, i = GRP[g][j]
            b = order[n]
            if g < N0:
                pre = [f"s_add_u32 s43, s53, {b*8192}"] if j == 0 else []
                so = "s43"
            else:
                pre = [f"s_add_u32 s{4 + m - N0}, s53, {order[m]*8192}" for m in range(N0, 16)] if (g == N0 and j == 0) else []
                so = f"s{4 + n - N0}"
            off = " offset:1024" if i % 2 else ""
            ops.append(pre + [("vm", f"buffer_load_dwordx4 {ar(areg(n, i))}, v{2 + i // 2}, s[24:27], {so} offen{off}{SC}", f"A{n}_{i}")])
        return ops
    def check(n):
        b = order[n]
        out = [f"s_bitcmp1_b32 s60, {2*b}", f"s_cbranch_scc1 K_RDY{n}", f"s_mov_b32 s59, {2*b}", "s_swappc_b64 s[68:69], s[66:67]", f"K_RDY{n}:"]
        return out
    def poll(g):
        return [("vm", f"buffer_load_dword v{40 + g % 4}, v6, s[24:27], s54 offen sc1", f"P{g}")]
    def upd(g):
        return [f"v_cmp_ne_u32 vcc, -1, v{40 + g % 4}"], ["s_lshr_b32 s57, vcc_lo, 1", "s_and_b32 s57, s57, vcc_lo", "s_or_b32 s60, s60, s57"]
    def gate_grp(g):
        out = []
        if g < N0:
            out += check(g)
        elif g == N0:
            for m in range(N0, 16):
                out += check(m)
            out += [("vm", "buffer_load_dword v20, v6, s[24:27], s54 offen sc1", "GF")]
        if g + 3 <= N0:
            out += poll(g)
        return out
    TA = opt.get("atouch", 0)
    def touchA(n0, n1):
        b0 = order[n0]
        cnt = (n1 - n0) * 8
        return [f"s_add_u32 s56, s53, {b0*8192}", f"s_mov_b64 exec, 0x{(1 << cnt) - 1:x}" if cnt < 32 else "s_mov_b32 exec_hi, 0",
                ("vm", "buffer_load_dword v45, v46, s[24:27], s56 offen sc1", "T"), "s_mov_b64 exec, -1"]
    if FAST:
        vq.need("E")
        stamp(a, opt, 8)
        a("v_cmp_ne_u32 vcc, -1, v44")
        a("s_lshr_b32 s57, vcc_lo, 1"); a("s_and_b32 s60, s57, vcc_lo")
        want = (1 << (2*order[0])) | (1 << (2*order[1]))
        a(f"s_and_b32 s57, s60, 0x{want:x}")
        a(f"s_cmp_eq_u32 s57, 0x{want:x}")
        a("s_cbranch_scc0 K_SLOW")
        q0 = list(vq.q)
        for g in range(2):
            emit([poll(g)])
            emit(loadsA(g))
        flag()
        stamp(a, opt, 9)
        a("s_branch K_GO")
        a.label("K_SLOW")
        vq.q = q0
        flag()
    for g in range(2):
        emit([gate_grp(g)])
        if g == 0:
            stamp(a, opt, 9)
        emit(loadsA(g))
    if FAST:
        a.label("K_GO")
    def redw(i):
        k = i // 2
        return [f"ds_write_b128 {'v7' if k < 2 else 'v8'}, {vr(acc2(i, ct))} offset:{(k % 2)*32768 + (i % 2)*4096 + ct*1024}" for ct in range(4)]
    def Bop(n, ct):
        b = order[n]
        return vr(fB(n % 2, ct)) if b >= 8 else ar(RES[b] + ct * 4)
    for n in range(N0):
        FINE = n < opt.get("fine", 2)
        if not FINE:
            vq.need(f"A{n}_7")
        else:
            vq.need(f"A{n}_0")
        if n == 0:
            stamp(a, opt, 12)
        if opt.get("pstamps"):
            stamp(a, opt, 32 + n)
        ms = []
        for i in range(8):
            for ct in range(4):
                c = vr(acc2(i, ct))
                ms.append(f"{MF} {c}, {Bop(n, ct)}, {ar(areg(n, i))}, {'0' if n == 0 else c}")
        fill = {}
        if n + 3 <= N0:
            u1, u2 = upd(n)
            fill[0] = u1; fill[1] = u2
        if n + 1 < 8:
            spread(fill, [[x] for x in breads(order[n + 1], fB((n + 1) % 2, 0), False)], 4, 20)
        if n == 0:
            spread(fill, [gate_grp(2)] + loadsA(2), 2, 16)
            spread(fill, [gate_grp(3)] + loadsA(3), 16, 31)
            if TA:
                fill.setdefault(31, []).extend(touchA(4, TA))
        else:
            spread(fill, [gate_grp(n + 3)] + loadsA(n + 3), 2, opt.get("lspan", 28))
        if TA and n + TA < 16:
            fill.setdefault(31, []).extend(touchA(n + TA, n + TA + 1))
        if FINE:
            for i in range(1, 8):
                fill.setdefault(4 * i - 1, []).append(("needvm", [f"A{n}_{i}"]))
        weave(ms, fill)
    if opt.get("pstamps"):
        stamp(a, opt, 32 + N0)
    gf = [("needvm", ["GF"]), "v_mov_b32 v22, v20", "v_permlane16_swap_b32 v20, v22"]
    for r in (20, 22):
        gf += [f"v_sub_f32 v{r+1}, 1.0, v{r}", f"v_cvt_pk_bf16_f32 v{r+1}, v{r+1}, v{r+1}", f"v_and_b32 v{r+1}, 0xffff0000, v{r+1}"]
    gf += [["s_cmp_lt_u32 s38, 2", "s_cbranch_scc1 K_NOSWAP", "v_swap_b32 v20, v21", "v_swap_b32 v22, v23", "K_NOSWAP:"]]
    R = 128
    rds = [f"ds_read_b128 {vr(R + k*32 + j*4)}, v{9+k} offset:{j*1024}" for k in range(3) for j in range(8)]
    for i in range(8):
        vq.need(*[f"A{n}_{i}" for n in range(N0, 16)])
        ms = [f"{MF} {vr(acc2(i, ct))}, {Bop(n, ct)}, {ar(areg(n, i))}, {vr(acc2(i, ct))}" for ct in range(4) for n in range(N0, 16)]
        fill = {}
        if i == 0:
            spread(fill, [x if isinstance(x, list) else [x] for x in gf], 0, len(ms))
        if 1 <= i <= 6:
            spread(fill, [[w] for w in redw(i - 1)], min(2, len(ms) - 4), len(ms))
        if i == 7:
            stamp(a, opt, 14)
            a("s_waitcnt lgkmcnt(0)")
            a("s_barrier")
            spread(fill, [[r] for r in rds], 0, len(ms))
        weave(ms, fill)
    OWN = acc2(6, 0)
    a("s_waitcnt lgkmcnt(15)")
    for j in range(0, 32, 2):
        a(f"v_pk_add_f32 {vr(OWN+j, 2)}, {vr(OWN+j, 2)}, {vr(R+j, 2)}")
    for j in range(0, 32, 2):
        gsel = 20 if j < 16 else 22
        a(f"v_pk_mul_f32 {vr(OWN+j, 2)}, {vr(OWN+j, 2)}, {vr(gsel, 2)} op_sel_hi:[1,0]")
    a("s_waitcnt lgkmcnt(0)")
    for pr in range(4):
        for j in range(8 * pr, 8 * pr + 8, 2):
            a(f"v_pk_add_f32 {vr(R+32+j, 2)}, {vr(R+32+j, 2)}, {vr(R+64+j, 2)}")
        for j in range(8 * pr, 8 * pr + 8, 2):
            gsel = 20 if j < 16 else 22
            a(f"v_pk_fma_f32 {vr(OWN+j, 2)}, {vr(R+32+j, 2)}, {vr(gsel, 2)}, {vr(OWN+j, 2)} op_sel:[0,1,0] op_sel_hi:[1,1,1]")
        b = 64 + 4 * pr
        for j in range(4):
            a(f"v_cvt_pk_bf16_f32 v{b+j}, v{OWN+8*pr+2*j}, v{OWN+8*pr+2*j+1}")
        a(f"v_permlane16_swap_b32 v{b}, v{b+2}")
        a(f"v_permlane16_swap_b32 v{b+1}, v{b+3}")
        a(f"buffer_store_dwordx4 {vr(b)}, v14, s[16:19], {'s61' if pr < 2 else 's62'} offen offset:{(pr % 2)*64}")
    stamp(a, opt, 15)
    stamp_out(a, opt, 0)
    a.label("K_END")
    a("s_endpgm")
    a.label("K_WAIT")
    a("buffer_load_dword v44, v6, s[24:27], s54 offen sc1")
    if opt.get("stamps"):
        a("v_readlane_b32 s56, v31, 23")
        a("s_add_u32 s56, s56, 1")
        a("v_writelane_b32 v31, s56, 23")
    a("s_waitcnt vmcnt(0)")
    a("v_cmp_ne_u32 vcc, -1, v44")
    a("s_lshr_b32 s57, vcc_lo, 1"); a("s_and_b32 s57, s57, vcc_lo"); a("s_or_b32 s60, s60, s57")
    a("s_bitcmp1_b32 s60, s59")
    a("s_cbranch_scc0 K_WAIT")
    a.label("K_LAST")
    a("s_setpc_b64 s[68:69]")

def build(opt):
    a = Asm()
    gen(a, opt)
    out = HEADER + "; @launch grid=(256,1,1) block=(256,1,1) lds=163840\n"
    out += '.amdgcn_target "amdgcn-amd-amdhsa--gfx950"\n.text\n' + a.text() + '.section .rodata,"a"\n' + kd(KNAME, 512, 96, 256)
    return out

if __name__ == "__main__":
    opt = {}
    for kv in sys.argv[2:]:
        k, v = kv.split("=")
        try:
            v = eval(v)
        except Exception:
            pass
        opt[k] = v
    open(sys.argv[1], "w").write(build(opt))
```

```python
import sys, struct
from asmlib import Asm, Ins, regs_of
from gen import f2u, LdsQ, kd, srd, stamp, stamp_out, HEADER, WS_DIAG, WS_SIZE, WS_SLOT, WS_G, LOG2E, EPS

MF = "v_mfma_f32_16x16x32_bf16"
WS_WOF = 16 << 20
WS_TOT = 20 << 20
KNAME = "gated_mix__linear_attn_block__linear_attn_block__prompt_kernel"
def vr(b, n=4): return f"v[{b}:{b+n-1}]"
def ar(b, n=4): return f"a[{b}:{b+n-1}]"

class VmQ:
    def __init__(self, a):
        self.a = a; self.q = []
    def issue(self, text, tag):
        self.a(text); self.q.append(tag)
    def count(self, tags):
        idx = -1
        for i, t in enumerate(self.q):
            if t in tags:
                idx = i
        if idx < 0:
            return None
        return min(len(self.q) - idx - 1, 63)
    def need(self, *tags, extra=""):
        n = self.count(tags)
        if n is None:
            if extra:
                self.a(f"s_waitcnt {extra}")
            return
        self.a(f"s_waitcnt vmcnt({n}) {extra}".rstrip())
        self.q = self.q[len(self.q) - n:] if n else []
    def drained(self):
        self.q = []

def gen(a, opt):
    lq = LdsQ(a); vq = VmQ(a)
    def put(x):
        if isinstance(x, tuple):
            if x[0] == "ds":
                lq.issue(x[1])
            elif x[0] == "vm":
                vq.issue(x[1], x[2])
            elif x[0] == "needvm":
                vq.need(*x[1])
            elif x[0] == "needds":
                lq.need(x[1])
        else:
            a(x)
    def weave(mf, fill):
        for g, m in enumerate(mf):
            lq.need(Ins(m).srcAB)
            a(m)
            for x in fill.get(g, []):
                put(x)
    def spread(fill, items, start, end):
        n = len(items)
        for i, it in enumerate(items):
            fill.setdefault(start + (i * (end - start)) // n, []).extend(it)

    XB = [0, 32768]
    WB = [65536 + 24576 * s for s in range(3)]
    EX = 139264
    EX2 = EX + 16384
    ACC = 64
    def acc(rt, ct): return ACC + (rt * 6 + ct) * 4
    def fW(st, ct, ks): return 48 * (st % 2) + (ct * 2 + ks) * 4
    def fX(e, ks): return 96 + e * 8 + ks * 4
    def fXR(rt, ks): return 112 + rt * 8 + ks * 4
    a.raw(f".globl {KNAME}\n.p2align 8\n.type {KNAME},@function")
    a.label(KNAME)
    a("s_cmp_ge_u32 s2, 256")
    a("s_cbranch_scc1 K_END")
    a("s_load_dwordx4 s[4:7], s[0:1], 0")
    a("s_load_dwordx2 s[8:9], s[0:1], 32")
    a("s_load_dwordx4 s[68:71], s[0:1], 48")
    a("s_load_dwordx4 s[12:15], s[0:1], 64")
    a("s_load_dwordx2 s[74:75], s[0:1], 16")
    a("s_load_dwordx2 s[76:77], s[0:1], 40")
    if opt.get("stamps"):
        a("v_mov_b32 v31, 0")
    stamp(a, opt, 30, real=True)
    stamp(a, opt, 0)
    a("v_lshrrev_b32 v21, 6, v0")
    a("v_and_b32 v1, 63, v0")
    a("v_readfirstlane_b32 s38, v21")
    a("s_and_b32 s56, s2, 7")
    a("s_lshr_b32 s57, s2, 3")
    if opt.get("k1map", "A") == "A":
        a("s_and_b32 s36, s57, 7")
        a("s_lshr_b32 s58, s57, 3")
        a("s_lshl_b32 s37, s56, 2")
        a("s_add_u32 s37, s37, s58")
    else:
        a("s_and_b32 s36, s56, 1")
        a("s_lshl_b32 s36, s36, 2")
        a("s_and_b32 s58, s57, 3")
        a("s_add_u32 s36, s36, s58")
        a("s_lshr_b32 s37, s56, 1")
        a("s_lshl_b32 s37, s37, 3")
        a("s_lshr_b32 s58, s57, 2")
        a("s_add_u32 s37, s37, s58")
    a("s_and_b32 s39, s38, 1")
    a("s_lshr_b32 s40, s38, 1")
    a("s_and_b32 s41, s37, 15")
    a("s_lshr_b32 s42, s37, 4")
    a("v_lshrrev_b32 v21, 3, v1")
    a("v_and_b32 v22, 7, v1")
    a("v_lshrrev_b32 v23, 4, v1")
    a("v_and_b32 v24, 1, v23")
    a("v_lshlrev_b32 v24, 2, v24")
    a("v_xor_b32 v24, v22, v24")
    a("v_lshlrev_b32 v24, 4, v24")
    a("v_mul_u32_u24 v25, 6144, v21")
    a("v_add_u32 v24, v24, v25")
    a("v_xor_b32 v25, 32, v24")
    a("s_mul_i32 s56, s38, 6")
    a("s_lshl_b32 s59, s41, 7")
    for i in range(6):
        a(f"s_add_u32 s57, s56, {i}")
        a("s_lshr_b32 s58, s57, 3")
        a("s_and_b32 s57, s57, 7")
        a(f"s_mul_i32 s57, s57, {8*6144}")
        a("s_lshl_b32 s58, s58, 11")
        a("s_add_u32 s57, s57, s58")
        a("s_add_u32 s57, s57, s59")
        if i % 4:
            a(f"s_sub_u32 s57, s57, {(i % 4) * 1024}")
        a(f"v_add_u32 v{10+i}, s57, {'v24' if i % 2 == 0 else 'v25'}")
    a("v_xor_b32 v24, v22, v23")
    a("v_lshlrev_b32 v24, 4, v24")
    a("v_lshl_add_u32 v24, v21, 11, v24")
    a("s_lshl_b32 s56, s36, 19")
    a("s_lshl_b32 s57, s40, 18")
    a("s_add_u32 s56, s56, s57")
    a("s_lshl_b32 s57, s39, 16")
    a("s_add_u32 s56, s56, s57")
    a("v_add_u32 v2, s56, v24")
    a("v_xor_b32 v25, 64, v2")
    for i in range(1, 8):
        src = "v2" if i % 2 == 0 else "v25"
        a(f"v_add_u32 v{2+i}, {(i % 4)*16384 + (i // 4)*131072 - (i % 4) * 1024}, {src}")
    a("s_lshl_b32 s48, s38, 13")
    a("s_lshl_b32 s45, s40, 14")
    a("s_lshl_b32 s57, s39, 12")
    a("s_add_u32 s45, s45, s57")
    a("s_mov_b32 s72, 0")
    a("s_mul_i32 s49, s38, 6144")
    a("s_mov_b32 s43, 0")
    a("s_mov_b32 s44, 0")
    a("s_waitcnt lgkmcnt(0)")
    srd(a, 16, 4, 2048 * 1024 * 2)
    a("s_cmp_eq_u32 s42, 0")
    a("s_cselect_b32 s56, s6, s8")
    a("s_cselect_b32 s57, s7, s9")
    srd(a, 20, 56, 1024 * 3072 * 2)
    stamp(a, opt, 10)

    def dmaXh(t, h):
        ops = []
        so = "s43" if h == 0 else "s72"
        for i in range(4 * h, 4 * h + 4):
            pre = [f"s_add_u32 m0, s45, {XB[t % 2] + h * 8192}"] if i % 4 == 0 else []
            off = f" offset:{(i % 4) * 1024}" if i % 4 else ""
            ops.append(pre + [("vm", f"buffer_load_dwordx4 v{2+i}, s[16:19], {so} offen{off} lds", f"X{t}{'ab'[h]}")])
        ops[3].append(f"s_add_u32 {so}, {so}, 128")
        return ops
    def dmaX(t):
        return dmaXh(t, 0) + dmaXh(t, 1)
    def dmaW(t):
        ops = []
        for i in range(6):
            pre = [f"s_add_u32 m0, s49, {WB[t % 3] + (i // 4) * 4096}"] if i % 4 == 0 else []
            off = f" offset:{(i % 4) * 1024}" if i % 4 else ""
            ops.append(pre + [("vm", f"buffer_load_dwordx4 v{10+i}, s[20:23], s44 offen{off} lds", f"W{t}")])
        ops[5].append(f"s_add_u32 s44, s44, {64*6144}")
        return ops
    def emit(groups):
        for op in groups:
            for x in op:
                put(x)
    emit(dmaW(0) + dmaX(0))
    stamp(a, opt, 11)
    srd(a, 24, 14, WS_TOT)
    srd(a, 28, 12, 256)
    srd(a, 32, 68, 2048)
    a("v_lshlrev_b32 v26, 4, v1")
    a("s_lshl_b32 s46, s37, 1")
    a("s_add_u32 s46, s46, s40")
    a("s_lshl_b32 s47, s36, 1")
    a("s_add_u32 s47, s47, s39")
    a("s_lshl_b32 s56, s47, 7")
    a("s_lshl_b32 s57, s46, 1")
    a("s_add_u32 s56, s56, s57")
    a("s_lshl_b32 s60, s56, 11")
    a("s_lshl_b32 s55, s56, 2")
    a(f"s_add_u32 s55, s55, {WS_G}")
    a("s_lshl_b32 s56, s47, 19")
    a("s_lshl_b32 s57, s46, 13")
    a("s_add_u32 s65, s56, s57")
    a("s_lshl_b32 s56, s37, 17")
    a("s_lshl_b32 s57, s38, 12")
    a("s_add_u32 s61, s56, s57")
    a(f"s_add_u32 s61, s61, {WS_SLOT}")
    a("s_lshl_b32 s57, s36, 14")
    a("s_add_u32 s62, s61, s57")
    a("v_lshrrev_b32 v27, 4, v1")
    a("v_lshlrev_b32 v27, 4, v27")
    a("v_and_b32 v30, 7, v1")
    a("v_lshl_add_u32 v30, v30, 14, v27")
    a("s_lshl_b32 s63, s37, 3")
    for i in range(4):
        a(f"v_mov_b32 v{32+i}, -1")
    a("v_lshlrev_b32 v38, 7, v1")
    a("v_mov_b32 v28, 1")
    a("v_mov_b32 v29, 0")
    sent = [[("vm", "buffer_store_dwordx4 v[32:35], v26, s[24:27], s62 offen sc1", "S")],
            [("vm", "buffer_store_dwordx4 v[32:35], v26, s[24:27], s62 offen offset:1024 sc1", "S")],
            [("vm", "buffer_store_dwordx4 v[32:35], v27, s[24:27], s62 offen offset:2048 sc1", "S")],
            [("vm", "buffer_store_dwordx2 v[32:33], v29, s[24:27], s55 offen sc1", "S")]]
    if opt.get("sent_pro"):
        emit(sent)
    a("v_and_b32 v21, 15, v1")
    a("v_lshrrev_b32 v22, 4, v1")
    a("v_bfe_u32 v23, v1, 1, 3")
    a("v_xor_b32 v23, v23, v22")
    a("v_lshlrev_b32 v23, 4, v23")
    a("v_lshl_add_u32 v23, v21, 7, v23")
    a("s_lshl_b32 s56, s39, 14")
    a("v_add_u32 v16, s56, v23")
    a("v_xor_b32 v17, 64, v16")
    a("v_bfe_u32 v23, v1, 2, 2")
    a("v_lshl_add_u32 v24, v22, 3, v23")
    a("v_lshlrev_b32 v24, 7, v24")
    a("v_bfe_u32 v25, v1, 1, 1")
    a("s_lshl_b32 s56, s40, 2")
    a("v_or_b32 v25, s56, v25")
    a("v_and_b32 v36, 2, v23")
    a("v_lshlrev_b32 v36, 1, v36")
    a("v_xor_b32 v25, v25, v36")
    a("v_and_b32 v36, 1, v22")
    a("v_lshlrev_b32 v36, 1, v36")
    a("v_xor_b32 v25, v25, v36")
    a("v_lshl_add_u32 v24, v25, 4, v24")
    a("v_and_b32 v36, 1, v1")
    a("v_lshl_add_u32 v24, v36, 3, v24")
    a("v_xor_b32 v25, 32, v24")
    for s in range(3):
        a(f"v_add_u32 v{18+2*s}, {WB[s]}, v24")
        a(f"v_add_u32 v{19+2*s}, {WB[s]}, v25")
    a(f"v_mov_b32 v36, 0x{f2u(EPS):08x}")
    a(f"v_mov_b32 v37, v36")
    for rt in range(8):
        for r in range(0, 16, 2):
            a(f"v_pk_mov_b32 {vr(acc(rt, 0) + r, 2)}, v[36:37], v[36:37]")
    if opt.get("wpace", 6):
        a("s_lshl_b32 s56, s2, 2")
        a("s_add_u32 s56, s56, s38")
        a("s_bitcmp1_b32 s56, 3")
        a("s_cselect_b32 s84, s8, s6")
        a("s_cselect_b32 s85, s9, s7")
        a("s_and_b32 s85, s85, 0xffff")
        a(f"s_mov_b32 s86, {1024*3072*2}")
        a("s_mov_b32 s87, 0x00020000")
        a("s_lshr_b32 s57, s56, 4")
        a(f"s_add_u32 s57, s57, {64*opt.get('wpace', 6)}")
        a("s_mul_i32 s73, s57, 6144")
        a("s_and_b32 s57, s56, 7")
        a("s_mul_i32 s57, s57, 768")
        a("s_add_u32 s73, s73, s57")
        pass
    ET = opt.get("etouch", 1)
    if ET == 1:
        a("s_lshl_b32 s56, s2, 2")
        a("s_add_u32 s56, s56, s38")
        a("s_lshr_b32 s57, s56, 4")
        a("s_lshl_b32 s57, s57, 3")
        a("s_and_b32 s58, s56, 7")
        a("s_add_u32 s57, s57, s58")
        a(f"s_add_u32 s57, s57, {opt.get('et_row0', 0)}")
        a(f"s_cmp_lt_u32 s57, {64*opt.get('wpace', 6)}")
        a("s_cselect_b32 s57, s57, 1024")
        a("s_mul_i32 s57, s57, 6144")
        a("v_lshlrev_b32 v40, 10, v1")
        a("s_mov_b64 exec, 0x3f")
        vq.issue("buffer_load_dword v39, v40, s[84:87], s57 offen offset:384", "T")
        a("s_mov_b64 exec, -1")
    if ET == 2:
        for st in range(opt.get("et0", 2), opt.get("wpace", 6)):
            a(f"s_sub_u32 s57, s73, {(opt.get('wpace', 6) - st)*64*6144}")
            a("s_mov_b64 exec, 0x3f")
            vq.issue("buffer_load_dword v39, v38, s[84:87], s57 offen", "T")
            a("s_mov_b64 exec, -1")
    if opt.get("ctouch", 1):
        a("s_getpc_b64 s[56:57]")
        a.label("K_CT")
        a(f"s_sub_u32 s56, s56, K_CT-{KNAME}")
        a("s_subb_u32 s57, s57, 0")
        a("s_mov_b64 s[88:89], s[56:57]")
        a("s_lshr_b32 s58, s2, 3")
        a("s_lshl_b32 s58, s58, 2")
        a("s_add_u32 s58, s58, s38")
        a("s_lshl_b32 s79, s58, 7")
        a("s_mul_i32 s58, s58, 384")
        a("v_add_u32 v40, s58, v38")
        a(f"v_min_u32 v40, K_LAST-{KNAME}, v40")
        a("s_mov_b64 exec, 7")
        vq.issue("global_load_dword v39, v40, s[56:57]", "T")
        a("s_mov_b64 exec, -1")
    PRE = opt.get("pre", "W1")
    pre_list = {"none": [], "W1": dmaW(1), "W1X1": dmaW(1) + dmaX(1)}[PRE]
    emit(pre_list)
    if opt.get("xsp", 0x3c):
        m = opt.get("xsp", 0x3c)
        emit([[f"s_mov_b32 exec_lo, 0x{m | (m << 16):x}", "s_mov_b32 exec_hi, 0", ("vm", "buffer_load_dword v39, v38, s[16:19], s60 offen", "T"), "s_mov_b64 exec, -1"]])
    stamp(a, opt, 1)

    def rdW(t):
        ops = []
        for ct in range(6):
            for ks in range(2):
                for sub in range(2):
                    r = fW(t, ct, ks) + 2 * sub
                    ops.append(("ds", f"ds_read_b64_tr_b16 {ar(r, 2)}, v{18 + 2*(t % 3) + (ct & 1)} offset:{(ct >> 1)*8192 + ks*4096 + sub*512}"))
        return ops
    def rdX(t, rt, dst):
        return [("ds", f"ds_read_b128 {ar(dst(ks))}, v{16+ks} offset:{XB[t % 2] + rt*2048}") for ks in range(2)]
    def mf(t, rt, cts, X):
        out = []
        for ct in cts:
            for ks in range(2):
                W = ar(fW(t, ct, ks))
                A, B = (W, ar(X(ks))) if ct < 2 else (ar(X(ks)), W)
                c = vr(acc(rt, ct))
                cin = "0" if (t == 0 and ks == 0 and ct >= 4) else c
                out.append(f"{MF} {c}, {A}, {B}, {cin}")
        return out
    DEFER = opt.get("defer", 2)
    HST = opt.get("hst", 5)
    DSP = opt.get("dma_per_block", 3)
    def cts_of(t): return [2, 3, 4, 5] if t >= 16 - DEFER else [0, 1, 2, 3, 4, 5]
    def Xreg(t, rt): return (lambda ks: fXR(rt, ks)) if t == 15 else (lambda ks: fX(rt % 2, ks))
    def blocks(seq, pend, wreads, front=None, valu=()):
        pend = list(pend); wreads = list(wreads); valu = list(valu)
        for n, (t, rt) in enumerate(seq):
            cts = cts_of(t)
            nb = len(cts) * 2
            fill = {}
            if rt < 7:
                nx = rdX(t, rt + 1, Xreg(t, rt + 1))
            elif t < 15:
                nx = rdX(t + 1, 0, Xreg(t + 1, 0))
            else:
                nx = []
            items = [[x] for x in nx]
            left_w = len([1 for (_, r) in seq[n:] if r < 7])
            if rt < 7 and wreads:
                k = -(-len(wreads) // left_w)
                items += [[x] for x in wreads[:k]]
                wreads = wreads[k:]
            if n == 0 and front:
                fill[0] = list(front)
            spread(fill, items, 0, nb - 1)
            k = min(len(pend), max(DSP, -(-len(pend) // (len(seq) - n))))
            spread(fill, pend[:k], 1, nb)
            pend = pend[k:]
            k = -(-len(valu) // (len(seq) - n))
            spread(fill, [x if isinstance(x, list) else [x] for x in valu[:k]], 0, nb)
            valu = valu[k:]
            weave(mf(t, rt, cts, Xreg(t, rt)), fill)
        assert not pend and not wreads and not valu

    vq.need("W0", "X0a")
    a("s_barrier")
    stamp(a, opt, 2)
    stamp(a, opt, 25, real=True)
    w0 = rdW(0)
    for x in w0[:4] + rdX(0, 0, lambda ks: fX(0, ks)) + w0[4:13]:
        put(x)
    rest0 = ([] if PRE != "none" else dmaW(1)) + ([] if PRE == "W1X1" else dmaXh(1, 0)) + dmaW(2) + ([] if PRE == "W1X1" else dmaXh(1, 1))
    k0 = min(len(rest0), opt.get("k0", 10))
    blocks([(0, r) for r in range(3)], rest0[:k0], [], front=w0[13:])
    vq.need("W1", "X0b", extra="lgkmcnt(0)")
    lq.drained()
    a("s_barrier")
    x0 = []
    if opt.get("xs0"):
        m = opt["xs0"]
        x0 = [[f"s_mov_b32 exec_lo, 0x{m | (m << 16):x}", "s_mov_b32 exec_hi, 0", ("vm", "buffer_load_dword v39, v38, s[16:19], s60 offen", "T"), "s_mov_b64 exec, -1"]]
    blocks([(0, r) for r in range(3, 7)], rest0[k0:] + dmaXh(2, 0) + dmaW(3) + x0, rdW(1))

    def window1(t, extra=(), last=False, valu=(), first=()):
        vq.need(f"X{t+1}a", f"X{t+1}b", f"W{t+2}", *( ["S"] if t == HST else []), extra="lgkmcnt(0)")
        lq.drained()
        a("s_barrier")
        if opt.get("wstamps"):
            stamp(a, opt, 32 + t)
        pend = list(first)
        if t + 2 <= 15:
            pend += dmaX(t + 2) if t > 0 else dmaXh(2, 1)
        if t + 4 <= 15:
            pend += dmaW(t + 4)
        pend += list(extra)
        seq = [(t, 7)] + [(t + 1, r) for r in range(8 if last else 7)]
        blocks(seq, pend, rdW(t + 2) if t + 2 <= 15 else [], valu=valu)

    def window(t, extra=(), last=False, valu=(), first=()):
        if not opt.get("mid", 0):
            return window1(t, extra, last, valu, first)
        vq.need(f"X{t+1}a", f"W{t+2}", *( ["S"] if t == HST else []), extra="lgkmcnt(0)")
        lq.drained()
        a("s_barrier")
        if opt.get("wstamps"):
            stamp(a, opt, 32 + t)
        pend = list(first)
        if t + 2 <= 15:
            pend += dmaXh(t + 2, 1)
        wd = dmaW(t + 4) if t + 4 <= 15 else []
        pend += wd[:4]
        wr = rdW(t + 2) if t + 2 <= 15 else []
        valu = list(valu); extra = list(extra)
        nv = len(valu) // 2
        ne = len(extra) // 2 if last else 0
        blocks([(t, 7)] + [(t + 1, r) for r in range(3)], pend + extra[:ne], wr[:10], valu=valu[:nv])
        vq.need(f"X{t+1}b")
        lq.need(regs_of(ar(Xreg(t + 1, 3)(0), 8)))
        a("s_barrier")
        pend = []
        if t + 3 <= 15:
            pend += dmaXh(t + 3, 0)
        if wd:
            wd[4] = [f"s_add_u32 m0, s49, {WB[(t + 4) % 3] + 4096}"] + wd[4][1:]
        pend += wd[4:] + extra[ne:]
        blocks([(t + 1, r) for r in range(3, 8 if last else 7)], pend, wr[10:], valu=valu[nv:])

    hs = ["s_cmp_lg_u32 s38, 0", "s_cbranch_scc1 K_NOATOM", "s_mov_b64 exec, 1",
          "buffer_atomic_add v28, v29, s[28:31], s63 offen sc1", "s_mov_b64 exec, -1", "K_NOATOM:"]
    G = 64
    gate = [("needvm", ["G"]), "v_mov_b32 v38, 0", "v_mov_b32 v39, 0"]
    for i in range(8):
        gr = lambda j: acc(j // 4, 1) + j % 4
        gate.append(f"v_dot2_f32_bf16 v38, v{gr(i)}, v{gr(16+i)}, v38")
        gate.append(f"v_dot2_f32_bf16 v39, v{gr(8+i)}, v{gr(16+i)}, v39")
    for ctrl in ("quad_perm:[1,0,3,2]", "quad_perm:[2,3,0,1]", "row_half_mirror", "row_mirror"):
        for r in (38, 39):
            gate.append(f"v_add_f32_dpp v{r}, v{r}, v{r} {ctrl} row_mask:0xf bank_mask:0xf")
    gate2 = []
    for r in (38, 39):
        for k, ln in enumerate((0, 16, 32, 48)):
            gate2.append(f"v_readlane_b32 s{4 + (r-38)*4 + k}, v{r}, {ln}")
    for r, s0 in ((38, 4), (39, 8)):
        gate2 += [f"v_mov_b32 v{r}, s{s0}", f"v_add_f32 v{r}, s{s0+1}, v{r}", f"v_add_f32 v{r}, s{s0+2}, v{r}", f"v_add_f32 v{r}, s{s0+3}, v{r}"]
    for ops in (["v_cvt_pk_bf16_f32 v{r}, v{r}, v{r}", "v_and_b32 v{r}, 0xffff0000, v{r}", "v_mul_f32 v{r}, 0x%08x, v{r}" % f2u(-LOG2E),
                 "v_exp_f32 v{r}, v{r}", "v_add_f32 v{r}, 1.0, v{r}", "v_rcp_f32 v{r}, v{r}", "v_cvt_pk_bf16_f32 v{r}, v{r}, v{r}",
                 "v_and_b32 v{r}, 0xffff0000, v{r}"]):
        for r in (38, 39):
            gate2.append(ops.format(r=r))

    p2 = ["s_and_b32 s56, s2, 7", "s_lshr_b32 s57, s2, 3",
          "s_and_b32 s50, s56, 3", "s_lshl_b32 s50, s50, 2", "s_and_b32 s58, s57, 3", "s_add_u32 s50, s50, s58",
          "s_lshr_b32 s51, s56, 2", "s_lshl_b32 s51, s51, 3", "s_lshr_b32 s58, s57, 2", "s_add_u32 s51, s51, s58",
          ["s_cmp_lt_u32 s38, 2", "s_cselect_b32 s80, s74, s76", "s_cselect_b32 s81, s75, s77"],
          "s_and_b32 s81, s81, 0xffff", f"s_mov_b32 s82, {1024*1024*2}", "s_mov_b32 s83, 0x00020000",
          "s_lshl_b32 s52, s39, 20", "s_lshl_b32 s56, s51, 7", "s_add_u32 s52, s52, s56",
          "s_lshl_b32 s53, s50, 19", "s_lshl_b32 s56, s38, 17", "s_add_u32 s53, s53, s56",
          "s_lshl_b32 s56, s50, 9", "s_lshl_b32 s57, s38, 7", "s_add_u32 s56, s56, s57", f"s_add_u32 s54, s56, {WS_G}",
          "v_lshrrev_b32 v48, 3, v1", "v_and_b32 v49, 7, v1", "v_bfe_u32 v50, v1, 4, 1", "v_lshlrev_b32 v50, 2, v50",
          "v_xor_b32 v49, v49, v50", "v_bfe_u32 v50, v1, 5, 1", "v_lshlrev_b32 v50, 1, v50", "v_xor_b32 v49, v49, v50",
          "v_lshlrev_b32 v49, 4, v49", "v_lshl_add_u32 v40, v48, 11, v49"]
    p2 += [f"v_add_u32 v{40+i}, {i*(8*2048 - 1024)}, v40" for i in range(1, 4)]
    HS = opt.get("halfst", 1)
    p2 += ["s_mul_i32 s64, s38, 6144" if HS else "s_lshl_b32 s64, s38, 12", f"s_add_u32 s64, s64, {EX}"]
    p2b = ["v_lshrrev_b32 v48, 4, v1", "v_bfe_u32 v49, v1, 2, 2", "v_lshl_add_u32 v50, v48, 2, v49", "v_lshlrev_b32 v50, 7, v50",
           "v_bfe_u32 v51, v1, 1, 1", "v_and_b32 v52, 2, v49", "v_lshlrev_b32 v52, 1, v52", "v_xor_b32 v51, v51, v52",
           "v_and_b32 v52, 1, v48", "v_lshlrev_b32 v52, 1, v52", "v_xor_b32 v51, v51, v52", "v_lshl_add_u32 v50, v51, 4, v50",
           "v_and_b32 v52, 1, v1", "v_lshl_add_u32 v50, v52, 3, v50", "v_add_u32 v44, s64, v50"]
    p2b += [f"v_xor_b32 v{44+ct}, {ct*32}, v44" for ct in range(1, 4)]
    p2b += ["v_lshlrev_b32 v53, 3, v1"]
    p2c = [f"v_mov_b32 v{12+i}, v{40+i}" for i in range(4)] + ["s_add_u32 s56, s48, 0x10000", "v_add_u32 v32, s56, v50"]
    p2c += [f"v_xor_b32 v{32+ct}, {ct*32}, v32" for ct in range(1, 4)]
    SLOT = {}
    RES = {0: 176, 1: 192, 2: 208, 3: 224, 4: 240, 5: 16, 6: 32, 7: 64}
    AQ = [q for q in range(0, 256, 4) if not any(r <= q < r + 16 for r in RES.values())]
    assert len(AQ) == 32
    def dmaB(b, slot):
        SLOT[b] = slot
        ops = []
        for j in range(4):
            off = f" offset:{j*1024}" if j else ""
            m0 = "s_mov_b32 m0, s64" if slot is None else f"s_add_u32 m0, s48, {slot}"
            ops.append(([m0] if j == 0 else []) +
                       [("vm", f"buffer_load_dwordx4 v{(40 if slot is None else 12)+j}, s[80:83], s52 offen{off} lds", f"B{b}")])
        ops[-1].append("s_add_u32 s52, s52, 65536")
        return ops
    def breads(b, dst, agpr):
        sl = SLOT[b]
        base = 44 if sl is None else (32 if sl >= 65536 else 16)
        o = 0 if sl is None else sl % 65536
        return [("ds", f"ds_read_b64_tr_b16 {(ar if agpr else vr)(dst + ct*4 + 2*sub, 2)}, v{base+ct} offset:{o + sub*2048}")
                for ct in range(4) for sub in range(2)]
    PD = opt.get("wpace", 6)
    def wp():
        return ["s_mov_b64 exec, 0x3f", ("vm", "buffer_load_dword v39, v38, s[84:87], s73 offen", "T"), "s_mov_b64 exec, -1",
                f"s_add_u32 s73, s73, {64*6144}"]
    wt_setup = [["s_bitcmp1_b32 s38, 0", "s_cselect_b32 s92, s76, s74", "s_cselect_b32 s93, s77, s75"], "s_and_b32 s93, s93, 0xffff",
                f"s_mov_b32 s94, {1024*1024*2}", "s_mov_b32 s95, 0x00020000",
                "s_lshl_b32 s78, s2, 1", "s_add_u32 s78, s78, s40", "s_lshl_b32 s78, s78, 12"]
    WTN, WT0 = opt.get("wtn", 4), opt.get("wt0", 9)
    def wt(k):
        n = 32 // WTN
        return [f"s_mov_b64 exec, 0x{(1 << n) - 1:x}",
                ("vm", f"buffer_load_dword v39, v38, s[92:95], s78 offen offset:{k*n*128}", "T"), "s_mov_b64 exec, -1"]
    xs = opt.get("xsplit", {0: 0xc0, 1: 0x300, 2: 0xc00, 3: 0x3000, 4: 0xc000})
    ST0 = opt.get("st0", 2 if HS else 3)
    sw = opt.get("sent_w", [1, 2, 3, 3]) if not opt.get("sent_pro") else [-1] * 4
    for t in range(15):
        kw = {"extra": [], "valu": []}
        if xs and t in xs:
            m = xs[t]
            kw["extra"] += [[f"s_mov_b32 exec_lo, 0x{m | (m << 16):x}", "s_mov_b32 exec_hi, 0", ("vm", "buffer_load_dword v39, v38, s[16:19], s60 offen", "T"), "s_mov_b64 exec, -1"]]
        if PD and t + PD <= 15: kw["extra"] += [wp()]
        if t == ST0 - 2: kw["valu"] += p2
        if t == ST0 - 1: kw["valu"] += p2b
        for k in range(4):
            if sw[k] == t: kw["extra"] += [sent[k]]
        if t == HST: kw["extra"] += [hs]
        for (tw, lab, nl) in opt.get("ct2", [(12, "K_TAIL", 2)]):
            if t == tw:
                kw["extra"] += [[f"s_add_u32 s59, s79, {lab}-{KNAME}", "v_lshlrev_b32 v54, 14, v1", "v_add_u32 v54, s59, v54",
                                 f"v_min_u32 v54, K_LAST-{KNAME}, v54", f"s_mov_b64 exec, {(1 << nl) - 1}",
                                 ("vm", "global_load_dword v39, v54, s[88:89]", "T"), "s_mov_b64 exec, -1"]]
        a.label(f"K_W{t}")
        if t == WT0 - 1: kw["valu"] += wt_setup
        if WT0 <= t < WT0 + WTN: kw["extra"] += [wt(t - WT0)]
        LT = opt.get("lt")
        if LT:
            if t == min(LT) - 1:
                kw["valu"] += ["v_lshrrev_b32 v55, 3, v1", "v_lshlrev_b32 v55, 16, v55", "v_and_b32 v56, 7, v1", "v_lshl_add_u32 v55, v56, 7, v55",
                               "s_lshl_b32 s3, s39, 20", "s_lshr_b32 s56, s2, 3", "s_lshl_b32 s56, s56, 11", "s_add_u32 s3, s3, s56",
                               "s_and_b32 s56, s2, 4", "s_lshl_b32 s56, s56, 8", "s_add_u32 s3, s3, s56"]
            if t in LT:
                b0, nb_ = LT[t]
                kw["extra"] += [[f"s_add_u32 s56, s3, {b0*65536}", f"s_mov_b32 exec_lo, 0x{(1 << (8*nb_)) - 1:x}", "s_mov_b32 exec_hi, 0",
                                 ("vm", "buffer_load_dword v39, v55, s[80:83], s56 offen", "T"), "s_mov_b64 exec, -1"]]
        if HS:
            h = t - ST0
            if 0 <= h < 10:
                sub = h % 2
                grp = []
                for j in (2*sub, 2*sub + 1):
                    off = f" offset:{j*1024}" if j else ""
                    grp.append(([f"s_add_u32 m0, s64, {(h % 3)*2048 - sub*2048}"] if j % 2 == 0 else []) +
                               [("vm", f"buffer_load_dwordx4 v{40+j}, s[80:83], s52 offen{off} lds", f"H{h}")])
                if sub:
                    grp[-1].append("s_add_u32 s52, s52, 65536")
                kw["extra"] += grp
            h = t - ST0 - 2
            if 0 <= h < 10:
                kw["valu"] += [("needvm", [f"H{h}"])] + [("ds", f"ds_read_b64_tr_b16 {ar(RES[h // 2] + ct*4 + 2*(h % 2), 2)}, v{44+ct} offset:{(h % 3)*2048}") for ct in range(4)]
        elif ST0 <= t < ST0 + 10:
            b = (t - ST0) // 2
            if (t - ST0) % 2 == 0:
                kw["extra"] += dmaB(b, None)
            else:
                kw["valu"] += [[]] * 12 + [("needvm", [f"B{b}"])] + breads(b, RES[b], True)
        if t == 13:
            kw["valu"] += p2c
            kw["extra"] += [[("vm", "buffer_load_dword v28, v53, s[28:31], 0 offen sc1", "C")]]
        if t == 14:
            kw["extra"] += dmaB(5, 65536) + dmaB(6, 65536 + 4096) + dmaB(7, 98304) + dmaB(8, 98304 + 4096)
            kw["last"] = True
        window(t, **kw)
    stamp(a, opt, 3)
    stamp(a, opt, 26, real=True)

    a.label("K_TAIL")
    a(f"s_mov_b32 s66, 0x{f2u(LOG2E):08x}")
    a(f"s_mov_b32 s67, 0x{f2u(LOG2E):08x}")
    a(f"v_mov_b32 v20, 0x{f2u(-EPS * LOG2E):08x}")
    a("v_mov_b32 v21, v20")
    for i in range(4):
        a(f"v_mov_b32 v{22+i}, 0x3f803f80")
    KV, ZC = 40, 56
    T0 = 2
    def phi8(b0, b1, dst, inter=()):
        src = [b0, b0 + 2, b1, b1 + 2]
        L = []
        for i, s in enumerate(src):
            L.append(f"v_pk_fma_f32 {vr(T0 + 2*i, 2)}, {vr(s, 2)}, s[66:67], v[20:21]")
        for i in range(8):
            L.append(f"v_exp_f32_e64 v{T0+i}, v{T0+i} clamp")
        for s in src:
            L.append(f"v_max_f32 v{s}, v36, v{s}")
            L.append(f"v_max_f32 v{s+1}, v36, v{s+1}")
        for i, s in enumerate(src):
            L.append(f"v_pk_add_f32 {vr(T0 + 2*i, 2)}, {vr(s, 2)}, {vr(T0 + 2*i, 2)}")
        for i in range(4):
            L.append(f"v_cvt_pk_bf16_f32 v{dst+i}, v{T0+2*i}, v{T0+2*i+1}")
        pos = {0: [], 8: [], 18: []}
        for n, it in enumerate(inter):
            pos[(0, 8, 18)[(n * 3) // max(len(inter), 1)]].append(it)
        for n, x in enumerate(L):
            if n in pos:
                emit(pos[n])
            a(x)
    def pack8(b0, b1, dst):
        for i, s in enumerate([b0, b0 + 2, b1, b1 + 2]):
            a(f"v_cvt_pk_bf16_f32 v{dst+i}, v{s}, v{s+1}")
    t1 = {2: [[("needvm", ["B7"])] + breads(5, RES[5], True), breads(6, RES[6], True), breads(7, RES[7], True)]}
    rf = dmaB(9, SLOT[5]) + dmaB(10, SLOT[6]) + dmaB(11, SLOT[7])
    rf[0] = ["s_waitcnt lgkmcnt(0)"] + rf[0]
    for k in range(4):
        t1[3 + k] = rf[3*k:3*k+3]
    BQ = opt.get("bq", 0)
    if BQ:
        t1 = {}
    for m in range(4):
        for dt in range(2):
            phi8(acc(2*m, 2 + dt), acc(2*m + 1, 2 + dt), acc(2*m, 2 + dt), inter=t1.get(m*2 + dt, []))
    lq.drained()
    kvm = []
    for m in range(4):
        for dt in range(2):
            c = vr(ZC + dt*4)
            kvm.append(f"{MF} {c}, {vr(acc(2*m, 2+dt))}, v[22:25], {'0' if m == 0 else c}")
    for m in range(4):
        for et in range(2):
            pack8(acc(2*m, 4 + et), acc(2*m + 1, 4 + et), acc(2*m, 4 + et))
            a(kvm.pop(0))
    for m in range(4):
        for dt in range(2):
            for et in range(2):
                c = vr(KV + dt*8 + et*4)
                a(f"{MF} {c}, {vr(acc(2*m, 2+dt))}, {vr(acc(2*m, 4+et))}, {'0' if m == 0 else c}")
    a("s_lshl_b32 s56, s38, 12")
    a(f"s_add_u32 s56, s56, {EX}")
    a("v_add_u32 v10, s56, v26")
    a("v_xor_b32 v11, 4096, v10")
    a("s_cmp_eq_u32 s39, 0")
    a("s_cbranch_scc1 K_EXW0")
    a(f"ds_write_b128 v10, {vr(ZC)} offset:2048")
    a(f"ds_write_b128 v10, {vr(KV)}")
    a(f"ds_write_b128 v10, {vr(KV+4)} offset:1024")
    a("s_waitcnt lgkmcnt(0)")
    for i in range(0, 8, 2):
        a(f"v_pk_mov_b32 {vr(KV+i, 2)}, {vr(KV+8+i, 2)}, {vr(KV+8+i, 2)} op_sel:[0,1]")
    for i in range(0, 4, 2):
        a(f"v_pk_mov_b32 {vr(ZC+i, 2)}, {vr(ZC+4+i, 2)}, {vr(ZC+4+i, 2)} op_sel:[0,1]")
    a("s_branch K_EXW1")
    a.label("K_EXW0")
    a(f"ds_write_b128 v10, {vr(ZC+4)} offset:2048")
    a("s_nop 2")
    a(f"ds_write_b128 v10, {vr(KV+8)}")
    a(f"ds_write_b128 v10, {vr(KV+12)} offset:1024")
    a("s_waitcnt lgkmcnt(0)")
    a.label("K_EXW1")
    lq.drained()
    a("s_barrier")
    a(f"ds_read_b128 {vr(KV+8)}, v11")
    a(f"ds_read_b128 {vr(KV+12)}, v11 offset:1024")
    a(f"ds_read_b128 {vr(ZC+4)}, v11 offset:2048")
    a("s_mov_b32 s56, 0x00010001")
    a("s_mov_b32 s57, 0x00010001")
    a("s_waitcnt lgkmcnt(0)")
    for i in range(0, 8, 2):
        a(f"v_pk_add_f32 {vr(KV+i, 2)}, {vr(KV+i, 2)}, {vr(KV+8+i, 2)}")
    for i in range(0, 4, 2):
        a(f"v_pk_add_f32 {vr(ZC+i, 2)}, {vr(ZC+i, 2)}, {vr(ZC+4+i, 2)}")
    for r in list(range(KV, KV + 8)) + list(range(ZC, ZC + 4)):
        a(f"v_min_u32 v{r}, -2, v{r}")
    vq.issue(f"buffer_store_dwordx4 {vr(KV)}, v26, s[24:27], s62 offen sc1", "P")
    vq.issue(f"buffer_store_dwordx4 {vr(KV+4)}, v26, s[24:27], s62 offen offset:1024 sc1", "P")
    a("s_mov_b64 exec, s[56:57]")
    vq.issue(f"buffer_store_dwordx4 {vr(ZC)}, v27, s[24:27], s62 offen offset:2048 sc1", "P")
    a("s_mov_b64 exec, -1")
    stamp(a, opt, 4)
    vq.need("C")
    a("s_mov_b32 s58, -1")
    a("s_mov_b32 s59, 0")
    a.label("K_HS")
    a("v_cmp_eq_u32 vcc, 8, v28")
    a("s_cmp_eq_u64 vcc, s[58:59]")
    a("s_cbranch_scc1 K_HSOK")
    a("s_sleep 2")
    a("v_lshlrev_b32 v10, 3, v1")
    a("buffer_load_dword v28, v10, s[28:31], 0 offen sc1")
    a("s_waitcnt vmcnt(0)")
    a("s_branch K_HS")
    a.label("K_HSOK")
    PB = [acc(p, 2) for p in range(8)]
    ZG = 48
    def gather_ops():
        ops = []
        for p in range(8):
            for k in range(2):
                ops.append(([f"s_add_u32 s56, s61, {p * 16384}"] if k == 0 else []) +
                           [("vm", f"buffer_load_dwordx4 {vr(PB[p] + 4*k)}, v26, s[24:27], s56 offen offset:{k*1024} sc1", "H")])
        ops.append([("vm", f"buffer_load_dwordx4 {vr(ZG)}, v30, s[24:27], s61 offen offset:2048 sc1", "H")])
        return ops
    def gather(track):
        for op in gather_ops():
            for x in op:
                a(x[1] if isinstance(x, tuple) else x)
    gops = gather_ops()
    if BQ:
        rd = breads(5, RES[5], True) + breads(6, RES[6], True) + breads(7, RES[7], True)
        rf[0] = rf[0][1:]
        rf[0] = [("needds", regs_of(ar(RES[5], 16)))] + rf[0]
        rf[4] = [("needds", regs_of(ar(RES[6], 16)))] + rf[4]
        rf[8] = [("needds", regs_of(ar(RES[7], 16)))] + rf[8]
        qfill = [[("needvm", ["B7"])] + rd[:1]] + [[x] for x in rd[1:]]
        qb = None
    else:
        qb = dmaB(12, 32768) + dmaB(13, 32768 + 4096)
    GQ = opt.get("gather_in_q", 0)
    if DEFER >= 2:
        for x in rdX(14, 0, lambda ks: fX(0, ks)):
            put(x)
    for rt in range(8):
        fill = {}
        ms = mf(15, rt, [0, 1], lambda ks: fXR(rt, ks)) if DEFER >= 1 else []
        if DEFER >= 2:
            ms += mf(14, rt, [0, 1], lambda ks: fX(rt % 2, ks))
            if rt < 7:
                fill[1] = rdX(14, rt + 1, lambda ks: fX((rt + 1) % 2, ks))
        if BQ:
            if rt < 3:
                spread(fill, qfill[8*rt:8*rt+8], 0, len(ms))
            if rt >= 2:
                spread(fill, rf[2*(rt-2):2*(rt-2)+2], 2, len(ms))
        else:
            fill.setdefault(2, []).extend(qb[rt])
        per = len(ms) // 4
        first_rt = 8 - -(-GQ // max(per, 1))
        if GQ and rt >= first_rt:
            k = min(per, GQ - (17 - len(gops)))
            spread(fill, gops[:k], 0, len(ms)); gops = gops[k:]
        weave(ms, fill)
    stamp(a, opt, 13)
    GSP = opt.get("gather_span", 7)
    for rt in range(8):
        k = -(-len(gops) // (GSP - rt)) if rt < GSP else 0
        phi8(acc(rt, 0), acc(rt, 1), acc(rt, 0), inter=gops[:k]); gops = gops[k:]
    gate_ld = [[("vm", f"buffer_load_dwordx4 {vr(acc(i, 1))}, v26, s[16:19], s60 offen offset:{i*1024}", "G")] for i in range(4)]
    gate_ld += [[("vm", f"buffer_load_dwordx4 {vr(acc(4 + i, 1))}, v26, s[32:35], 0 offen offset:{i*1024}", "G")] for i in range(2)]
    emit(gate_ld)
    stamp(a, opt, 5)
    S = 40
    vq.need("H")
    a.label("K_SUM")
    for i in range(0, 8, 2):
        a(f"v_pk_add_f32 {vr(S+i, 2)}, {vr(PB[0]+i, 2)}, {vr(PB[1]+i, 2)}")
    for i in range(4):
        a(f"v_add_f32_dpp v{52+i}, v{ZG+i}, v{ZG+i} quad_perm:[1,0,3,2] row_mask:0xf bank_mask:0xf")
    for p in range(2, 8):
        for i in range(0, 8, 2):
            a(f"v_pk_add_f32 {vr(S+i, 2)}, {vr(S+i, 2)}, {vr(PB[p]+i, 2)}")
        if p in (2, 3):
            ctrl = "quad_perm:[2,3,0,1]" if p == 2 else "row_half_mirror"
            for i in range(4):
                a(f"v_add_f32_dpp v{52+i}, v{52+i}, v{52+i} {ctrl} row_mask:0xf bank_mask:0xf")
    a(f"v_pk_add_f32 v[2:3], {vr(S, 2)}, {vr(S+2, 2)}")
    a(f"v_pk_add_f32 v[4:5], {vr(S+4, 2)}, {vr(S+6, 2)}")
    a(f"v_pk_add_f32 v[6:7], v[52:53], v[54:55]")
    a("v_pk_add_f32 v[2:3], v[2:3], v[4:5]")
    a("v_pk_add_f32 v[2:3], v[2:3], v[6:7]")
    a("v_cmp_u_f32 vcc, v2, v3")
    a("s_cbranch_vccz K_GOK")
    regs = [PB[p] + i for p in range(8) for i in range(8)] + [ZG + i for i in range(4)]
    a(f"v_max3_u32 v2, v{regs[0]}, v{regs[1]}, v{regs[2]}")
    regs = regs[3:]
    while regs:
        if len(regs) >= 2:
            a(f"v_max3_u32 v2, v2, v{regs[0]}, v{regs[1]}"); regs = regs[2:]
        else:
            a(f"v_max_u32 v2, v2, v{regs[0]}"); regs = regs[1:]
    a("v_cmp_eq_u32 vcc, -1, v2")
    a("s_cbranch_vccz K_GOK")
    if opt.get("stamps"):
        a("v_readlane_b32 s56, v31, 24")
        a("s_add_u32 s56, s56, 1")
        a("v_writelane_b32 v31, s56, 24")
    gather(False)
    a("s_waitcnt vmcnt(0)")
    a("s_branch K_SUM")
    a.label("K_GOK")
    stamp(a, opt, 6)
    for i in range(4):
        a(f"v_cvt_pk_bf16_f32 v{2+i}, v{S+2*i}, v{S+2*i+1}")
    a("v_cvt_pk_bf16_f32 v6, v52, v53")
    a("v_cvt_pk_bf16_f32 v7, v54, v55")
    a("s_mul_i32 s56, s40, 3072")
    a(f"s_add_u32 s56, s56, {EX2}")
    a("v_add_u32 v11, s56, v26")
    a("s_lshl_b32 s57, s39, 3")
    a("v_add_u32 v10, s57, v11")
    a("ds_write_b64 v10, v[6:7] offset:2048")
    a("ds_write_b64 v10, v[2:3]")
    a("ds_write_b64 v10, v[4:5] offset:1024")
    a("s_waitcnt lgkmcnt(0)")
    lq.drained()
    a("s_barrier")
    OPR = 40
    a(f"ds_read_b128 {vr(OPR+8)}, v11 offset:2048")
    a(f"ds_read_b128 {vr(OPR)}, v11")
    a(f"ds_read_b128 {vr(OPR+4)}, v11 offset:1024")
    a("s_waitcnt lgkmcnt(2)")
    eb = dmaB(14, 0) + dmaB(15, 4096) if opt.get("early14", 0) else []
    for rt in range(8):
        a(f"{MF} {vr(acc(rt, 4))}, {vr(OPR+8)}, {vr(acc(rt, 0))}, 0")
        if eb and rt % 2 == 0:
            emit(eb[:1]); eb = eb[1:]
    a("s_waitcnt lgkmcnt(0)")
    for rt in range(8):
        a(f"{MF} {vr(acc(rt, 2))}, {vr(OPR)}, {vr(acc(rt, 0))}, 0")
        a(f"{MF} {vr(acc(rt, 3))}, {vr(OPR+4)}, {vr(acc(rt, 0))}, 0")
        D = acc(rt, 4)
        a(f"v_add_f32 v{D}, v36, v{D}")
        a(f"v_rcp_f32 v{D}, v{D}")
        if eb and rt % 2 == 0:
            emit(eb[:1]); eb = eb[1:]
    a("s_add_u32 s63, s65, 4096")
    for rt in range(8):
        N, D = acc(rt, 2), acc(rt, 4)
        for r in range(0, 8, 2):
            a(f"v_pk_mul_f32 {vr(N+r, 2)}, {vr(N+r, 2)}, {vr(D, 2)} op_sel_hi:[1,0]")
        for r in range(0, 8, 2):
            a(f"v_cvt_pk_bf16_f32 v{D+4+r//2}, v{N+r}, v{N+r+1}")
        vq.issue(f"buffer_store_dwordx4 {vr(D+4)}, v26, s[24:27], {'s65' if rt < 4 else 's63'} offen offset:{(rt % 4)*1024} sc1", "O")
    stamp(a, opt, 7)
    if BQ:
        emit(dmaB(12, 32768) + dmaB(13, 32768 + 4096))
    if not opt.get("early14", 0):
        emit(dmaB(14, 0) + dmaB(15, 4096))
    for k in range(4):
        a(f"s_add_u32 s56, s38, {k + 1}")
        a("s_and_b32 s56, s56, 3")
        a("s_lshl_b32 s56, s56, 11")
        a(f"v_add_u32 v{2+k}, s56, v26")
    a("v_and_b32 v6, 31, v1")
    a("v_lshlrev_b32 v6, 2, v6")
    vq.need("G")
    for x in gate[1:] + gate2:
        a(x)
    srd(a, 16, 70, 2048 * 1024 * 2)
    a("v_add_u32 v7, s48, v26")
    a("v_add_u32 v8, 0x10000, v7")
    for j in range(3):
        a(f"s_xor_b32 s56, s38, {j + 1}")
        a("s_sub_u32 s57, s38, s56")
        a("s_sub_u32 s57, s57, 1")
        a("s_and_b32 s57, s57, 3")
        a("s_lshl_b32 s57, s57, 15")
        a("s_lshl_b32 s56, s56, 13")
        a("s_add_u32 s56, s56, s57")
        a(f"v_add_u32 v{9+j}, s56, v26")
    a("v_and_b32 v24, 15, v1")
    a("v_lshrrev_b32 v25, 4, v1")
    a("v_and_b32 v28, 1, v25")
    a("v_lshlrev_b32 v28, 5, v28")
    a("v_lshrrev_b32 v25, 1, v25")
    a("v_lshl_add_u32 v28, v25, 4, v28")
    a("v_lshl_add_u32 v14, v24, 11, v28")
    a("s_lshl_b32 s56, s50, 18")
    a("s_lshl_b32 s57, s38, 16")
    a("s_add_u32 s56, s56, s57")
    a("s_lshl_b32 s57, s51, 7")
    a("s_add_u32 s61, s56, s57")
    a(f"s_add_u32 s62, s61, {16*2048}")
    a("s_mov_b32 s60, 0")
    a("s_getpc_b64 s[66:67]")
    a.label("K_PC")
    a("s_add_u32 s66, s66, K_WAIT-K_PC")
    a("s_addc_u32 s67, s67, 0")
    D = opt.get("depth", 4)
    P2 = 128
    def acc2(i, ct): return P2 + (i * 4 + ct) * 4
    def fA(slot, i): return AQ[slot * 8 + i]
    def fB(s_, ct): return 64 + s_ * 16 + ct * 4
    order = list(range(8, 16)) + list(range(8))
    for ct in range(4):
        a(f"v_subrev_u32 v{16+ct}, 0x10000, v{32+ct}")
    vq.need("B8")
    for x in breads(order[0], fB(0, 0), False):
        put(x)
    if opt.get("atouch", 0):
        a("v_lshrrev_b32 v46, 3, v1")
        a("v_lshlrev_b32 v46, 13, v46")
        a("v_and_b32 v47, 7, v1")
        a("v_lshl_add_u32 v46, v47, 7, v46")
        a("s_and_b32 s56, s51, 7")
        a("s_lshl_b32 s56, s56, 10")
        a("v_add_u32 v46, s56, v46")
    EP = opt.get("early_poll", 1)
    if EP:
        vq.issue("buffer_load_dword v44, v6, s[24:27], s54 offen sc1", "E")
    def flag():
        a("s_mov_b64 exec, 1")
        a("buffer_store_dwordx2 v[38:39], v29, s[24:27], s55 offen sc1")
        a("s_mov_b64 exec, -1")
    FAST = opt.get("fast", 0)
    if not FAST:
        vq.need("O")
        flag()
        stamp(a, opt, 8)
        if EP:
            a("s_waitcnt vmcnt(1)"); vq.drained()
            a("v_cmp_ne_u32 vcc, -1, v44")
            a("s_lshr_b32 s57, vcc_lo, 1"); a("s_and_b32 s57, s57, vcc_lo"); a("s_or_b32 s60, s60, s57")
    SC = " sc1" if opt.get("a_sc1", 1) else ""
    NT = opt.get("ntail", 3)
    N0 = 16 - NT
    FR = {}
    for n in range(N0):
        for i in range(8):
            FR[(n, i)] = (n, i)
    seq = [(n, i) for i in range(8) for n in range(N0, 16)]
    for k, f in enumerate(seq):
        FR[f] = (N0 + k // 8, k % 8)
    GRP = {}
    for f, (g, j) in FR.items():
        GRP.setdefault(g, {})[j] = f
    def areg(n, i):
        g, j = FR[(n, i)]
        return AQ[(g % 4) * 8 + j]
    def loadsA(g):
        ops = []
        for j in range(8):
            n, i = GRP[g][j]
            b = order[n]
            if g < N0:
                pre = [f"s_add_u32 s43, s53, {b*8192}"] if j == 0 else []
                so = "s43"
            else:
                pre = [f"s_add_u32 s{4 + m - N0}, s53, {order[m]*8192}" for m in range(N0, 16)] if (g == N0 and j == 0) else []
                so = f"s{4 + n - N0}"
            off = " offset:1024" if i % 2 else ""
            ops.append(pre + [("vm", f"buffer_load_dwordx4 {ar(areg(n, i))}, v{2 + i // 2}, s[24:27], {so} offen{off}{SC}", f"A{n}_{i}")])
        return ops
    def check(n):
        b = order[n]
        out = [f"s_bitcmp1_b32 s60, {2*b}", f"s_cbranch_scc1 K_RDY{n}", f"s_mov_b32 s59, {2*b}", "s_swappc_b64 s[68:69], s[66:67]", f"K_RDY{n}:"]
        return out
    def poll(g):
        return [("vm", f"buffer_load_dword v{40 + g % 4}, v6, s[24:27], s54 offen sc1", f"P{g}")]
    def upd(g):
        return [f"v_cmp_ne_u32 vcc, -1, v{40 + g % 4}"], ["s_lshr_b32 s57, vcc_lo, 1", "s_and_b32 s57, s57, vcc_lo", "s_or_b32 s60, s60, s57"]
    def gate_grp(g):
        out = []
        if g < N0:
            out += check(g)
        elif g == N0:
            for m in range(N0, 16):
                out += check(m)
            out += [("vm", "buffer_load_dword v20, v6, s[24:27], s54 offen sc1", "GF")]
        if g + 3 <= N0:
            out += poll(g)
        return out
    TA = opt.get("atouch", 0)
    def touchA(n0, n1):
        b0 = order[n0]
        cnt = (n1 - n0) * 8
        return [f"s_add_u32 s56, s53, {b0*8192}", f"s_mov_b64 exec, 0x{(1 << cnt) - 1:x}" if cnt < 32 else "s_mov_b32 exec_hi, 0",
                ("vm", "buffer_load_dword v45, v46, s[24:27], s56 offen sc1", "T"), "s_mov_b64 exec, -1"]
    if FAST:
        vq.need("E")
        stamp(a, opt, 8)
        a("v_cmp_ne_u32 vcc, -1, v44")
        a("s_lshr_b32 s57, vcc_lo, 1"); a("s_and_b32 s60, s57, vcc_lo")
        want = (1 << (2*order[0])) | (1 << (2*order[1]))
        a(f"s_and_b32 s57, s60, 0x{want:x}")
        a(f"s_cmp_eq_u32 s57, 0x{want:x}")
        a("s_cbranch_scc0 K_SLOW")
        q0 = list(vq.q)
        for g in range(2):
            emit([poll(g)])
            emit(loadsA(g))
        flag()
        stamp(a, opt, 9)
        a("s_branch K_GO")
        a.label("K_SLOW")
        vq.q = q0
        flag()
    for g in range(2):
        emit([gate_grp(g)])
        if g == 0:
            stamp(a, opt, 9)
        emit(loadsA(g))
    if FAST:
        a.label("K_GO")
    def redw(i):
        k = i // 2
        return [f"ds_write_b128 {'v7' if k < 2 else 'v8'}, {vr(acc2(i, ct))} offset:{(k % 2)*32768 + (i % 2)*4096 + ct*1024}" for ct in range(4)]
    def Bop(n, ct):
        b = order[n]
        return vr(fB(n % 2, ct)) if b >= 8 else ar(RES[b] + ct * 4)
    for n in range(N0):
        FINE = n < opt.get("fine", 2)
        if not FINE:
            vq.need(f"A{n}_7")
        else:
            vq.need(f"A{n}_0")
        if n == 0:
            stamp(a, opt, 12)
        if opt.get("pstamps"):
            stamp(a, opt, 32 + n)
        ms = []
        for i in range(8):
            for ct in range(4):
                c = vr(acc2(i, ct))
                ms.append(f"{MF} {c}, {Bop(n, ct)}, {ar(areg(n, i))}, {'0' if n == 0 else c}")
        fill = {}
        if n + 3 <= N0:
            u1, u2 = upd(n)
            fill[0] = u1; fill[1] = u2
        if n + 1 < 8:
            spread(fill, [[x] for x in breads(order[n + 1], fB((n + 1) % 2, 0), False)], 4, 20)
        if n == 0:
            spread(fill, [gate_grp(2)] + loadsA(2), 2, 16)
            spread(fill, [gate_grp(3)] + loadsA(3), 16, 31)
            if TA:
                fill.setdefault(31, []).extend(touchA(4, TA))
        else:
            spread(fill, [gate_grp(n + 3)] + loadsA(n + 3), 2, opt.get("lspan", 28))
        if TA and n + TA < 16:
            fill.setdefault(31, []).extend(touchA(n + TA, n + TA + 1))
        if FINE:
            for i in range(1, 8):
                fill.setdefault(4 * i - 1, []).append(("needvm", [f"A{n}_{i}"]))
        weave(ms, fill)
    if opt.get("pstamps"):
        stamp(a, opt, 32 + N0)
    gf = [("needvm", ["GF"]), "v_mov_b32 v22, v20", "v_permlane16_swap_b32 v20, v22"]
    for r in (20, 22):
        gf += [f"v_sub_f32 v{r+1}, 1.0, v{r}", f"v_cvt_pk_bf16_f32 v{r+1}, v{r+1}, v{r+1}", f"v_and_b32 v{r+1}, 0xffff0000, v{r+1}"]
    gf += [["s_cmp_lt_u32 s38, 2", "s_cbranch_scc1 K_NOSWAP", "v_swap_b32 v20, v21", "v_swap_b32 v22, v23", "K_NOSWAP:"]]
    R = 128
    rds = [f"ds_read_b128 {vr(R + k*32 + j*4)}, v{9+k} offset:{j*1024}" for k in range(3) for j in range(8)]
    for i in range(8):
        vq.need(*[f"A{n}_{i}" for n in range(N0, 16)])
        ms = [f"{MF} {vr(acc2(i, ct))}, {Bop(n, ct)}, {ar(areg(n, i))}, {vr(acc2(i, ct))}" for ct in range(4) for n in range(N0, 16)]
        fill = {}
        if i == 0:
            spread(fill, [x if isinstance(x, list) else [x] for x in gf], 0, len(ms))
        if 1 <= i <= 6:
            spread(fill, [[w] for w in redw(i - 1)], min(2, len(ms) - 4), len(ms))
        if i == 7:
            stamp(a, opt, 14)
            a("s_waitcnt lgkmcnt(0)")
            a("s_barrier")
            spread(fill, [[r] for r in rds], 0, len(ms))
        weave(ms, fill)
    OWN = acc2(6, 0)
    a("s_waitcnt lgkmcnt(15)")
    for j in range(0, 32, 2):
        a(f"v_pk_add_f32 {vr(OWN+j, 2)}, {vr(OWN+j, 2)}, {vr(R+j, 2)}")
    for j in range(0, 32, 2):
        gsel = 20 if j < 16 else 22
        a(f"v_pk_mul_f32 {vr(OWN+j, 2)}, {vr(OWN+j, 2)}, {vr(gsel, 2)} op_sel_hi:[1,0]")
    a("s_waitcnt lgkmcnt(0)")
    for pr in range(4):
        for j in range(8 * pr, 8 * pr + 8, 2):
            a(f"v_pk_add_f32 {vr(R+32+j, 2)}, {vr(R+32+j, 2)}, {vr(R+64+j, 2)}")
        for j in range(8 * pr, 8 * pr + 8, 2):
            gsel = 20 if j < 16 else 22
            a(f"v_pk_fma_f32 {vr(OWN+j, 2)}, {vr(R+32+j, 2)}, {vr(gsel, 2)}, {vr(OWN+j, 2)} op_sel:[0,1,0] op_sel_hi:[1,1,1]")
        b = 64 + 4 * pr
        for j in range(4):
            a(f"v_cvt_pk_bf16_f32 v{b+j}, v{OWN+8*pr+2*j}, v{OWN+8*pr+2*j+1}")
        a(f"v_permlane16_swap_b32 v{b}, v{b+2}")
        a(f"v_permlane16_swap_b32 v{b+1}, v{b+3}")
        a(f"buffer_store_dwordx4 {vr(b)}, v14, s[16:19], {'s61' if pr < 2 else 's62'} offen offset:{(pr % 2)*64}")
    stamp(a, opt, 15)
    stamp_out(a, opt, 0)
    a.label("K_END")
    a("s_endpgm")
    a.label("K_WAIT")
    a("buffer_load_dword v44, v6, s[24:27], s54 offen sc1")
    if opt.get("stamps"):
        a("v_readlane_b32 s56, v31, 23")
        a("s_add_u32 s56, s56, 1")
        a("v_writelane_b32 v31, s56, 23")
    a("s_waitcnt vmcnt(0)")
    a("v_cmp_ne_u32 vcc, -1, v44")
    a("s_lshr_b32 s57, vcc_lo, 1"); a("s_and_b32 s57, s57, vcc_lo"); a("s_or_b32 s60, s60, s57")
    a("s_bitcmp1_b32 s60, s59")
    a("s_cbranch_scc0 K_WAIT")
    a.label("K_LAST")
    a("s_setpc_b64 s[68:69]")

def build(opt):
    a = Asm()
    gen(a, opt)
    out = HEADER + "; @launch grid=(256,1,1) block=(256,1,1) lds=163840\n"
    out += '.amdgcn_target "amdgcn-amd-amdhsa--gfx950"\n.text\n' + a.text() + '.section .rodata,"a"\n' + kd(KNAME, 512, 96, 256)
    return out

if __name__ == "__main__":
    opt = {}
    for kv in sys.argv[2:]:
        k, v = kv.split("=")
        try:
            v = eval(v)
        except Exception:
            pass
        opt[k] = v
    open(sys.argv[1], "w").write(build(opt))
```

```python
import sys, struct
from asmlib import Asm, Ins, regs_of
from gen import f2u, LdsQ, kd, srd, stamp, stamp_out, HEADER, WS_DIAG, WS_SIZE, WS_SLOT, WS_G, LOG2E, EPS

MF = "v_mfma_f32_16x16x32_bf16"
WS_WOF = 16 << 20
WS_TOT = 20 << 20
KNAME = "gated_mix__linear_attn_block__linear_attn_block__prompt_kernel"
def vr(b, n=4): return f"v[{b}:{b+n-1}]"
def ar(b, n=4): return f"a[{b}:{b+n-1}]"

class VmQ:
    def __init__(self, a):
        self.a = a; self.q = []
    def issue(self, text, tag):
        self.a(text); self.q.append(tag)
    def count(self, tags):
        idx = -1
        for i, t in enumerate(self.q):
            if t in tags:
                idx = i
        if idx < 0:
            return None
        return min(len(self.q) - idx - 1, 63)
    def need(self, *tags, extra=""):
        n = self.count(tags)
        if n is None:
            if extra:
                self.a(f"s_waitcnt {extra}")
            return
        self.a(f"s_waitcnt vmcnt({n}) {extra}".rstrip())
        self.q = self.q[len(self.q) - n:] if n else []
    def drained(self):
        self.q = []

def gen(a, opt):
    lq = LdsQ(a); vq = VmQ(a)
    ABL = [""]
    def put(x):
        if ABL[0] and isinstance(x, tuple):
            if "x" in ABL[0] and x[0] == "ds" and "b128" in x[1]: return
            if "w" in ABL[0] and x[0] == "ds" and "tr_b16" in x[1]: return
            if "d" in ABL[0] and x[0] == "vm" and x[2][0] in "XW": return
            if "X" in ABL[0] and x[0] == "vm" and x[2][0] == "X": return
        if isinstance(x, tuple):
            if x[0] == "ds":
                lq.issue(x[1])
            elif x[0] == "vm":
                vq.issue(x[1], x[2])
            elif x[0] == "needvm":
                vq.need(*x[1])
            elif x[0] == "needds":
                lq.need(x[1])
        else:
            a(x)
    def weave(mf, fill):
        for g, m in enumerate(mf):
            lq.need(Ins(m).srcAB)
            a(m)
            for x in fill.get(g, []):
                put(x)
    def spread(fill, items, start, end):
        n = len(items)
        for i, it in enumerate(items):
            fill.setdefault(start + (i * (end - start)) // n, []).extend(it)

    XB = [0, 32768]
    WB = [65536 + 24576 * s for s in range(3)]
    EX = 139264
    EX2 = EX + 16384
    ACC = 64
    def acc(rt, ct): return ACC + (rt * 6 + ct) * 4
    def fW(st, ct, ks): return 48 * (st % 2) + (ct * 2 + ks) * 4
    def fX(e, ks): return 96 + e * 8 + ks * 4
    def fXR(rt, ks): return 112 + rt * 8 + ks * 4
    a.raw(f".globl {KNAME}\n.p2align 8\n.type {KNAME},@function")
    a.label(KNAME)
    a("s_cmp_ge_u32 s2, 256")
    a("s_cbranch_scc1 K_END")
    a("s_load_dwordx4 s[4:7], s[0:1], 0")
    a("s_load_dwordx2 s[8:9], s[0:1], 32")
    a("s_load_dwordx4 s[68:71], s[0:1], 48")
    a("s_load_dwordx4 s[12:15], s[0:1], 64")
    a("s_load_dwordx2 s[74:75], s[0:1], 16")
    a("s_load_dwordx2 s[76:77], s[0:1], 40")
    if opt.get("stamps"):
        a("v_mov_b32 v31, 0")
    stamp(a, opt, 30, real=True)
    stamp(a, opt, 0)
    a("v_lshrrev_b32 v21, 6, v0")
    a("v_and_b32 v1, 63, v0")
    a("v_readfirstlane_b32 s38, v21")
    a("s_and_b32 s56, s2, 7")
    a("s_lshr_b32 s57, s2, 3")
    if opt.get("k1map", "A") == "A":
        a("s_and_b32 s36, s57, 7")
        a("s_lshr_b32 s58, s57, 3")
        a("s_lshl_b32 s37, s56, 2")
        a("s_add_u32 s37, s37, s58")
    else:
        a("s_and_b32 s36, s56, 1")
        a("s_lshl_b32 s36, s36, 2")
        a("s_and_b32 s58, s57, 3")
        a("s_add_u32 s36, s36, s58")
        a("s_lshr_b32 s37, s56, 1")
        a("s_lshl_b32 s37, s37, 3")
        a("s_lshr_b32 s58, s57, 2")
        a("s_add_u32 s37, s37, s58")
    a("s_and_b32 s39, s38, 1")
    a("s_lshr_b32 s40, s38, 1")
    a("s_and_b32 s41, s37, 15")
    a("s_lshr_b32 s42, s37, 4")
    a("v_lshrrev_b32 v21, 3, v1")
    a("v_and_b32 v22, 7, v1")
    a("v_lshrrev_b32 v23, 4, v1")
    a("v_and_b32 v24, 1, v23")
    a("v_lshlrev_b32 v24, 2, v24")
    a("v_xor_b32 v24, v22, v24")
    a("v_lshlrev_b32 v24, 4, v24")
    a("v_mul_u32_u24 v25, 6144, v21")
    a("v_add_u32 v24, v24, v25")
    a("v_xor_b32 v25, 32, v24")
    a("s_mul_i32 s56, s38, 6")
    a("s_lshl_b32 s59, s41, 7")
    for i in range(6):
        a(f"s_add_u32 s57, s56, {i}")
        a("s_lshr_b32 s58, s57, 3")
        a("s_and_b32 s57, s57, 7")
        a(f"s_mul_i32 s57, s57, {8*6144}")
        a("s_lshl_b32 s58, s58, 11")
        a("s_add_u32 s57, s57, s58")
        a("s_add_u32 s57, s57, s59")
        if i % 4:
            a(f"s_sub_u32 s57, s57, {(i % 4) * 1024}")
        a(f"v_add_u32 v{10+i}, s57, {'v24' if i % 2 == 0 else 'v25'}")
    a("v_xor_b32 v24, v22, v23")
    a("v_lshlrev_b32 v24, 4, v24")
    a("v_lshl_add_u32 v24, v21, 11, v24")
    a("s_lshl_b32 s56, s36, 19")
    a("s_lshl_b32 s57, s40, 18")
    a("s_add_u32 s56, s56, s57")
    a("s_lshl_b32 s57, s39, 16")
    a("s_add_u32 s56, s56, s57")
    a("v_add_u32 v2, s56, v24")
    a("v_xor_b32 v25, 64, v2")
    for i in range(1, 8):
        src = "v2" if i % 2 == 0 else "v25"
        a(f"v_add_u32 v{2+i}, {(i % 4)*16384 + (i // 4)*131072 - (i % 4) * 1024}, {src}")
    a("s_lshl_b32 s48, s38, 13")
    a("s_lshl_b32 s45, s40, 14")
    a("s_lshl_b32 s57, s39, 12")
    a("s_add_u32 s45, s45, s57")
    a("s_mov_b32 s72, 0")
    a("s_mul_i32 s49, s38, 6144")
    a("s_mov_b32 s43, 0")
    a("s_mov_b32 s44, 0")
    a("s_waitcnt lgkmcnt(0)")
    srd(a, 16, 4, 2048 * 1024 * 2)
    a("s_cmp_eq_u32 s42, 0")
    a("s_cselect_b32 s56, s6, s8")
    a("s_cselect_b32 s57, s7, s9")
    srd(a, 20, 56, 1024 * 3072 * 2)
    stamp(a, opt, 10)

    def dmaXh(t, h):
        ops = []
        so = "s43" if h == 0 else "s72"
        for i in range(4 * h, 4 * h + 4):
            pre = [f"s_add_u32 m0, s45, {XB[t % 2] + h * 8192}"] if i % 4 == 0 else []
            off = f" offset:{(i % 4) * 1024}" if i % 4 else ""
            ops.append(pre + [("vm", f"buffer_load_dwordx4 v{2+i}, s[16:19], {so} offen{off}{opt.get('dpol', '')} lds", f"X{t}{'ab'[h]}")])
        ops[3].append(f"s_add_u32 {so}, {so}, 128")
        return ops
    def dmaX(t):
        return dmaXh(t, 0) + dmaXh(t, 1)
    def dmaW(t):
        ops = []
        for i in range(6):
            pre = [f"s_add_u32 m0, s49, {WB[t % 3] + (i // 4) * 4096}"] if i % 4 == 0 else []
            off = f" offset:{(i % 4) * 1024}" if i % 4 else ""
            ops.append(pre + [("vm", f"buffer_load_dwordx4 v{10+i}, s[20:23], s44 offen{off}{opt.get('dpol', '')} lds", f"W{t}")])
        ops[5].append(f"s_add_u32 s44, s44, {64*6144}")
        return ops
    def emit(groups):
        for op in groups:
            for x in op:
                put(x)
    emit(dmaW(0) + dmaX(0))
    if opt.get("pre0"):
        emit(dmaW(1))
    stamp(a, opt, 11)
    srd(a, 24, 14, WS_TOT)
    srd(a, 28, 12, 256)
    srd(a, 32, 68, 2048)
    a("v_lshlrev_b32 v26, 4, v1")
    a("s_lshl_b32 s46, s37, 1")
    a("s_add_u32 s46, s46, s40")
    a("s_lshl_b32 s47, s36, 1")
    a("s_add_u32 s47, s47, s39")
    a("s_lshl_b32 s56, s47, 7")
    a("s_lshl_b32 s57, s46, 1")
    a("s_add_u32 s56, s56, s57")
    a("s_lshl_b32 s60, s56, 11")
    FS = opt.get("fs", 3)
    GB = WS_G if FS == 3 else WS_WOF
    a(f"s_lshl_b32 s55, s56, {FS - 1}")
    a(f"s_add_u32 s55, s55, {GB}")
    a("s_lshl_b32 s56, s47, 19")
    a("s_lshl_b32 s57, s46, 13")
    a("s_add_u32 s65, s56, s57")
    a("s_lshl_b32 s56, s37, 17")
    a("s_lshl_b32 s57, s38, 12")
    a("s_add_u32 s61, s56, s57")
    a(f"s_add_u32 s61, s61, {WS_SLOT}")
    a("s_lshl_b32 s57, s36, 14")
    a("s_add_u32 s62, s61, s57")
    a("v_lshrrev_b32 v27, 4, v1")
    a("v_lshlrev_b32 v27, 4, v27")
    a("v_and_b32 v30, 7, v1")
    a("v_lshl_add_u32 v30, v30, 14, v27")
    a("s_lshl_b32 s63, s37, 3")
    for i in range(4):
        a(f"v_mov_b32 v{32+i}, -1")
    a("v_lshlrev_b32 v38, 7, v1")
    a("v_mov_b32 v28, 1")
    a("v_mov_b32 v29, 0")
    sent = [[("vm", "buffer_store_dwordx4 v[32:35], v26, s[24:27], s62 offen sc1", "S")],
            [("vm", "buffer_store_dwordx4 v[32:35], v26, s[24:27], s62 offen offset:1024 sc1", "S")],
            [("vm", "buffer_store_dwordx4 v[32:35], v27, s[24:27], s62 offen offset:2048 sc1", "S")],
            [("vm", "buffer_store_dwordx2 v[32:33], v29, s[24:27], s55 offen sc1", "S")]]
    NS = opt.get("spec", 0)
    if NS:
        a("s_lshl_b32 s56, s2, 2")
        a("s_add_u32 s56, s56, s38")
        a("s_lshr_b32 s57, s56, 4")
        a("s_lshl_b32 s57, s57, 17")
        a("s_and_b32 s56, s56, 15")
        a(f"s_mul_i32 s56, s56, {NS*512}")
        a("s_add_u32 s3, s56, s57")
        a("s_add_u32 s3, s3, 65536")
        for k in range(NS // 2):
            sent.append([("vm", f"buffer_store_dwordx4 v[32:35], v26, s[24:27], s3 offen offset:{k*1024} sc1", "S")])
    if opt.get("sent_pro"):
        emit(sent)
    a("v_and_b32 v21, 15, v1")
    a("v_lshrrev_b32 v22, 4, v1")
    a("v_bfe_u32 v23, v1, 1, 3")
    a("v_xor_b32 v23, v23, v22")
    a("v_lshlrev_b32 v23, 4, v23")
    a("v_lshl_add_u32 v23, v21, 7, v23")
    a("s_lshl_b32 s56, s39, 14")
    a("v_add_u32 v16, s56, v23")
    a("v_xor_b32 v17, 64, v16")
    a("v_bfe_u32 v23, v1, 2, 2")
    a("v_lshl_add_u32 v24, v22, 3, v23")
    a("v_lshlrev_b32 v24, 7, v24")
    a("v_bfe_u32 v25, v1, 1, 1")
    a("s_lshl_b32 s56, s40, 2")
    a("v_or_b32 v25, s56, v25")
    a("v_and_b32 v36, 2, v23")
    a("v_lshlrev_b32 v36, 1, v36")
    a("v_xor_b32 v25, v25, v36")
    a("v_and_b32 v36, 1, v22")
    a("v_lshlrev_b32 v36, 1, v36")
    a("v_xor_b32 v25, v25, v36")
    a("v_lshl_add_u32 v24, v25, 4, v24")
    a("v_and_b32 v36, 1, v1")
    a("v_lshl_add_u32 v24, v36, 3, v24")
    a("v_xor_b32 v25, 32, v24")
    for s in range(3):
        a(f"v_add_u32 v{18+2*s}, {WB[s]}, v24")
        a(f"v_add_u32 v{19+2*s}, {WB[s]}, v25")
    a(f"v_mov_b32 v36, 0x{f2u(EPS):08x}")
    a(f"v_mov_b32 v37, v36")
    for rt in range(8):
        for r in range(0, 16, 2):
            a(f"v_pk_mov_b32 {vr(acc(rt, 0) + r, 2)}, v[36:37], v[36:37]")
    if opt.get("wpace", 6):
        a("s_lshl_b32 s56, s2, 2")
        a("s_add_u32 s56, s56, s38")
        a("s_bitcmp1_b32 s56, 3")
        a("s_cselect_b32 s84, s8, s6")
        a("s_cselect_b32 s85, s9, s7")
        a("s_and_b32 s85, s85, 0xffff")
        a(f"s_mov_b32 s86, {1024*3072*2}")
        a("s_mov_b32 s87, 0x00020000")
        a("s_lshr_b32 s57, s56, 4")
        a(f"s_add_u32 s57, s57, {64*opt.get('wpace', 6)}")
        a("s_mul_i32 s73, s57, 6144")
        a("s_and_b32 s57, s56, 7")
        a("s_mul_i32 s57, s57, 768")
        a("s_add_u32 s73, s73, s57")
        pass
    PRE = opt.get("pre", "W1")
    pre_list = {"none": [], "W1": dmaW(1), "W1X1": dmaW(1) + dmaX(1)}[PRE]
    if opt.get("pre0"):
        pre_list = pre_list[6:]
    if opt.get("pre_first"):
        emit(pre_list); pre_list = []
    ET = opt.get("etouch", 1)
    if ET == 1:
        a("s_lshl_b32 s56, s2, 2")
        a("s_add_u32 s56, s56, s38")
        a("s_lshr_b32 s57, s56, 4")
        a("s_lshl_b32 s57, s57, 3")
        a("s_and_b32 s58, s56, 7")
        a("s_add_u32 s57, s57, s58")
        a(f"s_add_u32 s57, s57, {opt.get('et_row0', 0)}")
        a(f"s_cmp_lt_u32 s57, {64*opt.get('wpace', 6)}")
        a("s_cselect_b32 s57, s57, 1024")
        a("s_mul_i32 s57, s57, 6144")
        a("v_lshlrev_b32 v40, 10, v1")
        a("s_mov_b64 exec, 0x3f")
        vq.issue("buffer_load_dword v39, v40, s[84:87], s57 offen offset:384", "T")
        a("s_mov_b64 exec, -1")
    if ET == 2:
        for st in range(opt.get("et0", 2), opt.get("wpace", 6)):
            a(f"s_sub_u32 s57, s73, {(opt.get('wpace', 6) - st)*64*6144}")
            a("s_mov_b64 exec, 0x3f")
            vq.issue("buffer_load_dword v39, v38, s[84:87], s57 offen", "T")
            a("s_mov_b64 exec, -1")
    if opt.get("ctouch", 1):
        a("s_getpc_b64 s[56:57]")
        a.label("K_CT")
        a(f"s_sub_u32 s56, s56, K_CT-{KNAME}")
        a("s_subb_u32 s57, s57, 0")
        a("s_mov_b64 s[88:89], s[56:57]")
        a("s_lshr_b32 s58, s2, 3")
        a("s_lshl_b32 s58, s58, 2")
        a("s_add_u32 s58, s58, s38")
        a("s_lshl_b32 s79, s58, 7")
        a("s_mul_i32 s58, s58, 384")
        a("v_add_u32 v40, s58, v38")
        a(f"v_min_u32 v40, K_LAST-{KNAME}, v40")
        a("s_mov_b64 exec, 7")
        vq.issue("global_load_dword v39, v40, s[56:57]", "T")
        a("s_mov_b64 exec, -1")
    emit(pre_list)
    if opt.get("xsp", 0x3c):
        m = opt.get("xsp", 0x3c)
        emit([[f"s_mov_b32 exec_lo, 0x{m | (m << 16):x}", "s_mov_b32 exec_hi, 0", ("vm", "buffer_load_dword v39, v38, s[16:19], s60 offen", "T"), "s_mov_b64 exec, -1"]])
    stamp(a, opt, 1)

    def rdW(t):
        ops = []
        for ct in range(6):
            for ks in range(2):
                for sub in range(2):
                    r = fW(t, ct, ks) + 2 * sub
                    ops.append(("ds", f"ds_read_b64_tr_b16 {ar(r, 2)}, v{18 + 2*(t % 3) + (ct & 1)} offset:{(ct >> 1)*8192 + ks*4096 + sub*512}"))
        return ops
    def rdX(t, rt, dst):
        return [("ds", f"ds_read_b128 {ar(dst(ks))}, v{16+ks} offset:{XB[t % 2] + rt*2048}") for ks in range(2)]
    def mf(t, rt, cts, X):
        out = []
        for ct in cts:
            for ks in range(2):
                W = ar(fW(t, ct, ks))
                A, B = (W, ar(X(ks))) if ct < 2 else (ar(X(ks)), W)
                c = vr(acc(rt, ct))
                cin = "0" if (t == 0 and ks == 0 and ct >= 4) else c
                out.append(f"{MF} {c}, {A}, {B}, {cin}")
        return out
    DEFER = opt.get("defer", 2)
    HST = opt.get("hst", 7 if opt.get("spec", 0) else 5)
    DSP = opt.get("dma_per_block", 2)
    IL = opt.get("il", 1)
    def cts_of(t):
        if IL and t == 15:
            return [2, 3]
        return [2, 3, 4, 5] if t >= 16 - DEFER else [0, 1, 2, 3, 4, 5]
    def Xreg(t, rt): return (lambda ks: fXR(rt, ks)) if t == 15 else (lambda ks: fX(rt % 2, ks))
    def blocks2(seq, pend, wreads, front=None, valu=()):
        CAP = opt.get("cap", 2)
        VC = opt.get("vcost", 2)
        nbs = [len(cts_of(t)) * 2 for t, _ in seq]
        starts = [sum(nbs[:i]) for i in range(len(seq))]
        G = sum(nbs)
        load = [0] * (G + 64)
        fill = {}
        def cost(x):
            if isinstance(x, tuple):
                return VC if x[0] == "vm" else (1 if x[0] == "ds" else 0)
            return 0 if x.endswith(":") else 1
        def place(g, grp, lim=None):
            c = sum(cost(x) for x in grp)
            lim = G - 1 if lim is None else lim
            g0 = g
            while g < lim and load[g] + min(c, CAP) > CAP:
                g += 1
            g = min(g, lim)
            load[g] += c
            fill.setdefault(g, []).extend(grp)
            return g
        if front:
            fill[0] = list(front); load[0] = 99
        for n, (t, rt) in enumerate(seq):
            if rt < 7: nx = rdX(t, rt + 1, Xreg(t, rt + 1))
            elif t < 15: nx = rdX(t + 1, 0, Xreg(t + 1, 0))
            else: nx = []
            for k, x in enumerate(nx):
                fill.setdefault(starts[n] + k, []).append(x); load[starts[n] + k] += 1
            if n: load[starts[n] - 1] += 1
        stream = []
        for grp in pend:
            atomic = any(isinstance(x, str) and ("exec" in x or x.endswith(":") or "cbranch" in x) for x in grp)
            if atomic: stream.append((grp, True))
            else:
                for x in grp: stream.append(([x], isinstance(x, tuple) and x[0] == "vm"))
        nv = sum(1 for _, v in stream if v)
        if nv:
            step = min(max(nbs) / DSP, (G - 3) / nv)
            pos = 2.0; last = 0
            for idx, (grp, isv) in enumerate(stream):
                if isv:
                    last = place(max(last, int(pos)), grp) ; pos = max(pos + step, last + 1.0)
                    last_v = last
                else:
                    nxt_v = idx + 1 < len(stream) and (stream[idx + 1][1] or not stream[idx+1][1]) and "m0" in grp[0]
                    tgt = max(last, int(pos) - 1) if nxt_v else last
                    last = place(tgt, grp)
                    if nxt_v: pos = max(pos, last + 1.0)
        ok = [starts[n] + g for n, (t, rt) in enumerate(seq) if rt < 7 for g in range(nbs[n])]
        if wreads:
            WEND = opt.get("wend", 8)
            ok2 = ok[:max(len(wreads) // 2, len(ok) - WEND)]
            last = ok2[0]
            for k, x in enumerate(wreads):
                last = place(max(last, ok2[(k * len(ok2)) // len(wreads)]), [x], lim=ok[-1])
        valu = [x if isinstance(x, list) else [x] for x in valu]
        last = 0
        for k, grp in enumerate(valu):
            last = place(max(last, (k * (G - 4)) // len(valu)), grp)
        for n, (t, rt) in enumerate(seq):
            lq.need(regs_of(ar(Xreg(t, rt)(0), 8)))
            weave(mf(t, rt, cts_of(t), Xreg(t, rt)), {g - starts[n]: v for g, v in fill.items() if starts[n] <= g < starts[n] + nbs[n]})

    def blocks(seq, pend, wreads, front=None, valu=()):
        if opt.get("sched2", 1):
            return blocks2(seq, pend, wreads, front, valu)
        pend = list(pend); wreads = list(wreads); valu = list(valu)
        for n, (t, rt) in enumerate(seq):
            cts = cts_of(t)
            nb = len(cts) * 2
            fill = {}
            if rt < 7:
                nx = rdX(t, rt + 1, Xreg(t, rt + 1))
            elif t < 15:
                nx = rdX(t + 1, 0, Xreg(t + 1, 0))
            else:
                nx = []
            items = [[x] for x in nx]
            left_w = len([1 for (_, r) in seq[n:] if r < 7])
            if rt < 7 and wreads:
                k = -(-len(wreads) // left_w)
                items += [[x] for x in wreads[:k]]
                wreads = wreads[k:]
            if n == 0 and front:
                fill[0] = list(front)
            spread(fill, items, 0, nb - 1)
            k = min(len(pend), max(DSP, -(-len(pend) // (len(seq) - n))))
            spread(fill, pend[:k], 1, nb)
            pend = pend[k:]
            k = -(-len(valu) // (len(seq) - n))
            spread(fill, [x if isinstance(x, list) else [x] for x in valu[:k]], 0, nb)
            valu = valu[k:]
            weave(mf(t, rt, cts, Xreg(t, rt)), fill)
        assert not pend and not wreads and not valu

    vq.need("W0", "X0a")
    a("s_barrier")
    stamp(a, opt, 2)
    stamp(a, opt, 25, real=True)
    w0 = rdW(0)
    for x in w0[:4] + rdX(0, 0, lambda ks: fX(0, ks)) + w0[4:13]:
        put(x)
    rest0 = ([] if PRE != "none" else dmaW(1)) + ([] if PRE == "W1X1" else dmaXh(1, 0)) + dmaW(2) + ([] if PRE == "W1X1" else dmaXh(1, 1))
    k0 = min(len(rest0), opt.get("k0", 10))
    blocks([(0, r) for r in range(3)], rest0[:k0], [], front=w0[13:])
    vq.need("W1", "X0b", extra="lgkmcnt(0)")
    lq.drained()
    a("s_barrier")
    x0 = []
    if opt.get("xs0"):
        m = opt["xs0"]
        x0 = [[f"s_mov_b32 exec_lo, 0x{m | (m << 16):x}", "s_mov_b32 exec_hi, 0", ("vm", "buffer_load_dword v39, v38, s[16:19], s60 offen", "T"), "s_mov_b64 exec, -1"]]
    blocks([(0, r) for r in range(3, 7)], rest0[k0:] + dmaXh(2, 0) + dmaW(3) + x0, rdW(1))

    def window1(t, extra=(), last=False, valu=(), first=()):
        ABL[0] = opt.get("abl", "") if 1 <= t <= 12 else ""
        vq.need(f"X{t+1}a", f"X{t+1}b", f"W{t+2}", *( ["S"] if t == HST else []), extra="lgkmcnt(0)")
        lq.drained()
        a("s_barrier")
        if opt.get("wstamps"):
            stamp(a, opt, 32 + t)
        pend = list(first)
        if t + 2 <= 15:
            pend += dmaX(t + 2) if t > 0 else dmaXh(2, 1)
        if t + 4 <= 15:
            pend += dmaW(t + 4)
        pend += list(extra)
        seq = [(t, 7)] + [(t + 1, r) for r in range(8 if last else 7)]
        blocks(seq, pend, rdW(t + 2) if t + 2 <= 15 else [], valu=valu)

    def window(t, extra=(), last=False, valu=(), first=()):
        if not opt.get("mid", 0):
            return window1(t, extra, last, valu, first)
        vq.need(f"X{t+1}a", f"W{t+2}", *( ["S"] if t == HST else []), extra="lgkmcnt(0)")
        lq.drained()
        a("s_barrier")
        if opt.get("wstamps"):
            stamp(a, opt, 32 + t)
        pend = list(first)
        if t + 2 <= 15:
            pend += dmaXh(t + 2, 1)
        wd = dmaW(t + 4) if t + 4 <= 15 else []
        pend += wd[:4]
        wr = rdW(t + 2) if t + 2 <= 15 else []
        valu = list(valu); extra = list(extra)
        nv = len(valu) // 2
        ne = len(extra) // 2 if last else 0
        blocks([(t, 7)] + [(t + 1, r) for r in range(3)], pend + extra[:ne], wr[:10], valu=valu[:nv])
        vq.need(f"X{t+1}b")
        lq.need(regs_of(ar(Xreg(t + 1, 3)(0), 8)))
        a("s_barrier")
        pend = []
        if t + 3 <= 15:
            pend += dmaXh(t + 3, 0)
        if wd:
            wd[4] = [f"s_add_u32 m0, s49, {WB[(t + 4) % 3] + 4096}"] + wd[4][1:]
        pend += wd[4:] + extra[ne:]
        blocks([(t + 1, r) for r in range(3, 8 if last else 7)], pend, wr[10:], valu=valu[nv:])

    hs = ["s_cmp_lg_u32 s38, 0", "s_cbranch_scc1 K_NOATOM", "s_mov_b64 exec, 1",
          "buffer_atomic_add v28, v29, s[28:31], s63 offen sc1", "s_mov_b64 exec, -1", "K_NOATOM:"]
    G = 64
    gate = [("needvm", ["G"]), "v_mov_b32 v38, 0", "v_mov_b32 v39, 0"]
    for i in range(8):
        gr = lambda j: acc(j // 4, 1) + j % 4
        gate.append(f"v_dot2_f32_bf16 v38, v{gr(i)}, v{gr(16+i)}, v38")
        gate.append(f"v_dot2_f32_bf16 v39, v{gr(8+i)}, v{gr(16+i)}, v39")
    for ctrl in ("quad_perm:[1,0,3,2]", "quad_perm:[2,3,0,1]", "row_half_mirror", "row_mirror"):
        for r in (38, 39):
            gate.append(f"v_add_f32_dpp v{r}, v{r}, v{r} {ctrl} row_mask:0xf bank_mask:0xf")
    gate2 = []
    for r in (38, 39):
        for k, ln in enumerate((0, 16, 32, 48)):
            gate2.append(f"v_readlane_b32 s{4 + (r-38)*4 + k}, v{r}, {ln}")
    for r, s0 in ((38, 4), (39, 8)):
        gate2 += [f"v_mov_b32 v{r}, s{s0}", f"v_add_f32 v{r}, s{s0+1}, v{r}", f"v_add_f32 v{r}, s{s0+2}, v{r}", f"v_add_f32 v{r}, s{s0+3}, v{r}"]
    for ops in (["v_cvt_pk_bf16_f32 v{r}, v{r}, v{r}", "v_and_b32 v{r}, 0xffff0000, v{r}", "v_mul_f32 v{r}, 0x%08x, v{r}" % f2u(-LOG2E),
                 "v_exp_f32 v{r}, v{r}", "v_add_f32 v{r}, 1.0, v{r}", "v_rcp_f32 v{r}, v{r}", "v_cvt_pk_bf16_f32 v{r}, v{r}, v{r}",
                 "v_and_b32 v{r}, 0xffff0000, v{r}"]):
        for r in (38, 39):
            gate2.append(ops.format(r=r))

    LM = opt.get("lm", 2)
    p2 = ["s_and_b32 s56, s2, 7", "s_lshr_b32 s57, s2, 3",
          f"s_and_b32 s50, s56, {(16 >> LM) - 1}", f"s_lshl_b32 s50, s50, {LM}", f"s_and_b32 s58, s57, {(1 << LM) - 1}", "s_add_u32 s50, s50, s58",
          f"s_lshr_b32 s51, s56, {4 - LM}", f"s_lshl_b32 s51, s51, {5 - LM}", f"s_lshr_b32 s58, s57, {LM}", "s_add_u32 s51, s51, s58",
          ["s_cmp_lt_u32 s38, 2", "s_cselect_b32 s80, s74, s76", "s_cselect_b32 s81, s75, s77"],
          "s_and_b32 s81, s81, 0xffff", f"s_mov_b32 s82, {1024*1024*2}", "s_mov_b32 s83, 0x00020000",
          "s_lshl_b32 s52, s39, 20", "s_lshl_b32 s56, s51, 7", "s_add_u32 s52, s52, s56",
          "s_lshl_b32 s53, s50, 19", "s_lshl_b32 s56, s38, 17", "s_add_u32 s53, s53, s56",
          f"s_lshl_b32 s56, s50, {6 + FS}", f"s_lshl_b32 s57, s38, {4 + FS}", "s_add_u32 s56, s56, s57", f"s_add_u32 s54, s56, {GB}",
          "v_lshrrev_b32 v48, 3, v1", "v_and_b32 v49, 7, v1", "v_bfe_u32 v50, v1, 4, 1", "v_lshlrev_b32 v50, 2, v50",
          "v_xor_b32 v49, v49, v50", "v_bfe_u32 v50, v1, 5, 1", "v_lshlrev_b32 v50, 1, v50", "v_xor_b32 v49, v49, v50",
          "v_lshlrev_b32 v49, 4, v49", "v_lshl_add_u32 v40, v48, 11, v49"]
    p2 += [f"v_add_u32 v{40+i}, {i*(8*2048 - 1024)}, v40" for i in range(1, 4)]
    HS = opt.get("halfst", 1)
    p2 += ["s_mul_i32 s64, s38, 6144" if HS else "s_lshl_b32 s64, s38, 12", f"s_add_u32 s64, s64, {EX}"]
    p2b = ["v_lshrrev_b32 v48, 4, v1", "v_bfe_u32 v49, v1, 2, 2", "v_lshl_add_u32 v50, v48, 2, v49", "v_lshlrev_b32 v50, 7, v50",
           "v_bfe_u32 v51, v1, 1, 1", "v_and_b32 v52, 2, v49", "v_lshlrev_b32 v52, 1, v52", "v_xor_b32 v51, v51, v52",
           "v_and_b32 v52, 1, v48", "v_lshlrev_b32 v52, 1, v52", "v_xor_b32 v51, v51, v52", "v_lshl_add_u32 v50, v51, 4, v50",
           "v_and_b32 v52, 1, v1", "v_lshl_add_u32 v50, v52, 3, v50", "v_add_u32 v44, s64, v50"]
    p2b += [f"v_xor_b32 v{44+ct}, {ct*32}, v44" for ct in range(1, 4)]
    p2b += ["v_lshlrev_b32 v53, 3, v1"]
    p2c = [f"v_mov_b32 v{12+i}, v{40+i}" for i in range(4)] + ["s_add_u32 s56, s48, 0x10000", "v_add_u32 v32, s56, v50"]
    p2c += [f"v_xor_b32 v{32+ct}, {ct*32}, v32" for ct in range(1, 4)]
    SLOT = {}
    RES = {0: 176, 1: 192, 2: 208, 3: 224, 4: 240, 5: 16, 6: 32, 7: 64}
    AQ = [q for q in range(0, 256, 4) if not any(r <= q < r + 16 for r in RES.values())]
    assert len(AQ) == 32
    def dmaB(b, slot):
        SLOT[b] = slot
        ops = []
        for j in range(4):
            off = f" offset:{j*1024}" if j else ""
            m0 = "s_mov_b32 m0, s64" if slot is None else f"s_add_u32 m0, s48, {slot}"
            ops.append(([m0] if j == 0 else []) +
                       [("vm", f"buffer_load_dwordx4 v{(40 if slot is None else 12)+j}, s[80:83], s52 offen{off} lds", f"B{b}")])
        ops[-1].append("s_add_u32 s52, s52, 65536")
        return ops
    def breads(b, dst, agpr):
        sl = SLOT[b]
        base = 44 if sl is None else (32 if sl >= 65536 else 16)
        o = 0 if sl is None else sl % 65536
        return [("ds", f"ds_read_b64_tr_b16 {(ar if agpr else vr)(dst + ct*4 + 2*sub, 2)}, v{base+ct} offset:{o + sub*2048}")
                for ct in range(4) for sub in range(2)]
    PD = opt.get("wpace", 6)
    def wp():
        return ["s_mov_b64 exec, 0x3f", ("vm", "buffer_load_dword v39, v38, s[84:87], s73 offen", "T"), "s_mov_b64 exec, -1",
                f"s_add_u32 s73, s73, {64*6144}"]
    wt_setup = [["s_bitcmp1_b32 s38, 0", "s_cselect_b32 s92, s76, s74", "s_cselect_b32 s93, s77, s75"], "s_and_b32 s93, s93, 0xffff",
                f"s_mov_b32 s94, {1024*1024*2}", "s_mov_b32 s95, 0x00020000",
                "s_lshl_b32 s78, s2, 1", "s_add_u32 s78, s78, s40", "s_lshl_b32 s78, s78, 12"]
    WTN, WT0 = opt.get("wtn", 4), opt.get("wt0", 9)
    def wt(k):
        n = 32 // WTN
        return [f"s_mov_b64 exec, 0x{(1 << n) - 1:x}",
                ("vm", f"buffer_load_dword v39, v38, s[92:95], s78 offen offset:{k*n*128}", "T"), "s_mov_b64 exec, -1"]
    xs = opt.get("xsplit", {0: 0xc0, 1: 0x300, 2: 0xc00, 3: 0x3000, 4: 0xc000})
    ST0 = opt.get("st0", 2 if HS else 3)
    sw = opt.get("sent_w", [1, 2, 3, 3, 4, 5]) if not opt.get("sent_pro") else [-1] * 6
    for t in range(15):
        kw = {"extra": [], "valu": []}
        if xs and t in xs:
            m = xs[t]
            kw["extra"] += [[f"s_mov_b32 exec_lo, 0x{m | (m << 16):x}", "s_mov_b32 exec_hi, 0", ("vm", "buffer_load_dword v39, v38, s[16:19], s60 offen", "T"), "s_mov_b64 exec, -1"]]
        if PD and t + PD <= 15: kw["extra"] += [wp()]
        if t == ST0 - 2: kw["valu"] += p2
        if t == ST0 - 1: kw["valu"] += p2b
        for k in range(len(sent)):
            if sw[k] == t: kw["extra"] += [sent[k]]
        if t == HST: kw["extra"] += [hs]
        TL = opt.get("tlb", "")
        if TL and t == opt.get("tlb_w", 12):
            grp = ["s_mov_b64 exec, 1"]
            if "o" in TL: grp.append(("vm", "buffer_load_dword v39, v29, s[24:27], s65 offen sc1", "T"))
            if "a" in TL: grp.append(("vm", "buffer_load_dword v39, v29, s[24:27], s53 offen sc1", "T"))
            if "A" in TL:
                grp += ["s_mov_b64 exec, 3", "v_lshlrev_b32 v54, 16, v1", ("vm", "buffer_load_dword v39, v54, s[24:27], s53 offen sc1", "T"), "s_mov_b64 exec, 1"]
            if "u" in TL:
                grp += ["s_lshl_b32 s59, s50, 18", "s_lshl_b32 s58, s38, 16", "s_add_u32 s59, s59, s58", "v_mov_b32 v54, s59",
                        ("vm", "global_load_dword v39, v54, s[70:71]", "T")]
            kw["extra"] += [grp + ["s_mov_b64 exec, -1"]]
        for (tw, lab, nl) in opt.get("ct2", [(4, "K_W7", 1), (12, "K_TAIL", 2)]):
            if t == tw:
                kw["extra"] += [[f"s_add_u32 s59, s79, {lab}-{KNAME}", "v_lshlrev_b32 v54, 14, v1", "v_add_u32 v54, s59, v54",
                                 f"v_min_u32 v54, K_LAST-{KNAME}, v54", f"s_mov_b64 exec, {(1 << nl) - 1}",
                                 ("vm", "global_load_dword v39, v54, s[88:89]", "T"), "s_mov_b64 exec, -1"]]
        a.label(f"K_W{t}")
        if t == WT0 - 1: kw["valu"] += wt_setup
        if WT0 <= t < WT0 + WTN: kw["extra"] += [wt(t - WT0)]
        LT = opt.get("lt")
        if LT:
            if t == min(LT) - 1:
                kw["valu"] += ["v_lshrrev_b32 v55, 3, v1", "v_lshlrev_b32 v55, 16, v55", "v_and_b32 v56, 7, v1", "v_lshl_add_u32 v55, v56, 7, v55",
                               "s_lshl_b32 s3, s39, 20", "s_lshr_b32 s56, s2, 3", "s_lshl_b32 s56, s56, 11", "s_add_u32 s3, s3, s56",
                               "s_and_b32 s56, s2, 4", "s_lshl_b32 s56, s56, 8", "s_add_u32 s3, s3, s56"]
            if t in LT:
                b0, nb_ = LT[t]
                kw["extra"] += [[f"s_add_u32 s56, s3, {b0*65536}", f"s_mov_b32 exec_lo, 0x{(1 << (8*nb_)) - 1:x}", "s_mov_b32 exec_hi, 0",
                                 ("vm", "buffer_load_dword v39, v55, s[80:83], s56 offen", "T"), "s_mov_b64 exec, -1"]]
        if HS:
            h = t - ST0
            if 0 <= h < 10:
                sub = h % 2
                grp = []
                for j in (2*sub, 2*sub + 1):
                    off = f" offset:{j*1024}" if j else ""
                    grp.append(([f"s_add_u32 m0, s64, {(h % 3)*2048 - sub*2048}"] if j % 2 == 0 else []) +
                               [("vm", f"buffer_load_dwordx4 v{40+j}, s[80:83], s52 offen{off} lds", f"H{h}")])
                if sub:
                    grp[-1].append("s_add_u32 s52, s52, 65536")
                kw["extra"] += grp
            h = t - ST0 - 2
            if 0 <= h < 10:
                kw["valu"] += [("needvm", [f"H{h}"])] + [("ds", f"ds_read_b64_tr_b16 {ar(RES[h // 2] + ct*4 + 2*(h % 2), 2)}, v{44+ct} offset:{(h % 3)*2048}") for ct in range(4)]
        elif ST0 <= t < ST0 + 10:
            b = (t - ST0) // 2
            if (t - ST0) % 2 == 0:
                kw["extra"] += dmaB(b, None)
            else:
                kw["valu"] += [[]] * 12 + [("needvm", [f"B{b}"])] + breads(b, RES[b], True)
        if t == 13:
            kw["valu"] += p2c
            kw["extra"] += [[("vm", "buffer_load_dword v28, v53, s[28:31], 0 offen sc1", "C")]]
        if t == 14:
            b58 = dmaB(5, 65536) + dmaB(6, 65536 + 4096) + dmaB(7, 98304) + dmaB(8, 98304 + 4096)
            NW14 = opt.get("nw14", 10) if IL else 16
            kw["extra"] += b58[:NW14]; b58 = b58[NW14:]
            kw["last"] = True
            if IL:
                kw["valu"] += [f"s_mov_b32 s66, 0x{f2u(LOG2E):08x}", f"s_mov_b32 s67, 0x{f2u(LOG2E):08x}",
                               f"v_mov_b32 v20, 0x{f2u(-EPS * LOG2E):08x}", "v_mov_b32 v21, v20"] + [f"v_mov_b32 v{22+i}, 0x3f803f80" for i in range(4)]
                kw["valu"] += [["s_lshl_b32 s56, s38, 12", f"s_add_u32 s56, s56, {EX}", "v_add_u32 v10, s56, v26"], "v_xor_b32 v11, 4096, v10"]
                DSP = 1
        window(t, **kw)
    stamp(a, opt, 3)
    stamp(a, opt, 26, real=True)

    a.label("K_TAIL")
    if not IL:
        a(f"s_mov_b32 s66, 0x{f2u(LOG2E):08x}")
        a(f"s_mov_b32 s67, 0x{f2u(LOG2E):08x}")
        a(f"v_mov_b32 v20, 0x{f2u(-EPS * LOG2E):08x}")
        a("v_mov_b32 v21, v20")
        for i in range(4):
            a(f"v_mov_b32 v{22+i}, 0x3f803f80")
    KV, ZC = 40, 56
    T0 = 2
    MSL = opt.get("mslots", [4, 6, 8, 10, 12, 14, 17, 24])
    def phi8(b0, b1, dst, inter=(), mfs=()):
        src = [b0, b0 + 2, b1, b1 + 2]
        L = []
        for i, s in enumerate(src):
            L.append(f"v_pk_fma_f32 {vr(T0 + 2*i, 2)}, {vr(s, 2)}, s[66:67], v[20:21]")
        for i in range(8):
            L.append(f"v_exp_f32_e64 v{T0+i}, v{T0+i} clamp")
        for s in src:
            L.append(f"v_max_f32 v{s}, v36, v{s}")
            L.append(f"v_max_f32 v{s+1}, v36, v{s+1}")
        for i, s in enumerate(src):
            L.append(f"v_pk_add_f32 {vr(T0 + 2*i, 2)}, {vr(s, 2)}, {vr(T0 + 2*i, 2)}")
        for i in range(4):
            L.append(f"v_cvt_pk_bf16_f32 v{dst+i}, v{T0+2*i}, v{T0+2*i+1}")
        pos = {0: [], 8: [], 18: []}
        for n, it in enumerate(inter):
            pos[(0, 8, 18)[(n * 3) // max(len(inter), 1)]].append(it)
        mfs = list(mfs)
        assert len(mfs) <= len(MSL)
        for n, x in enumerate(L):
            if n in pos:
                emit(pos[n])
            if n in MSL and mfs:
                m_ = mfs.pop(0)
                lq.need(Ins(m_).srcAB)
                a(m_)
            a(x)
    def pack8(b0, b1, dst):
        for i, s in enumerate([b0, b0 + 2, b1, b1 + 2]):
            a(f"v_cvt_pk_bf16_f32 v{dst+i}, v{s}, v{s+1}")
    t1 = {2: [[("needvm", ["B7"])] + breads(5, RES[5], True), breads(6, RES[6], True), breads(7, RES[7], True)]}
    rf = dmaB(9, SLOT[5]) + dmaB(10, SLOT[6]) + dmaB(11, SLOT[7])
    rf[0] = ["s_waitcnt lgkmcnt(0)"] + rf[0]
    for k in range(4):
        t1[3 + k] = rf[3*k:3*k+3]
    BQ = opt.get("bq", 0)
    if BQ:
        t1 = {}
    def kvz(m):
        out = []
        for dt in range(2):
            c = vr(ZC + dt*4)
            out.append(f"{MF} {c}, {vr(acc(2*m, 2+dt))}, v[22:25], {'0' if m == 0 else c}")
            for et in range(2):
                c = vr(KV + dt*8 + et*4)
                out.append(f"{MF} {c}, {vr(acc(2*m, 2+dt))}, {vr(acc(2*m, 4+et))}, {'0' if m == 0 else c}")
        return out
    if IL:
        h = -(-len(b58) // 2)
        t1 = {0: b58[:h], 1: b58[h:], 3: t1[2]}
        rf[0] = rf[0][1:]
        rf[0] = [("needds", regs_of(ar(RES[7], 16)))] + rf[0]
        for k in range(4):
            t1[4 + k] = rf[3*k:3*k+3]
        if opt.get("x_nob"):
            t1 = {}
        if opt.get("x_norf"):
            for k in range(4): t1[4 + k] = []
        if opt.get("x_nowait"):
            t1[3][0] = t1[3][0][1:]
        for j in range(8):
            if opt.get("tstamps"):
                stamp(a, opt, 48 + j)
            m, dt = j // 2, j % 2
            if j < 4:
                mfs = mf(15, 2*j, [4, 5], lambda ks: fXR(2*j, ks)) + mf(15, 2*j + 1, [4, 5], lambda ks: fXR(2*j + 1, ks))
            elif j < 7:
                mfs = kvz(j - 4)
            else:
                mfs = []
            phi8(acc(2*m, 2 + dt), acc(2*m + 1, 2 + dt), acc(2*m, 2 + dt), inter=t1.get(j, []), mfs=mfs)
            if 1 <= j <= 4:
                for et in range(2):
                    pack8(acc(2*(j-1), 4 + et), acc(2*(j-1) + 1, 4 + et), acc(2*(j-1), 4 + et))
        if opt.get("tstamps"):
            stamp(a, opt, 56)
        for x in kvz(3):
            a(x)
        a("s_nop 3")
    else:
        for m in range(4):
            for dt in range(2):
                phi8(acc(2*m, 2 + dt), acc(2*m + 1, 2 + dt), acc(2*m, 2 + dt), inter=t1.get(m*2 + dt, []))
        lq.drained()
        kvm = []
        for m in range(4):
            for dt in range(2):
                c = vr(ZC + dt*4)
                kvm.append(f"{MF} {c}, {vr(acc(2*m, 2+dt))}, v[22:25], {'0' if m == 0 else c}")
        for m in range(4):
            for et in range(2):
                pack8(acc(2*m, 4 + et), acc(2*m + 1, 4 + et), acc(2*m, 4 + et))
                a(kvm.pop(0))
        for m in range(4):
            for dt in range(2):
                for et in range(2):
                    c = vr(KV + dt*8 + et*4)
                    a(f"{MF} {c}, {vr(acc(2*m, 2+dt))}, {vr(acc(2*m, 4+et))}, {'0' if m == 0 else c}")
        a("s_lshl_b32 s56, s38, 12")
        a(f"s_add_u32 s56, s56, {EX}")
        a("v_add_u32 v10, s56, v26")
        a("v_xor_b32 v11, 4096, v10")
    a("s_cmp_eq_u32 s39, 0")
    a("s_cbranch_scc1 K_EXW0")
    a(f"ds_write_b128 v10, {vr(ZC)} offset:2048")
    a(f"ds_write_b128 v10, {vr(KV)}")
    a(f"ds_write_b128 v10, {vr(KV+4)} offset:1024")
    a("s_waitcnt lgkmcnt(0)")
    for i in range(0, 8, 2):
        a(f"v_pk_mov_b32 {vr(KV+i, 2)}, {vr(KV+8+i, 2)}, {vr(KV+8+i, 2)} op_sel:[0,1]")
    for i in range(0, 4, 2):
        a(f"v_pk_mov_b32 {vr(ZC+i, 2)}, {vr(ZC+4+i, 2)}, {vr(ZC+4+i, 2)} op_sel:[0,1]")
    a("s_branch K_EXW1")
    a.label("K_EXW0")
    a(f"ds_write_b128 v10, {vr(ZC+4)} offset:2048")
    a("s_nop 2")
    a(f"ds_write_b128 v10, {vr(KV+8)}")
    a(f"ds_write_b128 v10, {vr(KV+12)} offset:1024")
    a("s_waitcnt lgkmcnt(0)")
    a.label("K_EXW1")
    lq.drained()
    if opt.get("tstamps"):
        stamp(a, opt, 57)
    a("s_barrier")
    if opt.get("tstamps"):
        stamp(a, opt, 58)
    a(f"ds_read_b128 {vr(KV+8)}, v11")
    a(f"ds_read_b128 {vr(KV+12)}, v11 offset:1024")
    a(f"ds_read_b128 {vr(ZC+4)}, v11 offset:2048")
    a("s_mov_b32 s56, 0x00010001")
    a("s_mov_b32 s57, 0x00010001")
    a("s_waitcnt lgkmcnt(0)")
    for i in range(0, 8, 2):
        a(f"v_pk_add_f32 {vr(KV+i, 2)}, {vr(KV+i, 2)}, {vr(KV+8+i, 2)}")
    for i in range(0, 4, 2):
        a(f"v_pk_add_f32 {vr(ZC+i, 2)}, {vr(ZC+i, 2)}, {vr(ZC+4+i, 2)}")
    for r in list(range(KV, KV + 8)) + list(range(ZC, ZC + 4)):
        a(f"v_min_u32 v{r}, -2, v{r}")
    vq.issue(f"buffer_store_dwordx4 {vr(KV)}, v26, s[24:27], s62 offen sc1", "P")
    vq.issue(f"buffer_store_dwordx4 {vr(KV+4)}, v26, s[24:27], s62 offen offset:1024 sc1", "P")
    a("s_mov_b64 exec, s[56:57]")
    vq.issue(f"buffer_store_dwordx4 {vr(ZC)}, v27, s[24:27], s62 offen offset:2048 sc1", "P")
    a("s_mov_b64 exec, -1")
    stamp(a, opt, 4)
    vq.need("C")
    a("s_mov_b32 s58, -1")
    a("s_mov_b32 s59, 0")
    a.label("K_HS")
    a("v_cmp_eq_u32 vcc, 8, v28")
    a("s_cmp_eq_u64 vcc, s[58:59]")
    a("s_cbranch_scc1 K_HSOK")
    a("s_sleep 2")
    a("v_lshlrev_b32 v10, 3, v1")
    a("buffer_load_dword v28, v10, s[28:31], 0 offen sc1")
    a("s_waitcnt vmcnt(0)")
    a("s_branch K_HS")
    a.label("K_HSOK")
    PB = [acc(p, 2) for p in range(8)]
    ZG = 48
    def gather_ops():
        ops = []
        for p in range(8):
            for k in range(2):
                ops.append(([f"s_add_u32 s56, s61, {p * 16384}"] if k == 0 else []) +
                           [("vm", f"buffer_load_dwordx4 {vr(PB[p] + 4*k)}, v26, s[24:27], s56 offen offset:{k*1024} sc1", "H")])
        ops.append([("vm", f"buffer_load_dwordx4 {vr(ZG)}, v30, s[24:27], s61 offen offset:2048 sc1", "H")])
        return ops
    def gather(track):
        for op in gather_ops():
            for x in op:
                a(x[1] if isinstance(x, tuple) else x)
    gops = gather_ops()
    if BQ:
        rd = breads(5, RES[5], True) + breads(6, RES[6], True) + breads(7, RES[7], True)
        rf[0] = rf[0][1:]
        rf[0] = [("needds", regs_of(ar(RES[5], 16)))] + rf[0]
        rf[4] = [("needds", regs_of(ar(RES[6], 16)))] + rf[4]
        rf[8] = [("needds", regs_of(ar(RES[7], 16)))] + rf[8]
        qfill = [[("needvm", ["B7"])] + rd[:1]] + [[x] for x in rd[1:]]
        qb = None
    else:
        qb = dmaB(12, 32768) + dmaB(13, 32768 + 4096)
    GQ = opt.get("gather_in_q", 0)
    ILQ = opt.get("ilq", 0)
    if ILQ:
        LA = opt.get("qla", 2)
        def qm(rt):
            return mf(15, rt, [0, 1], lambda ks: fXR(rt, ks)) + mf(14, rt, [0, 1], lambda ks: fX(rt % 2, ks))
        def xr(rt):
            return rdX(14, rt, lambda ks: fX(rt % 2, ks)) if rt < 8 else []
        for x in xr(0):
            put(x)
        for rt in range(LA):
            k = -(-len(qb) // (LA - rt)) if opt.get("qb_front", 1) else 0
            fill = {1: xr(rt + 1)}
            spread(fill, qb[:k], 2, 8); qb = qb[k:]
            weave(qm(rt), fill)
        stamp(a, opt, 13)
        G0, G1 = opt.get("g0", 2), opt.get("g1", 7)
        for rt in range(8):
            inter = []
            if rt + LA < 8:
                inter.append(xr(rt + LA + 1))
            if rt < G0 and qb:
                k = -(-len(qb) // (G0 - rt)); inter += qb[:k]; qb = qb[k:]
            if G0 <= rt < G1:
                k = -(-len(gops) // (G1 - rt)); inter += gops[:k]; gops = gops[k:]
            phi8(acc(rt, 0), acc(rt, 1), acc(rt, 0), inter=inter, mfs=qm(rt + LA) if rt + LA < 8 else [])
        assert not gops and not qb
    else:
        if DEFER >= 2:
            for x in rdX(14, 0, lambda ks: fX(0, ks)):
                put(x)
        for rt in range(8):
            fill = {}
            ms = mf(15, rt, [0, 1], lambda ks: fXR(rt, ks)) if DEFER >= 1 else []
            if DEFER >= 2:
                ms += mf(14, rt, [0, 1], lambda ks: fX(rt % 2, ks))
                if rt < 7:
                    fill[1] = rdX(14, rt + 1, lambda ks: fX((rt + 1) % 2, ks))
            if BQ:
                if rt < 3:
                    spread(fill, qfill[8*rt:8*rt+8], 0, len(ms))
                if rt >= 2:
                    spread(fill, rf[2*(rt-2):2*(rt-2)+2], 2, len(ms))
            else:
                fill.setdefault(2, []).extend(qb[rt])
            per = len(ms) // 4
            first_rt = 8 - -(-GQ // max(per, 1))
            if GQ and rt >= first_rt:
                k = min(per, GQ - (17 - len(gops)))
                spread(fill, gops[:k], 0, len(ms)); gops = gops[k:]
            weave(ms, fill)
        stamp(a, opt, 13)
        GSP = opt.get("gather_span", 7)
        for rt in range(8):
            k = -(-len(gops) // (GSP - rt)) if rt < GSP else 0
            phi8(acc(rt, 0), acc(rt, 1), acc(rt, 0), inter=gops[:k]); gops = gops[k:]
    gate_ld = [[("vm", f"buffer_load_dwordx4 {vr(acc(i, 1))}, v26, s[16:19], s60 offen offset:{i*1024}", "G")] for i in range(4)]
    gate_ld += [[("vm", f"buffer_load_dwordx4 {vr(acc(4 + i, 1))}, v26, s[32:35], 0 offen offset:{i*1024}", "G")] for i in range(2)]
    emit(gate_ld)
    stamp(a, opt, 5)
    S = 40
    vq.need("H")
    a.label("K_SUM")
    for i in range(0, 8, 2):
        a(f"v_pk_add_f32 {vr(S+i, 2)}, {vr(PB[0]+i, 2)}, {vr(PB[1]+i, 2)}")
    for i in range(4):
        a(f"v_add_f32_dpp v{52+i}, v{ZG+i}, v{ZG+i} quad_perm:[1,0,3,2] row_mask:0xf bank_mask:0xf")
    for p in range(2, 8):
        for i in range(0, 8, 2):
            a(f"v_pk_add_f32 {vr(S+i, 2)}, {vr(S+i, 2)}, {vr(PB[p]+i, 2)}")
        if p in (2, 3):
            ctrl = "quad_perm:[2,3,0,1]" if p == 2 else "row_half_mirror"
            for i in range(4):
                a(f"v_add_f32_dpp v{52+i}, v{52+i}, v{52+i} {ctrl} row_mask:0xf bank_mask:0xf")
    a(f"v_pk_add_f32 v[2:3], {vr(S, 2)}, {vr(S+2, 2)}")
    a(f"v_pk_add_f32 v[4:5], {vr(S+4, 2)}, {vr(S+6, 2)}")
    a(f"v_pk_add_f32 v[6:7], v[52:53], v[54:55]")
    a("v_pk_add_f32 v[2:3], v[2:3], v[4:5]")
    a("v_pk_add_f32 v[2:3], v[2:3], v[6:7]")
    a("v_cmp_u_f32 vcc, v2, v3")
    a("s_cbranch_vccz K_GOK")
    regs = [PB[p] + i for p in range(8) for i in range(8)] + [ZG + i for i in range(4)]
    a(f"v_max3_u32 v2, v{regs[0]}, v{regs[1]}, v{regs[2]}")
    regs = regs[3:]
    while regs:
        if len(regs) >= 2:
            a(f"v_max3_u32 v2, v2, v{regs[0]}, v{regs[1]}"); regs = regs[2:]
        else:
            a(f"v_max_u32 v2, v2, v{regs[0]}"); regs = regs[1:]
    a("v_cmp_eq_u32 vcc, -1, v2")
    a("s_cbranch_vccz K_GOK")
    if opt.get("stamps"):
        a("v_readlane_b32 s56, v31, 24")
        a("s_add_u32 s56, s56, 1")
        a("v_writelane_b32 v31, s56, 24")
    gather(False)
    a("s_waitcnt vmcnt(0)")
    a("s_branch K_SUM")
    a.label("K_GOK")
    stamp(a, opt, 6)
    for i in range(4):
        a(f"v_cvt_pk_bf16_f32 v{2+i}, v{S+2*i}, v{S+2*i+1}")
    a("v_cvt_pk_bf16_f32 v6, v52, v53")
    a("v_cvt_pk_bf16_f32 v7, v54, v55")
    a("s_mul_i32 s56, s40, 3072")
    a(f"s_add_u32 s56, s56, {EX2}")
    a("v_add_u32 v11, s56, v26")
    a("s_lshl_b32 s57, s39, 3")
    a("v_add_u32 v10, s57, v11")
    a("ds_write_b64 v10, v[6:7] offset:2048")
    a("ds_write_b64 v10, v[2:3]")
    a("ds_write_b64 v10, v[4:5] offset:1024")
    a("s_waitcnt lgkmcnt(0)")
    lq.drained()
    a("s_barrier")
    OPR = 40
    a(f"ds_read_b128 {vr(OPR+8)}, v11 offset:2048")
    a(f"ds_read_b128 {vr(OPR)}, v11")
    a(f"ds_read_b128 {vr(OPR+4)}, v11 offset:1024")
    a("s_waitcnt lgkmcnt(2)")
    eb = dmaB(14, 0) + dmaB(15, 4096) if opt.get("early14", 1) else []
    for rt in range(8):
        a(f"{MF} {vr(acc(rt, 4))}, {vr(OPR+8)}, {vr(acc(rt, 0))}, 0")
        if eb and rt % 2 == 0:
            emit(eb[:1]); eb = eb[1:]
    a("s_waitcnt lgkmcnt(0)")
    for rt in range(8):
        a(f"{MF} {vr(acc(rt, 2))}, {vr(OPR)}, {vr(acc(rt, 0))}, 0")
        a(f"{MF} {vr(acc(rt, 3))}, {vr(OPR+4)}, {vr(acc(rt, 0))}, 0")
        D = acc(rt, 4)
        a(f"v_add_f32 v{D}, v36, v{D}")
        a(f"v_rcp_f32 v{D}, v{D}")
        if eb and rt % 2 == 0:
            emit(eb[:1]); eb = eb[1:]
    a("s_add_u32 s63, s65, 4096")
    for rt in range(8):
        N, D = acc(rt, 2), acc(rt, 4)
        for r in range(0, 8, 2):
            a(f"v_pk_mul_f32 {vr(N+r, 2)}, {vr(N+r, 2)}, {vr(D, 2)} op_sel_hi:[1,0]")
        for r in range(0, 8, 2):
            a(f"v_cvt_pk_bf16_f32 v{D+4+r//2}, v{N+r}, v{N+r+1}")
        vq.issue(f"buffer_store_dwordx4 {vr(D+4)}, v26, s[24:27], {'s65' if rt < 4 else 's63'} offen offset:{(rt % 4)*1024} sc1", "O")
    stamp(a, opt, 7)
    if BQ:
        emit(dmaB(12, 32768) + dmaB(13, 32768 + 4096))
    if not opt.get("early14", 1):
        emit(dmaB(14, 0) + dmaB(15, 4096))
    for k in range(4):
        a(f"s_add_u32 s56, s38, {k + 1}")
        a("s_and_b32 s56, s56, 3")
        a("s_lshl_b32 s56, s56, 11")
        a(f"v_add_u32 v{2+k}, s56, v26")
    a("v_bfe_u32 v6, v1, 1, 4")
    a(f"v_lshlrev_b32 v6, {FS}, v6")
    a("v_and_b32 v7, 1, v1")
    a("v_lshl_add_u32 v6, v7, 2, v6")
    vq.need("G")
    for x in gate[1:] + gate2:
        a(x)
    srd(a, 16, 70, 2048 * 1024 * 2)
    a("v_add_u32 v7, s48, v26")
    a("v_add_u32 v8, 0x10000, v7")
    for j in range(3):
        a(f"s_xor_b32 s56, s38, {j + 1}")
        a("s_sub_u32 s57, s38, s56")
        a("s_sub_u32 s57, s57, 1")
        a("s_and_b32 s57, s57, 3")
        a("s_lshl_b32 s57, s57, 15")
        a("s_lshl_b32 s56, s56, 13")
        a("s_add_u32 s56, s56, s57")
        a(f"v_add_u32 v{9+j}, s56, v26")
    a("v_and_b32 v24, 15, v1")
    a("v_lshrrev_b32 v25, 4, v1")
    a("v_and_b32 v28, 1, v25")
    a("v_lshlrev_b32 v28, 5, v28")
    a("v_lshrrev_b32 v25, 1, v25")
    a("v_lshl_add_u32 v28, v25, 4, v28")
    FL = opt.get("fullline", 1)
    if FL:
        a("v_and_b32 v24, 7, v1")
        a("v_bfe_u32 v25, v1, 3, 1")
        a("v_lshl_add_u32 v28, v25, 6, v28")
    a("v_lshl_add_u32 v14, v24, 11, v28")
    if FL:
        a("v_add_u32 v15, 0x4000, v14")
    a("s_lshl_b32 s56, s50, 18")
    a("s_lshl_b32 s57, s38, 16")
    a("s_add_u32 s56, s56, s57")
    a("s_lshl_b32 s57, s51, 7")
    a("s_add_u32 s61, s56, s57")
    a(f"s_add_u32 s62, s61, {16*2048}")
    a("s_mov_b32 s60, 0")
    a("s_getpc_b64 s[66:67]")
    a.label("K_PC")
    a("s_add_u32 s66, s66, K_WAIT-K_PC")
    a("s_addc_u32 s67, s67, 0")
    D = opt.get("depth", 4)
    P2 = 128
    def acc2(i, ct): return P2 + (i * 4 + ct) * 4
    def fA(slot, i): return AQ[slot * 8 + i]
    def fB(s_, ct): return 64 + s_ * 16 + ct * 4
    order = list(range(8, 16)) + list(range(8))
    for ct in range(4):
        a(f"v_subrev_u32 v{16+ct}, 0x10000, v{32+ct}")
    vq.need("B8")
    for x in breads(order[0], fB(0, 0), False):
        put(x)
    if opt.get("atouch", 0):
        a("v_lshrrev_b32 v46, 3, v1")
        a("v_lshlrev_b32 v46, 13, v46")
        a("v_and_b32 v47, 7, v1")
        a("v_lshl_add_u32 v46, v47, 7, v46")
        a("s_and_b32 s56, s51, 7")
        a("s_lshl_b32 s56, s56, 10")
        a("v_add_u32 v46, s56, v46")
    EP = opt.get("early_poll", 0) and not NS
    if EP:
        vq.issue("buffer_load_dword v44, v6, s[24:27], s54 offen sc1", "E")
    def flag():
        a("s_mov_b64 exec, 1")
        a("buffer_store_dwordx2 v[38:39], v29, s[24:27], s55 offen sc1")
        a("s_mov_b64 exec, -1")
    FAST = opt.get("fast", 0)
    if not FAST and not NS:
        vq.need("O")
        flag()
        stamp(a, opt, 8)
        if EP:
            a("s_waitcnt vmcnt(1)"); vq.drained()
            a("v_cmp_ne_u32 vcc, -1, v44")
            a("s_lshr_b32 s57, vcc_lo, 1"); a("s_and_b32 s57, s57, vcc_lo"); a("s_or_b32 s60, s60, s57")
        if opt.get("fsleep"):
            a(f"s_sleep {opt['fsleep']}")
        if opt.get("fwait", 1):
            a("s_waitcnt vmcnt(0)"); vq.drained()
        PP = opt.get("pp", 0)
        if PP:
            want = sum(1 << (2*order[k]) for k in range(opt.get("pp_heads", 2)))
            a(f"s_and_b32 s57, s60, 0x{want:x}")
            a(f"s_cmp_eq_u32 s57, 0x{want:x}")
            a("s_cbranch_scc1 K_PPOK")
            for k in range(PP):
                a(f"buffer_load_dword v{48+k}, v6, s[24:27], s54 offen sc1")
                if k < PP - 1:
                    a(f"s_sleep {opt.get('pp_sleep', 3)}")
            a.label("K_PPL")
            for k in range(PP):
                a(f"s_waitcnt vmcnt({PP-1})")
                a(f"v_cmp_ne_u32 vcc, -1, v{48+k}")
                a("s_lshr_b32 s57, vcc_lo, 1"); a("s_and_b32 s57, s57, vcc_lo"); a("s_or_b32 s60, s60, s57")
                a(f"s_and_b32 s57, s60, 0x{want:x}")
                a(f"s_cmp_eq_u32 s57, 0x{want:x}")
                a("s_cbranch_scc1 K_PPOK")
                a(f"buffer_load_dword v{48+k}, v6, s[24:27], s54 offen sc1")
            a("s_branch K_PPL")
            a.label("K_PPOK")
    SC = " sc1" if opt.get("a_sc1", 1) else ""
    NT = opt.get("ntail", 3)
    N0 = 16 - NT
    FR = {}
    for n in range(N0):
        for i in range(8):
            FR[(n, i)] = (n, i)
    seq = [(n, i) for i in range(8) for n in range(N0, 16)]
    for k, f in enumerate(seq):
        FR[f] = (N0 + k // 8, k % 8)
    GRP = {}
    for f, (g, j) in FR.items():
        GRP.setdefault(g, {})[j] = f
    def areg(n, i):
        g, j = FR[(n, i)]
        return AQ[(g % 4) * 8 + j]
    def loadsA(g):
        ops = []
        for j in range(8):
            n, i = GRP[g][j]
            b = order[n]
            if g < N0:
                pre = [f"s_add_u32 s43, s53, {b*8192}"] if j == 0 else []
                so = "s43"
            else:
                pre = [f"s_add_u32 s{4 + m - N0}, s53, {order[m]*8192}" for m in range(N0, 16)] if (g == N0 and j == 0) else []
                so = f"s{4 + n - N0}"
            off = " offset:1024" if i % 2 else ""
            ops.append(pre + [("vm", f"buffer_load_dwordx4 {ar(areg(n, i))}, v{2 + i // 2}, s[24:27], {so} offen{off}{SC}", f"A{n}_{i}")])
        return ops
    def check(n):
        b = order[n]
        out = [f"s_bitcmp1_b32 s60, {2*b}", f"s_cbranch_scc1 K_RDY{n}", f"s_mov_b32 s59, {2*b}", "s_swappc_b64 s[68:69], s[66:67]", f"K_RDY{n}:"]
        return out
    def poll(g):
        return [("vm", f"buffer_load_dword v{40 + g % 4}, v6, s[24:27], s54 offen sc1", f"P{g}")]
    def upd(g):
        return [f"v_cmp_ne_u32 vcc, -1, v{40 + g % 4}"], ["s_lshr_b32 s57, vcc_lo, 1", "s_and_b32 s57, s57, vcc_lo", "s_or_b32 s60, s60, s57"]
    def gate_grp(g):
        out = []
        if NS:
            if g < N0:
                out += check(g)
            elif g == N0:
                for m in list(range(N0, 16)) + list(range(NS)):
                    out += check(m)
                out += [("vm", "buffer_load_dword v20, v6, s[24:27], s54 offen sc1", "GF")]
            return out
        if g < N0:
            out += check(g)
        elif g == N0:
            for m in range(N0, 16):
                out += check(m)
            out += [("vm", "buffer_load_dword v20, v6, s[24:27], s54 offen sc1", "GF")]
        if g + 3 <= N0 and g in PSET:
            out += poll(g)
        return out
    TA = opt.get("atouch", 0)
    PSET = opt.get("pset", [3])
    def touchA(n0, n1):
        b0 = order[n0]
        cnt = (n1 - n0) * 8
        return [f"s_add_u32 s56, s53, {b0*8192}", f"s_mov_b64 exec, 0x{(1 << cnt) - 1:x}" if cnt < 32 else "s_mov_b32 exec_hi, 0",
                ("vm", "buffer_load_dword v45, v46, s[24:27], s56 offen sc1", "T"), "s_mov_b64 exec, -1"]
    if FAST:
        vq.need("E")
        stamp(a, opt, 8)
        a("v_cmp_ne_u32 vcc, -1, v44")
        a("s_lshr_b32 s57, vcc_lo, 1"); a("s_and_b32 s60, s57, vcc_lo")
        want = (1 << (2*order[0])) | (1 << (2*order[1]))
        a(f"s_and_b32 s57, s60, 0x{want:x}")
        a(f"s_cmp_eq_u32 s57, 0x{want:x}")
        a("s_cbranch_scc0 K_SLOW")
        q0 = list(vq.q)
        for g in range(2):
            emit([poll(g)])
            emit(loadsA(g))
        flag()
        stamp(a, opt, 9)
        a("s_branch K_GO")
        a.label("K_SLOW")
        vq.q = q0
        flag()
    if NS:
        vq.need("O")
        stamp(a, opt, 8)
        if opt.get("spec_sleep"):
            a(f"s_sleep {opt['spec_sleep']}")
        FPOS = opt.get("fpos", 2)
        for g in range(NS):
            if g == FPOS:
                flag(); vq.q.append("F")
            emit(loadsA(g))
        if FPOS >= NS:
            flag(); vq.q.append("F")
        stamp(a, opt, 9)
    for g in range(0 if NS else 2):
        emit([gate_grp(g)])
        if g == 0:
            stamp(a, opt, 9)
        emit(loadsA(g))
    if FAST:
        a.label("K_GO")
    def redw(i):
        k = i // 2
        return [f"ds_write_b128 {'v7' if k < 2 else 'v8'}, {vr(acc2(i, ct))} offset:{(k % 2)*32768 + (i % 2)*4096 + ct*1024}" for ct in range(4)]
    def Bop(n, ct):
        b = order[n]
        return vr(fB(n % 2, ct)) if b >= 8 else ar(RES[b] + ct * 4)
    issued = set()
    NPOLL = opt.get("npoll", 5)
    for n in range(N0 if NS else 0):
        if n < NS:
            lq.need(regs_of(Bop(n, 0)))
            for i in range(8):
                vq.need(f"A{n}_{i}")
                a(f"{MF} v[48:51], {Bop(n, 0)}, {ar(areg(n, i))}, {'0' if i == 0 else 'v[48:51]'}")
            a("v_cmp_u_f32 vcc, v48, v48")
            a(f"s_cbranch_vccz K_VOK{n}")
            if opt.get("stamps"):
                a("v_readlane_b32 s56, v31, 22")
                a("s_add_u32 s56, s56, 1")
                a("v_writelane_b32 v31, s56, 22")
            a(f"s_mov_b32 s59, {2*order[n]}")
            a("s_swappc_b64 s[68:69], s[66:67]")
            for op in loadsA(n):
                for x in op:
                    a(x[1] if isinstance(x, tuple) else x)
            a("s_waitcnt vmcnt(0)")
            a.label(f"K_VOK{n}")
        else:
            vq.need(f"A{n}_7")
        if n == 0:
            stamp(a, opt, 12)
        if opt.get("pstamps"):
            stamp(a, opt, 32 + n)
        ms = []
        for i in range(8):
            for ct in range(4):
                c = vr(acc2(i, ct))
                ms.append(f"{MF} {c}, {Bop(n, ct)}, {ar(areg(n, i))}, {'0' if n == 0 else c}")
        fill = {}
        if 1 <= n <= NPOLL:
            u1, u2 = upd(n - 1)
            fill[0] = [("needvm", [f"P{n-1}"])] + u1; fill[1] = u2
        if n < NPOLL:
            fill.setdefault(2, []).extend(poll(n))
        if n + 1 < 8:
            spread(fill, [[x] for x in breads(order[n + 1], fB((n + 1) % 2, 0), False)], 4, 20)
        gs = [g for g in range(NS, n + 4) if g not in issued] if n >= 1 else []
        items = []
        for g in gs:
            items += [gate_grp(g)] + loadsA(g); issued.add(g)
        if items:
            spread(fill, items, 3, 30)
        weave(ms, fill)
    for n in range(0 if NS else N0):
        FINE = n < opt.get("fine", 2)
        if not FINE:
            vq.need(f"A{n}_7")
        else:
            vq.need(f"A{n}_0")
        if n == 0:
            stamp(a, opt, 12)
        if opt.get("pstamps"):
            stamp(a, opt, 32 + n)
        ms = []
        for i in range(8):
            for ct in range(4):
                c = vr(acc2(i, ct))
                ms.append(f"{MF} {c}, {Bop(n, ct)}, {ar(areg(n, i))}, {'0' if n == 0 else c}")
        fill = {}
        if n + 3 <= N0 and n in PSET:
            u1, u2 = upd(n)
            fill[0] = u1; fill[1] = u2
        if n + 1 < 8:
            spread(fill, [[x] for x in breads(order[n + 1], fB((n + 1) % 2, 0), False)], 4, 20)
        if n == 0:
            spread(fill, [gate_grp(2)] + loadsA(2), 2, 16)
            spread(fill, [gate_grp(3)] + loadsA(3), 16, 31)
            if TA:
                fill.setdefault(31, []).extend(touchA(4, TA))
        else:
            spread(fill, [gate_grp(n + 3)] + loadsA(n + 3), 2, opt.get("lspan", 28))
        if TA and n + TA < 16:
            fill.setdefault(31, []).extend(touchA(n + TA, n + TA + 1))
        if FINE:
            for i in range(1, 8):
                fill.setdefault(4 * i - 1, []).append(("needvm", [f"A{n}_{i}"]))
        weave(ms, fill)
    if opt.get("pstamps"):
        stamp(a, opt, 32 + N0)
    gf = [("needvm", ["GF"]), "v_mov_b32 v22, v20", "v_permlane16_swap_b32 v20, v22"]
    for r in (20, 22):
        gf += [f"v_sub_f32 v{r+1}, 1.0, v{r}", f"v_cvt_pk_bf16_f32 v{r+1}, v{r+1}, v{r+1}", f"v_and_b32 v{r+1}, 0xffff0000, v{r+1}"]
    gf += [["s_cmp_lt_u32 s38, 2", "s_cbranch_scc1 K_NOSWAP", "v_swap_b32 v20, v21", "v_swap_b32 v22, v23", "K_NOSWAP:"]]
    R = 128
    rds = [f"ds_read_b128 {vr(R + k*32 + j*4)}, v{9+k} offset:{j*1024}" for k in range(3) for j in range(8)]
    for i in range(8):
        vq.need(*[f"A{n}_{i}" for n in range(N0, 16)])
        ms = [f"{MF} {vr(acc2(i, ct))}, {Bop(n, ct)}, {ar(areg(n, i))}, {vr(acc2(i, ct))}" for ct in range(4) for n in range(N0, 16)]
        fill = {}
        if i == 0:
            spread(fill, [x if isinstance(x, list) else [x] for x in gf], 0, len(ms))
        if 1 <= i <= 6:
            spread(fill, [[w] for w in redw(i - 1)], min(2, len(ms) - 4), len(ms))
        if i == 7:
            stamp(a, opt, 14)
            a("s_waitcnt lgkmcnt(0)")
            a("s_barrier")
            spread(fill, [[r] for r in rds], 0, len(ms))
        weave(ms, fill)
    OWN = acc2(6, 0)
    a("s_waitcnt lgkmcnt(15)")
    for j in range(0, 32, 2):
        a(f"v_pk_add_f32 {vr(OWN+j, 2)}, {vr(OWN+j, 2)}, {vr(R+j, 2)}")
    for j in range(0, 32, 2):
        gsel = 20 if j < 16 else 22
        a(f"v_pk_mul_f32 {vr(OWN+j, 2)}, {vr(OWN+j, 2)}, {vr(gsel, 2)} op_sel_hi:[1,0]")
    a("s_waitcnt lgkmcnt(0)")
    for pr in range(4):
        for j in range(8 * pr, 8 * pr + 8, 2):
            a(f"v_pk_add_f32 {vr(R+32+j, 2)}, {vr(R+32+j, 2)}, {vr(R+64+j, 2)}")
        for j in range(8 * pr, 8 * pr + 8, 2):
            gsel = 20 if j < 16 else 22
            a(f"v_pk_fma_f32 {vr(OWN+j, 2)}, {vr(R+32+j, 2)}, {vr(gsel, 2)}, {vr(OWN+j, 2)} op_sel:[0,1,0] op_sel_hi:[1,1,1]")
        b = 64 + 4 * pr
        for j in range(4):
            a(f"v_cvt_pk_bf16_f32 v{b+j}, v{OWN+8*pr+2*j}, v{OWN+8*pr+2*j+1}")
        a(f"v_permlane16_swap_b32 v{b}, v{b+2}")
        a(f"v_permlane16_swap_b32 v{b+1}, v{b+3}")
        if not FL:
            a(f"buffer_store_dwordx4 {vr(b)}, v14, s[16:19], {'s61' if pr < 2 else 's62'} offen offset:{(pr % 2)*64}{opt.get('ost', ' sc1')}")
        elif pr % 2 == 1:
            for j in range(4):
                a(f"v_mov_b32 v{80+j}, v{b-4+j}")
            for j in range(4):
                a(f"v_mov_b32_dpp v{b-4+j}, v{b+j} row_ror:8 row_mask:0xf bank_mask:0xc")
            for j in range(4):
                a(f"v_mov_b32_dpp v{b+j}, v{80+j} row_ror:8 row_mask:0xf bank_mask:0x3")
            so = 's61' if pr < 2 else 's62'
            a(f"buffer_store_dwordx4 {vr(b-4)}, v14, s[16:19], {so} offen{opt.get('ost', ' sc1')}")
            a(f"buffer_store_dwordx4 {vr(b)}, v15, s[16:19], {so} offen{opt.get('ost', ' sc1')}")
    stamp(a, opt, 15)
    stamp_out(a, opt, 0)
    a.label("K_END")
    a("s_endpgm")
    a.label("K_WAIT")
    a("buffer_load_dword v44, v6, s[24:27], s54 offen sc1")
    if opt.get("stamps"):
        a("v_readlane_b32 s56, v31, 23")
        a("s_add_u32 s56, s56, 1")
        a("v_writelane_b32 v31, s56, 23")
    a("s_waitcnt vmcnt(0)")
    a("v_cmp_ne_u32 vcc, -1, v44")
    a("s_lshr_b32 s57, vcc_lo, 1"); a("s_and_b32 s57, s57, vcc_lo"); a("s_or_b32 s60, s60, s57")
    a("s_bitcmp1_b32 s60, s59")
    if opt.get("wsleep"):
        a("s_cbranch_scc1 K_LAST")
        a(f"s_sleep {opt['wsleep']}")
        a("s_branch K_WAIT")
    else:
        a("s_cbranch_scc0 K_WAIT")
    a.label("K_LAST")
    a("s_setpc_b64 s[68:69]")

def build(opt):
    a = Asm()
    gen(a, opt)
    out = HEADER + "; @launch grid=(256,1,1) block=(256,1,1) lds=163840\n"
    out += '.amdgcn_target "amdgcn-amd-amdhsa--gfx950"\n.text\n' + a.text() + '.section .rodata,"a"\n' + kd(KNAME, 512, 96, 256)
    return out

if __name__ == "__main__":
    opt = {}
    for kv in sys.argv[2:]:
        k, v = kv.split("=")
        try:
            v = eval(v)
        except Exception:
            pass
        opt[k] = v
    open(sys.argv[1], "w").write(build(opt))
```

```python
import sys, struct
from asmlib import Asm, Ins, regs_of
from gen import f2u, LdsQ, kd, srd, stamp, stamp_out, HEADER, WS_DIAG, WS_SIZE, WS_SLOT, WS_G, LOG2E, EPS

MF = "v_mfma_f32_16x16x32_bf16"
WS_WOF = 16 << 20
WS_TOT = 20 << 20
KNAME = "gated_mix__linear_attn_block__linear_attn_block__prompt_kernel"
def vr(b, n=4): return f"v[{b}:{b+n-1}]"
def ar(b, n=4): return f"a[{b}:{b+n-1}]"

class VmQ:
    def __init__(self, a):
        self.a = a; self.q = []
    def issue(self, text, tag):
        self.a(text); self.q.append(tag)
    def count(self, tags):
        idx = -1
        for i, t in enumerate(self.q):
            if t in tags:
                idx = i
        if idx < 0:
            return None
        return min(len(self.q) - idx - 1, 63)
    def need(self, *tags, extra=""):
        n = self.count(tags)
        if n is None:
            if extra:
                self.a(f"s_waitcnt {extra}")
            return
        self.a(f"s_waitcnt vmcnt({n}) {extra}".rstrip())
        self.q = self.q[len(self.q) - n:] if n else []
    def drained(self):
        self.q = []

def gen(a, opt):
    lq = LdsQ(a); vq = VmQ(a)
    ABL = [""]
    def put(x):
        if ABL[0] and isinstance(x, tuple):
            if "x" in ABL[0] and x[0] == "ds" and "b128" in x[1]: return
            if "w" in ABL[0] and x[0] == "ds" and "tr_b16" in x[1]: return
            if "d" in ABL[0] and x[0] == "vm" and x[2][0] in "XW": return
            if "X" in ABL[0] and x[0] == "vm" and x[2][0] == "X": return
        if isinstance(x, tuple):
            if x[0] == "ds":
                lq.issue(x[1])
            elif x[0] == "vm":
                vq.issue(x[1], x[2])
            elif x[0] == "needvm":
                vq.need(*x[1])
            elif x[0] == "needds":
                lq.need(x[1])
        else:
            a(x)
    def weave(mf, fill):
        for g, m in enumerate(mf):
            lq.need(Ins(m).srcAB)
            a(m)
            for x in fill.get(g, []):
                put(x)
    def spread(fill, items, start, end):
        n = len(items)
        for i, it in enumerate(items):
            fill.setdefault(start + (i * (end - start)) // n, []).extend(it)

    XB = [0, 32768]
    WB = [65536 + 24576 * s for s in range(3)]
    EX = 139264
    EX2 = EX + 16384
    ACC = 64
    def acc(rt, ct): return ACC + (rt * 6 + ct) * 4
    def fW(st, ct, ks): return 48 * (st % 2) + (ct * 2 + ks) * 4
    def fX(e, ks): return 96 + e * 8 + ks * 4
    def fXR(rt, ks): return 112 + rt * 8 + ks * 4
    a.raw(f".globl {KNAME}\n.p2align 8\n.type {KNAME},@function")
    a.label(KNAME)
    a("s_cmp_ge_u32 s2, 256")
    a("s_cbranch_scc1 K_END")
    a("s_load_dwordx4 s[4:7], s[0:1], 0")
    a("s_load_dwordx2 s[8:9], s[0:1], 32")
    a("s_load_dwordx4 s[68:71], s[0:1], 48")
    a("s_load_dwordx4 s[12:15], s[0:1], 64")
    a("s_load_dwordx2 s[74:75], s[0:1], 16")
    a("s_load_dwordx2 s[76:77], s[0:1], 40")
    if opt.get("stamps"):
        a("v_mov_b32 v31, 0")
    stamp(a, opt, 30, real=True)
    stamp(a, opt, 0)
    a("v_lshrrev_b32 v21, 6, v0")
    a("v_and_b32 v1, 63, v0")
    a("v_readfirstlane_b32 s38, v21")
    a("s_and_b32 s56, s2, 7")
    a("s_lshr_b32 s57, s2, 3")
    if opt.get("k1map", "A") == "A":
        a("s_and_b32 s36, s57, 7")
        a("s_lshr_b32 s58, s57, 3")
        a("s_lshl_b32 s37, s56, 2")
        a("s_add_u32 s37, s37, s58")
    else:
        a("s_and_b32 s36, s56, 1")
        a("s_lshl_b32 s36, s36, 2")
        a("s_and_b32 s58, s57, 3")
        a("s_add_u32 s36, s36, s58")
        a("s_lshr_b32 s37, s56, 1")
        a("s_lshl_b32 s37, s37, 3")
        a("s_lshr_b32 s58, s57, 2")
        a("s_add_u32 s37, s37, s58")
    a("s_and_b32 s39, s38, 1")
    a("s_lshr_b32 s40, s38, 1")
    a("s_and_b32 s41, s37, 15")
    a("s_lshr_b32 s42, s37, 4")
    a("v_lshrrev_b32 v21, 3, v1")
    a("v_and_b32 v22, 7, v1")
    a("v_lshrrev_b32 v23, 4, v1")
    a("v_and_b32 v24, 1, v23")
    a("v_lshlrev_b32 v24, 2, v24")
    a("v_xor_b32 v24, v22, v24")
    a("v_lshlrev_b32 v24, 4, v24")
    a("v_mul_u32_u24 v25, 6144, v21")
    a("v_add_u32 v24, v24, v25")
    a("v_xor_b32 v25, 32, v24")
    a("s_mul_i32 s56, s38, 6")
    a("s_lshl_b32 s59, s41, 7")
    for i in range(6):
        a(f"s_add_u32 s57, s56, {i}")
        a("s_lshr_b32 s58, s57, 3")
        a("s_and_b32 s57, s57, 7")
        a(f"s_mul_i32 s57, s57, {8*6144}")
        a("s_lshl_b32 s58, s58, 11")
        a("s_add_u32 s57, s57, s58")
        a("s_add_u32 s57, s57, s59")
        if i % 4:
            a(f"s_sub_u32 s57, s57, {(i % 4) * 1024}")
        a(f"v_add_u32 v{10+i}, s57, {'v24' if i % 2 == 0 else 'v25'}")
    a("v_xor_b32 v24, v22, v23")
    a("v_lshlrev_b32 v24, 4, v24")
    a("v_lshl_add_u32 v24, v21, 11, v24")
    a("s_lshl_b32 s56, s36, 19")
    a("s_lshl_b32 s57, s40, 18")
    a("s_add_u32 s56, s56, s57")
    a("s_lshl_b32 s57, s39, 16")
    a("s_add_u32 s56, s56, s57")
    a("v_add_u32 v2, s56, v24")
    a("v_xor_b32 v25, 64, v2")
    for i in range(1, 8):
        src = "v2" if i % 2 == 0 else "v25"
        a(f"v_add_u32 v{2+i}, {(i % 4)*16384 + (i // 4)*131072 - (i % 4) * 1024}, {src}")
    a("s_lshl_b32 s48, s38, 13")
    a("s_lshl_b32 s45, s40, 14")
    a("s_lshl_b32 s57, s39, 12")
    a("s_add_u32 s45, s45, s57")
    a("s_mov_b32 s72, 0")
    a("s_mul_i32 s49, s38, 6144")
    a("s_mov_b32 s43, 0")
    a("s_mov_b32 s44, 0")
    a("s_waitcnt lgkmcnt(0)")
    srd(a, 16, 4, 2048 * 1024 * 2)
    a("s_cmp_eq_u32 s42, 0")
    a("s_cselect_b32 s56, s6, s8")
    a("s_cselect_b32 s57, s7, s9")
    srd(a, 20, 56, 1024 * 3072 * 2)
    stamp(a, opt, 10)

    def dmaXh(t, h):
        ops = []
        so = "s43" if h == 0 else "s72"
        for i in range(4 * h, 4 * h + 4):
            pre = [f"s_add_u32 m0, s45, {XB[t % 2] + h * 8192}"] if i % 4 == 0 else []
            off = f" offset:{(i % 4) * 1024}" if i % 4 else ""
            ops.append(pre + [("vm", f"buffer_load_dwordx4 v{2+i}, s[16:19], {so} offen{off}{opt.get('dpol', '')} lds", f"X{t}{'ab'[h]}")])
        ops[3].append(f"s_add_u32 {so}, {so}, 128")
        return ops
    def dmaX(t):
        return dmaXh(t, 0) + dmaXh(t, 1)
    def dmaW(t):
        ops = []
        for i in range(6):
            pre = [f"s_add_u32 m0, s49, {WB[t % 3] + (i // 4) * 4096}"] if i % 4 == 0 else []
            off = f" offset:{(i % 4) * 1024}" if i % 4 else ""
            ops.append(pre + [("vm", f"buffer_load_dwordx4 v{10+i}, s[20:23], s44 offen{off}{opt.get('dpol', '')} lds", f"W{t}")])
        ops[5].append(f"s_add_u32 s44, s44, {64*6144}")
        return ops
    def emit(groups):
        for op in groups:
            for x in op:
                put(x)
    emit(dmaW(0) + dmaX(0))
    if opt.get("pre0"):
        emit(dmaW(1))
    stamp(a, opt, 11)
    srd(a, 24, 14, WS_TOT)
    srd(a, 28, 12, 256)
    srd(a, 32, 68, 2048)
    a("v_lshlrev_b32 v26, 4, v1")
    a("s_lshl_b32 s46, s37, 1")
    a("s_add_u32 s46, s46, s40")
    a("s_lshl_b32 s47, s36, 1")
    a("s_add_u32 s47, s47, s39")
    a("s_lshl_b32 s56, s47, 7")
    a("s_lshl_b32 s57, s46, 1")
    a("s_add_u32 s56, s56, s57")
    a("s_lshl_b32 s60, s56, 11")
    FS = opt.get("fs", 3)
    GB = WS_G if FS == 3 else WS_WOF
    a(f"s_lshl_b32 s55, s56, {FS - 1}")
    a(f"s_add_u32 s55, s55, {GB}")
    a("s_lshl_b32 s56, s47, 19")
    a("s_lshl_b32 s57, s46, 13")
    a("s_add_u32 s65, s56, s57")
    a("s_lshl_b32 s56, s37, 17")
    a("s_lshl_b32 s57, s38, 12")
    a("s_add_u32 s61, s56, s57")
    a(f"s_add_u32 s61, s61, {WS_SLOT}")
    a("s_lshl_b32 s57, s36, 14")
    a("s_add_u32 s62, s61, s57")
    a("v_lshrrev_b32 v27, 4, v1")
    a("v_lshlrev_b32 v27, 4, v27")
    a("v_and_b32 v30, 7, v1")
    a("v_lshl_add_u32 v30, v30, 14, v27")
    a("s_lshl_b32 s63, s37, 3")
    for i in range(4):
        a(f"v_mov_b32 v{32+i}, -1")
    a("v_lshlrev_b32 v38, 7, v1")
    a("v_mov_b32 v28, 1")
    a("v_mov_b32 v29, 0")
    sent = [[("vm", "buffer_store_dwordx4 v[32:35], v26, s[24:27], s62 offen sc1", "S")],
            [("vm", "buffer_store_dwordx4 v[32:35], v26, s[24:27], s62 offen offset:1024 sc1", "S")],
            [("vm", "buffer_store_dwordx4 v[32:35], v27, s[24:27], s62 offen offset:2048 sc1", "S")],
            [("vm", "buffer_store_dwordx2 v[32:33], v29, s[24:27], s55 offen sc1", "S")]]
    NS = opt.get("spec", 0)
    if NS:
        a("s_lshl_b32 s56, s2, 2")
        a("s_add_u32 s56, s56, s38")
        a("s_lshr_b32 s57, s56, 4")
        a("s_lshl_b32 s57, s57, 17")
        a("s_and_b32 s56, s56, 15")
        a(f"s_mul_i32 s56, s56, {NS*512}")
        a("s_add_u32 s3, s56, s57")
        a("s_add_u32 s3, s3, 65536")
        for k in range(NS // 2):
            sent.append([("vm", f"buffer_store_dwordx4 v[32:35], v26, s[24:27], s3 offen offset:{k*1024} sc1", "S")])
    if opt.get("sent_pro"):
        emit(sent)
    a("v_and_b32 v21, 15, v1")
    a("v_lshrrev_b32 v22, 4, v1")
    a("v_bfe_u32 v23, v1, 1, 3")
    a("v_xor_b32 v23, v23, v22")
    a("v_lshlrev_b32 v23, 4, v23")
    a("v_lshl_add_u32 v23, v21, 7, v23")
    a("s_lshl_b32 s56, s39, 14")
    a("v_add_u32 v16, s56, v23")
    a("v_xor_b32 v17, 64, v16")
    a("v_bfe_u32 v23, v1, 2, 2")
    a("v_lshl_add_u32 v24, v22, 3, v23")
    a("v_lshlrev_b32 v24, 7, v24")
    a("v_bfe_u32 v25, v1, 1, 1")
    a("s_lshl_b32 s56, s40, 2")
    a("v_or_b32 v25, s56, v25")
    a("v_and_b32 v36, 2, v23")
    a("v_lshlrev_b32 v36, 1, v36")
    a("v_xor_b32 v25, v25, v36")
    a("v_and_b32 v36, 1, v22")
    a("v_lshlrev_b32 v36, 1, v36")
    a("v_xor_b32 v25, v25, v36")
    a("v_lshl_add_u32 v24, v25, 4, v24")
    a("v_and_b32 v36, 1, v1")
    a("v_lshl_add_u32 v24, v36, 3, v24")
    a("v_xor_b32 v25, 32, v24")
    for s in range(3):
        a(f"v_add_u32 v{18+2*s}, {WB[s]}, v24")
        a(f"v_add_u32 v{19+2*s}, {WB[s]}, v25")
    a(f"v_mov_b32 v36, 0x{f2u(EPS):08x}")
    a(f"v_mov_b32 v37, v36")
    for rt in range(8):
        for r in range(0, 16, 2):
            a(f"v_pk_mov_b32 {vr(acc(rt, 0) + r, 2)}, v[36:37], v[36:37]")
    if opt.get("wpace", 6):
        a("s_lshl_b32 s56, s2, 2")
        a("s_add_u32 s56, s56, s38")
        a("s_bitcmp1_b32 s56, 3")
        a("s_cselect_b32 s84, s8, s6")
        a("s_cselect_b32 s85, s9, s7")
        a("s_and_b32 s85, s85, 0xffff")
        a(f"s_mov_b32 s86, {1024*3072*2}")
        a("s_mov_b32 s87, 0x00020000")
        a("s_lshr_b32 s57, s56, 4")
        a(f"s_add_u32 s57, s57, {64*opt.get('wpace', 6)}")
        a("s_mul_i32 s73, s57, 6144")
        a("s_and_b32 s57, s56, 7")
        a("s_mul_i32 s57, s57, 768")
        a("s_add_u32 s73, s73, s57")
        pass
    PRE = opt.get("pre", "W1")
    pre_list = {"none": [], "W1": dmaW(1), "W1X1": dmaW(1) + dmaX(1)}[PRE]
    if opt.get("pre0"):
        pre_list = pre_list[6:]
    if opt.get("pre_first"):
        emit(pre_list); pre_list = []
    ET = opt.get("etouch", 1)
    if ET == 1:
        a("s_lshl_b32 s56, s2, 2")
        a("s_add_u32 s56, s56, s38")
        a("s_lshr_b32 s57, s56, 4")
        a("s_lshl_b32 s57, s57, 3")
        a("s_and_b32 s58, s56, 7")
        a("s_add_u32 s57, s57, s58")
        a(f"s_add_u32 s57, s57, {opt.get('et_row0', 0)}")
        a(f"s_cmp_lt_u32 s57, {64*opt.get('wpace', 6)}")
        a("s_cselect_b32 s57, s57, 1024")
        a("s_mul_i32 s57, s57, 6144")
        a("v_lshlrev_b32 v40, 10, v1")
        a("s_mov_b64 exec, 0x3f")
        vq.issue("buffer_load_dword v39, v40, s[84:87], s57 offen offset:384", "T")
        a("s_mov_b64 exec, -1")
    if ET == 2:
        for st in range(opt.get("et0", 2), opt.get("wpace", 6)):
            a(f"s_sub_u32 s57, s73, {(opt.get('wpace', 6) - st)*64*6144}")
            a("s_mov_b64 exec, 0x3f")
            vq.issue("buffer_load_dword v39, v38, s[84:87], s57 offen", "T")
            a("s_mov_b64 exec, -1")
    if opt.get("ctouch", 1):
        a("s_getpc_b64 s[56:57]")
        a.label("K_CT")
        a(f"s_sub_u32 s56, s56, K_CT-{KNAME}")
        a("s_subb_u32 s57, s57, 0")
        a("s_mov_b64 s[88:89], s[56:57]")
        a("s_lshr_b32 s58, s2, 3")
        a("s_lshl_b32 s58, s58, 2")
        a("s_add_u32 s58, s58, s38")
        a("s_lshl_b32 s79, s58, 7")
        a("s_mul_i32 s58, s58, 384")
        a("v_add_u32 v40, s58, v38")
        a(f"v_min_u32 v40, K_LAST-{KNAME}, v40")
        a("s_mov_b64 exec, 7")
        vq.issue("global_load_dword v39, v40, s[56:57]", "T")
        a("s_mov_b64 exec, -1")
    emit(pre_list)
    if opt.get("xsp", 0x3c):
        m = opt.get("xsp", 0x3c)
        emit([[f"s_mov_b32 exec_lo, 0x{m | (m << 16):x}", "s_mov_b32 exec_hi, 0", ("vm", "buffer_load_dword v39, v38, s[16:19], s60 offen", "T"), "s_mov_b64 exec, -1"]])
    stamp(a, opt, 1)

    def rdW(t):
        ops = []
        for ct in range(6):
            for ks in range(2):
                for sub in range(2):
                    r = fW(t, ct, ks) + 2 * sub
                    ops.append(("ds", f"ds_read_b64_tr_b16 {ar(r, 2)}, v{18 + 2*(t % 3) + (ct & 1)} offset:{(ct >> 1)*8192 + ks*4096 + sub*512}"))
        return ops
    def rdX(t, rt, dst):
        return [("ds", f"ds_read_b128 {ar(dst(ks))}, v{16+ks} offset:{XB[t % 2] + rt*2048}") for ks in range(2)]
    def mf(t, rt, cts, X):
        out = []
        for ct in cts:
            for ks in range(2):
                W = ar(fW(t, ct, ks))
                A, B = (W, ar(X(ks))) if ct < 2 else (ar(X(ks)), W)
                c = vr(acc(rt, ct))
                cin = "0" if (t == 0 and ks == 0 and ct >= 4) else c
                out.append(f"{MF} {c}, {A}, {B}, {cin}")
        return out
    DEFER = opt.get("defer", 2)
    HST = opt.get("hst", 7 if opt.get("spec", 0) else 5)
    DSP = opt.get("dma_per_block", 2)
    IL = opt.get("il", 1)
    def cts_of(t):
        if IL and t == 15:
            return [2, 3]
        return [2, 3, 4, 5] if t >= 16 - DEFER else [0, 1, 2, 3, 4, 5]
    def Xreg(t, rt): return (lambda ks: fXR(rt, ks)) if t == 15 else (lambda ks: fX(rt % 2, ks))
    def blocks2(seq, pend, wreads, front=None, valu=()):
        CAP = opt.get("cap", 2)
        VC = opt.get("vcost", 2)
        nbs = [len(cts_of(t)) * 2 for t, _ in seq]
        starts = [sum(nbs[:i]) for i in range(len(seq))]
        G = sum(nbs)
        load = [0] * (G + 64)
        fill = {}
        def cost(x):
            if isinstance(x, tuple):
                return VC if x[0] == "vm" else (1 if x[0] == "ds" else 0)
            return 0 if x.endswith(":") else 1
        def place(g, grp, lim=None):
            c = sum(cost(x) for x in grp)
            lim = G - 1 if lim is None else lim
            g0 = g
            while g < lim and load[g] + min(c, CAP) > CAP:
                g += 1
            g = min(g, lim)
            load[g] += c
            fill.setdefault(g, []).extend(grp)
            return g
        if front:
            fill[0] = list(front); load[0] = 99
        for n, (t, rt) in enumerate(seq):
            if rt < 7: nx = rdX(t, rt + 1, Xreg(t, rt + 1))
            elif t < 15: nx = rdX(t + 1, 0, Xreg(t + 1, 0))
            else: nx = []
            for k, x in enumerate(nx):
                fill.setdefault(starts[n] + k, []).append(x); load[starts[n] + k] += 1
            if n: load[starts[n] - 1] += 1
        stream = []
        for grp in pend:
            atomic = any(isinstance(x, str) and ("exec" in x or x.endswith(":") or "cbranch" in x) for x in grp)
            if atomic: stream.append((grp, True))
            else:
                for x in grp: stream.append(([x], isinstance(x, tuple) and x[0] == "vm"))
        nv = sum(1 for _, v in stream if v)
        if nv:
            step = min(max(nbs) / DSP, (G - 3) / nv)
            pos = 2.0; last = 0
            for idx, (grp, isv) in enumerate(stream):
                if isv:
                    last = place(max(last, int(pos)), grp) ; pos = max(pos + step, last + 1.0)
                    last_v = last
                else:
                    nxt_v = idx + 1 < len(stream) and (stream[idx + 1][1] or not stream[idx+1][1]) and "m0" in grp[0]
                    tgt = max(last, int(pos) - 1) if nxt_v else last
                    last = place(tgt, grp)
                    if nxt_v: pos = max(pos, last + 1.0)
        ok = [starts[n] + g for n, (t, rt) in enumerate(seq) if rt < 7 for g in range(nbs[n])]
        if wreads:
            WEND = opt.get("wend", 8)
            ok2 = ok[:max(len(wreads) // 2, len(ok) - WEND)]
            last = ok2[0]
            for k, x in enumerate(wreads):
                last = place(max(last, ok2[(k * len(ok2)) // len(wreads)]), [x], lim=ok[-1])
        valu = [x if isinstance(x, list) else [x] for x in valu]
        last = 0
        for k, grp in enumerate(valu):
            last = place(max(last, (k * (G - 4)) // len(valu)), grp)
        for n, (t, rt) in enumerate(seq):
            lq.need(regs_of(ar(Xreg(t, rt)(0), 8)))
            weave(mf(t, rt, cts_of(t), Xreg(t, rt)), {g - starts[n]: v for g, v in fill.items() if starts[n] <= g < starts[n] + nbs[n]})

    def blocks(seq, pend, wreads, front=None, valu=()):
        if opt.get("sched2", 1):
            return blocks2(seq, pend, wreads, front, valu)
        pend = list(pend); wreads = list(wreads); valu = list(valu)
        for n, (t, rt) in enumerate(seq):
            cts = cts_of(t)
            nb = len(cts) * 2
            fill = {}
            if rt < 7:
                nx = rdX(t, rt + 1, Xreg(t, rt + 1))
            elif t < 15:
                nx = rdX(t + 1, 0, Xreg(t + 1, 0))
            else:
                nx = []
            items = [[x] for x in nx]
            left_w = len([1 for (_, r) in seq[n:] if r < 7])
            if rt < 7 and wreads:
                k = -(-len(wreads) // left_w)
                items += [[x] for x in wreads[:k]]
                wreads = wreads[k:]
            if n == 0 and front:
                fill[0] = list(front)
            spread(fill, items, 0, nb - 1)
            k = min(len(pend), max(DSP, -(-len(pend) // (len(seq) - n))))
            spread(fill, pend[:k], 1, nb)
            pend = pend[k:]
            k = -(-len(valu) // (len(seq) - n))
            spread(fill, [x if isinstance(x, list) else [x] for x in valu[:k]], 0, nb)
            valu = valu[k:]
            weave(mf(t, rt, cts, Xreg(t, rt)), fill)
        assert not pend and not wreads and not valu

    vq.need("W0", "X0a")
    a("s_barrier")
    stamp(a, opt, 2)
    stamp(a, opt, 25, real=True)
    w0 = rdW(0)
    for x in w0[:4] + rdX(0, 0, lambda ks: fX(0, ks)) + w0[4:13]:
        put(x)
    rest0 = ([] if PRE != "none" else dmaW(1)) + ([] if PRE == "W1X1" else dmaXh(1, 0)) + dmaW(2) + ([] if PRE == "W1X1" else dmaXh(1, 1))
    k0 = min(len(rest0), opt.get("k0", 10))
    blocks([(0, r) for r in range(3)], rest0[:k0], [], front=w0[13:])
    vq.need("W1", "X0b", extra="lgkmcnt(0)")
    lq.drained()
    a("s_barrier")
    x0 = []
    if opt.get("xs0"):
        m = opt["xs0"]
        x0 = [[f"s_mov_b32 exec_lo, 0x{m | (m << 16):x}", "s_mov_b32 exec_hi, 0", ("vm", "buffer_load_dword v39, v38, s[16:19], s60 offen", "T"), "s_mov_b64 exec, -1"]]
    blocks([(0, r) for r in range(3, 7)], rest0[k0:] + dmaXh(2, 0) + dmaW(3) + x0, rdW(1))

    def window1(t, extra=(), last=False, valu=(), first=()):
        ABL[0] = opt.get("abl", "") if 1 <= t <= 12 else ""
        vq.need(f"X{t+1}a", f"X{t+1}b", f"W{t+2}", *( ["S"] if t == HST else []), extra="lgkmcnt(0)")
        lq.drained()
        a("s_barrier")
        if opt.get("wstamps"):
            stamp(a, opt, 32 + t)
        pend = list(first)
        if t + 2 <= 15:
            pend += dmaX(t + 2) if t > 0 else dmaXh(2, 1)
        if t + 4 <= 15:
            pend += dmaW(t + 4)
        pend += list(extra)
        seq = [(t, 7)] + [(t + 1, r) for r in range(8 if last else 7)]
        blocks(seq, pend, rdW(t + 2) if t + 2 <= 15 else [], valu=valu)

    def window(t, extra=(), last=False, valu=(), first=()):
        if not opt.get("mid", 0):
            return window1(t, extra, last, valu, first)
        vq.need(f"X{t+1}a", f"W{t+2}", *( ["S"] if t == HST else []), extra="lgkmcnt(0)")
        lq.drained()
        a("s_barrier")
        if opt.get("wstamps"):
            stamp(a, opt, 32 + t)
        pend = list(first)
        if t + 2 <= 15:
            pend += dmaXh(t + 2, 1)
        wd = dmaW(t + 4) if t + 4 <= 15 else []
        pend += wd[:4]
        wr = rdW(t + 2) if t + 2 <= 15 else []
        valu = list(valu); extra = list(extra)
        nv = len(valu) // 2
        ne = len(extra) // 2 if last else 0
        blocks([(t, 7)] + [(t + 1, r) for r in range(3)], pend + extra[:ne], wr[:10], valu=valu[:nv])
        vq.need(f"X{t+1}b")
        lq.need(regs_of(ar(Xreg(t + 1, 3)(0), 8)))
        a("s_barrier")
        pend = []
        if t + 3 <= 15:
            pend += dmaXh(t + 3, 0)
        if wd:
            wd[4] = [f"s_add_u32 m0, s49, {WB[(t + 4) % 3] + 4096}"] + wd[4][1:]
        pend += wd[4:] + extra[ne:]
        blocks([(t + 1, r) for r in range(3, 8 if last else 7)], pend, wr[10:], valu=valu[nv:])

    hs = ["s_cmp_lg_u32 s38, 0", "s_cbranch_scc1 K_NOATOM", "s_mov_b64 exec, 1",
          "buffer_atomic_add v28, v29, s[28:31], s63 offen sc1", "s_mov_b64 exec, -1", "K_NOATOM:"]
    G = 64
    gate = [("needvm", ["G"]), "v_mov_b32 v38, 0", "v_mov_b32 v39, 0"]
    for i in range(8):
        gr = lambda j: acc(j // 4, 1) + j % 4
        gate.append(f"v_dot2_f32_bf16 v38, v{gr(i)}, v{gr(16+i)}, v38")
        gate.append(f"v_dot2_f32_bf16 v39, v{gr(8+i)}, v{gr(16+i)}, v39")
    for ctrl in ("quad_perm:[1,0,3,2]", "quad_perm:[2,3,0,1]", "row_half_mirror", "row_mirror"):
        for r in (38, 39):
            gate.append(f"v_add_f32_dpp v{r}, v{r}, v{r} {ctrl} row_mask:0xf bank_mask:0xf")
    gate2 = []
    for r in (38, 39):
        for k, ln in enumerate((0, 16, 32, 48)):
            gate2.append(f"v_readlane_b32 s{4 + (r-38)*4 + k}, v{r}, {ln}")
    for r, s0 in ((38, 4), (39, 8)):
        gate2 += [f"v_mov_b32 v{r}, s{s0}", f"v_add_f32 v{r}, s{s0+1}, v{r}", f"v_add_f32 v{r}, s{s0+2}, v{r}", f"v_add_f32 v{r}, s{s0+3}, v{r}"]
    for ops in (["v_cvt_pk_bf16_f32 v{r}, v{r}, v{r}", "v_and_b32 v{r}, 0xffff0000, v{r}", "v_mul_f32 v{r}, 0x%08x, v{r}" % f2u(-LOG2E),
                 "v_exp_f32 v{r}, v{r}", "v_add_f32 v{r}, 1.0, v{r}", "v_rcp_f32 v{r}, v{r}", "v_cvt_pk_bf16_f32 v{r}, v{r}, v{r}",
                 "v_and_b32 v{r}, 0xffff0000, v{r}"]):
        for r in (38, 39):
            gate2.append(ops.format(r=r))

    LM = opt.get("lm", 2)
    p2 = ["s_and_b32 s56, s2, 7", "s_lshr_b32 s57, s2, 3",
          f"s_and_b32 s50, s56, {(16 >> LM) - 1}", f"s_lshl_b32 s50, s50, {LM}", f"s_and_b32 s58, s57, {(1 << LM) - 1}", "s_add_u32 s50, s50, s58",
          f"s_lshr_b32 s51, s56, {4 - LM}", f"s_lshl_b32 s51, s51, {5 - LM}", f"s_lshr_b32 s58, s57, {LM}", "s_add_u32 s51, s51, s58",
          ["s_cmp_lt_u32 s38, 2", "s_cselect_b32 s80, s74, s76", "s_cselect_b32 s81, s75, s77"],
          "s_and_b32 s81, s81, 0xffff", f"s_mov_b32 s82, {1024*1024*2}", "s_mov_b32 s83, 0x00020000",
          "s_lshl_b32 s52, s39, 20", "s_lshl_b32 s56, s51, 7", "s_add_u32 s52, s52, s56",
          "s_lshl_b32 s53, s50, 19", "s_lshl_b32 s56, s38, 17", "s_add_u32 s53, s53, s56",
          f"s_lshl_b32 s56, s50, {6 + FS}", f"s_lshl_b32 s57, s38, {4 + FS}", "s_add_u32 s56, s56, s57", f"s_add_u32 s54, s56, {GB}",
          "v_lshrrev_b32 v48, 3, v1", "v_and_b32 v49, 7, v1", "v_bfe_u32 v50, v1, 4, 1", "v_lshlrev_b32 v50, 2, v50",
          "v_xor_b32 v49, v49, v50", "v_bfe_u32 v50, v1, 5, 1", "v_lshlrev_b32 v50, 1, v50", "v_xor_b32 v49, v49, v50",
          "v_lshlrev_b32 v49, 4, v49", "v_lshl_add_u32 v40, v48, 11, v49"]
    p2 += [f"v_add_u32 v{40+i}, {i*(8*2048 - 1024)}, v40" for i in range(1, 4)]
    HS = opt.get("halfst", 1)
    p2 += ["s_mul_i32 s64, s38, 6144" if HS else "s_lshl_b32 s64, s38, 12", f"s_add_u32 s64, s64, {EX}"]
    p2b = ["v_lshrrev_b32 v48, 4, v1", "v_bfe_u32 v49, v1, 2, 2", "v_lshl_add_u32 v50, v48, 2, v49", "v_lshlrev_b32 v50, 7, v50",
           "v_bfe_u32 v51, v1, 1, 1", "v_and_b32 v52, 2, v49", "v_lshlrev_b32 v52, 1, v52", "v_xor_b32 v51, v51, v52",
           "v_and_b32 v52, 1, v48", "v_lshlrev_b32 v52, 1, v52", "v_xor_b32 v51, v51, v52", "v_lshl_add_u32 v50, v51, 4, v50",
           "v_and_b32 v52, 1, v1", "v_lshl_add_u32 v50, v52, 3, v50", "v_add_u32 v44, s64, v50"]
    p2b += [f"v_xor_b32 v{44+ct}, {ct*32}, v44" for ct in range(1, 4)]
    p2b += ["v_lshlrev_b32 v53, 3, v1"]
    p2c = [f"v_mov_b32 v{12+i}, v{40+i}" for i in range(4)] + ["s_add_u32 s56, s48, 0x10000", "v_add_u32 v32, s56, v50"]
    p2c += [f"v_xor_b32 v{32+ct}, {ct*32}, v32" for ct in range(1, 4)]
    SLOT = {}
    RES = {0: 176, 1: 192, 2: 208, 3: 224, 4: 240, 5: 16, 6: 32, 7: 64}
    AQ = [q for q in range(0, 256, 4) if not any(r <= q < r + 16 for r in RES.values())]
    assert len(AQ) == 32
    def dmaB(b, slot):
        SLOT[b] = slot
        ops = []
        for j in range(4):
            off = f" offset:{j*1024}" if j else ""
            m0 = "s_mov_b32 m0, s64" if slot is None else f"s_add_u32 m0, s48, {slot}"
            ops.append(([m0] if j == 0 else []) +
                       [("vm", f"buffer_load_dwordx4 v{(40 if slot is None else 12)+j}, s[80:83], s52 offen{off} lds", f"B{b}")])
        ops[-1].append("s_add_u32 s52, s52, 65536")
        return ops
    def breads(b, dst, agpr):
        sl = SLOT[b]
        base = 44 if sl is None else (32 if sl >= 65536 else 16)
        o = 0 if sl is None else sl % 65536
        return [("ds", f"ds_read_b64_tr_b16 {(ar if agpr else vr)(dst + ct*4 + 2*sub, 2)}, v{base+ct} offset:{o + sub*2048}")
                for ct in range(4) for sub in range(2)]
    PD = opt.get("wpace", 6)
    def wp():
        return ["s_mov_b64 exec, 0x3f", ("vm", "buffer_load_dword v39, v38, s[84:87], s73 offen", "T"), "s_mov_b64 exec, -1",
                f"s_add_u32 s73, s73, {64*6144}"]
    wt_setup = [["s_bitcmp1_b32 s38, 0", "s_cselect_b32 s92, s76, s74", "s_cselect_b32 s93, s77, s75"], "s_and_b32 s93, s93, 0xffff",
                f"s_mov_b32 s94, {1024*1024*2}", "s_mov_b32 s95, 0x00020000",
                "s_lshl_b32 s78, s2, 1", "s_add_u32 s78, s78, s40", "s_lshl_b32 s78, s78, 12"]
    WTN, WT0 = opt.get("wtn", 4), opt.get("wt0", 9)
    def wt(k):
        n = 32 // WTN
        return [f"s_mov_b64 exec, 0x{(1 << n) - 1:x}",
                ("vm", f"buffer_load_dword v39, v38, s[92:95], s78 offen offset:{k*n*128}", "T"), "s_mov_b64 exec, -1"]
    xs = opt.get("xsplit", {0: 0xc0, 1: 0x300, 2: 0xc00, 3: 0x3000, 4: 0xc000})
    ST0 = opt.get("st0", 2 if HS else 3)
    sw = opt.get("sent_w", [1, 2, 3, 3, 4, 5]) if not opt.get("sent_pro") else [-1] * 6
    for t in range(15):
        kw = {"extra": [], "valu": []}
        if xs and t in xs:
            m = xs[t]
            kw["extra"] += [[f"s_mov_b32 exec_lo, 0x{m | (m << 16):x}", "s_mov_b32 exec_hi, 0", ("vm", "buffer_load_dword v39, v38, s[16:19], s60 offen", "T"), "s_mov_b64 exec, -1"]]
        if PD and t + PD <= 15: kw["extra"] += [wp()]
        if t == ST0 - 2: kw["valu"] += p2
        if t == ST0 - 1: kw["valu"] += p2b
        for k in range(len(sent)):
            if sw[k] == t: kw["extra"] += [sent[k]]
        if t == HST: kw["extra"] += [hs]
        TL = opt.get("tlb", "")
        if TL and t == opt.get("tlb_w", 12):
            grp = ["s_mov_b64 exec, 1"]
            if "o" in TL: grp.append(("vm", "buffer_load_dword v39, v29, s[24:27], s65 offen sc1", "T"))
            if "a" in TL: grp.append(("vm", "buffer_load_dword v39, v29, s[24:27], s53 offen sc1", "T"))
            if "A" in TL:
                grp += ["s_mov_b64 exec, 3", "v_lshlrev_b32 v54, 16, v1", ("vm", "buffer_load_dword v39, v54, s[24:27], s53 offen sc1", "T"), "s_mov_b64 exec, 1"]
            if "u" in TL:
                grp += ["s_lshl_b32 s59, s50, 18", "s_lshl_b32 s58, s38, 16", "s_add_u32 s59, s59, s58", "v_mov_b32 v54, s59",
                        ("vm", "global_load_dword v39, v54, s[70:71]", "T")]
            kw["extra"] += [grp + ["s_mov_b64 exec, -1"]]
        for (tw, lab, nl) in opt.get("ct2", [(4, "K_W7", 1), (12, "K_TAIL", 2)]):
            if t == tw:
                kw["extra"] += [[f"s_add_u32 s59, s79, {lab}-{KNAME}", "v_lshlrev_b32 v54, 14, v1", "v_add_u32 v54, s59, v54",
                                 f"v_min_u32 v54, K_LAST-{KNAME}, v54", f"s_mov_b64 exec, {(1 << nl) - 1}",
                                 ("vm", "global_load_dword v39, v54, s[88:89]", "T"), "s_mov_b64 exec, -1"]]
        a.label(f"K_W{t}")
        if t == WT0 - 1: kw["valu"] += wt_setup
        if WT0 <= t < WT0 + WTN: kw["extra"] += [wt(t - WT0)]
        LT = opt.get("lt")
        if LT:
            if t == min(LT) - 1:
                kw["valu"] += ["v_lshrrev_b32 v55, 3, v1", "v_lshlrev_b32 v55, 16, v55", "v_and_b32 v56, 7, v1", "v_lshl_add_u32 v55, v56, 7, v55",
                               "s_lshl_b32 s3, s39, 20", "s_lshr_b32 s56, s2, 3", "s_lshl_b32 s56, s56, 11", "s_add_u32 s3, s3, s56",
                               "s_and_b32 s56, s2, 4", "s_lshl_b32 s56, s56, 8", "s_add_u32 s3, s3, s56"]
            if t in LT:
                b0, nb_ = LT[t]
                kw["extra"] += [[f"s_add_u32 s56, s3, {b0*65536}", f"s_mov_b32 exec_lo, 0x{(1 << (8*nb_)) - 1:x}", "s_mov_b32 exec_hi, 0",
                                 ("vm", "buffer_load_dword v39, v55, s[80:83], s56 offen", "T"), "s_mov_b64 exec, -1"]]
        if HS:
            h = t - ST0
            if 0 <= h < 10:
                sub = h % 2
                grp = []
                for j in (2*sub, 2*sub + 1):
                    off = f" offset:{j*1024}" if j else ""
                    grp.append(([f"s_add_u32 m0, s64, {(h % 3)*2048 - sub*2048}"] if j % 2 == 0 else []) +
                               [("vm", f"buffer_load_dwordx4 v{40+j}, s[80:83], s52 offen{off} lds", f"H{h}")])
                if sub:
                    grp[-1].append("s_add_u32 s52, s52, 65536")
                kw["extra"] += grp
            h = t - ST0 - 2
            if 0 <= h < 10:
                kw["valu"] += [("needvm", [f"H{h}"])] + [("ds", f"ds_read_b64_tr_b16 {ar(RES[h // 2] + ct*4 + 2*(h % 2), 2)}, v{44+ct} offset:{(h % 3)*2048}") for ct in range(4)]
        elif ST0 <= t < ST0 + 10:
            b = (t - ST0) // 2
            if (t - ST0) % 2 == 0:
                kw["extra"] += dmaB(b, None)
            else:
                kw["valu"] += [[]] * 12 + [("needvm", [f"B{b}"])] + breads(b, RES[b], True)
        if t == 13:
            kw["valu"] += p2c
            kw["extra"] += [[("vm", "buffer_load_dword v28, v53, s[28:31], 0 offen sc1", "C")]]
        if t == 14:
            b58 = dmaB(5, 65536) + dmaB(6, 65536 + 4096) + dmaB(7, 98304) + dmaB(8, 98304 + 4096)
            NW14 = opt.get("nw14", 10) if IL else 16
            kw["extra"] += b58[:NW14]; b58 = b58[NW14:]
            kw["last"] = True
            if IL:
                kw["valu"] += [f"s_mov_b32 s66, 0x{f2u(LOG2E):08x}", f"s_mov_b32 s67, 0x{f2u(LOG2E):08x}",
                               f"v_mov_b32 v20, 0x{f2u(-EPS * LOG2E):08x}", "v_mov_b32 v21, v20"] + [f"v_mov_b32 v{22+i}, 0x3f803f80" for i in range(4)]
                kw["valu"] += [["s_lshl_b32 s56, s38, 12", f"s_add_u32 s56, s56, {EX}", "v_add_u32 v10, s56, v26"], "v_xor_b32 v11, 4096, v10"]
                DSP = 1
        window(t, **kw)
    stamp(a, opt, 3)
    stamp(a, opt, 26, real=True)

    a.label("K_TAIL")
    if not IL:
        a(f"s_mov_b32 s66, 0x{f2u(LOG2E):08x}")
        a(f"s_mov_b32 s67, 0x{f2u(LOG2E):08x}")
        a(f"v_mov_b32 v20, 0x{f2u(-EPS * LOG2E):08x}")
        a("v_mov_b32 v21, v20")
        for i in range(4):
            a(f"v_mov_b32 v{22+i}, 0x3f803f80")
    KV, ZC = 40, 56
    T0 = 2
    MSL = opt.get("mslots", [4, 6, 8, 10, 12, 14, 17, 24])
    def phi8(b0, b1, dst, inter=(), mfs=()):
        src = [b0, b0 + 2, b1, b1 + 2]
        L = []
        for i, s in enumerate(src):
            L.append(f"v_pk_fma_f32 {vr(T0 + 2*i, 2)}, {vr(s, 2)}, s[66:67], v[20:21]")
        for i in range(8):
            L.append(f"v_exp_f32_e64 v{T0+i}, v{T0+i} clamp")
        for s in src:
            L.append(f"v_max_f32 v{s}, v36, v{s}")
            L.append(f"v_max_f32 v{s+1}, v36, v{s+1}")
        for i, s in enumerate(src):
            L.append(f"v_pk_add_f32 {vr(T0 + 2*i, 2)}, {vr(s, 2)}, {vr(T0 + 2*i, 2)}")
        for i in range(4):
            L.append(f"v_cvt_pk_bf16_f32 v{dst+i}, v{T0+2*i}, v{T0+2*i+1}")
        pos = {0: [], 8: [], 18: []}
        for n, it in enumerate(inter):
            pos[(0, 8, 18)[(n * 3) // max(len(inter), 1)]].append(it)
        mfs = list(mfs)
        assert len(mfs) <= len(MSL)
        for n, x in enumerate(L):
            if n in pos:
                emit(pos[n])
            if n in MSL and mfs:
                m_ = mfs.pop(0)
                lq.need(Ins(m_).srcAB)
                a(m_)
            a(x)
    def pack8(b0, b1, dst):
        for i, s in enumerate([b0, b0 + 2, b1, b1 + 2]):
            a(f"v_cvt_pk_bf16_f32 v{dst+i}, v{s}, v{s+1}")
    t1 = {2: [[("needvm", ["B7"])] + breads(5, RES[5], True), breads(6, RES[6], True), breads(7, RES[7], True)]}
    rf = dmaB(9, SLOT[5]) + dmaB(10, SLOT[6]) + dmaB(11, SLOT[7])
    rf[0] = ["s_waitcnt lgkmcnt(0)"] + rf[0]
    for k in range(4):
        t1[3 + k] = rf[3*k:3*k+3]
    BQ = opt.get("bq", 0)
    if BQ:
        t1 = {}
    def kvz(m):
        out = []
        for dt in range(2):
            c = vr(ZC + dt*4)
            out.append(f"{MF} {c}, {vr(acc(2*m, 2+dt))}, v[22:25], {'0' if m == 0 else c}")
            for et in range(2):
                c = vr(KV + dt*8 + et*4)
                out.append(f"{MF} {c}, {vr(acc(2*m, 2+dt))}, {vr(acc(2*m, 4+et))}, {'0' if m == 0 else c}")
        return out
    if IL:
        h = -(-len(b58) // 2)
        t1 = {0: b58[:h], 1: b58[h:], 3: t1[2]}
        rf[0] = rf[0][1:]
        rf[0] = [("needds", regs_of(ar(RES[7], 16)))] + rf[0]
        for k in range(4):
            t1[4 + k] = rf[3*k:3*k+3]
        if opt.get("x_nob"):
            t1 = {}
        if opt.get("x_norf"):
            for k in range(4): t1[4 + k] = []
        if opt.get("x_nowait"):
            t1[3][0] = t1[3][0][1:]
        for j in range(8):
            if opt.get("tstamps"):
                stamp(a, opt, 48 + j)
            m, dt = j // 2, j % 2
            if j < 4:
                mfs = mf(15, 2*j, [4, 5], lambda ks: fXR(2*j, ks)) + mf(15, 2*j + 1, [4, 5], lambda ks: fXR(2*j + 1, ks))
            elif j < 7:
                mfs = kvz(j - 4)
            else:
                mfs = []
            phi8(acc(2*m, 2 + dt), acc(2*m + 1, 2 + dt), acc(2*m, 2 + dt), inter=t1.get(j, []), mfs=mfs)
            if 1 <= j <= 4:
                for et in range(2):
                    pack8(acc(2*(j-1), 4 + et), acc(2*(j-1) + 1, 4 + et), acc(2*(j-1), 4 + et))
        if opt.get("tstamps"):
            stamp(a, opt, 56)
        for x in kvz(3):
            a(x)
        a("s_nop 3")
    else:
        for m in range(4):
            for dt in range(2):
                phi8(acc(2*m, 2 + dt), acc(2*m + 1, 2 + dt), acc(2*m, 2 + dt), inter=t1.get(m*2 + dt, []))
        lq.drained()
        kvm = []
        for m in range(4):
            for dt in range(2):
                c = vr(ZC + dt*4)
                kvm.append(f"{MF} {c}, {vr(acc(2*m, 2+dt))}, v[22:25], {'0' if m == 0 else c}")
        for m in range(4):
            for et in range(2):
                pack8(acc(2*m, 4 + et), acc(2*m + 1, 4 + et), acc(2*m, 4 + et))
                a(kvm.pop(0))
        for m in range(4):
            for dt in range(2):
                for et in range(2):
                    c = vr(KV + dt*8 + et*4)
                    a(f"{MF} {c}, {vr(acc(2*m, 2+dt))}, {vr(acc(2*m, 4+et))}, {'0' if m == 0 else c}")
        a("s_lshl_b32 s56, s38, 12")
        a(f"s_add_u32 s56, s56, {EX}")
        a("v_add_u32 v10, s56, v26")
        a("v_xor_b32 v11, 4096, v10")
    a("s_cmp_eq_u32 s39, 0")
    a("s_cbranch_scc1 K_EXW0")
    a(f"ds_write_b128 v10, {vr(ZC)} offset:2048")
    a(f"ds_write_b128 v10, {vr(KV)}")
    a(f"ds_write_b128 v10, {vr(KV+4)} offset:1024")
    a("s_waitcnt lgkmcnt(0)")
    for i in range(0, 8, 2):
        a(f"v_pk_mov_b32 {vr(KV+i, 2)}, {vr(KV+8+i, 2)}, {vr(KV+8+i, 2)} op_sel:[0,1]")
    for i in range(0, 4, 2):
        a(f"v_pk_mov_b32 {vr(ZC+i, 2)}, {vr(ZC+4+i, 2)}, {vr(ZC+4+i, 2)} op_sel:[0,1]")
    a("s_branch K_EXW1")
    a.label("K_EXW0")
    a(f"ds_write_b128 v10, {vr(ZC+4)} offset:2048")
    a("s_nop 2")
    a(f"ds_write_b128 v10, {vr(KV+8)}")
    a(f"ds_write_b128 v10, {vr(KV+12)} offset:1024")
    a("s_waitcnt lgkmcnt(0)")
    a.label("K_EXW1")
    lq.drained()
    if opt.get("tstamps"):
        stamp(a, opt, 57)
    a("s_barrier")
    if opt.get("tstamps"):
        stamp(a, opt, 58)
    a(f"ds_read_b128 {vr(KV+8)}, v11")
    a(f"ds_read_b128 {vr(KV+12)}, v11 offset:1024")
    a(f"ds_read_b128 {vr(ZC+4)}, v11 offset:2048")
    a("s_mov_b32 s56, 0x00010001")
    a("s_mov_b32 s57, 0x00010001")
    a("s_waitcnt lgkmcnt(0)")
    for i in range(0, 8, 2):
        a(f"v_pk_add_f32 {vr(KV+i, 2)}, {vr(KV+i, 2)}, {vr(KV+8+i, 2)}")
    for i in range(0, 4, 2):
        a(f"v_pk_add_f32 {vr(ZC+i, 2)}, {vr(ZC+i, 2)}, {vr(ZC+4+i, 2)}")
    for r in list(range(KV, KV + 8)) + list(range(ZC, ZC + 4)):
        a(f"v_min_u32 v{r}, -2, v{r}")
    vq.issue(f"buffer_store_dwordx4 {vr(KV)}, v26, s[24:27], s62 offen sc1", "P")
    vq.issue(f"buffer_store_dwordx4 {vr(KV+4)}, v26, s[24:27], s62 offen offset:1024 sc1", "P")
    a("s_mov_b64 exec, s[56:57]")
    vq.issue(f"buffer_store_dwordx4 {vr(ZC)}, v27, s[24:27], s62 offen offset:2048 sc1", "P")
    a("s_mov_b64 exec, -1")
    stamp(a, opt, 4)
    vq.need("C")
    a("s_mov_b32 s58, -1")
    a("s_mov_b32 s59, 0")
    a.label("K_HS")
    a("v_cmp_eq_u32 vcc, 8, v28")
    a("s_cmp_eq_u64 vcc, s[58:59]")
    a("s_cbranch_scc1 K_HSOK")
    a("s_sleep 2")
    a("v_lshlrev_b32 v10, 3, v1")
    a("buffer_load_dword v28, v10, s[28:31], 0 offen sc1")
    a("s_waitcnt vmcnt(0)")
    a("s_branch K_HS")
    a.label("K_HSOK")
    PB = [acc(p, 2) for p in range(8)]
    ZG = 48
    def gather_ops():
        ops = []
        for p in range(8):
            for k in range(2):
                ops.append(([f"s_add_u32 s56, s61, {p * 16384}"] if k == 0 else []) +
                           [("vm", f"buffer_load_dwordx4 {vr(PB[p] + 4*k)}, v26, s[24:27], s56 offen offset:{k*1024} sc1", "H")])
        ops.append([("vm", f"buffer_load_dwordx4 {vr(ZG)}, v30, s[24:27], s61 offen offset:2048 sc1", "H")])
        return ops
    def gather(track):
        for op in gather_ops():
            for x in op:
                a(x[1] if isinstance(x, tuple) else x)
    gops = gather_ops()
    if BQ:
        rd = breads(5, RES[5], True) + breads(6, RES[6], True) + breads(7, RES[7], True)
        rf[0] = rf[0][1:]
        rf[0] = [("needds", regs_of(ar(RES[5], 16)))] + rf[0]
        rf[4] = [("needds", regs_of(ar(RES[6], 16)))] + rf[4]
        rf[8] = [("needds", regs_of(ar(RES[7], 16)))] + rf[8]
        qfill = [[("needvm", ["B7"])] + rd[:1]] + [[x] for x in rd[1:]]
        qb = None
    else:
        qb = dmaB(12, 32768) + dmaB(13, 32768 + 4096)
    GQ = opt.get("gather_in_q", 0)
    ILQ = opt.get("ilq", 0)
    if ILQ:
        LA = opt.get("qla", 2)
        def qm(rt):
            return mf(15, rt, [0, 1], lambda ks: fXR(rt, ks)) + mf(14, rt, [0, 1], lambda ks: fX(rt % 2, ks))
        def xr(rt):
            return rdX(14, rt, lambda ks: fX(rt % 2, ks)) if rt < 8 else []
        for x in xr(0):
            put(x)
        for rt in range(LA):
            k = -(-len(qb) // (LA - rt)) if opt.get("qb_front", 1) else 0
            fill = {1: xr(rt + 1)}
            spread(fill, qb[:k], 2, 8); qb = qb[k:]
            weave(qm(rt), fill)
        stamp(a, opt, 13)
        G0, G1 = opt.get("g0", 2), opt.get("g1", 7)
        for rt in range(8):
            inter = []
            if rt + LA < 8:
                inter.append(xr(rt + LA + 1))
            if rt < G0 and qb:
                k = -(-len(qb) // (G0 - rt)); inter += qb[:k]; qb = qb[k:]
            if G0 <= rt < G1:
                k = -(-len(gops) // (G1 - rt)); inter += gops[:k]; gops = gops[k:]
            phi8(acc(rt, 0), acc(rt, 1), acc(rt, 0), inter=inter, mfs=qm(rt + LA) if rt + LA < 8 else [])
        assert not gops and not qb
    else:
        if DEFER >= 2:
            for x in rdX(14, 0, lambda ks: fX(0, ks)):
                put(x)
        for rt in range(8):
            fill = {}
            ms = mf(15, rt, [0, 1], lambda ks: fXR(rt, ks)) if DEFER >= 1 else []
            if DEFER >= 2:
                ms += mf(14, rt, [0, 1], lambda ks: fX(rt % 2, ks))
                if rt < 7:
                    fill[1] = rdX(14, rt + 1, lambda ks: fX((rt + 1) % 2, ks))
            if BQ:
                if rt < 3:
                    spread(fill, qfill[8*rt:8*rt+8], 0, len(ms))
                if rt >= 2:
                    spread(fill, rf[2*(rt-2):2*(rt-2)+2], 2, len(ms))
            else:
                fill.setdefault(2, []).extend(qb[rt])
            per = len(ms) // 4
            first_rt = 8 - -(-GQ // max(per, 1))
            if GQ and rt >= first_rt:
                k = min(per, GQ - (17 - len(gops)))
                spread(fill, gops[:k], 0, len(ms)); gops = gops[k:]
            weave(ms, fill)
        stamp(a, opt, 13)
        GSP = opt.get("gather_span", 7)
        for rt in range(8):
            k = -(-len(gops) // (GSP - rt)) if rt < GSP else 0
            phi8(acc(rt, 0), acc(rt, 1), acc(rt, 0), inter=gops[:k]); gops = gops[k:]
    gate_ld = [[("vm", f"buffer_load_dwordx4 {vr(acc(i, 1))}, v26, s[16:19], s60 offen offset:{i*1024}", "G")] for i in range(4)]
    gate_ld += [[("vm", f"buffer_load_dwordx4 {vr(acc(4 + i, 1))}, v26, s[32:35], 0 offen offset:{i*1024}", "G")] for i in range(2)]
    emit(gate_ld)
    stamp(a, opt, 5)
    S = 40
    vq.need("H")
    a.label("K_SUM")
    for i in range(0, 8, 2):
        a(f"v_pk_add_f32 {vr(S+i, 2)}, {vr(PB[0]+i, 2)}, {vr(PB[1]+i, 2)}")
    for i in range(4):
        a(f"v_add_f32_dpp v{52+i}, v{ZG+i}, v{ZG+i} quad_perm:[1,0,3,2] row_mask:0xf bank_mask:0xf")
    for p in range(2, 8):
        for i in range(0, 8, 2):
            a(f"v_pk_add_f32 {vr(S+i, 2)}, {vr(S+i, 2)}, {vr(PB[p]+i, 2)}")
        if p in (2, 3):
            ctrl = "quad_perm:[2,3,0,1]" if p == 2 else "row_half_mirror"
            for i in range(4):
                a(f"v_add_f32_dpp v{52+i}, v{52+i}, v{52+i} {ctrl} row_mask:0xf bank_mask:0xf")
    a(f"v_pk_add_f32 v[2:3], {vr(S, 2)}, {vr(S+2, 2)}")
    a(f"v_pk_add_f32 v[4:5], {vr(S+4, 2)}, {vr(S+6, 2)}")
    a(f"v_pk_add_f32 v[6:7], v[52:53], v[54:55]")
    a("v_pk_add_f32 v[2:3], v[2:3], v[4:5]")
    a("v_pk_add_f32 v[2:3], v[2:3], v[6:7]")
    a("v_cmp_u_f32 vcc, v2, v3")
    a("s_cbranch_vccz K_GOK")
    regs = [PB[p] + i for p in range(8) for i in range(8)] + [ZG + i for i in range(4)]
    a(f"v_max3_u32 v2, v{regs[0]}, v{regs[1]}, v{regs[2]}")
    regs = regs[3:]
    while regs:
        if len(regs) >= 2:
            a(f"v_max3_u32 v2, v2, v{regs[0]}, v{regs[1]}"); regs = regs[2:]
        else:
            a(f"v_max_u32 v2, v2, v{regs[0]}"); regs = regs[1:]
    a("v_cmp_eq_u32 vcc, -1, v2")
    a("s_cbranch_vccz K_GOK")
    if opt.get("stamps"):
        a("v_readlane_b32 s56, v31, 24")
        a("s_add_u32 s56, s56, 1")
        a("v_writelane_b32 v31, s56, 24")
    gather(False)
    a("s_waitcnt vmcnt(0)")
    a("s_branch K_SUM")
    a.label("K_GOK")
    stamp(a, opt, 6)
    for i in range(4):
        a(f"v_cvt_pk_bf16_f32 v{2+i}, v{S+2*i}, v{S+2*i+1}")
    a("v_cvt_pk_bf16_f32 v6, v52, v53")
    a("v_cvt_pk_bf16_f32 v7, v54, v55")
    a("s_mul_i32 s56, s40, 3072")
    a(f"s_add_u32 s56, s56, {EX2}")
    a("v_add_u32 v11, s56, v26")
    a("s_lshl_b32 s57, s39, 3")
    a("v_add_u32 v10, s57, v11")
    a("ds_write_b64 v10, v[6:7] offset:2048")
    a("ds_write_b64 v10, v[2:3]")
    a("ds_write_b64 v10, v[4:5] offset:1024")
    a("s_waitcnt lgkmcnt(0)")
    lq.drained()
    a("s_barrier")
    OPR = 40
    a(f"ds_read_b128 {vr(OPR+8)}, v11 offset:2048")
    a(f"ds_read_b128 {vr(OPR)}, v11")
    a(f"ds_read_b128 {vr(OPR+4)}, v11 offset:1024")
    a("s_waitcnt lgkmcnt(2)")
    eb = dmaB(14, 0) + dmaB(15, 4096) if opt.get("early14", 1) else []
    for rt in range(8):
        a(f"{MF} {vr(acc(rt, 4))}, {vr(OPR+8)}, {vr(acc(rt, 0))}, 0")
        if eb and rt % 2 == 0:
            emit(eb[:1]); eb = eb[1:]
    a("s_waitcnt lgkmcnt(0)")
    for rt in range(8):
        a(f"{MF} {vr(acc(rt, 2))}, {vr(OPR)}, {vr(acc(rt, 0))}, 0")
        a(f"{MF} {vr(acc(rt, 3))}, {vr(OPR+4)}, {vr(acc(rt, 0))}, 0")
        D = acc(rt, 4)
        a(f"v_add_f32 v{D}, v36, v{D}")
        a(f"v_rcp_f32 v{D}, v{D}")
        if eb and rt % 2 == 0:
            emit(eb[:1]); eb = eb[1:]
    a("s_add_u32 s63, s65, 4096")
    for rt in range(8):
        N, D = acc(rt, 2), acc(rt, 4)
        for r in range(0, 8, 2):
            a(f"v_pk_mul_f32 {vr(N+r, 2)}, {vr(N+r, 2)}, {vr(D, 2)} op_sel_hi:[1,0]")
        for r in range(0, 8, 2):
            a(f"v_cvt_pk_bf16_f32 v{D+4+r//2}, v{N+r}, v{N+r+1}")
        vq.issue(f"buffer_store_dwordx4 {vr(D+4)}, v26, s[24:27], {'s65' if rt < 4 else 's63'} offen offset:{(rt % 4)*1024} sc1", "O")
    stamp(a, opt, 7)
    if BQ:
        emit(dmaB(12, 32768) + dmaB(13, 32768 + 4096))
    if not opt.get("early14", 1):
        emit(dmaB(14, 0) + dmaB(15, 4096))
    for k in range(4):
        a(f"s_add_u32 s56, s38, {k + 1}")
        a("s_and_b32 s56, s56, 3")
        a("s_lshl_b32 s56, s56, 11")
        a(f"v_add_u32 v{2+k}, s56, v26")
    a("v_bfe_u32 v6, v1, 1, 4")
    a(f"v_lshlrev_b32 v6, {FS}, v6")
    a("v_and_b32 v7, 1, v1")
    a("v_lshl_add_u32 v6, v7, 2, v6")
    vq.need("G")
    for x in gate[1:] + gate2:
        a(x)
    srd(a, 16, 70, 2048 * 1024 * 2)
    a("v_add_u32 v7, s48, v26")
    a("v_add_u32 v8, 0x10000, v7")
    for j in range(3):
        a(f"s_xor_b32 s56, s38, {j + 1}")
        a("s_sub_u32 s57, s38, s56")
        a("s_sub_u32 s57, s57, 1")
        a("s_and_b32 s57, s57, 3")
        a("s_lshl_b32 s57, s57, 15")
        a("s_lshl_b32 s56, s56, 13")
        a("s_add_u32 s56, s56, s57")
        a(f"v_add_u32 v{9+j}, s56, v26")
    a("v_and_b32 v24, 15, v1")
    a("v_lshrrev_b32 v25, 4, v1")
    a("v_and_b32 v28, 1, v25")
    a("v_lshlrev_b32 v28, 5, v28")
    a("v_lshrrev_b32 v25, 1, v25")
    a("v_lshl_add_u32 v28, v25, 4, v28")
    FL = opt.get("fullline", 1)
    if FL:
        a("v_and_b32 v24, 7, v1")
        a("v_bfe_u32 v25, v1, 3, 1")
        a("v_lshl_add_u32 v28, v25, 6, v28")
    a("v_lshl_add_u32 v14, v24, 11, v28")
    if FL:
        a("v_add_u32 v15, 0x4000, v14")
    a("s_lshl_b32 s56, s50, 18")
    a("s_lshl_b32 s57, s38, 16")
    a("s_add_u32 s56, s56, s57")
    a("s_lshl_b32 s57, s51, 7")
    a("s_add_u32 s61, s56, s57")
    a(f"s_add_u32 s62, s61, {16*2048}")
    a("s_mov_b32 s60, 0")
    a("s_getpc_b64 s[66:67]")
    a.label("K_PC")
    a("s_add_u32 s66, s66, K_WAIT-K_PC")
    a("s_addc_u32 s67, s67, 0")
    D = opt.get("depth", 4)
    P2 = 128
    def acc2(i, ct): return P2 + (i * 4 + ct) * 4
    def fA(slot, i): return AQ[slot * 8 + i]
    def fB(s_, ct): return 64 + s_ * 16 + ct * 4
    order = list(range(8, 16)) + list(range(8))
    for ct in range(4):
        a(f"v_subrev_u32 v{16+ct}, 0x10000, v{32+ct}")
    vq.need("B8")
    for x in breads(order[0], fB(0, 0), False):
        put(x)
    if opt.get("atouch", 0):
        a("v_lshrrev_b32 v46, 3, v1")
        a("v_lshlrev_b32 v46, 13, v46")
        a("v_and_b32 v47, 7, v1")
        a("v_lshl_add_u32 v46, v47, 7, v46")
        a("s_and_b32 s56, s51, 7")
        a("s_lshl_b32 s56, s56, 10")
        a("v_add_u32 v46, s56, v46")
    EP = opt.get("early_poll", 0) and not NS
    if EP:
        vq.issue("buffer_load_dword v44, v6, s[24:27], s54 offen sc1", "E")
    def flag():
        a("s_mov_b64 exec, 1")
        a("buffer_store_dwordx2 v[38:39], v29, s[24:27], s55 offen sc1")
        a("s_mov_b64 exec, -1")
    FAST = opt.get("fast", 0)
    if not FAST and not NS:
        vq.need("O")
        flag()
        stamp(a, opt, 8)
        if EP:
            a("s_waitcnt vmcnt(1)"); vq.drained()
            a("v_cmp_ne_u32 vcc, -1, v44")
            a("s_lshr_b32 s57, vcc_lo, 1"); a("s_and_b32 s57, s57, vcc_lo"); a("s_or_b32 s60, s60, s57")
        if opt.get("fsleep"):
            a(f"s_sleep {opt['fsleep']}")
        if opt.get("fwait", 1):
            a("s_waitcnt vmcnt(0)"); vq.drained()
        PP = opt.get("pp", 0)
        if PP:
            want = sum(1 << (2*order[k]) for k in range(opt.get("pp_heads", 2)))
            a(f"s_and_b32 s57, s60, 0x{want:x}")
            a(f"s_cmp_eq_u32 s57, 0x{want:x}")
            a("s_cbranch_scc1 K_PPOK")
            for k in range(PP):
                a(f"buffer_load_dword v{48+k}, v6, s[24:27], s54 offen sc1")
                if k < PP - 1:
                    a(f"s_sleep {opt.get('pp_sleep', 3)}")
            a.label("K_PPL")
            for k in range(PP):
                a(f"s_waitcnt vmcnt({PP-1})")
                a(f"v_cmp_ne_u32 vcc, -1, v{48+k}")
                a("s_lshr_b32 s57, vcc_lo, 1"); a("s_and_b32 s57, s57, vcc_lo"); a("s_or_b32 s60, s60, s57")
                a(f"s_and_b32 s57, s60, 0x{want:x}")
                a(f"s_cmp_eq_u32 s57, 0x{want:x}")
                a("s_cbranch_scc1 K_PPOK")
                a(f"buffer_load_dword v{48+k}, v6, s[24:27], s54 offen sc1")
            a("s_branch K_PPL")
            a.label("K_PPOK")
    SC = " sc1" if opt.get("a_sc1", 1) else ""
    NT = opt.get("ntail", 3)
    N0 = 16 - NT
    FR = {}
    for n in range(N0):
        for i in range(8):
            FR[(n, i)] = (n, i)
    seq = [(n, i) for i in range(8) for n in range(N0, 16)]
    for k, f in enumerate(seq):
        FR[f] = (N0 + k // 8, k % 8)
    GRP = {}
    for f, (g, j) in FR.items():
        GRP.setdefault(g, {})[j] = f
    def areg(n, i):
        g, j = FR[(n, i)]
        return AQ[(g % 4) * 8 + j]
    def loadsA(g):
        ops = []
        for j in range(8):
            n, i = GRP[g][j]
            b = order[n]
            if g < N0:
                pre = [f"s_add_u32 s43, s53, {b*8192}"] if j == 0 else []
                so = "s43"
            else:
                pre = [f"s_add_u32 s{4 + m - N0}, s53, {order[m]*8192}" for m in range(N0, 16)] if (g == N0 and j == 0) else []
                so = f"s{4 + n - N0}"
            off = " offset:1024" if i % 2 else ""
            ops.append(pre + [("vm", f"buffer_load_dwordx4 {ar(areg(n, i))}, v{2 + i // 2}, s[24:27], {so} offen{off}{SC}", f"A{n}_{i}")])
        return ops
    def check(n):
        b = order[n]
        out = [f"s_bitcmp1_b32 s60, {2*b}", f"s_cbranch_scc1 K_RDY{n}", f"s_mov_b32 s59, {2*b}", "s_swappc_b64 s[68:69], s[66:67]", f"K_RDY{n}:"]
        return out
    def poll(g):
        return [("vm", f"buffer_load_dword v{40 + g % 4}, v6, s[24:27], s54 offen sc1", f"P{g}")]
    def upd(g):
        return [f"v_cmp_ne_u32 vcc, -1, v{40 + g % 4}"], ["s_lshr_b32 s57, vcc_lo, 1", "s_and_b32 s57, s57, vcc_lo", "s_or_b32 s60, s60, s57"]
    def gate_grp(g):
        out = []
        if NS:
            if g < N0:
                out += check(g)
            elif g == N0:
                for m in list(range(N0, 16)) + list(range(NS)):
                    out += check(m)
                out += [("vm", "buffer_load_dword v20, v6, s[24:27], s54 offen sc1", "GF")]
            return out
        if g < N0:
            out += check(g)
        elif g == N0:
            for m in range(N0, 16):
                out += check(m)
            out += [("vm", "buffer_load_dword v20, v6, s[24:27], s54 offen sc1", "GF")]
        if g + 3 <= N0 and g in PSET:
            out += poll(g)
        return out
    TA = opt.get("atouch", 0)
    PSET = opt.get("pset", [3])
    def touchA(n0, n1):
        b0 = order[n0]
        cnt = (n1 - n0) * 8
        return [f"s_add_u32 s56, s53, {b0*8192}", f"s_mov_b64 exec, 0x{(1 << cnt) - 1:x}" if cnt < 32 else "s_mov_b32 exec_hi, 0",
                ("vm", "buffer_load_dword v45, v46, s[24:27], s56 offen sc1", "T"), "s_mov_b64 exec, -1"]
    if FAST:
        vq.need("E")
        stamp(a, opt, 8)
        a("v_cmp_ne_u32 vcc, -1, v44")
        a("s_lshr_b32 s57, vcc_lo, 1"); a("s_and_b32 s60, s57, vcc_lo")
        want = (1 << (2*order[0])) | (1 << (2*order[1]))
        a(f"s_and_b32 s57, s60, 0x{want:x}")
        a(f"s_cmp_eq_u32 s57, 0x{want:x}")
        a("s_cbranch_scc0 K_SLOW")
        q0 = list(vq.q)
        for g in range(2):
            emit([poll(g)])
            emit(loadsA(g))
        flag()
        stamp(a, opt, 9)
        a("s_branch K_GO")
        a.label("K_SLOW")
        vq.q = q0
        flag()
    if NS:
        vq.need("O")
        stamp(a, opt, 8)
        if opt.get("spec_sleep"):
            a(f"s_sleep {opt['spec_sleep']}")
        FPOS = opt.get("fpos", 2)
        for g in range(NS):
            if g == FPOS:
                flag(); vq.q.append("F")
            emit(loadsA(g))
        if FPOS >= NS:
            flag(); vq.q.append("F")
        stamp(a, opt, 9)
    for g in range(0 if NS else 2):
        emit([gate_grp(g)])
        if g == 0:
            stamp(a, opt, 9)
        emit(loadsA(g))
    if FAST:
        a.label("K_GO")
    def redw(i):
        k = i // 2
        return [f"ds_write_b128 {'v7' if k < 2 else 'v8'}, {vr(acc2(i, ct))} offset:{(k % 2)*32768 + (i % 2)*4096 + ct*1024}" for ct in range(4)]
    def Bop(n, ct):
        b = order[n]
        return vr(fB(n % 2, ct)) if b >= 8 else ar(RES[b] + ct * 4)
    issued = set()
    NPOLL = opt.get("npoll", 5)
    for n in range(N0 if NS else 0):
        if n < NS:
            lq.need(regs_of(Bop(n, 0)))
            for i in range(8):
                vq.need(f"A{n}_{i}")
                a(f"{MF} v[48:51], {Bop(n, 0)}, {ar(areg(n, i))}, {'0' if i == 0 else 'v[48:51]'}")
            a("v_cmp_u_f32 vcc, v48, v48")
            a(f"s_cbranch_vccz K_VOK{n}")
            if opt.get("stamps"):
                a("v_readlane_b32 s56, v31, 22")
                a("s_add_u32 s56, s56, 1")
                a("v_writelane_b32 v31, s56, 22")
            a(f"s_mov_b32 s59, {2*order[n]}")
            a("s_swappc_b64 s[68:69], s[66:67]")
            for op in loadsA(n):
                for x in op:
                    a(x[1] if isinstance(x, tuple) else x)
            a("s_waitcnt vmcnt(0)")
            a.label(f"K_VOK{n}")
        else:
            vq.need(f"A{n}_7")
        if n == 0:
            stamp(a, opt, 12)
        if opt.get("pstamps"):
            stamp(a, opt, 32 + n)
        ms = []
        for i in range(8):
            for ct in range(4):
                c = vr(acc2(i, ct))
                ms.append(f"{MF} {c}, {Bop(n, ct)}, {ar(areg(n, i))}, {'0' if n == 0 else c}")
        fill = {}
        if 1 <= n <= NPOLL:
            u1, u2 = upd(n - 1)
            fill[0] = [("needvm", [f"P{n-1}"])] + u1; fill[1] = u2
        if n < NPOLL:
            fill.setdefault(2, []).extend(poll(n))
        if n + 1 < 8:
            spread(fill, [[x] for x in breads(order[n + 1], fB((n + 1) % 2, 0), False)], 4, 20)
        gs = [g for g in range(NS, n + 4) if g not in issued] if n >= 1 else []
        items = []
        for g in gs:
            items += [gate_grp(g)] + loadsA(g); issued.add(g)
        if items:
            spread(fill, items, 3, 30)
        weave(ms, fill)
    for n in range(0 if NS else N0):
        FINE = n < opt.get("fine", 2)
        if not FINE:
            vq.need(f"A{n}_7")
        else:
            vq.need(f"A{n}_0")
        if n == 0:
            stamp(a, opt, 12)
        if opt.get("pstamps"):
            stamp(a, opt, 32 + n)
        ms = []
        for i in range(8):
            for ct in range(4):
                c = vr(acc2(i, ct))
                ms.append(f"{MF} {c}, {Bop(n, ct)}, {ar(areg(n, i))}, {'0' if n == 0 else c}")
        fill = {}
        if n + 3 <= N0 and n in PSET:
            u1, u2 = upd(n)
            fill[0] = u1; fill[1] = u2
        if n + 1 < 8:
            spread(fill, [[x] for x in breads(order[n + 1], fB((n + 1) % 2, 0), False)], 4, 20)
        if n == 0:
            spread(fill, [gate_grp(2)] + loadsA(2), 2, 16)
            spread(fill, [gate_grp(3)] + loadsA(3), 16, 31)
            if TA:
                fill.setdefault(31, []).extend(touchA(4, TA))
        else:
            spread(fill, [gate_grp(n + 3)] + loadsA(n + 3), 2, opt.get("lspan", 28))
        if TA and n + TA < 16:
            fill.setdefault(31, []).extend(touchA(n + TA, n + TA + 1))
        if FINE:
            for i in range(1, 8):
                fill.setdefault(4 * i - 1, []).append(("needvm", [f"A{n}_{i}"]))
        weave(ms, fill)
    if opt.get("pstamps"):
        stamp(a, opt, 32 + N0)
    gf = [("needvm", ["GF"]), "v_mov_b32 v22, v20", "v_permlane16_swap_b32 v20, v22"]
    for r in (20, 22):
        gf += [f"v_sub_f32 v{r+1}, 1.0, v{r}", f"v_cvt_pk_bf16_f32 v{r+1}, v{r+1}, v{r+1}", f"v_and_b32 v{r+1}, 0xffff0000, v{r+1}"]
    gf += [["s_cmp_lt_u32 s38, 2", "s_cbranch_scc1 K_NOSWAP", "v_swap_b32 v20, v21", "v_swap_b32 v22, v23", "K_NOSWAP:"]]
    R = 128
    rds = [f"ds_read_b128 {vr(R + k*32 + j*4)}, v{9+k} offset:{j*1024}" for k in range(3) for j in range(8)]
    for i in range(8):
        vq.need(*[f"A{n}_{i}" for n in range(N0, 16)])
        ms = [f"{MF} {vr(acc2(i, ct))}, {Bop(n, ct)}, {ar(areg(n, i))}, {vr(acc2(i, ct))}" for ct in range(4) for n in range(N0, 16)]
        fill = {}
        if i == 0:
            spread(fill, [x if isinstance(x, list) else [x] for x in gf], 0, len(ms))
        if 1 <= i <= 6:
            spread(fill, [[w] for w in redw(i - 1)], min(2, len(ms) - 4), len(ms))
        if i == 7:
            stamp(a, opt, 14)
            a("s_waitcnt lgkmcnt(0)")
            if opt.get("pstamps"): stamp(a, opt, 17)
            a("s_barrier")
            if opt.get("pstamps"): stamp(a, opt, 18)
            spread(fill, [[r] for r in rds], 0, len(ms))
        weave(ms, fill)
    OWN = acc2(6, 0)
    if opt.get("pstamps"): stamp(a, opt, 19)
    a("s_waitcnt lgkmcnt(15)")
    for j in range(0, 32, 2):
        a(f"v_pk_add_f32 {vr(OWN+j, 2)}, {vr(OWN+j, 2)}, {vr(R+j, 2)}")
    for j in range(0, 32, 2):
        gsel = 20 if j < 16 else 22
        a(f"v_pk_mul_f32 {vr(OWN+j, 2)}, {vr(OWN+j, 2)}, {vr(gsel, 2)} op_sel_hi:[1,0]")
    a("s_waitcnt lgkmcnt(0)")
    for pr in range(4):
        for j in range(8 * pr, 8 * pr + 8, 2):
            a(f"v_pk_add_f32 {vr(R+32+j, 2)}, {vr(R+32+j, 2)}, {vr(R+64+j, 2)}")
        for j in range(8 * pr, 8 * pr + 8, 2):
            gsel = 20 if j < 16 else 22
            a(f"v_pk_fma_f32 {vr(OWN+j, 2)}, {vr(R+32+j, 2)}, {vr(gsel, 2)}, {vr(OWN+j, 2)} op_sel:[0,1,0] op_sel_hi:[1,1,1]")
        b = 64 + 4 * pr
        for j in range(4):
            a(f"v_cvt_pk_bf16_f32 v{b+j}, v{OWN+8*pr+2*j}, v{OWN+8*pr+2*j+1}")
        a(f"v_permlane16_swap_b32 v{b}, v{b+2}")
        a(f"v_permlane16_swap_b32 v{b+1}, v{b+3}")
        if not FL:
            a(f"buffer_store_dwordx4 {vr(b)}, v14, s[16:19], {'s61' if pr < 2 else 's62'} offen offset:{(pr % 2)*64}{opt.get('ost', ' sc1')}")
        elif pr % 2 == 1:
            for j in range(4):
                a(f"v_mov_b32 v{80+j}, v{b-4+j}")
            for j in range(4):
                a(f"v_mov_b32_dpp v{b-4+j}, v{b+j} row_ror:8 row_mask:0xf bank_mask:0xc")
            for j in range(4):
                a(f"v_mov_b32_dpp v{b+j}, v{80+j} row_ror:8 row_mask:0xf bank_mask:0x3")
            so = 's61' if pr < 2 else 's62'
            a(f"buffer_store_dwordx4 {vr(b-4)}, v14, s[16:19], {so} offen{opt.get('ost', ' sc1')}")
            a(f"buffer_store_dwordx4 {vr(b)}, v15, s[16:19], {so} offen{opt.get('ost', ' sc1')}")
    stamp(a, opt, 15)
    stamp_out(a, opt, 0)
    if opt.get("dbgout"):
        a(f"s_cmp_eq_u32 s2, {opt.get('dbgwg', 0)}")
        a("s_cbranch_scc0 K_END")
        a("s_cmp_eq_u32 s38, 0")
        a("s_cbranch_scc0 K_END")
        a("v_readlane_b32 s56, v31, 30")
        for k, sl in enumerate([2, 32, 36, 3, 7, 12, 14, 29]):
            a(f"v_readlane_b32 s57, v31, {sl}")
            a("s_sub_u32 s57, s57, s56")
            a(f"v_writelane_b32 v30, s57, {k}")
        a("v_lshlrev_b32 v27, 3, v1")
        a("s_mov_b64 exec, 0xff")
        a("buffer_store_dword v30, v27, s[28:31], 0 offen offset:4")
    a.label("K_END")
    a("s_endpgm")
    a.label("K_WAIT")
    a("buffer_load_dword v44, v6, s[24:27], s54 offen sc1")
    if opt.get("stamps"):
        a("v_readlane_b32 s56, v31, 23")
        a("s_add_u32 s56, s56, 1")
        a("v_writelane_b32 v31, s56, 23")
    a("s_waitcnt vmcnt(0)")
    a("v_cmp_ne_u32 vcc, -1, v44")
    a("s_lshr_b32 s57, vcc_lo, 1"); a("s_and_b32 s57, s57, vcc_lo"); a("s_or_b32 s60, s60, s57")
    a("s_bitcmp1_b32 s60, s59")
    if opt.get("wsleep"):
        a("s_cbranch_scc1 K_LAST")
        a(f"s_sleep {opt['wsleep']}")
        a("s_branch K_WAIT")
    else:
        a("s_cbranch_scc0 K_WAIT")
    a.label("K_LAST")
    a("s_setpc_b64 s[68:69]")

def build(opt):
    a = Asm()
    gen(a, opt)
    out = HEADER + "; @launch grid=(256,1,1) block=(256,1,1) lds=163840\n"
    out += '.amdgcn_target "amdgcn-amd-amdhsa--gfx950"\n.text\n' + a.text() + '.section .rodata,"a"\n' + kd(KNAME, 512, 96, 256)
    return out

if __name__ == "__main__":
    opt = {}
    for kv in sys.argv[2:]:
        k, v = kv.split("=")
        try:
            v = eval(v)
        except Exception:
            pass
        opt[k] = v
    open(sys.argv[1], "w").write(build(opt))
```

```python
import sys, struct
from asmlib import Asm, Ins, regs_of
from gen import f2u, LdsQ, kd, srd, stamp, stamp_out, HEADER, WS_DIAG, WS_SIZE, WS_SLOT, WS_G, LOG2E, EPS

MF = "v_mfma_f32_16x16x32_bf16"
WS_WOF = 16 << 20
WS_TOT = 20 << 20
KNAME = "gated_mix__linear_attn_block__linear_attn_block__prompt_kernel"
def vr(b, n=4): return f"v[{b}:{b+n-1}]"
def ar(b, n=4): return f"a[{b}:{b+n-1}]"

class VmQ:
    def __init__(self, a):
        self.a = a; self.q = []
    def issue(self, text, tag):
        self.a(text); self.q.append(tag)
    def count(self, tags):
        idx = -1
        for i, t in enumerate(self.q):
            if t in tags:
                idx = i
        if idx < 0:
            return None
        return min(len(self.q) - idx - 1, 63)
    def need(self, *tags, extra=""):
        n = self.count(tags)
        if n is None:
            if extra:
                self.a(f"s_waitcnt {extra}")
            return
        self.a(f"s_waitcnt vmcnt({n}) {extra}".rstrip())
        self.q = self.q[len(self.q) - n:] if n else []
    def drained(self):
        self.q = []

def gen(a, opt):
    lq = LdsQ(a); vq = VmQ(a)
    ABL = [""]
    def put(x):
        if ABL[0] and isinstance(x, tuple):
            if "x" in ABL[0] and x[0] == "ds" and "b128" in x[1]: return
            if "w" in ABL[0] and x[0] == "ds" and "tr_b16" in x[1]: return
            if "d" in ABL[0] and x[0] == "vm" and x[2][0] in "XW": return
            if "X" in ABL[0] and x[0] == "vm" and x[2][0] == "X": return
        if isinstance(x, tuple):
            if x[0] == "ds":
                lq.issue(x[1])
            elif x[0] == "vm":
                vq.issue(x[1], x[2])
            elif x[0] == "needvm":
                vq.need(*x[1])
            elif x[0] == "needds":
                lq.need(x[1])
        else:
            a(x)
    def weave(mf, fill):
        for g, m in enumerate(mf):
            lq.need(Ins(m).srcAB)
            a(m)
            for x in fill.get(g, []):
                put(x)
    def spread(fill, items, start, end):
        n = len(items)
        for i, it in enumerate(items):
            fill.setdefault(start + (i * (end - start)) // n, []).extend(it)

    XB = [0, 32768]
    WB = [65536 + 24576 * s for s in range(3)]
    EX = 139264
    EX2 = EX + 16384
    ACC = 64
    def acc(rt, ct): return ACC + (rt * 6 + ct) * 4
    def fW(st, ct, ks): return 48 * (st % 2) + (ct * 2 + ks) * 4
    def fX(e, ks): return 96 + e * 8 + ks * 4
    def fXR(rt, ks): return 112 + rt * 8 + ks * 4
    a.raw(f".globl {KNAME}\n.p2align 8\n.type {KNAME},@function")
    a.label(KNAME)
    a("s_cmp_ge_u32 s2, 256")
    a("s_cbranch_scc1 K_END")
    a("s_load_dwordx4 s[4:7], s[0:1], 0")
    a("s_load_dwordx2 s[8:9], s[0:1], 32")
    a("s_load_dwordx4 s[68:71], s[0:1], 48")
    a("s_load_dwordx4 s[12:15], s[0:1], 64")
    a("s_load_dwordx2 s[74:75], s[0:1], 16")
    a("s_load_dwordx2 s[76:77], s[0:1], 40")
    if opt.get("thr"):
        a("s_memrealtime s[96:97]")
    if opt.get("stamps"):
        a("v_mov_b32 v31, 0")
    stamp(a, opt, 30, real=True)
    stamp(a, opt, 0)
    a("v_lshrrev_b32 v21, 6, v0")
    a("v_and_b32 v1, 63, v0")
    a("v_readfirstlane_b32 s38, v21")
    a("s_and_b32 s56, s2, 7")
    a("s_lshr_b32 s57, s2, 3")
    if opt.get("k1map", "A") == "A":
        a("s_and_b32 s36, s57, 7")
        a("s_lshr_b32 s58, s57, 3")
        a("s_lshl_b32 s37, s56, 2")
        a("s_add_u32 s37, s37, s58")
    else:
        a("s_and_b32 s36, s56, 1")
        a("s_lshl_b32 s36, s36, 2")
        a("s_and_b32 s58, s57, 3")
        a("s_add_u32 s36, s36, s58")
        a("s_lshr_b32 s37, s56, 1")
        a("s_lshl_b32 s37, s37, 3")
        a("s_lshr_b32 s58, s57, 2")
        a("s_add_u32 s37, s37, s58")
    a("s_and_b32 s39, s38, 1")
    a("s_lshr_b32 s40, s38, 1")
    a("s_and_b32 s41, s37, 15")
    a("s_lshr_b32 s42, s37, 4")
    a("v_lshrrev_b32 v21, 3, v1")
    a("v_and_b32 v22, 7, v1")
    a("v_lshrrev_b32 v23, 4, v1")
    a("v_and_b32 v24, 1, v23")
    a("v_lshlrev_b32 v24, 2, v24")
    a("v_xor_b32 v24, v22, v24")
    a("v_lshlrev_b32 v24, 4, v24")
    a("v_mul_u32_u24 v25, 6144, v21")
    a("v_add_u32 v24, v24, v25")
    a("v_xor_b32 v25, 32, v24")
    a("s_mul_i32 s56, s38, 6")
    a("s_lshl_b32 s59, s41, 7")
    for i in range(6):
        a(f"s_add_u32 s57, s56, {i}")
        a("s_lshr_b32 s58, s57, 3")
        a("s_and_b32 s57, s57, 7")
        a(f"s_mul_i32 s57, s57, {8*6144}")
        a("s_lshl_b32 s58, s58, 11")
        a("s_add_u32 s57, s57, s58")
        a("s_add_u32 s57, s57, s59")
        if i % 4:
            a(f"s_sub_u32 s57, s57, {(i % 4) * 1024}")
        a(f"v_add_u32 v{10+i}, s57, {'v24' if i % 2 == 0 else 'v25'}")
    a("v_xor_b32 v24, v22, v23")
    a("v_lshlrev_b32 v24, 4, v24")
    a("v_lshl_add_u32 v24, v21, 11, v24")
    a("s_lshl_b32 s56, s36, 19")
    a("s_lshl_b32 s57, s40, 18")
    a("s_add_u32 s56, s56, s57")
    a("s_lshl_b32 s57, s39, 16")
    a("s_add_u32 s56, s56, s57")
    a("v_add_u32 v2, s56, v24")
    a("v_xor_b32 v25, 64, v2")
    for i in range(1, 8):
        src = "v2" if i % 2 == 0 else "v25"
        a(f"v_add_u32 v{2+i}, {(i % 4)*16384 + (i // 4)*131072 - (i % 4) * 1024}, {src}")
    a("s_lshl_b32 s48, s38, 13")
    a("s_lshl_b32 s45, s40, 14")
    a("s_lshl_b32 s57, s39, 12")
    a("s_add_u32 s45, s45, s57")
    a("s_mov_b32 s72, 0")
    a("s_mul_i32 s49, s38, 6144")
    a("s_mov_b32 s43, 0")
    a("s_mov_b32 s44, 0")
    a("s_waitcnt lgkmcnt(0)")
    srd(a, 16, 4, 2048 * 1024 * 2)
    a("s_cmp_eq_u32 s42, 0")
    a("s_cselect_b32 s56, s6, s8")
    a("s_cselect_b32 s57, s7, s9")
    srd(a, 20, 56, 1024 * 3072 * 2)
    stamp(a, opt, 10)

    def dmaXh(t, h):
        ops = []
        so = "s43" if h == 0 else "s72"
        for i in range(4 * h, 4 * h + 4):
            pre = [f"s_add_u32 m0, s45, {XB[t % 2] + h * 8192}"] if i % 4 == 0 else []
            off = f" offset:{(i % 4) * 1024}" if i % 4 else ""
            ops.append(pre + [("vm", f"buffer_load_dwordx4 v{2+i}, s[16:19], {so} offen{off}{opt.get('dpol', '')} lds", f"X{t}{'ab'[h]}")])
        ops[3].append(f"s_add_u32 {so}, {so}, 128")
        return ops
    def dmaX(t):
        return dmaXh(t, 0) + dmaXh(t, 1)
    def dmaW(t):
        ops = []
        for i in range(6):
            pre = [f"s_add_u32 m0, s49, {WB[t % 3] + (i // 4) * 4096}"] if i % 4 == 0 else []
            off = f" offset:{(i % 4) * 1024}" if i % 4 else ""
            ops.append(pre + [("vm", f"buffer_load_dwordx4 v{10+i}, s[20:23], s44 offen{off}{opt.get('dpol', '')} lds", f"W{t}")])
        ops[5].append(f"s_add_u32 s44, s44, {64*6144}")
        return ops
    def emit(groups):
        for op in groups:
            for x in op:
                put(x)
    emit(dmaW(0) + dmaX(0))
    if opt.get("pre0"):
        emit(dmaW(1))
    stamp(a, opt, 11)
    srd(a, 24, 14, WS_TOT)
    srd(a, 28, 12, 256)
    srd(a, 32, 68, 2048)
    a("v_lshlrev_b32 v26, 4, v1")
    a("s_lshl_b32 s46, s37, 1")
    a("s_add_u32 s46, s46, s40")
    a("s_lshl_b32 s47, s36, 1")
    a("s_add_u32 s47, s47, s39")
    a("s_lshl_b32 s56, s47, 7")
    a("s_lshl_b32 s57, s46, 1")
    a("s_add_u32 s56, s56, s57")
    a("s_lshl_b32 s60, s56, 11")
    FS = opt.get("fs", 3)
    GB = WS_G if FS == 3 else WS_WOF
    a(f"s_lshl_b32 s55, s56, {FS - 1}")
    a(f"s_add_u32 s55, s55, {GB}")
    a("s_lshl_b32 s56, s47, 19")
    a("s_lshl_b32 s57, s46, 13")
    a("s_add_u32 s65, s56, s57")
    a("s_lshl_b32 s56, s37, 17")
    a("s_lshl_b32 s57, s38, 12")
    a("s_add_u32 s61, s56, s57")
    a(f"s_add_u32 s61, s61, {WS_SLOT}")
    a("s_lshl_b32 s57, s36, 14")
    a("s_add_u32 s62, s61, s57")
    a("v_lshrrev_b32 v27, 4, v1")
    a("v_lshlrev_b32 v27, 4, v27")
    a("v_and_b32 v30, 7, v1")
    a("v_lshl_add_u32 v30, v30, 14, v27")
    a("s_lshl_b32 s63, s37, 3")
    for i in range(4):
        a(f"v_mov_b32 v{32+i}, -1")
    a("v_lshlrev_b32 v38, 7, v1")
    a("v_mov_b32 v28, 1")
    a("v_mov_b32 v29, 0")
    sent = [[("vm", "buffer_store_dwordx4 v[32:35], v26, s[24:27], s62 offen sc1", "S")],
            [("vm", "buffer_store_dwordx4 v[32:35], v26, s[24:27], s62 offen offset:1024 sc1", "S")],
            [("vm", "buffer_store_dwordx4 v[32:35], v27, s[24:27], s62 offen offset:2048 sc1", "S")],
            [("vm", "buffer_store_dwordx2 v[32:33], v29, s[24:27], s55 offen sc1", "S")]]
    NS = opt.get("spec", 0)
    if NS:
        a("s_lshl_b32 s56, s2, 2")
        a("s_add_u32 s56, s56, s38")
        a("s_lshr_b32 s57, s56, 4")
        a("s_lshl_b32 s57, s57, 17")
        a("s_and_b32 s56, s56, 15")
        a(f"s_mul_i32 s56, s56, {NS*512}")
        a("s_add_u32 s3, s56, s57")
        a("s_add_u32 s3, s3, 65536")
        for k in range(NS // 2):
            sent.append([("vm", f"buffer_store_dwordx4 v[32:35], v26, s[24:27], s3 offen offset:{k*1024} sc1", "S")])
    if opt.get("sent_pro"):
        emit(sent)
    a("v_and_b32 v21, 15, v1")
    a("v_lshrrev_b32 v22, 4, v1")
    a("v_bfe_u32 v23, v1, 1, 3")
    a("v_xor_b32 v23, v23, v22")
    a("v_lshlrev_b32 v23, 4, v23")
    a("v_lshl_add_u32 v23, v21, 7, v23")
    a("s_lshl_b32 s56, s39, 14")
    a("v_add_u32 v16, s56, v23")
    a("v_xor_b32 v17, 64, v16")
    a("v_bfe_u32 v23, v1, 2, 2")
    a("v_lshl_add_u32 v24, v22, 3, v23")
    a("v_lshlrev_b32 v24, 7, v24")
    a("v_bfe_u32 v25, v1, 1, 1")
    a("s_lshl_b32 s56, s40, 2")
    a("v_or_b32 v25, s56, v25")
    a("v_and_b32 v36, 2, v23")
    a("v_lshlrev_b32 v36, 1, v36")
    a("v_xor_b32 v25, v25, v36")
    a("v_and_b32 v36, 1, v22")
    a("v_lshlrev_b32 v36, 1, v36")
    a("v_xor_b32 v25, v25, v36")
    a("v_lshl_add_u32 v24, v25, 4, v24")
    a("v_and_b32 v36, 1, v1")
    a("v_lshl_add_u32 v24, v36, 3, v24")
    a("v_xor_b32 v25, 32, v24")
    for s in range(3):
        a(f"v_add_u32 v{18+2*s}, {WB[s]}, v24")
        a(f"v_add_u32 v{19+2*s}, {WB[s]}, v25")
    a(f"v_mov_b32 v36, 0x{f2u(EPS):08x}")
    a(f"v_mov_b32 v37, v36")
    for rt in range(8):
        for r in range(0, 16, 2):
            a(f"v_pk_mov_b32 {vr(acc(rt, 0) + r, 2)}, v[36:37], v[36:37]")
    if opt.get("wpace", 6):
        a("s_lshl_b32 s56, s2, 2")
        a("s_add_u32 s56, s56, s38")
        a("s_bitcmp1_b32 s56, 3")
        a("s_cselect_b32 s84, s8, s6")
        a("s_cselect_b32 s85, s9, s7")
        a("s_and_b32 s85, s85, 0xffff")
        a(f"s_mov_b32 s86, {1024*3072*2}")
        a("s_mov_b32 s87, 0x00020000")
        a("s_lshr_b32 s57, s56, 4")
        a(f"s_add_u32 s57, s57, {64*opt.get('wpace', 6)}")
        a("s_mul_i32 s73, s57, 6144")
        a("s_and_b32 s57, s56, 7")
        a("s_mul_i32 s57, s57, 768")
        a("s_add_u32 s73, s73, s57")
        pass
    PRE = opt.get("pre", "W1")
    pre_list = {"none": [], "W1": dmaW(1), "W1X1": dmaW(1) + dmaX(1)}[PRE]
    if opt.get("pre0"):
        pre_list = pre_list[6:]
    if opt.get("pre_first"):
        emit(pre_list); pre_list = []
    ET = opt.get("etouch", 1)
    if ET == 1:
        a("s_lshl_b32 s56, s2, 2")
        a("s_add_u32 s56, s56, s38")
        a("s_lshr_b32 s57, s56, 4")
        a("s_lshl_b32 s57, s57, 3")
        a("s_and_b32 s58, s56, 7")
        a("s_add_u32 s57, s57, s58")
        a(f"s_add_u32 s57, s57, {opt.get('et_row0', 0)}")
        a(f"s_cmp_lt_u32 s57, {64*opt.get('wpace', 6)}")
        a("s_cselect_b32 s57, s57, 1024")
        a("s_mul_i32 s57, s57, 6144")
        a("v_lshlrev_b32 v40, 10, v1")
        a("s_mov_b64 exec, 0x3f")
        vq.issue("buffer_load_dword v39, v40, s[84:87], s57 offen offset:384", "T")
        a("s_mov_b64 exec, -1")
    if ET == 2:
        for st in range(opt.get("et0", 2), opt.get("wpace", 6)):
            a(f"s_sub_u32 s57, s73, {(opt.get('wpace', 6) - st)*64*6144}")
            a("s_mov_b64 exec, 0x3f")
            vq.issue("buffer_load_dword v39, v38, s[84:87], s57 offen", "T")
            a("s_mov_b64 exec, -1")
    if opt.get("ctouch", 1):
        a("s_getpc_b64 s[56:57]")
        a.label("K_CT")
        a(f"s_sub_u32 s56, s56, K_CT-{KNAME}")
        a("s_subb_u32 s57, s57, 0")
        a("s_mov_b64 s[88:89], s[56:57]")
        a("s_lshr_b32 s58, s2, 3")
        a("s_lshl_b32 s58, s58, 2")
        a("s_add_u32 s58, s58, s38")
        a("s_lshl_b32 s79, s58, 7")
        a("s_mul_i32 s58, s58, 384")
        a("v_add_u32 v40, s58, v38")
        a(f"v_min_u32 v40, K_LAST-{KNAME}, v40")
        a("s_mov_b64 exec, 7")
        vq.issue("global_load_dword v39, v40, s[56:57]", "T")
        a("s_mov_b64 exec, -1")
    emit(pre_list)
    if opt.get("xsp", 0x3c):
        m = opt.get("xsp", 0x3c)
        emit([[f"s_mov_b32 exec_lo, 0x{m | (m << 16):x}", "s_mov_b32 exec_hi, 0", ("vm", "buffer_load_dword v39, v38, s[16:19], s60 offen", "T"), "s_mov_b64 exec, -1"]])
    stamp(a, opt, 1)

    def rdW(t):
        ops = []
        for ct in range(6):
            for ks in range(2):
                for sub in range(2):
                    r = fW(t, ct, ks) + 2 * sub
                    ops.append(("ds", f"ds_read_b64_tr_b16 {ar(r, 2)}, v{18 + 2*(t % 3) + (ct & 1)} offset:{(ct >> 1)*8192 + ks*4096 + sub*512}"))
        return ops
    def rdX(t, rt, dst):
        return [("ds", f"ds_read_b128 {ar(dst(ks))}, v{16+ks} offset:{XB[t % 2] + rt*2048}") for ks in range(2)]
    def mf(t, rt, cts, X):
        out = []
        for ct in cts:
            for ks in range(2):
                W = ar(fW(t, ct, ks))
                A, B = (W, ar(X(ks))) if ct < 2 else (ar(X(ks)), W)
                c = vr(acc(rt, ct))
                cin = "0" if (t == 0 and ks == 0 and ct >= 4) else c
                out.append(f"{MF} {c}, {A}, {B}, {cin}")
        return out
    DEFER = opt.get("defer", 2)
    HST = opt.get("hst", 7 if opt.get("spec", 0) else 5)
    DSP = opt.get("dma_per_block", 2)
    IL = opt.get("il", 1)
    def cts_of(t):
        if IL and t == 15:
            return [2, 3]
        return [2, 3, 4, 5] if t >= 16 - DEFER else [0, 1, 2, 3, 4, 5]
    def Xreg(t, rt): return (lambda ks: fXR(rt, ks)) if t == 15 else (lambda ks: fX(rt % 2, ks))
    def blocks2(seq, pend, wreads, front=None, valu=()):
        CAP = opt.get("cap", 2)
        VC = opt.get("vcost", 2)
        nbs = [len(cts_of(t)) * 2 for t, _ in seq]
        starts = [sum(nbs[:i]) for i in range(len(seq))]
        G = sum(nbs)
        load = [0] * (G + 64)
        fill = {}
        def cost(x):
            if isinstance(x, tuple):
                return VC if x[0] == "vm" else (1 if x[0] == "ds" else 0)
            return 0 if x.endswith(":") else 1
        def place(g, grp, lim=None):
            c = sum(cost(x) for x in grp)
            lim = G - 1 if lim is None else lim
            g0 = g
            while g < lim and load[g] + min(c, CAP) > CAP:
                g += 1
            g = min(g, lim)
            load[g] += c
            fill.setdefault(g, []).extend(grp)
            return g
        if front:
            fill[0] = list(front); load[0] = 99
        for n, (t, rt) in enumerate(seq):
            if rt < 7: nx = rdX(t, rt + 1, Xreg(t, rt + 1))
            elif t < 15: nx = rdX(t + 1, 0, Xreg(t + 1, 0))
            else: nx = []
            for k, x in enumerate(nx):
                fill.setdefault(starts[n] + k, []).append(x); load[starts[n] + k] += 1
            if n: load[starts[n] - 1] += 1
        stream = []
        for grp in pend:
            atomic = any(isinstance(x, str) and ("exec" in x or x.endswith(":") or "cbranch" in x) for x in grp)
            if atomic: stream.append((grp, True))
            else:
                for x in grp: stream.append(([x], isinstance(x, tuple) and x[0] == "vm"))
        nv = sum(1 for _, v in stream if v)
        if nv:
            step = min(max(nbs) / DSP, (G - 3) / nv)
            pos = 2.0; last = 0
            for idx, (grp, isv) in enumerate(stream):
                if isv:
                    last = place(max(last, int(pos)), grp) ; pos = max(pos + step, last + 1.0)
                    last_v = last
                else:
                    nxt_v = idx + 1 < len(stream) and (stream[idx + 1][1] or not stream[idx+1][1]) and "m0" in grp[0]
                    tgt = max(last, int(pos) - 1) if nxt_v else last
                    last = place(tgt, grp)
                    if nxt_v: pos = max(pos, last + 1.0)
        ok = [starts[n] + g for n, (t, rt) in enumerate(seq) if rt < 7 for g in range(nbs[n])]
        if wreads:
            WEND = opt.get("wend", 8)
            ok2 = ok[:max(len(wreads) // 2, len(ok) - WEND)]
            last = ok2[0]
            for k, x in enumerate(wreads):
                last = place(max(last, ok2[(k * len(ok2)) // len(wreads)]), [x], lim=ok[-1])
        valu = [x if isinstance(x, list) else [x] for x in valu]
        last = 0
        for k, grp in enumerate(valu):
            last = place(max(last, (k * (G - 4)) // len(valu)), grp)
        for n, (t, rt) in enumerate(seq):
            lq.need(regs_of(ar(Xreg(t, rt)(0), 8)))
            weave(mf(t, rt, cts_of(t), Xreg(t, rt)), {g - starts[n]: v for g, v in fill.items() if starts[n] <= g < starts[n] + nbs[n]})

    def blocks(seq, pend, wreads, front=None, valu=()):
        if opt.get("sched2", 1):
            return blocks2(seq, pend, wreads, front, valu)
        pend = list(pend); wreads = list(wreads); valu = list(valu)
        for n, (t, rt) in enumerate(seq):
            cts = cts_of(t)
            nb = len(cts) * 2
            fill = {}
            if rt < 7:
                nx = rdX(t, rt + 1, Xreg(t, rt + 1))
            elif t < 15:
                nx = rdX(t + 1, 0, Xreg(t + 1, 0))
            else:
                nx = []
            items = [[x] for x in nx]
            left_w = len([1 for (_, r) in seq[n:] if r < 7])
            if rt < 7 and wreads:
                k = -(-len(wreads) // left_w)
                items += [[x] for x in wreads[:k]]
                wreads = wreads[k:]
            if n == 0 and front:
                fill[0] = list(front)
            spread(fill, items, 0, nb - 1)
            k = min(len(pend), max(DSP, -(-len(pend) // (len(seq) - n))))
            spread(fill, pend[:k], 1, nb)
            pend = pend[k:]
            k = -(-len(valu) // (len(seq) - n))
            spread(fill, [x if isinstance(x, list) else [x] for x in valu[:k]], 0, nb)
            valu = valu[k:]
            weave(mf(t, rt, cts, Xreg(t, rt)), fill)
        assert not pend and not wreads and not valu

    vq.need("W0", "X0a")
    a("s_barrier")
    stamp(a, opt, 2)
    stamp(a, opt, 25, real=True)
    w0 = rdW(0)
    for x in w0[:4] + rdX(0, 0, lambda ks: fX(0, ks)) + w0[4:13]:
        put(x)
    rest0 = ([] if PRE != "none" else dmaW(1)) + ([] if PRE == "W1X1" else dmaXh(1, 0)) + dmaW(2) + ([] if PRE == "W1X1" else dmaXh(1, 1))
    k0 = min(len(rest0), opt.get("k0", 10))
    blocks([(0, r) for r in range(3)], rest0[:k0], [], front=w0[13:])
    vq.need("W1", "X0b", extra="lgkmcnt(0)")
    lq.drained()
    a("s_barrier")
    x0 = []
    if opt.get("xs0"):
        m = opt["xs0"]
        x0 = [[f"s_mov_b32 exec_lo, 0x{m | (m << 16):x}", "s_mov_b32 exec_hi, 0", ("vm", "buffer_load_dword v39, v38, s[16:19], s60 offen", "T"), "s_mov_b64 exec, -1"]]
    blocks([(0, r) for r in range(3, 7)], rest0[k0:] + dmaXh(2, 0) + dmaW(3) + x0, rdW(1))

    def window1(t, extra=(), last=False, valu=(), first=()):
        ABL[0] = opt.get("abl", "") if 1 <= t <= 12 else ""
        vq.need(f"X{t+1}a", f"X{t+1}b", f"W{t+2}", *( ["S"] if t == HST else []), extra="lgkmcnt(0)")
        lq.drained()
        a("s_barrier")
        if opt.get("wstamps"):
            stamp(a, opt, 32 + t)
        pend = list(first)
        if t + 2 <= 15:
            pend += dmaX(t + 2) if t > 0 else dmaXh(2, 1)
        if t + 4 <= 15:
            pend += dmaW(t + 4)
        pend += list(extra)
        seq = [(t, 7)] + [(t + 1, r) for r in range(8 if last else 7)]
        blocks(seq, pend, rdW(t + 2) if t + 2 <= 15 else [], valu=valu)

    def window(t, extra=(), last=False, valu=(), first=()):
        if not opt.get("mid", 0):
            return window1(t, extra, last, valu, first)
        vq.need(f"X{t+1}a", f"W{t+2}", *( ["S"] if t == HST else []), extra="lgkmcnt(0)")
        lq.drained()
        a("s_barrier")
        if opt.get("wstamps"):
            stamp(a, opt, 32 + t)
        pend = list(first)
        if t + 2 <= 15:
            pend += dmaXh(t + 2, 1)
        wd = dmaW(t + 4) if t + 4 <= 15 else []
        pend += wd[:4]
        wr = rdW(t + 2) if t + 2 <= 15 else []
        valu = list(valu); extra = list(extra)
        nv = len(valu) // 2
        ne = len(extra) // 2 if last else 0
        blocks([(t, 7)] + [(t + 1, r) for r in range(3)], pend + extra[:ne], wr[:10], valu=valu[:nv])
        vq.need(f"X{t+1}b")
        lq.need(regs_of(ar(Xreg(t + 1, 3)(0), 8)))
        a("s_barrier")
        pend = []
        if t + 3 <= 15:
            pend += dmaXh(t + 3, 0)
        if wd:
            wd[4] = [f"s_add_u32 m0, s49, {WB[(t + 4) % 3] + 4096}"] + wd[4][1:]
        pend += wd[4:] + extra[ne:]
        blocks([(t + 1, r) for r in range(3, 8 if last else 7)], pend, wr[10:], valu=valu[nv:])

    hs = ["s_cmp_lg_u32 s38, 0", "s_cbranch_scc1 K_NOATOM", "s_mov_b64 exec, 1",
          "buffer_atomic_add v28, v29, s[28:31], s63 offen sc1", "s_mov_b64 exec, -1", "K_NOATOM:"]
    G = 64
    gate = [("needvm", ["G"]), "v_mov_b32 v38, 0", "v_mov_b32 v39, 0"]
    for i in range(8):
        gr = lambda j: acc(j // 4, 1) + j % 4
        gate.append(f"v_dot2_f32_bf16 v38, v{gr(i)}, v{gr(16+i)}, v38")
        gate.append(f"v_dot2_f32_bf16 v39, v{gr(8+i)}, v{gr(16+i)}, v39")
    for ctrl in ("quad_perm:[1,0,3,2]", "quad_perm:[2,3,0,1]", "row_half_mirror", "row_mirror"):
        for r in (38, 39):
            gate.append(f"v_add_f32_dpp v{r}, v{r}, v{r} {ctrl} row_mask:0xf bank_mask:0xf")
    gate2 = []
    for r in (38, 39):
        for k, ln in enumerate((0, 16, 32, 48)):
            gate2.append(f"v_readlane_b32 s{4 + (r-38)*4 + k}, v{r}, {ln}")
    for r, s0 in ((38, 4), (39, 8)):
        gate2 += [f"v_mov_b32 v{r}, s{s0}", f"v_add_f32 v{r}, s{s0+1}, v{r}", f"v_add_f32 v{r}, s{s0+2}, v{r}", f"v_add_f32 v{r}, s{s0+3}, v{r}"]
    for ops in (["v_cvt_pk_bf16_f32 v{r}, v{r}, v{r}", "v_and_b32 v{r}, 0xffff0000, v{r}", "v_mul_f32 v{r}, 0x%08x, v{r}" % f2u(-LOG2E),
                 "v_exp_f32 v{r}, v{r}", "v_add_f32 v{r}, 1.0, v{r}", "v_rcp_f32 v{r}, v{r}", "v_cvt_pk_bf16_f32 v{r}, v{r}, v{r}",
                 "v_and_b32 v{r}, 0xffff0000, v{r}"]):
        for r in (38, 39):
            gate2.append(ops.format(r=r))

    LM = opt.get("lm", 2)
    p2 = ["s_and_b32 s56, s2, 7", "s_lshr_b32 s57, s2, 3",
          f"s_and_b32 s50, s56, {(16 >> LM) - 1}", f"s_lshl_b32 s50, s50, {LM}", f"s_and_b32 s58, s57, {(1 << LM) - 1}", "s_add_u32 s50, s50, s58",
          f"s_lshr_b32 s51, s56, {4 - LM}", f"s_lshl_b32 s51, s51, {5 - LM}", f"s_lshr_b32 s58, s57, {LM}", "s_add_u32 s51, s51, s58",
          ["s_cmp_lt_u32 s38, 2", "s_cselect_b32 s80, s74, s76", "s_cselect_b32 s81, s75, s77"],
          "s_and_b32 s81, s81, 0xffff", f"s_mov_b32 s82, {1024*1024*2}", "s_mov_b32 s83, 0x00020000",
          "s_lshl_b32 s52, s39, 20", "s_lshl_b32 s56, s51, 7", "s_add_u32 s52, s52, s56",
          "s_lshl_b32 s53, s50, 19", "s_lshl_b32 s56, s38, 17", "s_add_u32 s53, s53, s56",
          f"s_lshl_b32 s56, s50, {6 + FS}", f"s_lshl_b32 s57, s38, {4 + FS}", "s_add_u32 s56, s56, s57", f"s_add_u32 s54, s56, {GB}",
          "v_lshrrev_b32 v48, 3, v1", "v_and_b32 v49, 7, v1", "v_bfe_u32 v50, v1, 4, 1", "v_lshlrev_b32 v50, 2, v50",
          "v_xor_b32 v49, v49, v50", "v_bfe_u32 v50, v1, 5, 1", "v_lshlrev_b32 v50, 1, v50", "v_xor_b32 v49, v49, v50",
          "v_lshlrev_b32 v49, 4, v49", "v_lshl_add_u32 v40, v48, 11, v49"]
    p2 += [f"v_add_u32 v{40+i}, {i*(8*2048 - 1024)}, v40" for i in range(1, 4)]
    HS = opt.get("halfst", 1)
    p2 += ["s_mul_i32 s64, s38, 6144" if HS else "s_lshl_b32 s64, s38, 12", f"s_add_u32 s64, s64, {EX}"]
    p2b = ["v_lshrrev_b32 v48, 4, v1", "v_bfe_u32 v49, v1, 2, 2", "v_lshl_add_u32 v50, v48, 2, v49", "v_lshlrev_b32 v50, 7, v50",
           "v_bfe_u32 v51, v1, 1, 1", "v_and_b32 v52, 2, v49", "v_lshlrev_b32 v52, 1, v52", "v_xor_b32 v51, v51, v52",
           "v_and_b32 v52, 1, v48", "v_lshlrev_b32 v52, 1, v52", "v_xor_b32 v51, v51, v52", "v_lshl_add_u32 v50, v51, 4, v50",
           "v_and_b32 v52, 1, v1", "v_lshl_add_u32 v50, v52, 3, v50", "v_add_u32 v44, s64, v50"]
    p2b += [f"v_xor_b32 v{44+ct}, {ct*32}, v44" for ct in range(1, 4)]
    p2b += ["v_lshlrev_b32 v53, 3, v1"]
    p2c = [f"v_mov_b32 v{12+i}, v{40+i}" for i in range(4)] + ["s_add_u32 s56, s48, 0x10000", "v_add_u32 v32, s56, v50"]
    p2c += [f"v_xor_b32 v{32+ct}, {ct*32}, v32" for ct in range(1, 4)]
    SLOT = {}
    RES = {0: 176, 1: 192, 2: 208, 3: 224, 4: 240, 5: 16, 6: 32, 7: 64}
    AQ = [q for q in range(0, 256, 4) if not any(r <= q < r + 16 for r in RES.values())]
    assert len(AQ) == 32
    def dmaB(b, slot):
        SLOT[b] = slot
        ops = []
        for j in range(4):
            off = f" offset:{j*1024}" if j else ""
            m0 = "s_mov_b32 m0, s64" if slot is None else f"s_add_u32 m0, s48, {slot}"
            ops.append(([m0] if j == 0 else []) +
                       [("vm", f"buffer_load_dwordx4 v{(40 if slot is None else 12)+j}, s[80:83], s52 offen{off} lds", f"B{b}")])
        ops[-1].append("s_add_u32 s52, s52, 65536")
        return ops
    def breads(b, dst, agpr):
        sl = SLOT[b]
        base = 44 if sl is None else (32 if sl >= 65536 else 16)
        o = 0 if sl is None else sl % 65536
        return [("ds", f"ds_read_b64_tr_b16 {(ar if agpr else vr)(dst + ct*4 + 2*sub, 2)}, v{base+ct} offset:{o + sub*2048}")
                for ct in range(4) for sub in range(2)]
    PD = opt.get("wpace", 6)
    def wp():
        return ["s_mov_b64 exec, 0x3f", ("vm", "buffer_load_dword v39, v38, s[84:87], s73 offen", "T"), "s_mov_b64 exec, -1",
                f"s_add_u32 s73, s73, {64*6144}"]
    wt_setup = [["s_bitcmp1_b32 s38, 0", "s_cselect_b32 s92, s76, s74", "s_cselect_b32 s93, s77, s75"], "s_and_b32 s93, s93, 0xffff",
                f"s_mov_b32 s94, {1024*1024*2}", "s_mov_b32 s95, 0x00020000",
                "s_lshl_b32 s78, s2, 1", "s_add_u32 s78, s78, s40", "s_lshl_b32 s78, s78, 12"]
    WTN, WT0 = opt.get("wtn", 4), opt.get("wt0", 9)
    def wt(k):
        n = 32 // WTN
        return [f"s_mov_b64 exec, 0x{(1 << n) - 1:x}",
                ("vm", f"buffer_load_dword v39, v38, s[92:95], s78 offen offset:{k*n*128}", "T"), "s_mov_b64 exec, -1"]
    xs = opt.get("xsplit", {0: 0xc0, 1: 0x300, 2: 0xc00, 3: 0x3000, 4: 0xc000})
    ST0 = opt.get("st0", 2 if HS else 3)
    sw = opt.get("sent_w", [1, 2, 3, 3, 4, 5]) if not opt.get("sent_pro") else [-1] * 6
    for t in range(15):
        kw = {"extra": [], "valu": []}
        if xs and t in xs:
            m = xs[t]
            kw["extra"] += [[f"s_mov_b32 exec_lo, 0x{m | (m << 16):x}", "s_mov_b32 exec_hi, 0", ("vm", "buffer_load_dword v39, v38, s[16:19], s60 offen", "T"), "s_mov_b64 exec, -1"]]
        if PD and t + PD <= 15: kw["extra"] += [wp()]
        if t == ST0 - 2: kw["valu"] += p2
        if t == ST0 - 1: kw["valu"] += p2b
        for k in range(len(sent)):
            if sw[k] == t: kw["extra"] += [sent[k]]
        if t == HST: kw["extra"] += [hs]
        TL = opt.get("tlb", "")
        if TL and t == opt.get("tlb_w", 12):
            grp = ["s_mov_b64 exec, 1"]
            if "o" in TL: grp.append(("vm", "buffer_load_dword v39, v29, s[24:27], s65 offen sc1", "T"))
            if "a" in TL: grp.append(("vm", "buffer_load_dword v39, v29, s[24:27], s53 offen sc1", "T"))
            if "A" in TL:
                grp += ["s_mov_b64 exec, 3", "v_lshlrev_b32 v54, 16, v1", ("vm", "buffer_load_dword v39, v54, s[24:27], s53 offen sc1", "T"), "s_mov_b64 exec, 1"]
            if "u" in TL:
                grp += ["s_lshl_b32 s59, s50, 18", "s_lshl_b32 s58, s38, 16", "s_add_u32 s59, s59, s58", "v_mov_b32 v54, s59",
                        ("vm", "global_load_dword v39, v54, s[70:71]", "T")]
            kw["extra"] += [grp + ["s_mov_b64 exec, -1"]]
        for (tw, lab, nl) in opt.get("ct2", [(4, "K_W7", 1), (12, "K_TAIL", 2)]):
            if t == tw:
                kw["extra"] += [[f"s_add_u32 s59, s79, {lab}-{KNAME}", "v_lshlrev_b32 v54, 14, v1", "v_add_u32 v54, s59, v54",
                                 f"v_min_u32 v54, K_LAST-{KNAME}, v54", f"s_mov_b64 exec, {(1 << nl) - 1}",
                                 ("vm", "global_load_dword v39, v54, s[88:89]", "T"), "s_mov_b64 exec, -1"]]
        a.label(f"K_W{t}")
        if t == WT0 - 1: kw["valu"] += wt_setup
        if WT0 <= t < WT0 + WTN: kw["extra"] += [wt(t - WT0)]
        LT = opt.get("lt")
        if LT:
            if t == min(LT) - 1:
                kw["valu"] += ["v_lshrrev_b32 v55, 3, v1", "v_lshlrev_b32 v55, 16, v55", "v_and_b32 v56, 7, v1", "v_lshl_add_u32 v55, v56, 7, v55",
                               "s_lshl_b32 s3, s39, 20", "s_lshr_b32 s56, s2, 3", "s_lshl_b32 s56, s56, 11", "s_add_u32 s3, s3, s56",
                               "s_and_b32 s56, s2, 4", "s_lshl_b32 s56, s56, 8", "s_add_u32 s3, s3, s56"]
            if t in LT:
                b0, nb_ = LT[t]
                kw["extra"] += [[f"s_add_u32 s56, s3, {b0*65536}", f"s_mov_b32 exec_lo, 0x{(1 << (8*nb_)) - 1:x}", "s_mov_b32 exec_hi, 0",
                                 ("vm", "buffer_load_dword v39, v55, s[80:83], s56 offen", "T"), "s_mov_b64 exec, -1"]]
        if HS:
            h = t - ST0
            if 0 <= h < 10:
                sub = h % 2
                grp = []
                for j in (2*sub, 2*sub + 1):
                    off = f" offset:{j*1024}" if j else ""
                    grp.append(([f"s_add_u32 m0, s64, {(h % 3)*2048 - sub*2048}"] if j % 2 == 0 else []) +
                               [("vm", f"buffer_load_dwordx4 v{40+j}, s[80:83], s52 offen{off} lds", f"H{h}")])
                if sub:
                    grp[-1].append("s_add_u32 s52, s52, 65536")
                kw["extra"] += grp
            h = t - ST0 - 2
            if 0 <= h < 10:
                kw["valu"] += [("needvm", [f"H{h}"])] + [("ds", f"ds_read_b64_tr_b16 {ar(RES[h // 2] + ct*4 + 2*(h % 2), 2)}, v{44+ct} offset:{(h % 3)*2048}") for ct in range(4)]
        elif ST0 <= t < ST0 + 10:
            b = (t - ST0) // 2
            if (t - ST0) % 2 == 0:
                kw["extra"] += dmaB(b, None)
            else:
                kw["valu"] += [[]] * 12 + [("needvm", [f"B{b}"])] + breads(b, RES[b], True)
        if t == 13:
            kw["valu"] += p2c
            kw["extra"] += [[("vm", "buffer_load_dword v28, v53, s[28:31], 0 offen sc1", "C")]]
        if t == 14:
            b58 = dmaB(5, 65536) + dmaB(6, 65536 + 4096) + dmaB(7, 98304) + dmaB(8, 98304 + 4096)
            NW14 = opt.get("nw14", 10) if IL else 16
            kw["extra"] += b58[:NW14]; b58 = b58[NW14:]
            kw["last"] = True
            if IL:
                kw["valu"] += [f"s_mov_b32 s66, 0x{f2u(LOG2E):08x}", f"s_mov_b32 s67, 0x{f2u(LOG2E):08x}",
                               f"v_mov_b32 v20, 0x{f2u(-EPS * LOG2E):08x}", "v_mov_b32 v21, v20"] + [f"v_mov_b32 v{22+i}, 0x3f803f80" for i in range(4)]
                kw["valu"] += [["s_lshl_b32 s56, s38, 12", f"s_add_u32 s56, s56, {EX}", "v_add_u32 v10, s56, v26"], "v_xor_b32 v11, 4096, v10"]
                DSP = 1
        window(t, **kw)
    stamp(a, opt, 3)
    stamp(a, opt, 26, real=True)

    a.label("K_TAIL")
    if not IL:
        a(f"s_mov_b32 s66, 0x{f2u(LOG2E):08x}")
        a(f"s_mov_b32 s67, 0x{f2u(LOG2E):08x}")
        a(f"v_mov_b32 v20, 0x{f2u(-EPS * LOG2E):08x}")
        a("v_mov_b32 v21, v20")
        for i in range(4):
            a(f"v_mov_b32 v{22+i}, 0x3f803f80")
    KV, ZC = 40, 56
    T0 = 2
    MSL = opt.get("mslots", [4, 6, 8, 10, 12, 14, 17, 24])
    def phi8(b0, b1, dst, inter=(), mfs=()):
        src = [b0, b0 + 2, b1, b1 + 2]
        L = []
        for i, s in enumerate(src):
            L.append(f"v_pk_fma_f32 {vr(T0 + 2*i, 2)}, {vr(s, 2)}, s[66:67], v[20:21]")
        for i in range(8):
            L.append(f"v_exp_f32_e64 v{T0+i}, v{T0+i} clamp")
        for s in src:
            L.append(f"v_max_f32 v{s}, v36, v{s}")
            L.append(f"v_max_f32 v{s+1}, v36, v{s+1}")
        for i, s in enumerate(src):
            L.append(f"v_pk_add_f32 {vr(T0 + 2*i, 2)}, {vr(s, 2)}, {vr(T0 + 2*i, 2)}")
        for i in range(4):
            L.append(f"v_cvt_pk_bf16_f32 v{dst+i}, v{T0+2*i}, v{T0+2*i+1}")
        pos = {0: [], 8: [], 18: []}
        for n, it in enumerate(inter):
            pos[(0, 8, 18)[(n * 3) // max(len(inter), 1)]].append(it)
        mfs = list(mfs)
        assert len(mfs) <= len(MSL)
        for n, x in enumerate(L):
            if n in pos:
                emit(pos[n])
            if n in MSL and mfs:
                m_ = mfs.pop(0)
                lq.need(Ins(m_).srcAB)
                a(m_)
            a(x)
    def pack8(b0, b1, dst):
        for i, s in enumerate([b0, b0 + 2, b1, b1 + 2]):
            a(f"v_cvt_pk_bf16_f32 v{dst+i}, v{s}, v{s+1}")
    t1 = {2: [[("needvm", ["B7"])] + breads(5, RES[5], True), breads(6, RES[6], True), breads(7, RES[7], True)]}
    rf = dmaB(9, SLOT[5]) + dmaB(10, SLOT[6]) + dmaB(11, SLOT[7])
    rf[0] = ["s_waitcnt lgkmcnt(0)"] + rf[0]
    for k in range(4):
        t1[3 + k] = rf[3*k:3*k+3]
    BQ = opt.get("bq", 0)
    if BQ:
        t1 = {}
    def kvz(m):
        out = []
        for dt in range(2):
            c = vr(ZC + dt*4)
            out.append(f"{MF} {c}, {vr(acc(2*m, 2+dt))}, v[22:25], {'0' if m == 0 else c}")
            for et in range(2):
                c = vr(KV + dt*8 + et*4)
                out.append(f"{MF} {c}, {vr(acc(2*m, 2+dt))}, {vr(acc(2*m, 4+et))}, {'0' if m == 0 else c}")
        return out
    if IL:
        h = -(-len(b58) // 2)
        t1 = {0: b58[:h], 1: b58[h:], 3: t1[2]}
        rf[0] = rf[0][1:]
        rf[0] = [("needds", regs_of(ar(RES[7], 16)))] + rf[0]
        for k in range(4):
            t1[4 + k] = rf[3*k:3*k+3]
        if opt.get("x_nob"):
            t1 = {}
        if opt.get("x_norf"):
            for k in range(4): t1[4 + k] = []
        if opt.get("x_nowait"):
            t1[3][0] = t1[3][0][1:]
        for j in range(8):
            if opt.get("tstamps"):
                stamp(a, opt, 48 + j)
            m, dt = j // 2, j % 2
            if j < 4:
                mfs = mf(15, 2*j, [4, 5], lambda ks: fXR(2*j, ks)) + mf(15, 2*j + 1, [4, 5], lambda ks: fXR(2*j + 1, ks))
            elif j < 7:
                mfs = kvz(j - 4)
            else:
                mfs = []
            phi8(acc(2*m, 2 + dt), acc(2*m + 1, 2 + dt), acc(2*m, 2 + dt), inter=t1.get(j, []), mfs=mfs)
            if 1 <= j <= 4:
                for et in range(2):
                    pack8(acc(2*(j-1), 4 + et), acc(2*(j-1) + 1, 4 + et), acc(2*(j-1), 4 + et))
        if opt.get("tstamps"):
            stamp(a, opt, 56)
        for x in kvz(3):
            a(x)
        a("s_nop 3")
    else:
        for m in range(4):
            for dt in range(2):
                phi8(acc(2*m, 2 + dt), acc(2*m + 1, 2 + dt), acc(2*m, 2 + dt), inter=t1.get(m*2 + dt, []))
        lq.drained()
        kvm = []
        for m in range(4):
            for dt in range(2):
                c = vr(ZC + dt*4)
                kvm.append(f"{MF} {c}, {vr(acc(2*m, 2+dt))}, v[22:25], {'0' if m == 0 else c}")
        for m in range(4):
            for et in range(2):
                pack8(acc(2*m, 4 + et), acc(2*m + 1, 4 + et), acc(2*m, 4 + et))
                a(kvm.pop(0))
        for m in range(4):
            for dt in range(2):
                for et in range(2):
                    c = vr(KV + dt*8 + et*4)
                    a(f"{MF} {c}, {vr(acc(2*m, 2+dt))}, {vr(acc(2*m, 4+et))}, {'0' if m == 0 else c}")
        a("s_lshl_b32 s56, s38, 12")
        a(f"s_add_u32 s56, s56, {EX}")
        a("v_add_u32 v10, s56, v26")
        a("v_xor_b32 v11, 4096, v10")
    a("s_cmp_eq_u32 s39, 0")
    a("s_cbranch_scc1 K_EXW0")
    a(f"ds_write_b128 v10, {vr(ZC)} offset:2048")
    a(f"ds_write_b128 v10, {vr(KV)}")
    a(f"ds_write_b128 v10, {vr(KV+4)} offset:1024")
    a("s_waitcnt lgkmcnt(0)")
    for i in range(0, 8, 2):
        a(f"v_pk_mov_b32 {vr(KV+i, 2)}, {vr(KV+8+i, 2)}, {vr(KV+8+i, 2)} op_sel:[0,1]")
    for i in range(0, 4, 2):
        a(f"v_pk_mov_b32 {vr(ZC+i, 2)}, {vr(ZC+4+i, 2)}, {vr(ZC+4+i, 2)} op_sel:[0,1]")
    a("s_branch K_EXW1")
    a.label("K_EXW0")
    a(f"ds_write_b128 v10, {vr(ZC+4)} offset:2048")
    a("s_nop 2")
    a(f"ds_write_b128 v10, {vr(KV+8)}")
    a(f"ds_write_b128 v10, {vr(KV+12)} offset:1024")
    a("s_waitcnt lgkmcnt(0)")
    a.label("K_EXW1")
    lq.drained()
    if opt.get("tstamps"):
        stamp(a, opt, 57)
    a("s_barrier")
    if opt.get("tstamps"):
        stamp(a, opt, 58)
    a(f"ds_read_b128 {vr(KV+8)}, v11")
    a(f"ds_read_b128 {vr(KV+12)}, v11 offset:1024")
    a(f"ds_read_b128 {vr(ZC+4)}, v11 offset:2048")
    a("s_mov_b32 s56, 0x00010001")
    a("s_mov_b32 s57, 0x00010001")
    a("s_waitcnt lgkmcnt(0)")
    for i in range(0, 8, 2):
        a(f"v_pk_add_f32 {vr(KV+i, 2)}, {vr(KV+i, 2)}, {vr(KV+8+i, 2)}")
    for i in range(0, 4, 2):
        a(f"v_pk_add_f32 {vr(ZC+i, 2)}, {vr(ZC+i, 2)}, {vr(ZC+4+i, 2)}")
    for r in list(range(KV, KV + 8)) + list(range(ZC, ZC + 4)):
        a(f"v_min_u32 v{r}, -2, v{r}")
    vq.issue(f"buffer_store_dwordx4 {vr(KV)}, v26, s[24:27], s62 offen sc1", "P")
    vq.issue(f"buffer_store_dwordx4 {vr(KV+4)}, v26, s[24:27], s62 offen offset:1024 sc1", "P")
    a("s_mov_b64 exec, s[56:57]")
    vq.issue(f"buffer_store_dwordx4 {vr(ZC)}, v27, s[24:27], s62 offen offset:2048 sc1", "P")
    a("s_mov_b64 exec, -1")
    stamp(a, opt, 4)
    vq.need("C")
    a("s_mov_b32 s58, -1")
    a("s_mov_b32 s59, 0")
    a.label("K_HS")
    a("v_cmp_eq_u32 vcc, 8, v28")
    a("s_cmp_eq_u64 vcc, s[58:59]")
    a("s_cbranch_scc1 K_HSOK")
    a("s_sleep 2")
    a("v_lshlrev_b32 v10, 3, v1")
    a("buffer_load_dword v28, v10, s[28:31], 0 offen sc1")
    a("s_waitcnt vmcnt(0)")
    a("s_branch K_HS")
    a.label("K_HSOK")
    PB = [acc(p, 2) for p in range(8)]
    ZG = 48
    def gather_ops():
        ops = []
        for p in range(8):
            for k in range(2):
                ops.append(([f"s_add_u32 s56, s61, {p * 16384}"] if k == 0 else []) +
                           [("vm", f"buffer_load_dwordx4 {vr(PB[p] + 4*k)}, v26, s[24:27], s56 offen offset:{k*1024} sc1", "H")])
        ops.append([("vm", f"buffer_load_dwordx4 {vr(ZG)}, v30, s[24:27], s61 offen offset:2048 sc1", "H")])
        return ops
    def gather(track):
        for op in gather_ops():
            for x in op:
                a(x[1] if isinstance(x, tuple) else x)
    gops = gather_ops()
    if BQ:
        rd = breads(5, RES[5], True) + breads(6, RES[6], True) + breads(7, RES[7], True)
        rf[0] = rf[0][1:]
        rf[0] = [("needds", regs_of(ar(RES[5], 16)))] + rf[0]
        rf[4] = [("needds", regs_of(ar(RES[6], 16)))] + rf[4]
        rf[8] = [("needds", regs_of(ar(RES[7], 16)))] + rf[8]
        qfill = [[("needvm", ["B7"])] + rd[:1]] + [[x] for x in rd[1:]]
        qb = None
    else:
        qb = dmaB(12, 32768) + dmaB(13, 32768 + 4096)
    GQ = opt.get("gather_in_q", 0)
    ILQ = opt.get("ilq", 0)
    if ILQ:
        LA = opt.get("qla", 2)
        def qm(rt):
            return mf(15, rt, [0, 1], lambda ks: fXR(rt, ks)) + mf(14, rt, [0, 1], lambda ks: fX(rt % 2, ks))
        def xr(rt):
            return rdX(14, rt, lambda ks: fX(rt % 2, ks)) if rt < 8 else []
        for x in xr(0):
            put(x)
        for rt in range(LA):
            k = -(-len(qb) // (LA - rt)) if opt.get("qb_front", 1) else 0
            fill = {1: xr(rt + 1)}
            spread(fill, qb[:k], 2, 8); qb = qb[k:]
            weave(qm(rt), fill)
        stamp(a, opt, 13)
        G0, G1 = opt.get("g0", 2), opt.get("g1", 7)
        for rt in range(8):
            inter = []
            if rt + LA < 8:
                inter.append(xr(rt + LA + 1))
            if rt < G0 and qb:
                k = -(-len(qb) // (G0 - rt)); inter += qb[:k]; qb = qb[k:]
            if G0 <= rt < G1:
                k = -(-len(gops) // (G1 - rt)); inter += gops[:k]; gops = gops[k:]
            phi8(acc(rt, 0), acc(rt, 1), acc(rt, 0), inter=inter, mfs=qm(rt + LA) if rt + LA < 8 else [])
        assert not gops and not qb
    else:
        if DEFER >= 2:
            for x in rdX(14, 0, lambda ks: fX(0, ks)):
                put(x)
        for rt in range(8):
            fill = {}
            ms = mf(15, rt, [0, 1], lambda ks: fXR(rt, ks)) if DEFER >= 1 else []
            if DEFER >= 2:
                ms += mf(14, rt, [0, 1], lambda ks: fX(rt % 2, ks))
                if rt < 7:
                    fill[1] = rdX(14, rt + 1, lambda ks: fX((rt + 1) % 2, ks))
            if BQ:
                if rt < 3:
                    spread(fill, qfill[8*rt:8*rt+8], 0, len(ms))
                if rt >= 2:
                    spread(fill, rf[2*(rt-2):2*(rt-2)+2], 2, len(ms))
            else:
                fill.setdefault(2, []).extend(qb[rt])
            per = len(ms) // 4
            first_rt = 8 - -(-GQ // max(per, 1))
            if GQ and rt >= first_rt:
                k = min(per, GQ - (17 - len(gops)))
                spread(fill, gops[:k], 0, len(ms)); gops = gops[k:]
            weave(ms, fill)
        stamp(a, opt, 13)
        GSP = opt.get("gather_span", 7)
        for rt in range(8):
            k = -(-len(gops) // (GSP - rt)) if rt < GSP else 0
            phi8(acc(rt, 0), acc(rt, 1), acc(rt, 0), inter=gops[:k]); gops = gops[k:]
    gate_ld = [[("vm", f"buffer_load_dwordx4 {vr(acc(i, 1))}, v26, s[16:19], s60 offen offset:{i*1024}", "G")] for i in range(4)]
    gate_ld += [[("vm", f"buffer_load_dwordx4 {vr(acc(4 + i, 1))}, v26, s[32:35], 0 offen offset:{i*1024}", "G")] for i in range(2)]
    emit(gate_ld)
    stamp(a, opt, 5)
    S = 40
    vq.need("H")
    a.label("K_SUM")
    for i in range(0, 8, 2):
        a(f"v_pk_add_f32 {vr(S+i, 2)}, {vr(PB[0]+i, 2)}, {vr(PB[1]+i, 2)}")
    for i in range(4):
        a(f"v_add_f32_dpp v{52+i}, v{ZG+i}, v{ZG+i} quad_perm:[1,0,3,2] row_mask:0xf bank_mask:0xf")
    for p in range(2, 8):
        for i in range(0, 8, 2):
            a(f"v_pk_add_f32 {vr(S+i, 2)}, {vr(S+i, 2)}, {vr(PB[p]+i, 2)}")
        if p in (2, 3):
            ctrl = "quad_perm:[2,3,0,1]" if p == 2 else "row_half_mirror"
            for i in range(4):
                a(f"v_add_f32_dpp v{52+i}, v{52+i}, v{52+i} {ctrl} row_mask:0xf bank_mask:0xf")
    a(f"v_pk_add_f32 v[2:3], {vr(S, 2)}, {vr(S+2, 2)}")
    a(f"v_pk_add_f32 v[4:5], {vr(S+4, 2)}, {vr(S+6, 2)}")
    a(f"v_pk_add_f32 v[6:7], v[52:53], v[54:55]")
    a("v_pk_add_f32 v[2:3], v[2:3], v[4:5]")
    a("v_pk_add_f32 v[2:3], v[2:3], v[6:7]")
    a("v_cmp_u_f32 vcc, v2, v3")
    a("s_cbranch_vccz K_GOK")
    regs = [PB[p] + i for p in range(8) for i in range(8)] + [ZG + i for i in range(4)]
    a(f"v_max3_u32 v2, v{regs[0]}, v{regs[1]}, v{regs[2]}")
    regs = regs[3:]
    while regs:
        if len(regs) >= 2:
            a(f"v_max3_u32 v2, v2, v{regs[0]}, v{regs[1]}"); regs = regs[2:]
        else:
            a(f"v_max_u32 v2, v2, v{regs[0]}"); regs = regs[1:]
    a("v_cmp_eq_u32 vcc, -1, v2")
    a("s_cbranch_vccz K_GOK")
    if opt.get("stamps"):
        a("v_readlane_b32 s56, v31, 24")
        a("s_add_u32 s56, s56, 1")
        a("v_writelane_b32 v31, s56, 24")
    gather(False)
    a("s_waitcnt vmcnt(0)")
    a("s_branch K_SUM")
    a.label("K_GOK")
    stamp(a, opt, 6)
    for i in range(4):
        a(f"v_cvt_pk_bf16_f32 v{2+i}, v{S+2*i}, v{S+2*i+1}")
    a("v_cvt_pk_bf16_f32 v6, v52, v53")
    a("v_cvt_pk_bf16_f32 v7, v54, v55")
    a("s_mul_i32 s56, s40, 3072")
    a(f"s_add_u32 s56, s56, {EX2}")
    a("v_add_u32 v11, s56, v26")
    a("s_lshl_b32 s57, s39, 3")
    a("v_add_u32 v10, s57, v11")
    a("ds_write_b64 v10, v[6:7] offset:2048")
    a("ds_write_b64 v10, v[2:3]")
    a("ds_write_b64 v10, v[4:5] offset:1024")
    a("s_waitcnt lgkmcnt(0)")
    lq.drained()
    a("s_barrier")
    OPR = 40
    a(f"ds_read_b128 {vr(OPR+8)}, v11 offset:2048")
    a(f"ds_read_b128 {vr(OPR)}, v11")
    a(f"ds_read_b128 {vr(OPR+4)}, v11 offset:1024")
    a("s_waitcnt lgkmcnt(2)")
    eb = dmaB(14, 0) + dmaB(15, 4096) if opt.get("early14", 1) else []
    for rt in range(8):
        a(f"{MF} {vr(acc(rt, 4))}, {vr(OPR+8)}, {vr(acc(rt, 0))}, 0")
        if eb and rt % 2 == 0:
            emit(eb[:1]); eb = eb[1:]
    a("s_waitcnt lgkmcnt(0)")
    for rt in range(8):
        a(f"{MF} {vr(acc(rt, 2))}, {vr(OPR)}, {vr(acc(rt, 0))}, 0")
        a(f"{MF} {vr(acc(rt, 3))}, {vr(OPR+4)}, {vr(acc(rt, 0))}, 0")
        D = acc(rt, 4)
        a(f"v_add_f32 v{D}, v36, v{D}")
        a(f"v_rcp_f32 v{D}, v{D}")
        if eb and rt % 2 == 0:
            emit(eb[:1]); eb = eb[1:]
    a("s_add_u32 s63, s65, 4096")
    for rt in range(8):
        N, D = acc(rt, 2), acc(rt, 4)
        for r in range(0, 8, 2):
            a(f"v_pk_mul_f32 {vr(N+r, 2)}, {vr(N+r, 2)}, {vr(D, 2)} op_sel_hi:[1,0]")
        for r in range(0, 8, 2):
            a(f"v_cvt_pk_bf16_f32 v{D+4+r//2}, v{N+r}, v{N+r+1}")
        vq.issue(f"buffer_store_dwordx4 {vr(D+4)}, v26, s[24:27], {'s65' if rt < 4 else 's63'} offen offset:{(rt % 4)*1024} sc1", "O")
    stamp(a, opt, 7)
    if BQ:
        emit(dmaB(12, 32768) + dmaB(13, 32768 + 4096))
    if not opt.get("early14", 1):
        emit(dmaB(14, 0) + dmaB(15, 4096))
    for k in range(4):
        a(f"s_add_u32 s56, s38, {k + 1}")
        a("s_and_b32 s56, s56, 3")
        a("s_lshl_b32 s56, s56, 11")
        a(f"v_add_u32 v{2+k}, s56, v26")
    a("v_bfe_u32 v6, v1, 1, 4")
    a(f"v_lshlrev_b32 v6, {FS}, v6")
    a("v_and_b32 v7, 1, v1")
    a("v_lshl_add_u32 v6, v7, 2, v6")
    vq.need("G")
    for x in gate[1:] + gate2:
        a(x)
    srd(a, 16, 70, 2048 * 1024 * 2)
    a("v_add_u32 v7, s48, v26")
    a("v_add_u32 v8, 0x10000, v7")
    for j in range(3):
        a(f"s_xor_b32 s56, s38, {j + 1}")
        a("s_sub_u32 s57, s38, s56")
        a("s_sub_u32 s57, s57, 1")
        a("s_and_b32 s57, s57, 3")
        a("s_lshl_b32 s57, s57, 15")
        a("s_lshl_b32 s56, s56, 13")
        a("s_add_u32 s56, s56, s57")
        a(f"v_add_u32 v{9+j}, s56, v26")
    a("v_and_b32 v24, 15, v1")
    a("v_lshrrev_b32 v25, 4, v1")
    a("v_and_b32 v28, 1, v25")
    a("v_lshlrev_b32 v28, 5, v28")
    a("v_lshrrev_b32 v25, 1, v25")
    a("v_lshl_add_u32 v28, v25, 4, v28")
    FL = opt.get("fullline", 1)
    if FL:
        a("v_and_b32 v24, 7, v1")
        a("v_bfe_u32 v25, v1, 3, 1")
        a("v_lshl_add_u32 v28, v25, 6, v28")
    a("v_lshl_add_u32 v14, v24, 11, v28")
    if FL:
        a("v_add_u32 v15, 0x4000, v14")
    a("s_lshl_b32 s56, s50, 18")
    a("s_lshl_b32 s57, s38, 16")
    a("s_add_u32 s56, s56, s57")
    a("s_lshl_b32 s57, s51, 7")
    a("s_add_u32 s61, s56, s57")
    a(f"s_add_u32 s62, s61, {16*2048}")
    a("s_mov_b32 s60, 0")
    a("s_getpc_b64 s[66:67]")
    a.label("K_PC")
    a("s_add_u32 s66, s66, K_WAIT-K_PC")
    a("s_addc_u32 s67, s67, 0")
    D = opt.get("depth", 4)
    P2 = 128
    def acc2(i, ct): return P2 + (i * 4 + ct) * 4
    def fA(slot, i): return AQ[slot * 8 + i]
    def fB(s_, ct): return 64 + s_ * 16 + ct * 4
    order = list(range(8, 16)) + list(range(8))
    for ct in range(4):
        a(f"v_subrev_u32 v{16+ct}, 0x10000, v{32+ct}")
    vq.need("B8")
    for x in breads(order[0], fB(0, 0), False):
        put(x)
    if opt.get("atouch", 0):
        a("v_lshrrev_b32 v46, 3, v1")
        a("v_lshlrev_b32 v46, 13, v46")
        a("v_and_b32 v47, 7, v1")
        a("v_lshl_add_u32 v46, v47, 7, v46")
        a("s_and_b32 s56, s51, 7")
        a("s_lshl_b32 s56, s56, 10")
        a("v_add_u32 v46, s56, v46")
    EP = opt.get("early_poll", 0) and not NS
    if EP:
        vq.issue("buffer_load_dword v44, v6, s[24:27], s54 offen sc1", "E")
    def flag():
        a("s_mov_b64 exec, 1")
        a("buffer_store_dwordx2 v[38:39], v29, s[24:27], s55 offen sc1")
        a("s_mov_b64 exec, -1")
    FAST = opt.get("fast", 0)
    if not FAST and not NS:
        vq.need("O")
        flag()
        stamp(a, opt, 8)
        if EP:
            a("s_waitcnt vmcnt(1)"); vq.drained()
            a("v_cmp_ne_u32 vcc, -1, v44")
            a("s_lshr_b32 s57, vcc_lo, 1"); a("s_and_b32 s57, s57, vcc_lo"); a("s_or_b32 s60, s60, s57")
        if opt.get("fsleep"):
            a(f"s_sleep {opt['fsleep']}")
        if opt.get("fwait", 1):
            a("s_waitcnt vmcnt(0)"); vq.drained()
        PP = opt.get("pp", 0)
        if PP:
            want = sum(1 << (2*order[k]) for k in range(opt.get("pp_heads", 2)))
            a(f"s_and_b32 s57, s60, 0x{want:x}")
            a(f"s_cmp_eq_u32 s57, 0x{want:x}")
            a("s_cbranch_scc1 K_PPOK")
            for k in range(PP):
                a(f"buffer_load_dword v{48+k}, v6, s[24:27], s54 offen sc1")
                if k < PP - 1:
                    a(f"s_sleep {opt.get('pp_sleep', 3)}")
            a.label("K_PPL")
            for k in range(PP):
                a(f"s_waitcnt vmcnt({PP-1})")
                a(f"v_cmp_ne_u32 vcc, -1, v{48+k}")
                a("s_lshr_b32 s57, vcc_lo, 1"); a("s_and_b32 s57, s57, vcc_lo"); a("s_or_b32 s60, s60, s57")
                a(f"s_and_b32 s57, s60, 0x{want:x}")
                a(f"s_cmp_eq_u32 s57, 0x{want:x}")
                a("s_cbranch_scc1 K_PPOK")
                a(f"buffer_load_dword v{48+k}, v6, s[24:27], s54 offen sc1")
            a("s_branch K_PPL")
            a.label("K_PPOK")
    SC = " sc1" if opt.get("a_sc1", 1) else ""
    NT = opt.get("ntail", 3)
    N0 = 16 - NT
    FR = {}
    for n in range(N0):
        for i in range(8):
            FR[(n, i)] = (n, i)
    seq = [(n, i) for i in range(8) for n in range(N0, 16)]
    for k, f in enumerate(seq):
        FR[f] = (N0 + k // 8, k % 8)
    GRP = {}
    for f, (g, j) in FR.items():
        GRP.setdefault(g, {})[j] = f
    def areg(n, i):
        g, j = FR[(n, i)]
        return AQ[(g % 4) * 8 + j]
    def loadsA(g):
        ops = []
        for j in range(8):
            n, i = GRP[g][j]
            b = order[n]
            if g < N0:
                pre = [f"s_add_u32 s43, s53, {b*8192}"] if j == 0 else []
                so = "s43"
            else:
                pre = [f"s_add_u32 s{4 + m - N0}, s53, {order[m]*8192}" for m in range(N0, 16)] if (g == N0 and j == 0) else []
                so = f"s{4 + n - N0}"
            off = " offset:1024" if i % 2 else ""
            ops.append(pre + [("vm", f"buffer_load_dwordx4 {ar(areg(n, i))}, v{2 + i // 2}, s[24:27], {so} offen{off}{SC}", f"A{n}_{i}")])
        return ops
    def check(n):
        b = order[n]
        out = [f"s_bitcmp1_b32 s60, {2*b}", f"s_cbranch_scc1 K_RDY{n}", f"s_mov_b32 s59, {2*b}", "s_swappc_b64 s[68:69], s[66:67]", f"K_RDY{n}:"]
        return out
    def poll(g):
        return [("vm", f"buffer_load_dword v{40 + g % 4}, v6, s[24:27], s54 offen sc1", f"P{g}")]
    def upd(g):
        return [f"v_cmp_ne_u32 vcc, -1, v{40 + g % 4}"], ["s_lshr_b32 s57, vcc_lo, 1", "s_and_b32 s57, s57, vcc_lo", "s_or_b32 s60, s60, s57"]
    def gate_grp(g):
        out = []
        if NS:
            if g < N0:
                out += check(g)
            elif g == N0:
                for m in list(range(N0, 16)) + list(range(NS)):
                    out += check(m)
                out += [("vm", "buffer_load_dword v20, v6, s[24:27], s54 offen sc1", "GF")]
            return out
        if g < N0:
            out += check(g)
        elif g == N0:
            for m in range(N0, 16):
                out += check(m)
            out += [("vm", "buffer_load_dword v20, v6, s[24:27], s54 offen sc1", "GF")]
        if g + 3 <= N0 and g in PSET:
            out += poll(g)
        return out
    TA = opt.get("atouch", 0)
    PSET = opt.get("pset", [3])
    def touchA(n0, n1):
        b0 = order[n0]
        cnt = (n1 - n0) * 8
        return [f"s_add_u32 s56, s53, {b0*8192}", f"s_mov_b64 exec, 0x{(1 << cnt) - 1:x}" if cnt < 32 else "s_mov_b32 exec_hi, 0",
                ("vm", "buffer_load_dword v45, v46, s[24:27], s56 offen sc1", "T"), "s_mov_b64 exec, -1"]
    if FAST:
        vq.need("E")
        stamp(a, opt, 8)
        a("v_cmp_ne_u32 vcc, -1, v44")
        a("s_lshr_b32 s57, vcc_lo, 1"); a("s_and_b32 s60, s57, vcc_lo")
        want = (1 << (2*order[0])) | (1 << (2*order[1]))
        a(f"s_and_b32 s57, s60, 0x{want:x}")
        a(f"s_cmp_eq_u32 s57, 0x{want:x}")
        a("s_cbranch_scc0 K_SLOW")
        q0 = list(vq.q)
        for g in range(2):
            emit([poll(g)])
            emit(loadsA(g))
        flag()
        stamp(a, opt, 9)
        a("s_branch K_GO")
        a.label("K_SLOW")
        vq.q = q0
        flag()
    if NS:
        vq.need("O")
        stamp(a, opt, 8)
        if opt.get("spec_sleep"):
            a(f"s_sleep {opt['spec_sleep']}")
        FPOS = opt.get("fpos", 2)
        for g in range(NS):
            if g == FPOS:
                flag(); vq.q.append("F")
            emit(loadsA(g))
        if FPOS >= NS:
            flag(); vq.q.append("F")
        stamp(a, opt, 9)
    for g in range(0 if NS else 2):
        emit([gate_grp(g)])
        if g == 0:
            stamp(a, opt, 9)
        emit(loadsA(g))
    if FAST:
        a.label("K_GO")
    def redw(i):
        k = i // 2
        return [f"ds_write_b128 {'v7' if k < 2 else 'v8'}, {vr(acc2(i, ct))} offset:{(k % 2)*32768 + (i % 2)*4096 + ct*1024}" for ct in range(4)]
    def Bop(n, ct):
        b = order[n]
        return vr(fB(n % 2, ct)) if b >= 8 else ar(RES[b] + ct * 4)
    issued = set()
    NPOLL = opt.get("npoll", 5)
    for n in range(N0 if NS else 0):
        if n < NS:
            lq.need(regs_of(Bop(n, 0)))
            for i in range(8):
                vq.need(f"A{n}_{i}")
                a(f"{MF} v[48:51], {Bop(n, 0)}, {ar(areg(n, i))}, {'0' if i == 0 else 'v[48:51]'}")
            a("v_cmp_u_f32 vcc, v48, v48")
            a(f"s_cbranch_vccz K_VOK{n}")
            if opt.get("stamps"):
                a("v_readlane_b32 s56, v31, 22")
                a("s_add_u32 s56, s56, 1")
                a("v_writelane_b32 v31, s56, 22")
            a(f"s_mov_b32 s59, {2*order[n]}")
            a("s_swappc_b64 s[68:69], s[66:67]")
            for op in loadsA(n):
                for x in op:
                    a(x[1] if isinstance(x, tuple) else x)
            a("s_waitcnt vmcnt(0)")
            a.label(f"K_VOK{n}")
        else:
            vq.need(f"A{n}_7")
        if n == 0:
            stamp(a, opt, 12)
        if opt.get("pstamps"):
            stamp(a, opt, 32 + n)
        ms = []
        for i in range(8):
            for ct in range(4):
                c = vr(acc2(i, ct))
                ms.append(f"{MF} {c}, {Bop(n, ct)}, {ar(areg(n, i))}, {'0' if n == 0 else c}")
        fill = {}
        if 1 <= n <= NPOLL:
            u1, u2 = upd(n - 1)
            fill[0] = [("needvm", [f"P{n-1}"])] + u1; fill[1] = u2
        if n < NPOLL:
            fill.setdefault(2, []).extend(poll(n))
        if n + 1 < 8:
            spread(fill, [[x] for x in breads(order[n + 1], fB((n + 1) % 2, 0), False)], 4, 20)
        gs = [g for g in range(NS, n + 4) if g not in issued] if n >= 1 else []
        items = []
        for g in gs:
            items += [gate_grp(g)] + loadsA(g); issued.add(g)
        if items:
            spread(fill, items, 3, 30)
        weave(ms, fill)
    for n in range(0 if NS else N0):
        FINE = n < opt.get("fine", 2)
        if not FINE:
            vq.need(f"A{n}_7")
        else:
            vq.need(f"A{n}_0")
        if n == 0:
            stamp(a, opt, 12)
        if opt.get("pstamps"):
            stamp(a, opt, 32 + n)
        ms = []
        for i in range(8):
            for ct in range(4):
                c = vr(acc2(i, ct))
                ms.append(f"{MF} {c}, {Bop(n, ct)}, {ar(areg(n, i))}, {'0' if n == 0 else c}")
        fill = {}
        if n + 3 <= N0 and n in PSET:
            u1, u2 = upd(n)
            fill[0] = u1; fill[1] = u2
        if n + 1 < 8:
            spread(fill, [[x] for x in breads(order[n + 1], fB((n + 1) % 2, 0), False)], 4, 20)
        if n == 0:
            spread(fill, [gate_grp(2)] + loadsA(2), 2, 16)
            spread(fill, [gate_grp(3)] + loadsA(3), 16, 31)
            if TA:
                fill.setdefault(31, []).extend(touchA(4, TA))
        else:
            spread(fill, [gate_grp(n + 3)] + loadsA(n + 3), 2, opt.get("lspan", 28))
        if TA and n + TA < 16:
            fill.setdefault(31, []).extend(touchA(n + TA, n + TA + 1))
        if FINE:
            for i in range(1, 8):
                fill.setdefault(4 * i - 1, []).append(("needvm", [f"A{n}_{i}"]))
        weave(ms, fill)
    if opt.get("pstamps"):
        stamp(a, opt, 32 + N0)
    gf = [("needvm", ["GF"]), "v_mov_b32 v22, v20", "v_permlane16_swap_b32 v20, v22"]
    for r in (20, 22):
        gf += [f"v_sub_f32 v{r+1}, 1.0, v{r}", f"v_cvt_pk_bf16_f32 v{r+1}, v{r+1}, v{r+1}", f"v_and_b32 v{r+1}, 0xffff0000, v{r+1}"]
    gf += [["s_cmp_lt_u32 s38, 2", "s_cbranch_scc1 K_NOSWAP", "v_swap_b32 v20, v21", "v_swap_b32 v22, v23", "K_NOSWAP:"]]
    R = 128
    rds = [f"ds_read_b128 {vr(R + k*32 + j*4)}, v{9+k} offset:{j*1024}" for k in range(3) for j in range(8)]
    for i in range(8):
        vq.need(*[f"A{n}_{i}" for n in range(N0, 16)])
        ms = [f"{MF} {vr(acc2(i, ct))}, {Bop(n, ct)}, {ar(areg(n, i))}, {vr(acc2(i, ct))}" for ct in range(4) for n in range(N0, 16)]
        fill = {}
        if i == 0:
            spread(fill, [x if isinstance(x, list) else [x] for x in gf], 0, len(ms))
        if 1 <= i <= 6:
            spread(fill, [[w] for w in redw(i - 1)], min(2, len(ms) - 4), len(ms))
        if i == 7:
            stamp(a, opt, 14)
            a("s_waitcnt lgkmcnt(0)")
            if opt.get("pstamps"): stamp(a, opt, 17)
            a("s_barrier")
            if opt.get("pstamps"): stamp(a, opt, 18)
            spread(fill, [[r] for r in rds], 0, len(ms))
        weave(ms, fill)
    OWN = acc2(6, 0)
    if opt.get("thr"):
        a("s_memrealtime s[98:99]")
        a("s_waitcnt lgkmcnt(0)")
        a("s_sub_u32 s98, s98, s96")
        a(f"s_cmp_gt_u32 s98, {int(opt['thr']*100)}")
        a("s_cbranch_scc1 K_END")
    if opt.get("pstamps"): stamp(a, opt, 19)
    a("s_waitcnt lgkmcnt(15)")
    for j in range(0, 32, 2):
        a(f"v_pk_add_f32 {vr(OWN+j, 2)}, {vr(OWN+j, 2)}, {vr(R+j, 2)}")
    for j in range(0, 32, 2):
        gsel = 20 if j < 16 else 22
        a(f"v_pk_mul_f32 {vr(OWN+j, 2)}, {vr(OWN+j, 2)}, {vr(gsel, 2)} op_sel_hi:[1,0]")
    a("s_waitcnt lgkmcnt(0)")
    for pr in range(4):
        for j in range(8 * pr, 8 * pr + 8, 2):
            a(f"v_pk_add_f32 {vr(R+32+j, 2)}, {vr(R+32+j, 2)}, {vr(R+64+j, 2)}")
        for j in range(8 * pr, 8 * pr + 8, 2):
            gsel = 20 if j < 16 else 22
            a(f"v_pk_fma_f32 {vr(OWN+j, 2)}, {vr(R+32+j, 2)}, {vr(gsel, 2)}, {vr(OWN+j, 2)} op_sel:[0,1,0] op_sel_hi:[1,1,1]")
        b = 64 + 4 * pr
        for j in range(4):
            a(f"v_cvt_pk_bf16_f32 v{b+j}, v{OWN+8*pr+2*j}, v{OWN+8*pr+2*j+1}")
        a(f"v_permlane16_swap_b32 v{b}, v{b+2}")
        a(f"v_permlane16_swap_b32 v{b+1}, v{b+3}")
        if not FL:
            a(f"buffer_store_dwordx4 {vr(b)}, v14, s[16:19], {'s61' if pr < 2 else 's62'} offen offset:{(pr % 2)*64}{opt.get('ost', ' sc1')}")
        elif pr % 2 == 1:
            for j in range(4):
                a(f"v_mov_b32 v{80+j}, v{b-4+j}")
            for j in range(4):
                a(f"v_mov_b32_dpp v{b-4+j}, v{b+j} row_ror:8 row_mask:0xf bank_mask:0xc")
            for j in range(4):
                a(f"v_mov_b32_dpp v{b+j}, v{80+j} row_ror:8 row_mask:0xf bank_mask:0x3")
            so = 's61' if pr < 2 else 's62'
            a(f"buffer_store_dwordx4 {vr(b-4)}, v14, s[16:19], {so} offen{opt.get('ost', ' sc1')}")
            a(f"buffer_store_dwordx4 {vr(b)}, v15, s[16:19], {so} offen{opt.get('ost', ' sc1')}")
    stamp(a, opt, 15)
    stamp_out(a, opt, 0)
    if opt.get("dbgout"):
        a(f"s_cmp_eq_u32 s2, {opt.get('dbgwg', 0)}")
        a("s_cbranch_scc0 K_END")
        a("s_cmp_eq_u32 s38, 0")
        a("s_cbranch_scc0 K_END")
        a("v_readlane_b32 s56, v31, 30")
        for k, sl in enumerate([2, 32, 36, 3, 7, 12, 14, 29]):
            a(f"v_readlane_b32 s57, v31, {sl}")
            a("s_sub_u32 s57, s57, s56")
            a(f"v_writelane_b32 v30, s57, {k}")
        a("v_lshlrev_b32 v27, 3, v1")
        a("s_mov_b64 exec, 0xff")
        a("buffer_store_dword v30, v27, s[28:31], 0 offen offset:4")
    a.label("K_END")
    a("s_endpgm")
    a.label("K_WAIT")
    a("buffer_load_dword v44, v6, s[24:27], s54 offen sc1")
    if opt.get("stamps"):
        a("v_readlane_b32 s56, v31, 23")
        a("s_add_u32 s56, s56, 1")
        a("v_writelane_b32 v31, s56, 23")
    a("s_waitcnt vmcnt(0)")
    a("v_cmp_ne_u32 vcc, -1, v44")
    a("s_lshr_b32 s57, vcc_lo, 1"); a("s_and_b32 s57, s57, vcc_lo"); a("s_or_b32 s60, s60, s57")
    a("s_bitcmp1_b32 s60, s59")
    if opt.get("wsleep"):
        a("s_cbranch_scc1 K_LAST")
        a(f"s_sleep {opt['wsleep']}")
        a("s_branch K_WAIT")
    else:
        a("s_cbranch_scc0 K_WAIT")
    a.label("K_LAST")
    a("s_setpc_b64 s[68:69]")

def build(opt):
    a = Asm()
    gen(a, opt)
    out = HEADER + "; @launch grid=(256,1,1) block=(256,1,1) lds=163840\n"
    out += '.amdgcn_target "amdgcn-amd-amdhsa--gfx950"\n.text\n' + a.text() + '.section .rodata,"a"\n' + kd(KNAME, 512, 100 if opt.get('thr') else 96, 256)
    return out

if __name__ == "__main__":
    opt = {}
    for kv in sys.argv[2:]:
        k, v = kv.split("=")
        try:
            v = eval(v)
        except Exception:
            pass
        opt[k] = v
    open(sys.argv[1], "w").write(build(opt))
```

```python
import sys, struct
from asmlib import Asm, Ins, regs_of
from gen import f2u, LdsQ, kd, srd, stamp, stamp_out, HEADER, WS_DIAG, WS_SIZE, WS_SLOT, WS_G, LOG2E, EPS

MF = "v_mfma_f32_16x16x32_bf16"
WS_WOF = 16 << 20
WS_TOT = 20 << 20
KNAME = "gated_mix__linear_attn_block__linear_attn_block__prompt_kernel"
def vr(b, n=4): return f"v[{b}:{b+n-1}]"
def ar(b, n=4): return f"a[{b}:{b+n-1}]"

class VmQ:
    def __init__(self, a):
        self.a = a; self.q = []
    def issue(self, text, tag):
        self.a(text); self.q.append(tag)
    def count(self, tags):
        idx = -1
        for i, t in enumerate(self.q):
            if t in tags:
                idx = i
        if idx < 0:
            return None
        return min(len(self.q) - idx - 1, 63)
    def need(self, *tags, extra=""):
        n = self.count(tags)
        if n is None:
            if extra:
                self.a(f"s_waitcnt {extra}")
            return
        self.a(f"s_waitcnt vmcnt({n}) {extra}".rstrip())
        self.q = self.q[len(self.q) - n:] if n else []
    def drained(self):
        self.q = []

def gen(a, opt):
    lq = LdsQ(a); vq = VmQ(a)
    ABL = [""]
    def put(x):
        if ABL[0] and isinstance(x, tuple):
            if "x" in ABL[0] and x[0] == "ds" and "b128" in x[1]: return
            if "w" in ABL[0] and x[0] == "ds" and "tr_b16" in x[1]: return
            if "d" in ABL[0] and x[0] == "vm" and x[2][0] in "XW": return
            if "X" in ABL[0] and x[0] == "vm" and x[2][0] == "X": return
        if isinstance(x, tuple):
            if x[0] == "ds":
                lq.issue(x[1])
            elif x[0] == "vm":
                vq.issue(x[1], x[2])
            elif x[0] == "needvm":
                vq.need(*x[1])
            elif x[0] == "needds":
                lq.need(x[1])
        else:
            a(x)
    def weave(mf, fill):
        for g, m in enumerate(mf):
            lq.need(Ins(m).srcAB)
            a(m)
            for x in fill.get(g, []):
                put(x)
    def spread(fill, items, start, end):
        n = len(items)
        for i, it in enumerate(items):
            fill.setdefault(start + (i * (end - start)) // n, []).extend(it)

    XB = [0, 32768]
    WB = [65536 + 24576 * s for s in range(3)]
    EX = 139264
    EX2 = EX + 16384
    ACC = 64
    def acc(rt, ct): return ACC + (rt * 6 + ct) * 4
    def fW(st, ct, ks): return 48 * (st % 2) + (ct * 2 + ks) * 4
    def fX(e, ks): return 96 + e * 8 + ks * 4
    def fXR(rt, ks): return 112 + rt * 8 + ks * 4
    a.raw(f".globl {KNAME}\n.p2align 8\n.type {KNAME},@function")
    a.label(KNAME)
    a("s_cmp_ge_u32 s2, 256")
    a("s_cbranch_scc1 K_END")
    if opt.get("badmap"):
        a("s_lshr_b32 s3, s2, 5")
        a("s_and_b32 s2, s2, 31")
        a("s_lshl_b32 s2, s2, 3")
        a("s_or_b32 s2, s2, s3")
    a("s_load_dwordx4 s[4:7], s[0:1], 0")
    a("s_load_dwordx2 s[8:9], s[0:1], 32")
    a("s_load_dwordx4 s[68:71], s[0:1], 48")
    a("s_load_dwordx4 s[12:15], s[0:1], 64")
    a("s_load_dwordx2 s[74:75], s[0:1], 16")
    a("s_load_dwordx2 s[76:77], s[0:1], 40")
    if opt.get("thr"):
        a("s_memrealtime s[96:97]")
    if opt.get("stamps"):
        a("v_mov_b32 v31, 0")
    stamp(a, opt, 30, real=True)
    stamp(a, opt, 0)
    a("v_lshrrev_b32 v21, 6, v0")
    a("v_and_b32 v1, 63, v0")
    a("v_readfirstlane_b32 s38, v21")
    a("s_and_b32 s56, s2, 7")
    a("s_lshr_b32 s57, s2, 3")
    if opt.get("k1map", "A") == "A":
        a("s_and_b32 s36, s57, 7")
        a("s_lshr_b32 s58, s57, 3")
        a("s_lshl_b32 s37, s56, 2")
        a("s_add_u32 s37, s37, s58")
    else:
        a("s_and_b32 s36, s56, 1")
        a("s_lshl_b32 s36, s36, 2")
        a("s_and_b32 s58, s57, 3")
        a("s_add_u32 s36, s36, s58")
        a("s_lshr_b32 s37, s56, 1")
        a("s_lshl_b32 s37, s37, 3")
        a("s_lshr_b32 s58, s57, 2")
        a("s_add_u32 s37, s37, s58")
    a("s_and_b32 s39, s38, 1")
    a("s_lshr_b32 s40, s38, 1")
    a("s_and_b32 s41, s37, 15")
    a("s_lshr_b32 s42, s37, 4")
    a("v_lshrrev_b32 v21, 3, v1")
    a("v_and_b32 v22, 7, v1")
    a("v_lshrrev_b32 v23, 4, v1")
    a("v_and_b32 v24, 1, v23")
    a("v_lshlrev_b32 v24, 2, v24")
    a("v_xor_b32 v24, v22, v24")
    a("v_lshlrev_b32 v24, 4, v24")
    a("v_mul_u32_u24 v25, 6144, v21")
    a("v_add_u32 v24, v24, v25")
    a("v_xor_b32 v25, 32, v24")
    a("s_mul_i32 s56, s38, 6")
    a("s_lshl_b32 s59, s41, 7")
    for i in range(6):
        a(f"s_add_u32 s57, s56, {i}")
        a("s_lshr_b32 s58, s57, 3")
        a("s_and_b32 s57, s57, 7")
        a(f"s_mul_i32 s57, s57, {8*6144}")
        a("s_lshl_b32 s58, s58, 11")
        a("s_add_u32 s57, s57, s58")
        a("s_add_u32 s57, s57, s59")
        if i % 4:
            a(f"s_sub_u32 s57, s57, {(i % 4) * 1024}")
        a(f"v_add_u32 v{10+i}, s57, {'v24' if i % 2 == 0 else 'v25'}")
    a("v_xor_b32 v24, v22, v23")
    a("v_lshlrev_b32 v24, 4, v24")
    a("v_lshl_add_u32 v24, v21, 11, v24")
    a("s_lshl_b32 s56, s36, 19")
    a("s_lshl_b32 s57, s40, 18")
    a("s_add_u32 s56, s56, s57")
    a("s_lshl_b32 s57, s39, 16")
    a("s_add_u32 s56, s56, s57")
    a("v_add_u32 v2, s56, v24")
    a("v_xor_b32 v25, 64, v2")
    for i in range(1, 8):
        src = "v2" if i % 2 == 0 else "v25"
        a(f"v_add_u32 v{2+i}, {(i % 4)*16384 + (i // 4)*131072 - (i % 4) * 1024}, {src}")
    a("s_lshl_b32 s48, s38, 13")
    a("s_lshl_b32 s45, s40, 14")
    a("s_lshl_b32 s57, s39, 12")
    a("s_add_u32 s45, s45, s57")
    a("s_mov_b32 s72, 0")
    a("s_mul_i32 s49, s38, 6144")
    a("s_mov_b32 s43, 0")
    a("s_mov_b32 s44, 0")
    a("s_waitcnt lgkmcnt(0)")
    srd(a, 16, 4, 2048 * 1024 * 2)
    a("s_cmp_eq_u32 s42, 0")
    a("s_cselect_b32 s56, s6, s8")
    a("s_cselect_b32 s57, s7, s9")
    srd(a, 20, 56, 1024 * 3072 * 2)
    stamp(a, opt, 10)

    def dmaXh(t, h):
        ops = []
        so = "s43" if h == 0 else "s72"
        for i in range(4 * h, 4 * h + 4):
            pre = [f"s_add_u32 m0, s45, {XB[t % 2] + h * 8192}"] if i % 4 == 0 else []
            off = f" offset:{(i % 4) * 1024}" if i % 4 else ""
            ops.append(pre + [("vm", f"buffer_load_dwordx4 v{2+i}, s[16:19], {so} offen{off}{opt.get('dpol', '')} lds", f"X{t}{'ab'[h]}")])
        ops[3].append(f"s_add_u32 {so}, {so}, 128")
        return ops
    def dmaX(t):
        return dmaXh(t, 0) + dmaXh(t, 1)
    def dmaW(t):
        ops = []
        for i in range(6):
            pre = [f"s_add_u32 m0, s49, {WB[t % 3] + (i // 4) * 4096}"] if i % 4 == 0 else []
            off = f" offset:{(i % 4) * 1024}" if i % 4 else ""
            ops.append(pre + [("vm", f"buffer_load_dwordx4 v{10+i}, s[20:23], s44 offen{off}{opt.get('dpol', '')} lds", f"W{t}")])
        ops[5].append(f"s_add_u32 s44, s44, {64*6144}")
        return ops
    def emit(groups):
        for op in groups:
            for x in op:
                put(x)
    emit(dmaW(0) + dmaX(0))
    if opt.get("pre0"):
        emit(dmaW(1))
    stamp(a, opt, 11)
    srd(a, 24, 14, WS_TOT)
    srd(a, 28, 12, 256)
    srd(a, 32, 68, 2048)
    a("v_lshlrev_b32 v26, 4, v1")
    a("s_lshl_b32 s46, s37, 1")
    a("s_add_u32 s46, s46, s40")
    a("s_lshl_b32 s47, s36, 1")
    a("s_add_u32 s47, s47, s39")
    a("s_lshl_b32 s56, s47, 7")
    a("s_lshl_b32 s57, s46, 1")
    a("s_add_u32 s56, s56, s57")
    a("s_lshl_b32 s60, s56, 11")
    FS = opt.get("fs", 3)
    GB = WS_G if FS == 3 else WS_WOF
    a(f"s_lshl_b32 s55, s56, {FS - 1}")
    a(f"s_add_u32 s55, s55, {GB}")
    a("s_lshl_b32 s56, s47, 19")
    a("s_lshl_b32 s57, s46, 13")
    a("s_add_u32 s65, s56, s57")
    a("s_lshl_b32 s56, s37, 17")
    a("s_lshl_b32 s57, s38, 12")
    a("s_add_u32 s61, s56, s57")
    a(f"s_add_u32 s61, s61, {WS_SLOT}")
    a("s_lshl_b32 s57, s36, 14")
    a("s_add_u32 s62, s61, s57")
    a("v_lshrrev_b32 v27, 4, v1")
    a("v_lshlrev_b32 v27, 4, v27")
    a("v_and_b32 v30, 7, v1")
    a("v_lshl_add_u32 v30, v30, 14, v27")
    a("s_lshl_b32 s63, s37, 3")
    for i in range(4):
        a(f"v_mov_b32 v{32+i}, -1")
    a("v_lshlrev_b32 v38, 7, v1")
    a("v_mov_b32 v28, 1")
    if opt.get("thr"):
        a("s_getreg_b32 s56, hwreg(HW_REG_XCC_ID)")
        a("s_and_b32 s56, s56, 7")
        a("s_and_b32 s57, s2, 7")
        a("s_cmp_eq_u32 s56, s57")
        a("s_cselect_b32 s56, 1, 0x10001")
        a("v_mov_b32 v28, s56")
    a("v_mov_b32 v29, 0")
    sent = [[("vm", "buffer_store_dwordx4 v[32:35], v26, s[24:27], s62 offen sc1", "S")],
            [("vm", "buffer_store_dwordx4 v[32:35], v26, s[24:27], s62 offen offset:1024 sc1", "S")],
            [("vm", "buffer_store_dwordx4 v[32:35], v27, s[24:27], s62 offen offset:2048 sc1", "S")],
            [("vm", "buffer_store_dwordx2 v[32:33], v29, s[24:27], s55 offen sc1", "S")]]
    NS = opt.get("spec", 0)
    if NS:
        a("s_lshl_b32 s56, s2, 2")
        a("s_add_u32 s56, s56, s38")
        a("s_lshr_b32 s57, s56, 4")
        a("s_lshl_b32 s57, s57, 17")
        a("s_and_b32 s56, s56, 15")
        a(f"s_mul_i32 s56, s56, {NS*512}")
        a("s_add_u32 s3, s56, s57")
        a("s_add_u32 s3, s3, 65536")
        for k in range(NS // 2):
            sent.append([("vm", f"buffer_store_dwordx4 v[32:35], v26, s[24:27], s3 offen offset:{k*1024} sc1", "S")])
    if opt.get("sent_pro"):
        emit(sent)
    a("v_and_b32 v21, 15, v1")
    a("v_lshrrev_b32 v22, 4, v1")
    a("v_bfe_u32 v23, v1, 1, 3")
    a("v_xor_b32 v23, v23, v22")
    a("v_lshlrev_b32 v23, 4, v23")
    a("v_lshl_add_u32 v23, v21, 7, v23")
    a("s_lshl_b32 s56, s39, 14")
    a("v_add_u32 v16, s56, v23")
    a("v_xor_b32 v17, 64, v16")
    a("v_bfe_u32 v23, v1, 2, 2")
    a("v_lshl_add_u32 v24, v22, 3, v23")
    a("v_lshlrev_b32 v24, 7, v24")
    a("v_bfe_u32 v25, v1, 1, 1")
    a("s_lshl_b32 s56, s40, 2")
    a("v_or_b32 v25, s56, v25")
    a("v_and_b32 v36, 2, v23")
    a("v_lshlrev_b32 v36, 1, v36")
    a("v_xor_b32 v25, v25, v36")
    a("v_and_b32 v36, 1, v22")
    a("v_lshlrev_b32 v36, 1, v36")
    a("v_xor_b32 v25, v25, v36")
    a("v_lshl_add_u32 v24, v25, 4, v24")
    a("v_and_b32 v36, 1, v1")
    a("v_lshl_add_u32 v24, v36, 3, v24")
    a("v_xor_b32 v25, 32, v24")
    for s in range(3):
        a(f"v_add_u32 v{18+2*s}, {WB[s]}, v24")
        a(f"v_add_u32 v{19+2*s}, {WB[s]}, v25")
    a(f"v_mov_b32 v36, 0x{f2u(EPS):08x}")
    a(f"v_mov_b32 v37, v36")
    for rt in range(8):
        for r in range(0, 16, 2):
            a(f"v_pk_mov_b32 {vr(acc(rt, 0) + r, 2)}, v[36:37], v[36:37]")
    if opt.get("wpace", 6):
        a("s_lshl_b32 s56, s2, 2")
        a("s_add_u32 s56, s56, s38")
        a("s_bitcmp1_b32 s56, 3")
        a("s_cselect_b32 s84, s8, s6")
        a("s_cselect_b32 s85, s9, s7")
        a("s_and_b32 s85, s85, 0xffff")
        a(f"s_mov_b32 s86, {1024*3072*2}")
        a("s_mov_b32 s87, 0x00020000")
        a("s_lshr_b32 s57, s56, 4")
        a(f"s_add_u32 s57, s57, {64*opt.get('wpace', 6)}")
        a("s_mul_i32 s73, s57, 6144")
        a("s_and_b32 s57, s56, 7")
        a("s_mul_i32 s57, s57, 768")
        a("s_add_u32 s73, s73, s57")
        pass
    PRE = opt.get("pre", "W1")
    pre_list = {"none": [], "W1": dmaW(1), "W1X1": dmaW(1) + dmaX(1)}[PRE]
    if opt.get("pre0"):
        pre_list = pre_list[6:]
    if opt.get("pre_first"):
        emit(pre_list); pre_list = []
    ET = opt.get("etouch", 1)
    if ET == 1:
        a("s_lshl_b32 s56, s2, 2")
        a("s_add_u32 s56, s56, s38")
        a("s_lshr_b32 s57, s56, 4")
        a("s_lshl_b32 s57, s57, 3")
        a("s_and_b32 s58, s56, 7")
        a("s_add_u32 s57, s57, s58")
        a(f"s_add_u32 s57, s57, {opt.get('et_row0', 0)}")
        a(f"s_cmp_lt_u32 s57, {64*opt.get('wpace', 6)}")
        a("s_cselect_b32 s57, s57, 1024")
        a("s_mul_i32 s57, s57, 6144")
        a("v_lshlrev_b32 v40, 10, v1")
        a("s_mov_b64 exec, 0x3f")
        vq.issue("buffer_load_dword v39, v40, s[84:87], s57 offen offset:384", "T")
        a("s_mov_b64 exec, -1")
    if ET == 2:
        for st in range(opt.get("et0", 2), opt.get("wpace", 6)):
            a(f"s_sub_u32 s57, s73, {(opt.get('wpace', 6) - st)*64*6144}")
            a("s_mov_b64 exec, 0x3f")
            vq.issue("buffer_load_dword v39, v38, s[84:87], s57 offen", "T")
            a("s_mov_b64 exec, -1")
    if opt.get("ctouch", 1):
        a("s_getpc_b64 s[56:57]")
        a.label("K_CT")
        a(f"s_sub_u32 s56, s56, K_CT-{KNAME}")
        a("s_subb_u32 s57, s57, 0")
        a("s_mov_b64 s[88:89], s[56:57]")
        a("s_lshr_b32 s58, s2, 3")
        a("s_lshl_b32 s58, s58, 2")
        a("s_add_u32 s58, s58, s38")
        a("s_lshl_b32 s79, s58, 7")
        a("s_mul_i32 s58, s58, 384")
        a("v_add_u32 v40, s58, v38")
        a(f"v_min_u32 v40, K_LAST-{KNAME}, v40")
        a("s_mov_b64 exec, 7")
        vq.issue("global_load_dword v39, v40, s[56:57]", "T")
        a("s_mov_b64 exec, -1")
    emit(pre_list)
    if opt.get("xsp", 0x3c):
        m = opt.get("xsp", 0x3c)
        emit([[f"s_mov_b32 exec_lo, 0x{m | (m << 16):x}", "s_mov_b32 exec_hi, 0", ("vm", "buffer_load_dword v39, v38, s[16:19], s60 offen", "T"), "s_mov_b64 exec, -1"]])
    stamp(a, opt, 1)

    def rdW(t):
        ops = []
        for ct in range(6):
            for ks in range(2):
                for sub in range(2):
                    r = fW(t, ct, ks) + 2 * sub
                    ops.append(("ds", f"ds_read_b64_tr_b16 {ar(r, 2)}, v{18 + 2*(t % 3) + (ct & 1)} offset:{(ct >> 1)*8192 + ks*4096 + sub*512}"))
        return ops
    def rdX(t, rt, dst):
        return [("ds", f"ds_read_b128 {ar(dst(ks))}, v{16+ks} offset:{XB[t % 2] + rt*2048}") for ks in range(2)]
    def mf(t, rt, cts, X):
        out = []
        for ct in cts:
            for ks in range(2):
                W = ar(fW(t, ct, ks))
                A, B = (W, ar(X(ks))) if ct < 2 else (ar(X(ks)), W)
                c = vr(acc(rt, ct))
                cin = "0" if (t == 0 and ks == 0 and ct >= 4) else c
                out.append(f"{MF} {c}, {A}, {B}, {cin}")
        return out
    DEFER = opt.get("defer", 2)
    HST = opt.get("hst", 7 if opt.get("spec", 0) else 5)
    DSP = opt.get("dma_per_block", 2)
    IL = opt.get("il", 1)
    def cts_of(t):
        if IL and t == 15:
            return [2, 3]
        return [2, 3, 4, 5] if t >= 16 - DEFER else [0, 1, 2, 3, 4, 5]
    def Xreg(t, rt): return (lambda ks: fXR(rt, ks)) if t == 15 else (lambda ks: fX(rt % 2, ks))
    def blocks2(seq, pend, wreads, front=None, valu=()):
        CAP = opt.get("cap", 2)
        VC = opt.get("vcost", 2)
        nbs = [len(cts_of(t)) * 2 for t, _ in seq]
        starts = [sum(nbs[:i]) for i in range(len(seq))]
        G = sum(nbs)
        load = [0] * (G + 64)
        fill = {}
        def cost(x):
            if isinstance(x, tuple):
                return VC if x[0] == "vm" else (1 if x[0] == "ds" else 0)
            return 0 if x.endswith(":") else 1
        def place(g, grp, lim=None):
            c = sum(cost(x) for x in grp)
            lim = G - 1 if lim is None else lim
            g0 = g
            while g < lim and load[g] + min(c, CAP) > CAP:
                g += 1
            g = min(g, lim)
            load[g] += c
            fill.setdefault(g, []).extend(grp)
            return g
        if front:
            fill[0] = list(front); load[0] = 99
        for n, (t, rt) in enumerate(seq):
            if rt < 7: nx = rdX(t, rt + 1, Xreg(t, rt + 1))
            elif t < 15: nx = rdX(t + 1, 0, Xreg(t + 1, 0))
            else: nx = []
            for k, x in enumerate(nx):
                fill.setdefault(starts[n] + k, []).append(x); load[starts[n] + k] += 1
            if n: load[starts[n] - 1] += 1
        stream = []
        for grp in pend:
            atomic = any(isinstance(x, str) and ("exec" in x or x.endswith(":") or "cbranch" in x) for x in grp)
            if atomic: stream.append((grp, True))
            else:
                for x in grp: stream.append(([x], isinstance(x, tuple) and x[0] == "vm"))
        nv = sum(1 for _, v in stream if v)
        if nv:
            step = min(max(nbs) / DSP, (G - 3) / nv)
            pos = 2.0; last = 0
            for idx, (grp, isv) in enumerate(stream):
                if isv:
                    last = place(max(last, int(pos)), grp) ; pos = max(pos + step, last + 1.0)
                    last_v = last
                else:
                    nxt_v = idx + 1 < len(stream) and (stream[idx + 1][1] or not stream[idx+1][1]) and "m0" in grp[0]
                    tgt = max(last, int(pos) - 1) if nxt_v else last
                    last = place(tgt, grp)
                    if nxt_v: pos = max(pos, last + 1.0)
        ok = [starts[n] + g for n, (t, rt) in enumerate(seq) if rt < 7 for g in range(nbs[n])]
        if wreads:
            WEND = opt.get("wend", 8)
            ok2 = ok[:max(len(wreads) // 2, len(ok) - WEND)]
            last = ok2[0]
            for k, x in enumerate(wreads):
                last = place(max(last, ok2[(k * len(ok2)) // len(wreads)]), [x], lim=ok[-1])
        valu = [x if isinstance(x, list) else [x] for x in valu]
        last = 0
        for k, grp in enumerate(valu):
            last = place(max(last, (k * (G - 4)) // len(valu)), grp)
        for n, (t, rt) in enumerate(seq):
            lq.need(regs_of(ar(Xreg(t, rt)(0), 8)))
            weave(mf(t, rt, cts_of(t), Xreg(t, rt)), {g - starts[n]: v for g, v in fill.items() if starts[n] <= g < starts[n] + nbs[n]})

    def blocks(seq, pend, wreads, front=None, valu=()):
        if opt.get("sched2", 1):
            return blocks2(seq, pend, wreads, front, valu)
        pend = list(pend); wreads = list(wreads); valu = list(valu)
        for n, (t, rt) in enumerate(seq):
            cts = cts_of(t)
            nb = len(cts) * 2
            fill = {}
            if rt < 7:
                nx = rdX(t, rt + 1, Xreg(t, rt + 1))
            elif t < 15:
                nx = rdX(t + 1, 0, Xreg(t + 1, 0))
            else:
                nx = []
            items = [[x] for x in nx]
            left_w = len([1 for (_, r) in seq[n:] if r < 7])
            if rt < 7 and wreads:
                k = -(-len(wreads) // left_w)
                items += [[x] for x in wreads[:k]]
                wreads = wreads[k:]
            if n == 0 and front:
                fill[0] = list(front)
            spread(fill, items, 0, nb - 1)
            k = min(len(pend), max(DSP, -(-len(pend) // (len(seq) - n))))
            spread(fill, pend[:k], 1, nb)
            pend = pend[k:]
            k = -(-len(valu) // (len(seq) - n))
            spread(fill, [x if isinstance(x, list) else [x] for x in valu[:k]], 0, nb)
            valu = valu[k:]
            weave(mf(t, rt, cts, Xreg(t, rt)), fill)
        assert not pend and not wreads and not valu

    vq.need("W0", "X0a")
    a("s_barrier")
    stamp(a, opt, 2)
    stamp(a, opt, 25, real=True)
    w0 = rdW(0)
    for x in w0[:4] + rdX(0, 0, lambda ks: fX(0, ks)) + w0[4:13]:
        put(x)
    rest0 = ([] if PRE != "none" else dmaW(1)) + ([] if PRE == "W1X1" else dmaXh(1, 0)) + dmaW(2) + ([] if PRE == "W1X1" else dmaXh(1, 1))
    k0 = min(len(rest0), opt.get("k0", 10))
    blocks([(0, r) for r in range(3)], rest0[:k0], [], front=w0[13:])
    vq.need("W1", "X0b", extra="lgkmcnt(0)")
    lq.drained()
    a("s_barrier")
    x0 = []
    if opt.get("xs0"):
        m = opt["xs0"]
        x0 = [[f"s_mov_b32 exec_lo, 0x{m | (m << 16):x}", "s_mov_b32 exec_hi, 0", ("vm", "buffer_load_dword v39, v38, s[16:19], s60 offen", "T"), "s_mov_b64 exec, -1"]]
    blocks([(0, r) for r in range(3, 7)], rest0[k0:] + dmaXh(2, 0) + dmaW(3) + x0, rdW(1))

    def window1(t, extra=(), last=False, valu=(), first=()):
        ABL[0] = opt.get("abl", "") if 1 <= t <= 12 else ""
        vq.need(f"X{t+1}a", f"X{t+1}b", f"W{t+2}", *( ["S"] if t == HST else []), extra="lgkmcnt(0)")
        lq.drained()
        a("s_barrier")
        if opt.get("wstamps"):
            stamp(a, opt, 32 + t)
        pend = list(first)
        if t + 2 <= 15:
            pend += dmaX(t + 2) if t > 0 else dmaXh(2, 1)
        if t + 4 <= 15:
            pend += dmaW(t + 4)
        pend += list(extra)
        seq = [(t, 7)] + [(t + 1, r) for r in range(8 if last else 7)]
        blocks(seq, pend, rdW(t + 2) if t + 2 <= 15 else [], valu=valu)

    def window(t, extra=(), last=False, valu=(), first=()):
        if not opt.get("mid", 0):
            return window1(t, extra, last, valu, first)
        vq.need(f"X{t+1}a", f"W{t+2}", *( ["S"] if t == HST else []), extra="lgkmcnt(0)")
        lq.drained()
        a("s_barrier")
        if opt.get("wstamps"):
            stamp(a, opt, 32 + t)
        pend = list(first)
        if t + 2 <= 15:
            pend += dmaXh(t + 2, 1)
        wd = dmaW(t + 4) if t + 4 <= 15 else []
        pend += wd[:4]
        wr = rdW(t + 2) if t + 2 <= 15 else []
        valu = list(valu); extra = list(extra)
        nv = len(valu) // 2
        ne = len(extra) // 2 if last else 0
        blocks([(t, 7)] + [(t + 1, r) for r in range(3)], pend + extra[:ne], wr[:10], valu=valu[:nv])
        vq.need(f"X{t+1}b")
        lq.need(regs_of(ar(Xreg(t + 1, 3)(0), 8)))
        a("s_barrier")
        pend = []
        if t + 3 <= 15:
            pend += dmaXh(t + 3, 0)
        if wd:
            wd[4] = [f"s_add_u32 m0, s49, {WB[(t + 4) % 3] + 4096}"] + wd[4][1:]
        pend += wd[4:] + extra[ne:]
        blocks([(t + 1, r) for r in range(3, 8 if last else 7)], pend, wr[10:], valu=valu[nv:])

    hs = ["s_cmp_lg_u32 s38, 0", "s_cbranch_scc1 K_NOATOM", "s_mov_b64 exec, 1",
          "buffer_atomic_add v28, v29, s[28:31], s63 offen sc1", "s_mov_b64 exec, -1", "K_NOATOM:"]
    G = 64
    gate = [("needvm", ["G"]), "v_mov_b32 v38, 0", "v_mov_b32 v39, 0"]
    for i in range(8):
        gr = lambda j: acc(j // 4, 1) + j % 4
        gate.append(f"v_dot2_f32_bf16 v38, v{gr(i)}, v{gr(16+i)}, v38")
        gate.append(f"v_dot2_f32_bf16 v39, v{gr(8+i)}, v{gr(16+i)}, v39")
    for ctrl in ("quad_perm:[1,0,3,2]", "quad_perm:[2,3,0,1]", "row_half_mirror", "row_mirror"):
        for r in (38, 39):
            gate.append(f"v_add_f32_dpp v{r}, v{r}, v{r} {ctrl} row_mask:0xf bank_mask:0xf")
    gate2 = []
    for r in (38, 39):
        for k, ln in enumerate((0, 16, 32, 48)):
            gate2.append(f"v_readlane_b32 s{4 + (r-38)*4 + k}, v{r}, {ln}")
    for r, s0 in ((38, 4), (39, 8)):
        gate2 += [f"v_mov_b32 v{r}, s{s0}", f"v_add_f32 v{r}, s{s0+1}, v{r}", f"v_add_f32 v{r}, s{s0+2}, v{r}", f"v_add_f32 v{r}, s{s0+3}, v{r}"]
    for ops in (["v_cvt_pk_bf16_f32 v{r}, v{r}, v{r}", "v_and_b32 v{r}, 0xffff0000, v{r}", "v_mul_f32 v{r}, 0x%08x, v{r}" % f2u(-LOG2E),
                 "v_exp_f32 v{r}, v{r}", "v_add_f32 v{r}, 1.0, v{r}", "v_rcp_f32 v{r}, v{r}", "v_cvt_pk_bf16_f32 v{r}, v{r}, v{r}",
                 "v_and_b32 v{r}, 0xffff0000, v{r}"]):
        for r in (38, 39):
            gate2.append(ops.format(r=r))

    LM = opt.get("lm", 2)
    p2 = ["s_and_b32 s56, s2, 7", "s_lshr_b32 s57, s2, 3",
          f"s_and_b32 s50, s56, {(16 >> LM) - 1}", f"s_lshl_b32 s50, s50, {LM}", f"s_and_b32 s58, s57, {(1 << LM) - 1}", "s_add_u32 s50, s50, s58",
          f"s_lshr_b32 s51, s56, {4 - LM}", f"s_lshl_b32 s51, s51, {5 - LM}", f"s_lshr_b32 s58, s57, {LM}", "s_add_u32 s51, s51, s58",
          ["s_cmp_lt_u32 s38, 2", "s_cselect_b32 s80, s74, s76", "s_cselect_b32 s81, s75, s77"],
          "s_and_b32 s81, s81, 0xffff", f"s_mov_b32 s82, {1024*1024*2}", "s_mov_b32 s83, 0x00020000",
          "s_lshl_b32 s52, s39, 20", "s_lshl_b32 s56, s51, 7", "s_add_u32 s52, s52, s56",
          "s_lshl_b32 s53, s50, 19", "s_lshl_b32 s56, s38, 17", "s_add_u32 s53, s53, s56",
          f"s_lshl_b32 s56, s50, {6 + FS}", f"s_lshl_b32 s57, s38, {4 + FS}", "s_add_u32 s56, s56, s57", f"s_add_u32 s54, s56, {GB}",
          "v_lshrrev_b32 v48, 3, v1", "v_and_b32 v49, 7, v1", "v_bfe_u32 v50, v1, 4, 1", "v_lshlrev_b32 v50, 2, v50",
          "v_xor_b32 v49, v49, v50", "v_bfe_u32 v50, v1, 5, 1", "v_lshlrev_b32 v50, 1, v50", "v_xor_b32 v49, v49, v50",
          "v_lshlrev_b32 v49, 4, v49", "v_lshl_add_u32 v40, v48, 11, v49"]
    p2 += [f"v_add_u32 v{40+i}, {i*(8*2048 - 1024)}, v40" for i in range(1, 4)]
    HS = opt.get("halfst", 1)
    p2 += ["s_mul_i32 s64, s38, 6144" if HS else "s_lshl_b32 s64, s38, 12", f"s_add_u32 s64, s64, {EX}"]
    p2b = ["v_lshrrev_b32 v48, 4, v1", "v_bfe_u32 v49, v1, 2, 2", "v_lshl_add_u32 v50, v48, 2, v49", "v_lshlrev_b32 v50, 7, v50",
           "v_bfe_u32 v51, v1, 1, 1", "v_and_b32 v52, 2, v49", "v_lshlrev_b32 v52, 1, v52", "v_xor_b32 v51, v51, v52",
           "v_and_b32 v52, 1, v48", "v_lshlrev_b32 v52, 1, v52", "v_xor_b32 v51, v51, v52", "v_lshl_add_u32 v50, v51, 4, v50",
           "v_and_b32 v52, 1, v1", "v_lshl_add_u32 v50, v52, 3, v50", "v_add_u32 v44, s64, v50"]
    p2b += [f"v_xor_b32 v{44+ct}, {ct*32}, v44" for ct in range(1, 4)]
    p2b += ["v_lshlrev_b32 v53, 3, v1"]
    p2c = [f"v_mov_b32 v{12+i}, v{40+i}" for i in range(4)] + ["s_add_u32 s56, s48, 0x10000", "v_add_u32 v32, s56, v50"]
    p2c += [f"v_xor_b32 v{32+ct}, {ct*32}, v32" for ct in range(1, 4)]
    SLOT = {}
    RES = {0: 176, 1: 192, 2: 208, 3: 224, 4: 240, 5: 16, 6: 32, 7: 64}
    AQ = [q for q in range(0, 256, 4) if not any(r <= q < r + 16 for r in RES.values())]
    assert len(AQ) == 32
    def dmaB(b, slot):
        SLOT[b] = slot
        ops = []
        for j in range(4):
            off = f" offset:{j*1024}" if j else ""
            m0 = "s_mov_b32 m0, s64" if slot is None else f"s_add_u32 m0, s48, {slot}"
            ops.append(([m0] if j == 0 else []) +
                       [("vm", f"buffer_load_dwordx4 v{(40 if slot is None else 12)+j}, s[80:83], s52 offen{off} lds", f"B{b}")])
        ops[-1].append("s_add_u32 s52, s52, 65536")
        return ops
    def breads(b, dst, agpr):
        sl = SLOT[b]
        base = 44 if sl is None else (32 if sl >= 65536 else 16)
        o = 0 if sl is None else sl % 65536
        return [("ds", f"ds_read_b64_tr_b16 {(ar if agpr else vr)(dst + ct*4 + 2*sub, 2)}, v{base+ct} offset:{o + sub*2048}")
                for ct in range(4) for sub in range(2)]
    PD = opt.get("wpace", 6)
    def wp():
        return ["s_mov_b64 exec, 0x3f", ("vm", "buffer_load_dword v39, v38, s[84:87], s73 offen", "T"), "s_mov_b64 exec, -1",
                f"s_add_u32 s73, s73, {64*6144}"]
    wt_setup = [["s_bitcmp1_b32 s38, 0", "s_cselect_b32 s92, s76, s74", "s_cselect_b32 s93, s77, s75"], "s_and_b32 s93, s93, 0xffff",
                f"s_mov_b32 s94, {1024*1024*2}", "s_mov_b32 s95, 0x00020000",
                "s_lshl_b32 s78, s2, 1", "s_add_u32 s78, s78, s40", "s_lshl_b32 s78, s78, 12"]
    WTN, WT0 = opt.get("wtn", 4), opt.get("wt0", 9)
    def wt(k):
        n = 32 // WTN
        return [f"s_mov_b64 exec, 0x{(1 << n) - 1:x}",
                ("vm", f"buffer_load_dword v39, v38, s[92:95], s78 offen offset:{k*n*128}", "T"), "s_mov_b64 exec, -1"]
    xs = opt.get("xsplit", {0: 0xc0, 1: 0x300, 2: 0xc00, 3: 0x3000, 4: 0xc000})
    ST0 = opt.get("st0", 2 if HS else 3)
    sw = opt.get("sent_w", [1, 2, 3, 3, 4, 5]) if not opt.get("sent_pro") else [-1] * 6
    for t in range(15):
        kw = {"extra": [], "valu": []}
        if xs and t in xs:
            m = xs[t]
            kw["extra"] += [[f"s_mov_b32 exec_lo, 0x{m | (m << 16):x}", "s_mov_b32 exec_hi, 0", ("vm", "buffer_load_dword v39, v38, s[16:19], s60 offen", "T"), "s_mov_b64 exec, -1"]]
        if PD and t + PD <= 15: kw["extra"] += [wp()]
        if t == ST0 - 2: kw["valu"] += p2
        if t == ST0 - 1: kw["valu"] += p2b
        for k in range(len(sent)):
            if sw[k] == t: kw["extra"] += [sent[k]]
        if t == HST: kw["extra"] += [hs]
        TL = opt.get("tlb", "")
        if TL and t == opt.get("tlb_w", 12):
            grp = ["s_mov_b64 exec, 1"]
            if "o" in TL: grp.append(("vm", "buffer_load_dword v39, v29, s[24:27], s65 offen sc1", "T"))
            if "a" in TL: grp.append(("vm", "buffer_load_dword v39, v29, s[24:27], s53 offen sc1", "T"))
            if "A" in TL:
                grp += ["s_mov_b64 exec, 3", "v_lshlrev_b32 v54, 16, v1", ("vm", "buffer_load_dword v39, v54, s[24:27], s53 offen sc1", "T"), "s_mov_b64 exec, 1"]
            if "u" in TL:
                grp += ["s_lshl_b32 s59, s50, 18", "s_lshl_b32 s58, s38, 16", "s_add_u32 s59, s59, s58", "v_mov_b32 v54, s59",
                        ("vm", "global_load_dword v39, v54, s[70:71]", "T")]
            kw["extra"] += [grp + ["s_mov_b64 exec, -1"]]
        for (tw, lab, nl) in opt.get("ct2", [(4, "K_W7", 1), (12, "K_TAIL", 2)]):
            if t == tw:
                kw["extra"] += [[f"s_add_u32 s59, s79, {lab}-{KNAME}", "v_lshlrev_b32 v54, 14, v1", "v_add_u32 v54, s59, v54",
                                 f"v_min_u32 v54, K_LAST-{KNAME}, v54", f"s_mov_b64 exec, {(1 << nl) - 1}",
                                 ("vm", "global_load_dword v39, v54, s[88:89]", "T"), "s_mov_b64 exec, -1"]]
        a.label(f"K_W{t}")
        if t == WT0 - 1: kw["valu"] += wt_setup
        if WT0 <= t < WT0 + WTN: kw["extra"] += [wt(t - WT0)]
        LT = opt.get("lt")
        if LT:
            if t == min(LT) - 1:
                kw["valu"] += ["v_lshrrev_b32 v55, 3, v1", "v_lshlrev_b32 v55, 16, v55", "v_and_b32 v56, 7, v1", "v_lshl_add_u32 v55, v56, 7, v55",
                               "s_lshl_b32 s3, s39, 20", "s_lshr_b32 s56, s2, 3", "s_lshl_b32 s56, s56, 11", "s_add_u32 s3, s3, s56",
                               "s_and_b32 s56, s2, 4", "s_lshl_b32 s56, s56, 8", "s_add_u32 s3, s3, s56"]
            if t in LT:
                b0, nb_ = LT[t]
                kw["extra"] += [[f"s_add_u32 s56, s3, {b0*65536}", f"s_mov_b32 exec_lo, 0x{(1 << (8*nb_)) - 1:x}", "s_mov_b32 exec_hi, 0",
                                 ("vm", "buffer_load_dword v39, v55, s[80:83], s56 offen", "T"), "s_mov_b64 exec, -1"]]
        if HS:
            h = t - ST0
            if 0 <= h < 10:
                sub = h % 2
                grp = []
                for j in (2*sub, 2*sub + 1):
                    off = f" offset:{j*1024}" if j else ""
                    grp.append(([f"s_add_u32 m0, s64, {(h % 3)*2048 - sub*2048}"] if j % 2 == 0 else []) +
                               [("vm", f"buffer_load_dwordx4 v{40+j}, s[80:83], s52 offen{off} lds", f"H{h}")])
                if sub:
                    grp[-1].append("s_add_u32 s52, s52, 65536")
                kw["extra"] += grp
            h = t - ST0 - 2
            if 0 <= h < 10:
                kw["valu"] += [("needvm", [f"H{h}"])] + [("ds", f"ds_read_b64_tr_b16 {ar(RES[h // 2] + ct*4 + 2*(h % 2), 2)}, v{44+ct} offset:{(h % 3)*2048}") for ct in range(4)]
        elif ST0 <= t < ST0 + 10:
            b = (t - ST0) // 2
            if (t - ST0) % 2 == 0:
                kw["extra"] += dmaB(b, None)
            else:
                kw["valu"] += [[]] * 12 + [("needvm", [f"B{b}"])] + breads(b, RES[b], True)
        if t == 13:
            kw["valu"] += p2c
            kw["extra"] += [[("vm", "buffer_load_dword v28, v53, s[28:31], 0 offen sc1", "C")]]
        if t == 14:
            b58 = dmaB(5, 65536) + dmaB(6, 65536 + 4096) + dmaB(7, 98304) + dmaB(8, 98304 + 4096)
            NW14 = opt.get("nw14", 10) if IL else 16
            kw["extra"] += b58[:NW14]; b58 = b58[NW14:]
            kw["last"] = True
            if IL:
                kw["valu"] += [f"s_mov_b32 s66, 0x{f2u(LOG2E):08x}", f"s_mov_b32 s67, 0x{f2u(LOG2E):08x}",
                               f"v_mov_b32 v20, 0x{f2u(-EPS * LOG2E):08x}", "v_mov_b32 v21, v20"] + [f"v_mov_b32 v{22+i}, 0x3f803f80" for i in range(4)]
                kw["valu"] += [["s_lshl_b32 s56, s38, 12", f"s_add_u32 s56, s56, {EX}", "v_add_u32 v10, s56, v26"], "v_xor_b32 v11, 4096, v10"]
                DSP = 1
        window(t, **kw)
    stamp(a, opt, 3)
    stamp(a, opt, 26, real=True)

    a.label("K_TAIL")
    if not IL:
        a(f"s_mov_b32 s66, 0x{f2u(LOG2E):08x}")
        a(f"s_mov_b32 s67, 0x{f2u(LOG2E):08x}")
        a(f"v_mov_b32 v20, 0x{f2u(-EPS * LOG2E):08x}")
        a("v_mov_b32 v21, v20")
        for i in range(4):
            a(f"v_mov_b32 v{22+i}, 0x3f803f80")
    KV, ZC = 40, 56
    T0 = 2
    MSL = opt.get("mslots", [4, 6, 8, 10, 12, 14, 17, 24])
    def phi8(b0, b1, dst, inter=(), mfs=()):
        src = [b0, b0 + 2, b1, b1 + 2]
        L = []
        for i, s in enumerate(src):
            L.append(f"v_pk_fma_f32 {vr(T0 + 2*i, 2)}, {vr(s, 2)}, s[66:67], v[20:21]")
        for i in range(8):
            L.append(f"v_exp_f32_e64 v{T0+i}, v{T0+i} clamp")
        for s in src:
            L.append(f"v_max_f32 v{s}, v36, v{s}")
            L.append(f"v_max_f32 v{s+1}, v36, v{s+1}")
        for i, s in enumerate(src):
            L.append(f"v_pk_add_f32 {vr(T0 + 2*i, 2)}, {vr(s, 2)}, {vr(T0 + 2*i, 2)}")
        for i in range(4):
            L.append(f"v_cvt_pk_bf16_f32 v{dst+i}, v{T0+2*i}, v{T0+2*i+1}")
        pos = {0: [], 8: [], 18: []}
        for n, it in enumerate(inter):
            pos[(0, 8, 18)[(n * 3) // max(len(inter), 1)]].append(it)
        mfs = list(mfs)
        assert len(mfs) <= len(MSL)
        for n, x in enumerate(L):
            if n in pos:
                emit(pos[n])
            if n in MSL and mfs:
                m_ = mfs.pop(0)
                lq.need(Ins(m_).srcAB)
                a(m_)
            a(x)
    def pack8(b0, b1, dst):
        for i, s in enumerate([b0, b0 + 2, b1, b1 + 2]):
            a(f"v_cvt_pk_bf16_f32 v{dst+i}, v{s}, v{s+1}")
    t1 = {2: [[("needvm", ["B7"])] + breads(5, RES[5], True), breads(6, RES[6], True), breads(7, RES[7], True)]}
    rf = dmaB(9, SLOT[5]) + dmaB(10, SLOT[6]) + dmaB(11, SLOT[7])
    rf[0] = ["s_waitcnt lgkmcnt(0)"] + rf[0]
    for k in range(4):
        t1[3 + k] = rf[3*k:3*k+3]
    BQ = opt.get("bq", 0)
    if BQ:
        t1 = {}
    def kvz(m):
        out = []
        for dt in range(2):
            c = vr(ZC + dt*4)
            out.append(f"{MF} {c}, {vr(acc(2*m, 2+dt))}, v[22:25], {'0' if m == 0 else c}")
            for et in range(2):
                c = vr(KV + dt*8 + et*4)
                out.append(f"{MF} {c}, {vr(acc(2*m, 2+dt))}, {vr(acc(2*m, 4+et))}, {'0' if m == 0 else c}")
        return out
    if IL:
        h = -(-len(b58) // 2)
        t1 = {0: b58[:h], 1: b58[h:], 3: t1[2]}
        rf[0] = rf[0][1:]
        rf[0] = [("needds", regs_of(ar(RES[7], 16)))] + rf[0]
        for k in range(4):
            t1[4 + k] = rf[3*k:3*k+3]
        if opt.get("x_nob"):
            t1 = {}
        if opt.get("x_norf"):
            for k in range(4): t1[4 + k] = []
        if opt.get("x_nowait"):
            t1[3][0] = t1[3][0][1:]
        for j in range(8):
            if opt.get("tstamps"):
                stamp(a, opt, 48 + j)
            m, dt = j // 2, j % 2
            if j < 4:
                mfs = mf(15, 2*j, [4, 5], lambda ks: fXR(2*j, ks)) + mf(15, 2*j + 1, [4, 5], lambda ks: fXR(2*j + 1, ks))
            elif j < 7:
                mfs = kvz(j - 4)
            else:
                mfs = []
            phi8(acc(2*m, 2 + dt), acc(2*m + 1, 2 + dt), acc(2*m, 2 + dt), inter=t1.get(j, []), mfs=mfs)
            if 1 <= j <= 4:
                for et in range(2):
                    pack8(acc(2*(j-1), 4 + et), acc(2*(j-1) + 1, 4 + et), acc(2*(j-1), 4 + et))
        if opt.get("tstamps"):
            stamp(a, opt, 56)
        for x in kvz(3):
            a(x)
        a("s_nop 3")
    else:
        for m in range(4):
            for dt in range(2):
                phi8(acc(2*m, 2 + dt), acc(2*m + 1, 2 + dt), acc(2*m, 2 + dt), inter=t1.get(m*2 + dt, []))
        lq.drained()
        kvm = []
        for m in range(4):
            for dt in range(2):
                c = vr(ZC + dt*4)
                kvm.append(f"{MF} {c}, {vr(acc(2*m, 2+dt))}, v[22:25], {'0' if m == 0 else c}")
        for m in range(4):
            for et in range(2):
                pack8(acc(2*m, 4 + et), acc(2*m + 1, 4 + et), acc(2*m, 4 + et))
                a(kvm.pop(0))
        for m in range(4):
            for dt in range(2):
                for et in range(2):
                    c = vr(KV + dt*8 + et*4)
                    a(f"{MF} {c}, {vr(acc(2*m, 2+dt))}, {vr(acc(2*m, 4+et))}, {'0' if m == 0 else c}")
        a("s_lshl_b32 s56, s38, 12")
        a(f"s_add_u32 s56, s56, {EX}")
        a("v_add_u32 v10, s56, v26")
        a("v_xor_b32 v11, 4096, v10")
    a("s_cmp_eq_u32 s39, 0")
    a("s_cbranch_scc1 K_EXW0")
    a(f"ds_write_b128 v10, {vr(ZC)} offset:2048")
    a(f"ds_write_b128 v10, {vr(KV)}")
    a(f"ds_write_b128 v10, {vr(KV+4)} offset:1024")
    a("s_waitcnt lgkmcnt(0)")
    for i in range(0, 8, 2):
        a(f"v_pk_mov_b32 {vr(KV+i, 2)}, {vr(KV+8+i, 2)}, {vr(KV+8+i, 2)} op_sel:[0,1]")
    for i in range(0, 4, 2):
        a(f"v_pk_mov_b32 {vr(ZC+i, 2)}, {vr(ZC+4+i, 2)}, {vr(ZC+4+i, 2)} op_sel:[0,1]")
    a("s_branch K_EXW1")
    a.label("K_EXW0")
    a(f"ds_write_b128 v10, {vr(ZC+4)} offset:2048")
    a("s_nop 2")
    a(f"ds_write_b128 v10, {vr(KV+8)}")
    a(f"ds_write_b128 v10, {vr(KV+12)} offset:1024")
    a("s_waitcnt lgkmcnt(0)")
    a.label("K_EXW1")
    lq.drained()
    if opt.get("tstamps"):
        stamp(a, opt, 57)
    a("s_barrier")
    if opt.get("tstamps"):
        stamp(a, opt, 58)
    a(f"ds_read_b128 {vr(KV+8)}, v11")
    a(f"ds_read_b128 {vr(KV+12)}, v11 offset:1024")
    a(f"ds_read_b128 {vr(ZC+4)}, v11 offset:2048")
    a("s_mov_b32 s56, 0x00010001")
    a("s_mov_b32 s57, 0x00010001")
    a("s_waitcnt lgkmcnt(0)")
    for i in range(0, 8, 2):
        a(f"v_pk_add_f32 {vr(KV+i, 2)}, {vr(KV+i, 2)}, {vr(KV+8+i, 2)}")
    for i in range(0, 4, 2):
        a(f"v_pk_add_f32 {vr(ZC+i, 2)}, {vr(ZC+i, 2)}, {vr(ZC+4+i, 2)}")
    for r in list(range(KV, KV + 8)) + list(range(ZC, ZC + 4)):
        a(f"v_min_u32 v{r}, -2, v{r}")
    vq.issue(f"buffer_store_dwordx4 {vr(KV)}, v26, s[24:27], s62 offen sc1", "P")
    vq.issue(f"buffer_store_dwordx4 {vr(KV+4)}, v26, s[24:27], s62 offen offset:1024 sc1", "P")
    a("s_mov_b64 exec, s[56:57]")
    vq.issue(f"buffer_store_dwordx4 {vr(ZC)}, v27, s[24:27], s62 offen offset:2048 sc1", "P")
    a("s_mov_b64 exec, -1")
    stamp(a, opt, 4)
    vq.need("C")
    a("s_mov_b32 s58, -1")
    a("s_mov_b32 s59, 0")
    a.label("K_HS")
    if opt.get("thr"):
        a("v_cmp_lt_u32 vcc, 0xffff, v28")
        a("s_mov_b32 s97, vcc_lo")
        a("v_and_b32 v28, 0xffff, v28")
    a("v_cmp_eq_u32 vcc, 8, v28")
    a("s_cmp_eq_u64 vcc, s[58:59]")
    a("s_cbranch_scc1 K_HSOK")
    a("s_sleep 2")
    a("v_lshlrev_b32 v10, 3, v1")
    a("buffer_load_dword v28, v10, s[28:31], 0 offen sc1")
    a("s_waitcnt vmcnt(0)")
    a("s_branch K_HS")
    a.label("K_HSOK")
    PB = [acc(p, 2) for p in range(8)]
    ZG = 48
    def gather_ops():
        ops = []
        for p in range(8):
            for k in range(2):
                ops.append(([f"s_add_u32 s56, s61, {p * 16384}"] if k == 0 else []) +
                           [("vm", f"buffer_load_dwordx4 {vr(PB[p] + 4*k)}, v26, s[24:27], s56 offen offset:{k*1024} sc1", "H")])
        ops.append([("vm", f"buffer_load_dwordx4 {vr(ZG)}, v30, s[24:27], s61 offen offset:2048 sc1", "H")])
        return ops
    def gather(track):
        for op in gather_ops():
            for x in op:
                a(x[1] if isinstance(x, tuple) else x)
    gops = gather_ops()
    if BQ:
        rd = breads(5, RES[5], True) + breads(6, RES[6], True) + breads(7, RES[7], True)
        rf[0] = rf[0][1:]
        rf[0] = [("needds", regs_of(ar(RES[5], 16)))] + rf[0]
        rf[4] = [("needds", regs_of(ar(RES[6], 16)))] + rf[4]
        rf[8] = [("needds", regs_of(ar(RES[7], 16)))] + rf[8]
        qfill = [[("needvm", ["B7"])] + rd[:1]] + [[x] for x in rd[1:]]
        qb = None
    else:
        qb = dmaB(12, 32768) + dmaB(13, 32768 + 4096)
    GQ = opt.get("gather_in_q", 0)
    ILQ = opt.get("ilq", 0)
    if ILQ:
        LA = opt.get("qla", 2)
        def qm(rt):
            return mf(15, rt, [0, 1], lambda ks: fXR(rt, ks)) + mf(14, rt, [0, 1], lambda ks: fX(rt % 2, ks))
        def xr(rt):
            return rdX(14, rt, lambda ks: fX(rt % 2, ks)) if rt < 8 else []
        for x in xr(0):
            put(x)
        for rt in range(LA):
            k = -(-len(qb) // (LA - rt)) if opt.get("qb_front", 1) else 0
            fill = {1: xr(rt + 1)}
            spread(fill, qb[:k], 2, 8); qb = qb[k:]
            weave(qm(rt), fill)
        stamp(a, opt, 13)
        G0, G1 = opt.get("g0", 2), opt.get("g1", 7)
        for rt in range(8):
            inter = []
            if rt + LA < 8:
                inter.append(xr(rt + LA + 1))
            if rt < G0 and qb:
                k = -(-len(qb) // (G0 - rt)); inter += qb[:k]; qb = qb[k:]
            if G0 <= rt < G1:
                k = -(-len(gops) // (G1 - rt)); inter += gops[:k]; gops = gops[k:]
            phi8(acc(rt, 0), acc(rt, 1), acc(rt, 0), inter=inter, mfs=qm(rt + LA) if rt + LA < 8 else [])
        assert not gops and not qb
    else:
        if DEFER >= 2:
            for x in rdX(14, 0, lambda ks: fX(0, ks)):
                put(x)
        for rt in range(8):
            fill = {}
            ms = mf(15, rt, [0, 1], lambda ks: fXR(rt, ks)) if DEFER >= 1 else []
            if DEFER >= 2:
                ms += mf(14, rt, [0, 1], lambda ks: fX(rt % 2, ks))
                if rt < 7:
                    fill[1] = rdX(14, rt + 1, lambda ks: fX((rt + 1) % 2, ks))
            if BQ:
                if rt < 3:
                    spread(fill, qfill[8*rt:8*rt+8], 0, len(ms))
                if rt >= 2:
                    spread(fill, rf[2*(rt-2):2*(rt-2)+2], 2, len(ms))
            else:
                fill.setdefault(2, []).extend(qb[rt])
            per = len(ms) // 4
            first_rt = 8 - -(-GQ // max(per, 1))
            if GQ and rt >= first_rt:
                k = min(per, GQ - (17 - len(gops)))
                spread(fill, gops[:k], 0, len(ms)); gops = gops[k:]
            weave(ms, fill)
        stamp(a, opt, 13)
        GSP = opt.get("gather_span", 7)
        for rt in range(8):
            k = -(-len(gops) // (GSP - rt)) if rt < GSP else 0
            phi8(acc(rt, 0), acc(rt, 1), acc(rt, 0), inter=gops[:k]); gops = gops[k:]
    gate_ld = [[("vm", f"buffer_load_dwordx4 {vr(acc(i, 1))}, v26, s[16:19], s60 offen offset:{i*1024}", "G")] for i in range(4)]
    gate_ld += [[("vm", f"buffer_load_dwordx4 {vr(acc(4 + i, 1))}, v26, s[32:35], 0 offen offset:{i*1024}", "G")] for i in range(2)]
    emit(gate_ld)
    stamp(a, opt, 5)
    S = 40
    vq.need("H")
    a.label("K_SUM")
    for i in range(0, 8, 2):
        a(f"v_pk_add_f32 {vr(S+i, 2)}, {vr(PB[0]+i, 2)}, {vr(PB[1]+i, 2)}")
    for i in range(4):
        a(f"v_add_f32_dpp v{52+i}, v{ZG+i}, v{ZG+i} quad_perm:[1,0,3,2] row_mask:0xf bank_mask:0xf")
    for p in range(2, 8):
        for i in range(0, 8, 2):
            a(f"v_pk_add_f32 {vr(S+i, 2)}, {vr(S+i, 2)}, {vr(PB[p]+i, 2)}")
        if p in (2, 3):
            ctrl = "quad_perm:[2,3,0,1]" if p == 2 else "row_half_mirror"
            for i in range(4):
                a(f"v_add_f32_dpp v{52+i}, v{52+i}, v{52+i} {ctrl} row_mask:0xf bank_mask:0xf")
    a(f"v_pk_add_f32 v[2:3], {vr(S, 2)}, {vr(S+2, 2)}")
    a(f"v_pk_add_f32 v[4:5], {vr(S+4, 2)}, {vr(S+6, 2)}")
    a(f"v_pk_add_f32 v[6:7], v[52:53], v[54:55]")
    a("v_pk_add_f32 v[2:3], v[2:3], v[4:5]")
    a("v_pk_add_f32 v[2:3], v[2:3], v[6:7]")
    a("v_cmp_u_f32 vcc, v2, v3")
    a("s_cbranch_vccz K_GOK")
    regs = [PB[p] + i for p in range(8) for i in range(8)] + [ZG + i for i in range(4)]
    a(f"v_max3_u32 v2, v{regs[0]}, v{regs[1]}, v{regs[2]}")
    regs = regs[3:]
    while regs:
        if len(regs) >= 2:
            a(f"v_max3_u32 v2, v2, v{regs[0]}, v{regs[1]}"); regs = regs[2:]
        else:
            a(f"v_max_u32 v2, v2, v{regs[0]}"); regs = regs[1:]
    a("v_cmp_eq_u32 vcc, -1, v2")
    a("s_cbranch_vccz K_GOK")
    if opt.get("stamps"):
        a("v_readlane_b32 s56, v31, 24")
        a("s_add_u32 s56, s56, 1")
        a("v_writelane_b32 v31, s56, 24")
    gather(False)
    a("s_waitcnt vmcnt(0)")
    a("s_branch K_SUM")
    a.label("K_GOK")
    stamp(a, opt, 6)
    for i in range(4):
        a(f"v_cvt_pk_bf16_f32 v{2+i}, v{S+2*i}, v{S+2*i+1}")
    a("v_cvt_pk_bf16_f32 v6, v52, v53")
    a("v_cvt_pk_bf16_f32 v7, v54, v55")
    a("s_mul_i32 s56, s40, 3072")
    a(f"s_add_u32 s56, s56, {EX2}")
    a("v_add_u32 v11, s56, v26")
    a("s_lshl_b32 s57, s39, 3")
    a("v_add_u32 v10, s57, v11")
    a("ds_write_b64 v10, v[6:7] offset:2048")
    a("ds_write_b64 v10, v[2:3]")
    a("ds_write_b64 v10, v[4:5] offset:1024")
    a("s_waitcnt lgkmcnt(0)")
    lq.drained()
    a("s_barrier")
    OPR = 40
    a(f"ds_read_b128 {vr(OPR+8)}, v11 offset:2048")
    a(f"ds_read_b128 {vr(OPR)}, v11")
    a(f"ds_read_b128 {vr(OPR+4)}, v11 offset:1024")
    a("s_waitcnt lgkmcnt(2)")
    eb = dmaB(14, 0) + dmaB(15, 4096) if opt.get("early14", 1) else []
    for rt in range(8):
        a(f"{MF} {vr(acc(rt, 4))}, {vr(OPR+8)}, {vr(acc(rt, 0))}, 0")
        if eb and rt % 2 == 0:
            emit(eb[:1]); eb = eb[1:]
    a("s_waitcnt lgkmcnt(0)")
    for rt in range(8):
        a(f"{MF} {vr(acc(rt, 2))}, {vr(OPR)}, {vr(acc(rt, 0))}, 0")
        a(f"{MF} {vr(acc(rt, 3))}, {vr(OPR+4)}, {vr(acc(rt, 0))}, 0")
        D = acc(rt, 4)
        a(f"v_add_f32 v{D}, v36, v{D}")
        a(f"v_rcp_f32 v{D}, v{D}")
        if eb and rt % 2 == 0:
            emit(eb[:1]); eb = eb[1:]
    a("s_add_u32 s63, s65, 4096")
    for rt in range(8):
        N, D = acc(rt, 2), acc(rt, 4)
        for r in range(0, 8, 2):
            a(f"v_pk_mul_f32 {vr(N+r, 2)}, {vr(N+r, 2)}, {vr(D, 2)} op_sel_hi:[1,0]")
        for r in range(0, 8, 2):
            a(f"v_cvt_pk_bf16_f32 v{D+4+r//2}, v{N+r}, v{N+r+1}")
        vq.issue(f"buffer_store_dwordx4 {vr(D+4)}, v26, s[24:27], {'s65' if rt < 4 else 's63'} offen offset:{(rt % 4)*1024} sc1", "O")
    stamp(a, opt, 7)
    if BQ:
        emit(dmaB(12, 32768) + dmaB(13, 32768 + 4096))
    if not opt.get("early14", 1):
        emit(dmaB(14, 0) + dmaB(15, 4096))
    for k in range(4):
        a(f"s_add_u32 s56, s38, {k + 1}")
        a("s_and_b32 s56, s56, 3")
        a("s_lshl_b32 s56, s56, 11")
        a(f"v_add_u32 v{2+k}, s56, v26")
    a("v_bfe_u32 v6, v1, 1, 4")
    a(f"v_lshlrev_b32 v6, {FS}, v6")
    a("v_and_b32 v7, 1, v1")
    a("v_lshl_add_u32 v6, v7, 2, v6")
    vq.need("G")
    for x in gate[1:] + gate2:
        a(x)
    srd(a, 16, 70, 2048 * 1024 * 2)
    a("v_add_u32 v7, s48, v26")
    a("v_add_u32 v8, 0x10000, v7")
    for j in range(3):
        a(f"s_xor_b32 s56, s38, {j + 1}")
        a("s_sub_u32 s57, s38, s56")
        a("s_sub_u32 s57, s57, 1")
        a("s_and_b32 s57, s57, 3")
        a("s_lshl_b32 s57, s57, 15")
        a("s_lshl_b32 s56, s56, 13")
        a("s_add_u32 s56, s56, s57")
        a(f"v_add_u32 v{9+j}, s56, v26")
    a("v_and_b32 v24, 15, v1")
    a("v_lshrrev_b32 v25, 4, v1")
    a("v_and_b32 v28, 1, v25")
    a("v_lshlrev_b32 v28, 5, v28")
    a("v_lshrrev_b32 v25, 1, v25")
    a("v_lshl_add_u32 v28, v25, 4, v28")
    FL = opt.get("fullline", 1)
    if FL:
        a("v_and_b32 v24, 7, v1")
        a("v_bfe_u32 v25, v1, 3, 1")
        a("v_lshl_add_u32 v28, v25, 6, v28")
    a("v_lshl_add_u32 v14, v24, 11, v28")
    if FL:
        a("v_add_u32 v15, 0x4000, v14")
    a("s_lshl_b32 s56, s50, 18")
    a("s_lshl_b32 s57, s38, 16")
    a("s_add_u32 s56, s56, s57")
    a("s_lshl_b32 s57, s51, 7")
    a("s_add_u32 s61, s56, s57")
    a(f"s_add_u32 s62, s61, {16*2048}")
    a("s_mov_b32 s60, 0")
    a("s_getpc_b64 s[66:67]")
    a.label("K_PC")
    a("s_add_u32 s66, s66, K_WAIT-K_PC")
    a("s_addc_u32 s67, s67, 0")
    D = opt.get("depth", 4)
    P2 = 128
    def acc2(i, ct): return P2 + (i * 4 + ct) * 4
    def fA(slot, i): return AQ[slot * 8 + i]
    def fB(s_, ct): return 64 + s_ * 16 + ct * 4
    order = list(range(8, 16)) + list(range(8))
    for ct in range(4):
        a(f"v_subrev_u32 v{16+ct}, 0x10000, v{32+ct}")
    vq.need("B8")
    for x in breads(order[0], fB(0, 0), False):
        put(x)
    if opt.get("atouch", 0):
        a("v_lshrrev_b32 v46, 3, v1")
        a("v_lshlrev_b32 v46, 13, v46")
        a("v_and_b32 v47, 7, v1")
        a("v_lshl_add_u32 v46, v47, 7, v46")
        a("s_and_b32 s56, s51, 7")
        a("s_lshl_b32 s56, s56, 10")
        a("v_add_u32 v46, s56, v46")
    EP = opt.get("early_poll", 0) and not NS
    if EP:
        vq.issue("buffer_load_dword v44, v6, s[24:27], s54 offen sc1", "E")
    def flag():
        a("s_mov_b64 exec, 1")
        a("buffer_store_dwordx2 v[38:39], v29, s[24:27], s55 offen sc1")
        a("s_mov_b64 exec, -1")
    FAST = opt.get("fast", 0)
    if not FAST and not NS:
        vq.need("O")
        flag()
        stamp(a, opt, 8)
        if EP:
            a("s_waitcnt vmcnt(1)"); vq.drained()
            a("v_cmp_ne_u32 vcc, -1, v44")
            a("s_lshr_b32 s57, vcc_lo, 1"); a("s_and_b32 s57, s57, vcc_lo"); a("s_or_b32 s60, s60, s57")
        if opt.get("fsleep"):
            a(f"s_sleep {opt['fsleep']}")
        if opt.get("fwait", 1):
            a("s_waitcnt vmcnt(0)"); vq.drained()
        PP = opt.get("pp", 0)
        if PP:
            want = sum(1 << (2*order[k]) for k in range(opt.get("pp_heads", 2)))
            a(f"s_and_b32 s57, s60, 0x{want:x}")
            a(f"s_cmp_eq_u32 s57, 0x{want:x}")
            a("s_cbranch_scc1 K_PPOK")
            for k in range(PP):
                a(f"buffer_load_dword v{48+k}, v6, s[24:27], s54 offen sc1")
                if k < PP - 1:
                    a(f"s_sleep {opt.get('pp_sleep', 3)}")
            a.label("K_PPL")
            for k in range(PP):
                a(f"s_waitcnt vmcnt({PP-1})")
                a(f"v_cmp_ne_u32 vcc, -1, v{48+k}")
                a("s_lshr_b32 s57, vcc_lo, 1"); a("s_and_b32 s57, s57, vcc_lo"); a("s_or_b32 s60, s60, s57")
                a(f"s_and_b32 s57, s60, 0x{want:x}")
                a(f"s_cmp_eq_u32 s57, 0x{want:x}")
                a("s_cbranch_scc1 K_PPOK")
                a(f"buffer_load_dword v{48+k}, v6, s[24:27], s54 offen sc1")
            a("s_branch K_PPL")
            a.label("K_PPOK")
    SC = " sc1" if opt.get("a_sc1", 1) else ""
    NT = opt.get("ntail", 3)
    N0 = 16 - NT
    FR = {}
    for n in range(N0):
        for i in range(8):
            FR[(n, i)] = (n, i)
    seq = [(n, i) for i in range(8) for n in range(N0, 16)]
    for k, f in enumerate(seq):
        FR[f] = (N0 + k // 8, k % 8)
    GRP = {}
    for f, (g, j) in FR.items():
        GRP.setdefault(g, {})[j] = f
    def areg(n, i):
        g, j = FR[(n, i)]
        return AQ[(g % 4) * 8 + j]
    def loadsA(g):
        ops = []
        for j in range(8):
            n, i = GRP[g][j]
            b = order[n]
            if g < N0:
                pre = [f"s_add_u32 s43, s53, {b*8192}"] if j == 0 else []
                so = "s43"
            else:
                pre = [f"s_add_u32 s{4 + m - N0}, s53, {order[m]*8192}" for m in range(N0, 16)] if (g == N0 and j == 0) else []
                so = f"s{4 + n - N0}"
            off = " offset:1024" if i % 2 else ""
            ops.append(pre + [("vm", f"buffer_load_dwordx4 {ar(areg(n, i))}, v{2 + i // 2}, s[24:27], {so} offen{off}{SC}", f"A{n}_{i}")])
        return ops
    def check(n):
        b = order[n]
        out = [f"s_bitcmp1_b32 s60, {2*b}", f"s_cbranch_scc1 K_RDY{n}", f"s_mov_b32 s59, {2*b}", "s_swappc_b64 s[68:69], s[66:67]", f"K_RDY{n}:"]
        return out
    def poll(g):
        return [("vm", f"buffer_load_dword v{40 + g % 4}, v6, s[24:27], s54 offen sc1", f"P{g}")]
    def upd(g):
        return [f"v_cmp_ne_u32 vcc, -1, v{40 + g % 4}"], ["s_lshr_b32 s57, vcc_lo, 1", "s_and_b32 s57, s57, vcc_lo", "s_or_b32 s60, s60, s57"]
    def gate_grp(g):
        out = []
        if NS:
            if g < N0:
                out += check(g)
            elif g == N0:
                for m in list(range(N0, 16)) + list(range(NS)):
                    out += check(m)
                out += [("vm", "buffer_load_dword v20, v6, s[24:27], s54 offen sc1", "GF")]
            return out
        if g < N0:
            out += check(g)
        elif g == N0:
            for m in range(N0, 16):
                out += check(m)
            out += [("vm", "buffer_load_dword v20, v6, s[24:27], s54 offen sc1", "GF")]
        if g + 3 <= N0 and g in PSET:
            out += poll(g)
        return out
    TA = opt.get("atouch", 0)
    PSET = opt.get("pset", [3])
    def touchA(n0, n1):
        b0 = order[n0]
        cnt = (n1 - n0) * 8
        return [f"s_add_u32 s56, s53, {b0*8192}", f"s_mov_b64 exec, 0x{(1 << cnt) - 1:x}" if cnt < 32 else "s_mov_b32 exec_hi, 0",
                ("vm", "buffer_load_dword v45, v46, s[24:27], s56 offen sc1", "T"), "s_mov_b64 exec, -1"]
    if FAST:
        vq.need("E")
        stamp(a, opt, 8)
        a("v_cmp_ne_u32 vcc, -1, v44")
        a("s_lshr_b32 s57, vcc_lo, 1"); a("s_and_b32 s60, s57, vcc_lo")
        want = (1 << (2*order[0])) | (1 << (2*order[1]))
        a(f"s_and_b32 s57, s60, 0x{want:x}")
        a(f"s_cmp_eq_u32 s57, 0x{want:x}")
        a("s_cbranch_scc0 K_SLOW")
        q0 = list(vq.q)
        for g in range(2):
            emit([poll(g)])
            emit(loadsA(g))
        flag()
        stamp(a, opt, 9)
        a("s_branch K_GO")
        a.label("K_SLOW")
        vq.q = q0
        flag()
    if NS:
        vq.need("O")
        stamp(a, opt, 8)
        if opt.get("spec_sleep"):
            a(f"s_sleep {opt['spec_sleep']}")
        FPOS = opt.get("fpos", 2)
        for g in range(NS):
            if g == FPOS:
                flag(); vq.q.append("F")
            emit(loadsA(g))
        if FPOS >= NS:
            flag(); vq.q.append("F")
        stamp(a, opt, 9)
    for g in range(0 if NS else 2):
        emit([gate_grp(g)])
        if g == 0:
            stamp(a, opt, 9)
        emit(loadsA(g))
    if FAST:
        a.label("K_GO")
    def redw(i):
        k = i // 2
        return [f"ds_write_b128 {'v7' if k < 2 else 'v8'}, {vr(acc2(i, ct))} offset:{(k % 2)*32768 + (i % 2)*4096 + ct*1024}" for ct in range(4)]
    def Bop(n, ct):
        b = order[n]
        return vr(fB(n % 2, ct)) if b >= 8 else ar(RES[b] + ct * 4)
    issued = set()
    NPOLL = opt.get("npoll", 5)
    for n in range(N0 if NS else 0):
        if n < NS:
            lq.need(regs_of(Bop(n, 0)))
            for i in range(8):
                vq.need(f"A{n}_{i}")
                a(f"{MF} v[48:51], {Bop(n, 0)}, {ar(areg(n, i))}, {'0' if i == 0 else 'v[48:51]'}")
            a("v_cmp_u_f32 vcc, v48, v48")
            a(f"s_cbranch_vccz K_VOK{n}")
            if opt.get("stamps"):
                a("v_readlane_b32 s56, v31, 22")
                a("s_add_u32 s56, s56, 1")
                a("v_writelane_b32 v31, s56, 22")
            a(f"s_mov_b32 s59, {2*order[n]}")
            a("s_swappc_b64 s[68:69], s[66:67]")
            for op in loadsA(n):
                for x in op:
                    a(x[1] if isinstance(x, tuple) else x)
            a("s_waitcnt vmcnt(0)")
            a.label(f"K_VOK{n}")
        else:
            vq.need(f"A{n}_7")
        if n == 0:
            stamp(a, opt, 12)
        if opt.get("pstamps"):
            stamp(a, opt, 32 + n)
        ms = []
        for i in range(8):
            for ct in range(4):
                c = vr(acc2(i, ct))
                ms.append(f"{MF} {c}, {Bop(n, ct)}, {ar(areg(n, i))}, {'0' if n == 0 else c}")
        fill = {}
        if 1 <= n <= NPOLL:
            u1, u2 = upd(n - 1)
            fill[0] = [("needvm", [f"P{n-1}"])] + u1; fill[1] = u2
        if n < NPOLL:
            fill.setdefault(2, []).extend(poll(n))
        if n + 1 < 8:
            spread(fill, [[x] for x in breads(order[n + 1], fB((n + 1) % 2, 0), False)], 4, 20)
        gs = [g for g in range(NS, n + 4) if g not in issued] if n >= 1 else []
        items = []
        for g in gs:
            items += [gate_grp(g)] + loadsA(g); issued.add(g)
        if items:
            spread(fill, items, 3, 30)
        weave(ms, fill)
    for n in range(0 if NS else N0):
        FINE = n < opt.get("fine", 2)
        if not FINE:
            vq.need(f"A{n}_7")
        else:
            vq.need(f"A{n}_0")
        if n == 0:
            stamp(a, opt, 12)
        if opt.get("pstamps"):
            stamp(a, opt, 32 + n)
        ms = []
        for i in range(8):
            for ct in range(4):
                c = vr(acc2(i, ct))
                ms.append(f"{MF} {c}, {Bop(n, ct)}, {ar(areg(n, i))}, {'0' if n == 0 else c}")
        fill = {}
        if n + 3 <= N0 and n in PSET:
            u1, u2 = upd(n)
            fill[0] = u1; fill[1] = u2
        if n + 1 < 8:
            spread(fill, [[x] for x in breads(order[n + 1], fB((n + 1) % 2, 0), False)], 4, 20)
        if n == 0:
            spread(fill, [gate_grp(2)] + loadsA(2), 2, 16)
            spread(fill, [gate_grp(3)] + loadsA(3), 16, 31)
            if TA:
                fill.setdefault(31, []).extend(touchA(4, TA))
        else:
            spread(fill, [gate_grp(n + 3)] + loadsA(n + 3), 2, opt.get("lspan", 28))
        if TA and n + TA < 16:
            fill.setdefault(31, []).extend(touchA(n + TA, n + TA + 1))
        if FINE:
            for i in range(1, 8):
                fill.setdefault(4 * i - 1, []).append(("needvm", [f"A{n}_{i}"]))
        weave(ms, fill)
    if opt.get("pstamps"):
        stamp(a, opt, 32 + N0)
    gf = [("needvm", ["GF"]), "v_mov_b32 v22, v20", "v_permlane16_swap_b32 v20, v22"]
    for r in (20, 22):
        gf += [f"v_sub_f32 v{r+1}, 1.0, v{r}", f"v_cvt_pk_bf16_f32 v{r+1}, v{r+1}, v{r+1}", f"v_and_b32 v{r+1}, 0xffff0000, v{r+1}"]
    gf += [["s_cmp_lt_u32 s38, 2", "s_cbranch_scc1 K_NOSWAP", "v_swap_b32 v20, v21", "v_swap_b32 v22, v23", "K_NOSWAP:"]]
    R = 128
    rds = [f"ds_read_b128 {vr(R + k*32 + j*4)}, v{9+k} offset:{j*1024}" for k in range(3) for j in range(8)]
    for i in range(8):
        vq.need(*[f"A{n}_{i}" for n in range(N0, 16)])
        ms = [f"{MF} {vr(acc2(i, ct))}, {Bop(n, ct)}, {ar(areg(n, i))}, {vr(acc2(i, ct))}" for ct in range(4) for n in range(N0, 16)]
        fill = {}
        if i == 0:
            spread(fill, [x if isinstance(x, list) else [x] for x in gf], 0, len(ms))
        if 1 <= i <= 6:
            spread(fill, [[w] for w in redw(i - 1)], min(2, len(ms) - 4), len(ms))
        if i == 7:
            stamp(a, opt, 14)
            a("s_waitcnt lgkmcnt(0)")
            if opt.get("pstamps"): stamp(a, opt, 17)
            a("s_barrier")
            if opt.get("pstamps"): stamp(a, opt, 18)
            spread(fill, [[r] for r in rds], 0, len(ms))
        weave(ms, fill)
    OWN = acc2(6, 0)
    if opt.get("thr"):
        a("s_memrealtime s[98:99]")
        a("s_waitcnt lgkmcnt(0)")
        a("s_sub_u32 s98, s98, s96")
        a("s_cmp_eq_u32 s97, 0")
        a("s_cselect_b32 s98, s98, 0")
        a(f"s_cmp_gt_u32 s98, {int(opt['thr']*100)}")
        a("s_cbranch_scc1 K_END")
    if opt.get("pstamps"): stamp(a, opt, 19)
    a("s_waitcnt lgkmcnt(15)")
    for j in range(0, 32, 2):
        a(f"v_pk_add_f32 {vr(OWN+j, 2)}, {vr(OWN+j, 2)}, {vr(R+j, 2)}")
    for j in range(0, 32, 2):
        gsel = 20 if j < 16 else 22
        a(f"v_pk_mul_f32 {vr(OWN+j, 2)}, {vr(OWN+j, 2)}, {vr(gsel, 2)} op_sel_hi:[1,0]")
    a("s_waitcnt lgkmcnt(0)")
    for pr in range(4):
        for j in range(8 * pr, 8 * pr + 8, 2):
            a(f"v_pk_add_f32 {vr(R+32+j, 2)}, {vr(R+32+j, 2)}, {vr(R+64+j, 2)}")
        for j in range(8 * pr, 8 * pr + 8, 2):
            gsel = 20 if j < 16 else 22
            a(f"v_pk_fma_f32 {vr(OWN+j, 2)}, {vr(R+32+j, 2)}, {vr(gsel, 2)}, {vr(OWN+j, 2)} op_sel:[0,1,0] op_sel_hi:[1,1,1]")
        b = 64 + 4 * pr
        for j in range(4):
            a(f"v_cvt_pk_bf16_f32 v{b+j}, v{OWN+8*pr+2*j}, v{OWN+8*pr+2*j+1}")
        a(f"v_permlane16_swap_b32 v{b}, v{b+2}")
        a(f"v_permlane16_swap_b32 v{b+1}, v{b+3}")
        if not FL:
            a(f"buffer_store_dwordx4 {vr(b)}, v14, s[16:19], {'s61' if pr < 2 else 's62'} offen offset:{(pr % 2)*64}{opt.get('ost', ' sc1')}")
        elif pr % 2 == 1:
            for j in range(4):
                a(f"v_mov_b32 v{80+j}, v{b-4+j}")
            for j in range(4):
                a(f"v_mov_b32_dpp v{b-4+j}, v{b+j} row_ror:8 row_mask:0xf bank_mask:0xc")
            for j in range(4):
                a(f"v_mov_b32_dpp v{b+j}, v{80+j} row_ror:8 row_mask:0xf bank_mask:0x3")
            so = 's61' if pr < 2 else 's62'
            a(f"buffer_store_dwordx4 {vr(b-4)}, v14, s[16:19], {so} offen{opt.get('ost', ' sc1')}")
            a(f"buffer_store_dwordx4 {vr(b)}, v15, s[16:19], {so} offen{opt.get('ost', ' sc1')}")
    stamp(a, opt, 15)
    stamp_out(a, opt, 0)
    if opt.get("dbgout"):
        a(f"s_cmp_eq_u32 s2, {opt.get('dbgwg', 0)}")
        a("s_cbranch_scc0 K_END")
        a("s_cmp_eq_u32 s38, 0")
        a("s_cbranch_scc0 K_END")
        a("v_readlane_b32 s56, v31, 30")
        for k, sl in enumerate([2, 32, 36, 3, 7, 12, 14, 29]):
            a(f"v_readlane_b32 s57, v31, {sl}")
            a("s_sub_u32 s57, s57, s56")
            a(f"v_writelane_b32 v30, s57, {k}")
        a("v_lshlrev_b32 v27, 3, v1")
        a("s_mov_b64 exec, 0xff")
        a("buffer_store_dword v30, v27, s[28:31], 0 offen offset:4")
    a.label("K_END")
    a("s_endpgm")
    a.label("K_WAIT")
    a("buffer_load_dword v44, v6, s[24:27], s54 offen sc1")
    if opt.get("stamps"):
        a("v_readlane_b32 s56, v31, 23")
        a("s_add_u32 s56, s56, 1")
        a("v_writelane_b32 v31, s56, 23")
    a("s_waitcnt vmcnt(0)")
    a("v_cmp_ne_u32 vcc, -1, v44")
    a("s_lshr_b32 s57, vcc_lo, 1"); a("s_and_b32 s57, s57, vcc_lo"); a("s_or_b32 s60, s60, s57")
    a("s_bitcmp1_b32 s60, s59")
    if opt.get("wsleep"):
        a("s_cbranch_scc1 K_LAST")
        a(f"s_sleep {opt['wsleep']}")
        a("s_branch K_WAIT")
    else:
        a("s_cbranch_scc0 K_WAIT")
    a.label("K_LAST")
    a("s_setpc_b64 s[68:69]")

def build(opt):
    a = Asm()
    gen(a, opt)
    out = HEADER + "; @launch grid=(256,1,1) block=(256,1,1) lds=163840\n"
    out += '.amdgcn_target "amdgcn-amd-amdhsa--gfx950"\n.text\n' + a.text() + '.section .rodata,"a"\n' + kd(KNAME, 512, 100 if opt.get('thr') else 96, 256)
    return out

if __name__ == "__main__":
    opt = {}
    for kv in sys.argv[2:]:
        k, v = kv.split("=")
        try:
            v = eval(v)
        except Exception:
            pass
        opt[k] = v
    open(sys.argv[1], "w").write(build(opt))
```

```python
import sys, struct
from asmlib import Asm, Ins, regs_of
from gen import f2u, LdsQ, kd, srd, stamp, stamp_out, HEADER, WS_DIAG, WS_SIZE, WS_SLOT, WS_G, LOG2E, EPS

MF = "v_mfma_f32_16x16x32_bf16"
WS_WOF = 16 << 20
WS_TOT = 20 << 20
KNAME = "gated_mix__linear_attn_block__linear_attn_block__prompt_kernel"
def vr(b, n=4): return f"v[{b}:{b+n-1}]"
def ar(b, n=4): return f"a[{b}:{b+n-1}]"

class VmQ:
    def __init__(self, a):
        self.a = a; self.q = []
    def issue(self, text, tag):
        self.a(text); self.q.append(tag)
    def count(self, tags):
        idx = -1
        for i, t in enumerate(self.q):
            if t in tags:
                idx = i
        if idx < 0:
            return None
        return min(len(self.q) - idx - 1, 63)
    def need(self, *tags, extra=""):
        n = self.count(tags)
        if n is None:
            if extra:
                self.a(f"s_waitcnt {extra}")
            return
        self.a(f"s_waitcnt vmcnt({n}) {extra}".rstrip())
        self.q = self.q[len(self.q) - n:] if n else []
    def drained(self):
        self.q = []

def gen(a, opt):
    lq = LdsQ(a); vq = VmQ(a)
    ABL = [""]
    def put(x):
        if ABL[0] and isinstance(x, tuple):
            if "x" in ABL[0] and x[0] == "ds" and "b128" in x[1]: return
            if "w" in ABL[0] and x[0] == "ds" and "tr_b16" in x[1]: return
            if "d" in ABL[0] and x[0] == "vm" and x[2][0] in "XW": return
            if "X" in ABL[0] and x[0] == "vm" and x[2][0] == "X": return
        if isinstance(x, tuple):
            if x[0] == "ds":
                lq.issue(x[1])
            elif x[0] == "vm":
                vq.issue(x[1], x[2])
            elif x[0] == "needvm":
                vq.need(*x[1])
            elif x[0] == "needds":
                lq.need(x[1])
        else:
            a(x)
    def weave(mf, fill):
        for g, m in enumerate(mf):
            lq.need(Ins(m).srcAB)
            a(m)
            for x in fill.get(g, []):
                put(x)
    def spread(fill, items, start, end):
        n = len(items)
        for i, it in enumerate(items):
            fill.setdefault(start + (i * (end - start)) // n, []).extend(it)

    XB = [0, 32768]
    WB = [65536 + 24576 * s for s in range(3)]
    EX = 139264
    EX2 = EX + 16384
    ACC = 64
    def acc(rt, ct): return ACC + (rt * 6 + ct) * 4
    def fW(st, ct, ks): return 48 * (st % 2) + (ct * 2 + ks) * 4
    def fX(e, ks): return 96 + e * 8 + ks * 4
    def fXR(rt, ks): return 112 + rt * 8 + ks * 4
    a.raw(f".globl {KNAME}\n.p2align 8\n.type {KNAME},@function")
    a.label(KNAME)
    a("s_cmp_ge_u32 s2, 256")
    a("s_cbranch_scc1 K_END")
    if opt.get("badmap"):
        a("s_lshr_b32 s3, s2, 5")
        a("s_and_b32 s2, s2, 31")
        a("s_lshl_b32 s2, s2, 3")
        a("s_or_b32 s2, s2, s3")
    a("s_load_dwordx4 s[4:7], s[0:1], 0")
    a("s_load_dwordx2 s[8:9], s[0:1], 32")
    a("s_load_dwordx4 s[68:71], s[0:1], 48")
    a("s_load_dwordx4 s[12:15], s[0:1], 64")
    a("s_load_dwordx2 s[74:75], s[0:1], 16")
    a("s_load_dwordx2 s[76:77], s[0:1], 40")
    if opt.get("thr"):
        a("s_memrealtime s[96:97]")
    if opt.get("stamps"):
        a("v_mov_b32 v31, 0")
    stamp(a, opt, 30, real=True)
    stamp(a, opt, 0)
    a("v_lshrrev_b32 v21, 6, v0")
    a("v_and_b32 v1, 63, v0")
    a("v_readfirstlane_b32 s38, v21")
    a("s_and_b32 s56, s2, 7")
    a("s_lshr_b32 s57, s2, 3")
    if opt.get("k1map", "A") == "A":
        a("s_and_b32 s36, s57, 7")
        a("s_lshr_b32 s58, s57, 3")
        a("s_lshl_b32 s37, s56, 2")
        a("s_add_u32 s37, s37, s58")
    else:
        a("s_and_b32 s36, s56, 1")
        a("s_lshl_b32 s36, s36, 2")
        a("s_and_b32 s58, s57, 3")
        a("s_add_u32 s36, s36, s58")
        a("s_lshr_b32 s37, s56, 1")
        a("s_lshl_b32 s37, s37, 3")
        a("s_lshr_b32 s58, s57, 2")
        a("s_add_u32 s37, s37, s58")
    a("s_and_b32 s39, s38, 1")
    a("s_lshr_b32 s40, s38, 1")
    a("s_and_b32 s41, s37, 15")
    a("s_lshr_b32 s42, s37, 4")
    a("v_lshrrev_b32 v21, 3, v1")
    a("v_and_b32 v22, 7, v1")
    a("v_lshrrev_b32 v23, 4, v1")
    a("v_and_b32 v24, 1, v23")
    a("v_lshlrev_b32 v24, 2, v24")
    a("v_xor_b32 v24, v22, v24")
    a("v_lshlrev_b32 v24, 4, v24")
    a("v_mul_u32_u24 v25, 6144, v21")
    a("v_add_u32 v24, v24, v25")
    a("v_xor_b32 v25, 32, v24")
    a("s_mul_i32 s56, s38, 6")
    a("s_lshl_b32 s59, s41, 7")
    for i in range(6):
        a(f"s_add_u32 s57, s56, {i}")
        a("s_lshr_b32 s58, s57, 3")
        a("s_and_b32 s57, s57, 7")
        a(f"s_mul_i32 s57, s57, {8*6144}")
        a("s_lshl_b32 s58, s58, 11")
        a("s_add_u32 s57, s57, s58")
        a("s_add_u32 s57, s57, s59")
        if i % 4:
            a(f"s_sub_u32 s57, s57, {(i % 4) * 1024}")
        a(f"v_add_u32 v{10+i}, s57, {'v24' if i % 2 == 0 else 'v25'}")
    a("v_xor_b32 v24, v22, v23")
    a("v_lshlrev_b32 v24, 4, v24")
    a("v_lshl_add_u32 v24, v21, 11, v24")
    a("s_lshl_b32 s56, s36, 19")
    a("s_lshl_b32 s57, s40, 18")
    a("s_add_u32 s56, s56, s57")
    a("s_lshl_b32 s57, s39, 16")
    a("s_add_u32 s56, s56, s57")
    a("v_add_u32 v2, s56, v24")
    a("v_xor_b32 v25, 64, v2")
    for i in range(1, 8):
        src = "v2" if i % 2 == 0 else "v25"
        a(f"v_add_u32 v{2+i}, {(i % 4)*16384 + (i // 4)*131072 - (i % 4) * 1024}, {src}")
    a("s_lshl_b32 s48, s38, 13")
    a("s_lshl_b32 s45, s40, 14")
    a("s_lshl_b32 s57, s39, 12")
    a("s_add_u32 s45, s45, s57")
    a("s_mov_b32 s72, 0")
    a("s_mul_i32 s49, s38, 6144")
    a("s_mov_b32 s43, 0")
    a("s_mov_b32 s44, 0")
    a("s_waitcnt lgkmcnt(0)")
    srd(a, 16, 4, 2048 * 1024 * 2)
    a("s_cmp_eq_u32 s42, 0")
    a("s_cselect_b32 s56, s6, s8")
    a("s_cselect_b32 s57, s7, s9")
    srd(a, 20, 56, 1024 * 3072 * 2)
    stamp(a, opt, 10)

    def dmaXh(t, h):
        ops = []
        so = "s43" if h == 0 else "s72"
        for i in range(4 * h, 4 * h + 4):
            pre = [f"s_add_u32 m0, s45, {XB[t % 2] + h * 8192}"] if i % 4 == 0 else []
            off = f" offset:{(i % 4) * 1024}" if i % 4 else ""
            ops.append(pre + [("vm", f"buffer_load_dwordx4 v{2+i}, s[16:19], {so} offen{off}{opt.get('dpol', '')} lds", f"X{t}{'ab'[h]}")])
        ops[3].append(f"s_add_u32 {so}, {so}, 128")
        return ops
    def dmaX(t):
        return dmaXh(t, 0) + dmaXh(t, 1)
    def dmaW(t):
        ops = []
        for i in range(6):
            pre = [f"s_add_u32 m0, s49, {WB[t % 3] + (i // 4) * 4096}"] if i % 4 == 0 else []
            off = f" offset:{(i % 4) * 1024}" if i % 4 else ""
            ops.append(pre + [("vm", f"buffer_load_dwordx4 v{10+i}, s[20:23], s44 offen{off}{opt.get('dpol', '')} lds", f"W{t}")])
        ops[5].append(f"s_add_u32 s44, s44, {64*6144}")
        return ops
    def emit(groups):
        for op in groups:
            for x in op:
                put(x)
    emit(dmaW(0) + dmaX(0))
    if opt.get("pre0"):
        emit(dmaW(1))
    stamp(a, opt, 11)
    srd(a, 24, 14, WS_TOT)
    srd(a, 28, 12, 256)
    srd(a, 32, 68, 2048)
    a("v_lshlrev_b32 v26, 4, v1")
    a("s_lshl_b32 s46, s37, 1")
    a("s_add_u32 s46, s46, s40")
    a("s_lshl_b32 s47, s36, 1")
    a("s_add_u32 s47, s47, s39")
    a("s_lshl_b32 s56, s47, 7")
    a("s_lshl_b32 s57, s46, 1")
    a("s_add_u32 s56, s56, s57")
    a("s_lshl_b32 s60, s56, 11")
    FS = opt.get("fs", 3)
    GB = WS_G if FS == 3 else WS_WOF
    a(f"s_lshl_b32 s55, s56, {FS - 1}")
    a(f"s_add_u32 s55, s55, {GB}")
    a("s_lshl_b32 s56, s47, 19")
    a("s_lshl_b32 s57, s46, 13")
    a("s_add_u32 s65, s56, s57")
    a("s_lshl_b32 s56, s37, 17")
    a("s_lshl_b32 s57, s38, 12")
    a("s_add_u32 s61, s56, s57")
    a(f"s_add_u32 s61, s61, {WS_SLOT}")
    a("s_lshl_b32 s57, s36, 14")
    a("s_add_u32 s62, s61, s57")
    a("v_lshrrev_b32 v27, 4, v1")
    a("v_lshlrev_b32 v27, 4, v27")
    a("v_and_b32 v30, 7, v1")
    a("v_lshl_add_u32 v30, v30, 14, v27")
    a("s_lshl_b32 s63, s37, 3")
    for i in range(4):
        a(f"v_mov_b32 v{32+i}, -1")
    a("v_lshlrev_b32 v38, 7, v1")
    a("v_mov_b32 v28, 1")
    if opt.get("thr"):
        a("s_getreg_b32 s56, hwreg(HW_REG_XCC_ID)")
        a("s_sub_u32 s56, s56, s2")
        a("s_and_b32 s56, s56, 7")
        a("s_mul_i32 s57, s56, s56")
        a("s_lshl_b32 s57, s57, 20")
        a("s_lshl_b32 s56, s56, 12")
        a("s_add_u32 s56, s56, s57")
        a("s_lshl_b32 s99, s56, 3")
        a("s_add_u32 s99, s99, 8")
        a("s_add_u32 s56, s56, 1")
        a("v_mov_b32 v28, s56")
    a("v_mov_b32 v29, 0")
    sent = [[("vm", "buffer_store_dwordx4 v[32:35], v26, s[24:27], s62 offen sc1", "S")],
            [("vm", "buffer_store_dwordx4 v[32:35], v26, s[24:27], s62 offen offset:1024 sc1", "S")],
            [("vm", "buffer_store_dwordx4 v[32:35], v27, s[24:27], s62 offen offset:2048 sc1", "S")],
            [("vm", "buffer_store_dwordx2 v[32:33], v29, s[24:27], s55 offen sc1", "S")]]
    NS = opt.get("spec", 0)
    if NS:
        a("s_lshl_b32 s56, s2, 2")
        a("s_add_u32 s56, s56, s38")
        a("s_lshr_b32 s57, s56, 4")
        a("s_lshl_b32 s57, s57, 17")
        a("s_and_b32 s56, s56, 15")
        a(f"s_mul_i32 s56, s56, {NS*512}")
        a("s_add_u32 s3, s56, s57")
        a("s_add_u32 s3, s3, 65536")
        for k in range(NS // 2):
            sent.append([("vm", f"buffer_store_dwordx4 v[32:35], v26, s[24:27], s3 offen offset:{k*1024} sc1", "S")])
    if opt.get("sent_pro"):
        emit(sent)
    a("v_and_b32 v21, 15, v1")
    a("v_lshrrev_b32 v22, 4, v1")
    a("v_bfe_u32 v23, v1, 1, 3")
    a("v_xor_b32 v23, v23, v22")
    a("v_lshlrev_b32 v23, 4, v23")
    a("v_lshl_add_u32 v23, v21, 7, v23")
    a("s_lshl_b32 s56, s39, 14")
    a("v_add_u32 v16, s56, v23")
    a("v_xor_b32 v17, 64, v16")
    a("v_bfe_u32 v23, v1, 2, 2")
    a("v_lshl_add_u32 v24, v22, 3, v23")
    a("v_lshlrev_b32 v24, 7, v24")
    a("v_bfe_u32 v25, v1, 1, 1")
    a("s_lshl_b32 s56, s40, 2")
    a("v_or_b32 v25, s56, v25")
    a("v_and_b32 v36, 2, v23")
    a("v_lshlrev_b32 v36, 1, v36")
    a("v_xor_b32 v25, v25, v36")
    a("v_and_b32 v36, 1, v22")
    a("v_lshlrev_b32 v36, 1, v36")
    a("v_xor_b32 v25, v25, v36")
    a("v_lshl_add_u32 v24, v25, 4, v24")
    a("v_and_b32 v36, 1, v1")
    a("v_lshl_add_u32 v24, v36, 3, v24")
    a("v_xor_b32 v25, 32, v24")
    for s in range(3):
        a(f"v_add_u32 v{18+2*s}, {WB[s]}, v24")
        a(f"v_add_u32 v{19+2*s}, {WB[s]}, v25")
    a(f"v_mov_b32 v36, 0x{f2u(EPS):08x}")
    a(f"v_mov_b32 v37, v36")
    for rt in range(8):
        for r in range(0, 16, 2):
            a(f"v_pk_mov_b32 {vr(acc(rt, 0) + r, 2)}, v[36:37], v[36:37]")
    if opt.get("wpace", 6):
        a("s_lshl_b32 s56, s2, 2")
        a("s_add_u32 s56, s56, s38")
        a("s_bitcmp1_b32 s56, 3")
        a("s_cselect_b32 s84, s8, s6")
        a("s_cselect_b32 s85, s9, s7")
        a("s_and_b32 s85, s85, 0xffff")
        a(f"s_mov_b32 s86, {1024*3072*2}")
        a("s_mov_b32 s87, 0x00020000")
        a("s_lshr_b32 s57, s56, 4")
        a(f"s_add_u32 s57, s57, {64*opt.get('wpace', 6)}")
        a("s_mul_i32 s73, s57, 6144")
        a("s_and_b32 s57, s56, 7")
        a("s_mul_i32 s57, s57, 768")
        a("s_add_u32 s73, s73, s57")
        pass
    PRE = opt.get("pre", "W1")
    pre_list = {"none": [], "W1": dmaW(1), "W1X1": dmaW(1) + dmaX(1)}[PRE]
    if opt.get("pre0"):
        pre_list = pre_list[6:]
    if opt.get("pre_first"):
        emit(pre_list); pre_list = []
    ET = opt.get("etouch", 1)
    if ET == 1:
        a("s_lshl_b32 s56, s2, 2")
        a("s_add_u32 s56, s56, s38")
        a("s_lshr_b32 s57, s56, 4")
        a("s_lshl_b32 s57, s57, 3")
        a("s_and_b32 s58, s56, 7")
        a("s_add_u32 s57, s57, s58")
        a(f"s_add_u32 s57, s57, {opt.get('et_row0', 0)}")
        a(f"s_cmp_lt_u32 s57, {64*opt.get('wpace', 6)}")
        a("s_cselect_b32 s57, s57, 1024")
        a("s_mul_i32 s57, s57, 6144")
        a("v_lshlrev_b32 v40, 10, v1")
        a("s_mov_b64 exec, 0x3f")
        vq.issue("buffer_load_dword v39, v40, s[84:87], s57 offen offset:384", "T")
        a("s_mov_b64 exec, -1")
    if ET == 2:
        for st in range(opt.get("et0", 2), opt.get("wpace", 6)):
            a(f"s_sub_u32 s57, s73, {(opt.get('wpace', 6) - st)*64*6144}")
            a("s_mov_b64 exec, 0x3f")
            vq.issue("buffer_load_dword v39, v38, s[84:87], s57 offen", "T")
            a("s_mov_b64 exec, -1")
    if opt.get("ctouch", 1):
        a("s_getpc_b64 s[56:57]")
        a.label("K_CT")
        a(f"s_sub_u32 s56, s56, K_CT-{KNAME}")
        a("s_subb_u32 s57, s57, 0")
        a("s_mov_b64 s[88:89], s[56:57]")
        a("s_lshr_b32 s58, s2, 3")
        a("s_lshl_b32 s58, s58, 2")
        a("s_add_u32 s58, s58, s38")
        a("s_lshl_b32 s79, s58, 7")
        a("s_mul_i32 s58, s58, 384")
        a("v_add_u32 v40, s58, v38")
        a(f"v_min_u32 v40, K_LAST-{KNAME}, v40")
        a("s_mov_b64 exec, 7")
        vq.issue("global_load_dword v39, v40, s[56:57]", "T")
        a("s_mov_b64 exec, -1")
    emit(pre_list)
    if opt.get("xsp", 0x3c):
        m = opt.get("xsp", 0x3c)
        emit([[f"s_mov_b32 exec_lo, 0x{m | (m << 16):x}", "s_mov_b32 exec_hi, 0", ("vm", "buffer_load_dword v39, v38, s[16:19], s60 offen", "T"), "s_mov_b64 exec, -1"]])
    stamp(a, opt, 1)

    def rdW(t):
        ops = []
        for ct in range(6):
            for ks in range(2):
                for sub in range(2):
                    r = fW(t, ct, ks) + 2 * sub
                    ops.append(("ds", f"ds_read_b64_tr_b16 {ar(r, 2)}, v{18 + 2*(t % 3) + (ct & 1)} offset:{(ct >> 1)*8192 + ks*4096 + sub*512}"))
        return ops
    def rdX(t, rt, dst):
        return [("ds", f"ds_read_b128 {ar(dst(ks))}, v{16+ks} offset:{XB[t % 2] + rt*2048}") for ks in range(2)]
    def mf(t, rt, cts, X):
        out = []
        for ct in cts:
            for ks in range(2):
                W = ar(fW(t, ct, ks))
                A, B = (W, ar(X(ks))) if ct < 2 else (ar(X(ks)), W)
                c = vr(acc(rt, ct))
                cin = "0" if (t == 0 and ks == 0 and ct >= 4) else c
                out.append(f"{MF} {c}, {A}, {B}, {cin}")
        return out
    DEFER = opt.get("defer", 2)
    HST = opt.get("hst", 7 if opt.get("spec", 0) else 5)
    DSP = opt.get("dma_per_block", 2)
    IL = opt.get("il", 1)
    def cts_of(t):
        if IL and t == 15:
            return [2, 3]
        return [2, 3, 4, 5] if t >= 16 - DEFER else [0, 1, 2, 3, 4, 5]
    def Xreg(t, rt): return (lambda ks: fXR(rt, ks)) if t == 15 else (lambda ks: fX(rt % 2, ks))
    def blocks2(seq, pend, wreads, front=None, valu=()):
        CAP = opt.get("cap", 2)
        VC = opt.get("vcost", 2)
        nbs = [len(cts_of(t)) * 2 for t, _ in seq]
        starts = [sum(nbs[:i]) for i in range(len(seq))]
        G = sum(nbs)
        load = [0] * (G + 64)
        fill = {}
        def cost(x):
            if isinstance(x, tuple):
                return VC if x[0] == "vm" else (1 if x[0] == "ds" else 0)
            return 0 if x.endswith(":") else 1
        def place(g, grp, lim=None):
            c = sum(cost(x) for x in grp)
            lim = G - 1 if lim is None else lim
            g0 = g
            while g < lim and load[g] + min(c, CAP) > CAP:
                g += 1
            g = min(g, lim)
            load[g] += c
            fill.setdefault(g, []).extend(grp)
            return g
        if front:
            fill[0] = list(front); load[0] = 99
        for n, (t, rt) in enumerate(seq):
            if rt < 7: nx = rdX(t, rt + 1, Xreg(t, rt + 1))
            elif t < 15: nx = rdX(t + 1, 0, Xreg(t + 1, 0))
            else: nx = []
            for k, x in enumerate(nx):
                fill.setdefault(starts[n] + k, []).append(x); load[starts[n] + k] += 1
            if n: load[starts[n] - 1] += 1
        stream = []
        for grp in pend:
            atomic = any(isinstance(x, str) and ("exec" in x or x.endswith(":") or "cbranch" in x) for x in grp)
            if atomic: stream.append((grp, True))
            else:
                for x in grp: stream.append(([x], isinstance(x, tuple) and x[0] == "vm"))
        nv = sum(1 for _, v in stream if v)
        if nv:
            step = min(max(nbs) / DSP, (G - 3) / nv)
            pos = 2.0; last = 0
            for idx, (grp, isv) in enumerate(stream):
                if isv:
                    last = place(max(last, int(pos)), grp) ; pos = max(pos + step, last + 1.0)
                    last_v = last
                else:
                    nxt_v = idx + 1 < len(stream) and (stream[idx + 1][1] or not stream[idx+1][1]) and "m0" in grp[0]
                    tgt = max(last, int(pos) - 1) if nxt_v else last
                    last = place(tgt, grp)
                    if nxt_v: pos = max(pos, last + 1.0)
        ok = [starts[n] + g for n, (t, rt) in enumerate(seq) if rt < 7 for g in range(nbs[n])]
        if wreads:
            WEND = opt.get("wend", 8)
            ok2 = ok[:max(len(wreads) // 2, len(ok) - WEND)]
            last = ok2[0]
            for k, x in enumerate(wreads):
                last = place(max(last, ok2[(k * len(ok2)) // len(wreads)]), [x], lim=ok[-1])
        valu = [x if isinstance(x, list) else [x] for x in valu]
        last = 0
        for k, grp in enumerate(valu):
            last = place(max(last, (k * (G - 4)) // len(valu)), grp)
        for n, (t, rt) in enumerate(seq):
            lq.need(regs_of(ar(Xreg(t, rt)(0), 8)))
            weave(mf(t, rt, cts_of(t), Xreg(t, rt)), {g - starts[n]: v for g, v in fill.items() if starts[n] <= g < starts[n] + nbs[n]})

    def blocks(seq, pend, wreads, front=None, valu=()):
        if opt.get("sched2", 1):
            return blocks2(seq, pend, wreads, front, valu)
        pend = list(pend); wreads = list(wreads); valu = list(valu)
        for n, (t, rt) in enumerate(seq):
            cts = cts_of(t)
            nb = len(cts) * 2
            fill = {}
            if rt < 7:
                nx = rdX(t, rt + 1, Xreg(t, rt + 1))
            elif t < 15:
                nx = rdX(t + 1, 0, Xreg(t + 1, 0))
            else:
                nx = []
            items = [[x] for x in nx]
            left_w = len([1 for (_, r) in seq[n:] if r < 7])
            if rt < 7 and wreads:
                k = -(-len(wreads) // left_w)
                items += [[x] for x in wreads[:k]]
                wreads = wreads[k:]
            if n == 0 and front:
                fill[0] = list(front)
            spread(fill, items, 0, nb - 1)
            k = min(len(pend), max(DSP, -(-len(pend) // (len(seq) - n))))
            spread(fill, pend[:k], 1, nb)
            pend = pend[k:]
            k = -(-len(valu) // (len(seq) - n))
            spread(fill, [x if isinstance(x, list) else [x] for x in valu[:k]], 0, nb)
            valu = valu[k:]
            weave(mf(t, rt, cts, Xreg(t, rt)), fill)
        assert not pend and not wreads and not valu

    vq.need("W0", "X0a")
    a("s_barrier")
    stamp(a, opt, 2)
    stamp(a, opt, 25, real=True)
    w0 = rdW(0)
    for x in w0[:4] + rdX(0, 0, lambda ks: fX(0, ks)) + w0[4:13]:
        put(x)
    rest0 = ([] if PRE != "none" else dmaW(1)) + ([] if PRE == "W1X1" else dmaXh(1, 0)) + dmaW(2) + ([] if PRE == "W1X1" else dmaXh(1, 1))
    k0 = min(len(rest0), opt.get("k0", 10))
    blocks([(0, r) for r in range(3)], rest0[:k0], [], front=w0[13:])
    vq.need("W1", "X0b", extra="lgkmcnt(0)")
    lq.drained()
    a("s_barrier")
    x0 = []
    if opt.get("xs0"):
        m = opt["xs0"]
        x0 = [[f"s_mov_b32 exec_lo, 0x{m | (m << 16):x}", "s_mov_b32 exec_hi, 0", ("vm", "buffer_load_dword v39, v38, s[16:19], s60 offen", "T"), "s_mov_b64 exec, -1"]]
    blocks([(0, r) for r in range(3, 7)], rest0[k0:] + dmaXh(2, 0) + dmaW(3) + x0, rdW(1))

    def window1(t, extra=(), last=False, valu=(), first=()):
        ABL[0] = opt.get("abl", "") if 1 <= t <= 12 else ""
        vq.need(f"X{t+1}a", f"X{t+1}b", f"W{t+2}", *( ["S"] if t == HST else []), extra="lgkmcnt(0)")
        lq.drained()
        a("s_barrier")
        if opt.get("wstamps"):
            stamp(a, opt, 32 + t)
        pend = list(first)
        if t + 2 <= 15:
            pend += dmaX(t + 2) if t > 0 else dmaXh(2, 1)
        if t + 4 <= 15:
            pend += dmaW(t + 4)
        pend += list(extra)
        seq = [(t, 7)] + [(t + 1, r) for r in range(8 if last else 7)]
        blocks(seq, pend, rdW(t + 2) if t + 2 <= 15 else [], valu=valu)

    def window(t, extra=(), last=False, valu=(), first=()):
        if not opt.get("mid", 0):
            return window1(t, extra, last, valu, first)
        vq.need(f"X{t+1}a", f"W{t+2}", *( ["S"] if t == HST else []), extra="lgkmcnt(0)")
        lq.drained()
        a("s_barrier")
        if opt.get("wstamps"):
            stamp(a, opt, 32 + t)
        pend = list(first)
        if t + 2 <= 15:
            pend += dmaXh(t + 2, 1)
        wd = dmaW(t + 4) if t + 4 <= 15 else []
        pend += wd[:4]
        wr = rdW(t + 2) if t + 2 <= 15 else []
        valu = list(valu); extra = list(extra)
        nv = len(valu) // 2
        ne = len(extra) // 2 if last else 0
        blocks([(t, 7)] + [(t + 1, r) for r in range(3)], pend + extra[:ne], wr[:10], valu=valu[:nv])
        vq.need(f"X{t+1}b")
        lq.need(regs_of(ar(Xreg(t + 1, 3)(0), 8)))
        a("s_barrier")
        pend = []
        if t + 3 <= 15:
            pend += dmaXh(t + 3, 0)
        if wd:
            wd[4] = [f"s_add_u32 m0, s49, {WB[(t + 4) % 3] + 4096}"] + wd[4][1:]
        pend += wd[4:] + extra[ne:]
        blocks([(t + 1, r) for r in range(3, 8 if last else 7)], pend, wr[10:], valu=valu[nv:])

    hs = ["s_cmp_lg_u32 s38, 0", "s_cbranch_scc1 K_NOATOM", "s_mov_b64 exec, 1",
          "buffer_atomic_add v28, v29, s[28:31], s63 offen sc1", "s_mov_b64 exec, -1", "K_NOATOM:"]
    G = 64
    gate = [("needvm", ["G"]), "v_mov_b32 v38, 0", "v_mov_b32 v39, 0"]
    for i in range(8):
        gr = lambda j: acc(j // 4, 1) + j % 4
        gate.append(f"v_dot2_f32_bf16 v38, v{gr(i)}, v{gr(16+i)}, v38")
        gate.append(f"v_dot2_f32_bf16 v39, v{gr(8+i)}, v{gr(16+i)}, v39")
    for ctrl in ("quad_perm:[1,0,3,2]", "quad_perm:[2,3,0,1]", "row_half_mirror", "row_mirror"):
        for r in (38, 39):
            gate.append(f"v_add_f32_dpp v{r}, v{r}, v{r} {ctrl} row_mask:0xf bank_mask:0xf")
    gate2 = []
    for r in (38, 39):
        for k, ln in enumerate((0, 16, 32, 48)):
            gate2.append(f"v_readlane_b32 s{4 + (r-38)*4 + k}, v{r}, {ln}")
    for r, s0 in ((38, 4), (39, 8)):
        gate2 += [f"v_mov_b32 v{r}, s{s0}", f"v_add_f32 v{r}, s{s0+1}, v{r}", f"v_add_f32 v{r}, s{s0+2}, v{r}", f"v_add_f32 v{r}, s{s0+3}, v{r}"]
    for ops in (["v_cvt_pk_bf16_f32 v{r}, v{r}, v{r}", "v_and_b32 v{r}, 0xffff0000, v{r}", "v_mul_f32 v{r}, 0x%08x, v{r}" % f2u(-LOG2E),
                 "v_exp_f32 v{r}, v{r}", "v_add_f32 v{r}, 1.0, v{r}", "v_rcp_f32 v{r}, v{r}", "v_cvt_pk_bf16_f32 v{r}, v{r}, v{r}",
                 "v_and_b32 v{r}, 0xffff0000, v{r}"]):
        for r in (38, 39):
            gate2.append(ops.format(r=r))

    LM = opt.get("lm", 2)
    p2 = ["s_and_b32 s56, s2, 7", "s_lshr_b32 s57, s2, 3",
          f"s_and_b32 s50, s56, {(16 >> LM) - 1}", f"s_lshl_b32 s50, s50, {LM}", f"s_and_b32 s58, s57, {(1 << LM) - 1}", "s_add_u32 s50, s50, s58",
          f"s_lshr_b32 s51, s56, {4 - LM}", f"s_lshl_b32 s51, s51, {5 - LM}", f"s_lshr_b32 s58, s57, {LM}", "s_add_u32 s51, s51, s58",
          ["s_cmp_lt_u32 s38, 2", "s_cselect_b32 s80, s74, s76", "s_cselect_b32 s81, s75, s77"],
          "s_and_b32 s81, s81, 0xffff", f"s_mov_b32 s82, {1024*1024*2}", "s_mov_b32 s83, 0x00020000",
          "s_lshl_b32 s52, s39, 20", "s_lshl_b32 s56, s51, 7", "s_add_u32 s52, s52, s56",
          "s_lshl_b32 s53, s50, 19", "s_lshl_b32 s56, s38, 17", "s_add_u32 s53, s53, s56",
          f"s_lshl_b32 s56, s50, {6 + FS}", f"s_lshl_b32 s57, s38, {4 + FS}", "s_add_u32 s56, s56, s57", f"s_add_u32 s54, s56, {GB}",
          "v_lshrrev_b32 v48, 3, v1", "v_and_b32 v49, 7, v1", "v_bfe_u32 v50, v1, 4, 1", "v_lshlrev_b32 v50, 2, v50",
          "v_xor_b32 v49, v49, v50", "v_bfe_u32 v50, v1, 5, 1", "v_lshlrev_b32 v50, 1, v50", "v_xor_b32 v49, v49, v50",
          "v_lshlrev_b32 v49, 4, v49", "v_lshl_add_u32 v40, v48, 11, v49"]
    p2 += [f"v_add_u32 v{40+i}, {i*(8*2048 - 1024)}, v40" for i in range(1, 4)]
    HS = opt.get("halfst", 1)
    p2 += ["s_mul_i32 s64, s38, 6144" if HS else "s_lshl_b32 s64, s38, 12", f"s_add_u32 s64, s64, {EX}"]
    p2b = ["v_lshrrev_b32 v48, 4, v1", "v_bfe_u32 v49, v1, 2, 2", "v_lshl_add_u32 v50, v48, 2, v49", "v_lshlrev_b32 v50, 7, v50",
           "v_bfe_u32 v51, v1, 1, 1", "v_and_b32 v52, 2, v49", "v_lshlrev_b32 v52, 1, v52", "v_xor_b32 v51, v51, v52",
           "v_and_b32 v52, 1, v48", "v_lshlrev_b32 v52, 1, v52", "v_xor_b32 v51, v51, v52", "v_lshl_add_u32 v50, v51, 4, v50",
           "v_and_b32 v52, 1, v1", "v_lshl_add_u32 v50, v52, 3, v50", "v_add_u32 v44, s64, v50"]
    p2b += [f"v_xor_b32 v{44+ct}, {ct*32}, v44" for ct in range(1, 4)]
    p2b += ["v_lshlrev_b32 v53, 3, v1"]
    p2c = [f"v_mov_b32 v{12+i}, v{40+i}" for i in range(4)] + ["s_add_u32 s56, s48, 0x10000", "v_add_u32 v32, s56, v50"]
    p2c += [f"v_xor_b32 v{32+ct}, {ct*32}, v32" for ct in range(1, 4)]
    SLOT = {}
    RES = {0: 176, 1: 192, 2: 208, 3: 224, 4: 240, 5: 16, 6: 32, 7: 64}
    AQ = [q for q in range(0, 256, 4) if not any(r <= q < r + 16 for r in RES.values())]
    assert len(AQ) == 32
    def dmaB(b, slot):
        SLOT[b] = slot
        ops = []
        for j in range(4):
            off = f" offset:{j*1024}" if j else ""
            m0 = "s_mov_b32 m0, s64" if slot is None else f"s_add_u32 m0, s48, {slot}"
            ops.append(([m0] if j == 0 else []) +
                       [("vm", f"buffer_load_dwordx4 v{(40 if slot is None else 12)+j}, s[80:83], s52 offen{off} lds", f"B{b}")])
        ops[-1].append("s_add_u32 s52, s52, 65536")
        return ops
    def breads(b, dst, agpr):
        sl = SLOT[b]
        base = 44 if sl is None else (32 if sl >= 65536 else 16)
        o = 0 if sl is None else sl % 65536
        return [("ds", f"ds_read_b64_tr_b16 {(ar if agpr else vr)(dst + ct*4 + 2*sub, 2)}, v{base+ct} offset:{o + sub*2048}")
                for ct in range(4) for sub in range(2)]
    PD = opt.get("wpace", 6)
    def wp():
        return ["s_mov_b64 exec, 0x3f", ("vm", "buffer_load_dword v39, v38, s[84:87], s73 offen", "T"), "s_mov_b64 exec, -1",
                f"s_add_u32 s73, s73, {64*6144}"]
    wt_setup = [["s_bitcmp1_b32 s38, 0", "s_cselect_b32 s92, s76, s74", "s_cselect_b32 s93, s77, s75"], "s_and_b32 s93, s93, 0xffff",
                f"s_mov_b32 s94, {1024*1024*2}", "s_mov_b32 s95, 0x00020000",
                "s_lshl_b32 s78, s2, 1", "s_add_u32 s78, s78, s40", "s_lshl_b32 s78, s78, 12"]
    WTN, WT0 = opt.get("wtn", 4), opt.get("wt0", 9)
    def wt(k):
        n = 32 // WTN
        return [f"s_mov_b64 exec, 0x{(1 << n) - 1:x}",
                ("vm", f"buffer_load_dword v39, v38, s[92:95], s78 offen offset:{k*n*128}", "T"), "s_mov_b64 exec, -1"]
    xs = opt.get("xsplit", {0: 0xc0, 1: 0x300, 2: 0xc00, 3: 0x3000, 4: 0xc000})
    ST0 = opt.get("st0", 2 if HS else 3)
    sw = opt.get("sent_w", [1, 2, 3, 3, 4, 5]) if not opt.get("sent_pro") else [-1] * 6
    for t in range(15):
        kw = {"extra": [], "valu": []}
        if xs and t in xs:
            m = xs[t]
            kw["extra"] += [[f"s_mov_b32 exec_lo, 0x{m | (m << 16):x}", "s_mov_b32 exec_hi, 0", ("vm", "buffer_load_dword v39, v38, s[16:19], s60 offen", "T"), "s_mov_b64 exec, -1"]]
        if PD and t + PD <= 15: kw["extra"] += [wp()]
        if t == ST0 - 2: kw["valu"] += p2
        if t == ST0 - 1: kw["valu"] += p2b
        for k in range(len(sent)):
            if sw[k] == t: kw["extra"] += [sent[k]]
        if t == HST: kw["extra"] += [hs]
        TL = opt.get("tlb", "")
        if TL and t == opt.get("tlb_w", 12):
            grp = ["s_mov_b64 exec, 1"]
            if "o" in TL: grp.append(("vm", "buffer_load_dword v39, v29, s[24:27], s65 offen sc1", "T"))
            if "a" in TL: grp.append(("vm", "buffer_load_dword v39, v29, s[24:27], s53 offen sc1", "T"))
            if "A" in TL:
                grp += ["s_mov_b64 exec, 3", "v_lshlrev_b32 v54, 16, v1", ("vm", "buffer_load_dword v39, v54, s[24:27], s53 offen sc1", "T"), "s_mov_b64 exec, 1"]
            if "u" in TL:
                grp += ["s_lshl_b32 s59, s50, 18", "s_lshl_b32 s58, s38, 16", "s_add_u32 s59, s59, s58", "v_mov_b32 v54, s59",
                        ("vm", "global_load_dword v39, v54, s[70:71]", "T")]
            kw["extra"] += [grp + ["s_mov_b64 exec, -1"]]
        for (tw, lab, nl) in opt.get("ct2", [(4, "K_W7", 1), (12, "K_TAIL", 2)]):
            if t == tw:
                kw["extra"] += [[f"s_add_u32 s59, s79, {lab}-{KNAME}", "v_lshlrev_b32 v54, 14, v1", "v_add_u32 v54, s59, v54",
                                 f"v_min_u32 v54, K_LAST-{KNAME}, v54", f"s_mov_b64 exec, {(1 << nl) - 1}",
                                 ("vm", "global_load_dword v39, v54, s[88:89]", "T"), "s_mov_b64 exec, -1"]]
        a.label(f"K_W{t}")
        if t == WT0 - 1: kw["valu"] += wt_setup
        if WT0 <= t < WT0 + WTN: kw["extra"] += [wt(t - WT0)]
        LT = opt.get("lt")
        if LT:
            if t == min(LT) - 1:
                kw["valu"] += ["v_lshrrev_b32 v55, 3, v1", "v_lshlrev_b32 v55, 16, v55", "v_and_b32 v56, 7, v1", "v_lshl_add_u32 v55, v56, 7, v55",
                               "s_lshl_b32 s3, s39, 20", "s_lshr_b32 s56, s2, 3", "s_lshl_b32 s56, s56, 11", "s_add_u32 s3, s3, s56",
                               "s_and_b32 s56, s2, 4", "s_lshl_b32 s56, s56, 8", "s_add_u32 s3, s3, s56"]
            if t in LT:
                b0, nb_ = LT[t]
                kw["extra"] += [[f"s_add_u32 s56, s3, {b0*65536}", f"s_mov_b32 exec_lo, 0x{(1 << (8*nb_)) - 1:x}", "s_mov_b32 exec_hi, 0",
                                 ("vm", "buffer_load_dword v39, v55, s[80:83], s56 offen", "T"), "s_mov_b64 exec, -1"]]
        if HS:
            h = t - ST0
            if 0 <= h < 10:
                sub = h % 2
                grp = []
                for j in (2*sub, 2*sub + 1):
                    off = f" offset:{j*1024}" if j else ""
                    grp.append(([f"s_add_u32 m0, s64, {(h % 3)*2048 - sub*2048}"] if j % 2 == 0 else []) +
                               [("vm", f"buffer_load_dwordx4 v{40+j}, s[80:83], s52 offen{off} lds", f"H{h}")])
                if sub:
                    grp[-1].append("s_add_u32 s52, s52, 65536")
                kw["extra"] += grp
            h = t - ST0 - 2
            if 0 <= h < 10:
                kw["valu"] += [("needvm", [f"H{h}"])] + [("ds", f"ds_read_b64_tr_b16 {ar(RES[h // 2] + ct*4 + 2*(h % 2), 2)}, v{44+ct} offset:{(h % 3)*2048}") for ct in range(4)]
        elif ST0 <= t < ST0 + 10:
            b = (t - ST0) // 2
            if (t - ST0) % 2 == 0:
                kw["extra"] += dmaB(b, None)
            else:
                kw["valu"] += [[]] * 12 + [("needvm", [f"B{b}"])] + breads(b, RES[b], True)
        if t == 13:
            kw["valu"] += p2c
            kw["extra"] += [[("vm", "buffer_load_dword v28, v53, s[28:31], 0 offen sc1", "C")]]
        if t == 14:
            b58 = dmaB(5, 65536) + dmaB(6, 65536 + 4096) + dmaB(7, 98304) + dmaB(8, 98304 + 4096)
            NW14 = opt.get("nw14", 10) if IL else 16
            kw["extra"] += b58[:NW14]; b58 = b58[NW14:]
            kw["last"] = True
            if IL:
                kw["valu"] += [f"s_mov_b32 s66, 0x{f2u(LOG2E):08x}", f"s_mov_b32 s67, 0x{f2u(LOG2E):08x}",
                               f"v_mov_b32 v20, 0x{f2u(-EPS * LOG2E):08x}", "v_mov_b32 v21, v20"] + [f"v_mov_b32 v{22+i}, 0x3f803f80" for i in range(4)]
                kw["valu"] += [["s_lshl_b32 s56, s38, 12", f"s_add_u32 s56, s56, {EX}", "v_add_u32 v10, s56, v26"], "v_xor_b32 v11, 4096, v10"]
                DSP = 1
        window(t, **kw)
    stamp(a, opt, 3)
    stamp(a, opt, 26, real=True)

    a.label("K_TAIL")
    if not IL:
        a(f"s_mov_b32 s66, 0x{f2u(LOG2E):08x}")
        a(f"s_mov_b32 s67, 0x{f2u(LOG2E):08x}")
        a(f"v_mov_b32 v20, 0x{f2u(-EPS * LOG2E):08x}")
        a("v_mov_b32 v21, v20")
        for i in range(4):
            a(f"v_mov_b32 v{22+i}, 0x3f803f80")
    KV, ZC = 40, 56
    T0 = 2
    MSL = opt.get("mslots", [4, 6, 8, 10, 12, 14, 17, 24])
    def phi8(b0, b1, dst, inter=(), mfs=()):
        src = [b0, b0 + 2, b1, b1 + 2]
        L = []
        for i, s in enumerate(src):
            L.append(f"v_pk_fma_f32 {vr(T0 + 2*i, 2)}, {vr(s, 2)}, s[66:67], v[20:21]")
        for i in range(8):
            L.append(f"v_exp_f32_e64 v{T0+i}, v{T0+i} clamp")
        for s in src:
            L.append(f"v_max_f32 v{s}, v36, v{s}")
            L.append(f"v_max_f32 v{s+1}, v36, v{s+1}")
        for i, s in enumerate(src):
            L.append(f"v_pk_add_f32 {vr(T0 + 2*i, 2)}, {vr(s, 2)}, {vr(T0 + 2*i, 2)}")
        for i in range(4):
            L.append(f"v_cvt_pk_bf16_f32 v{dst+i}, v{T0+2*i}, v{T0+2*i+1}")
        pos = {0: [], 8: [], 18: []}
        for n, it in enumerate(inter):
            pos[(0, 8, 18)[(n * 3) // max(len(inter), 1)]].append(it)
        mfs = list(mfs)
        assert len(mfs) <= len(MSL)
        for n, x in enumerate(L):
            if n in pos:
                emit(pos[n])
            if n in MSL and mfs:
                m_ = mfs.pop(0)
                lq.need(Ins(m_).srcAB)
                a(m_)
            a(x)
    def pack8(b0, b1, dst):
        for i, s in enumerate([b0, b0 + 2, b1, b1 + 2]):
            a(f"v_cvt_pk_bf16_f32 v{dst+i}, v{s}, v{s+1}")
    t1 = {2: [[("needvm", ["B7"])] + breads(5, RES[5], True), breads(6, RES[6], True), breads(7, RES[7], True)]}
    rf = dmaB(9, SLOT[5]) + dmaB(10, SLOT[6]) + dmaB(11, SLOT[7])
    rf[0] = ["s_waitcnt lgkmcnt(0)"] + rf[0]
    for k in range(4):
        t1[3 + k] = rf[3*k:3*k+3]
    BQ = opt.get("bq", 0)
    if BQ:
        t1 = {}
    def kvz(m):
        out = []
        for dt in range(2):
            c = vr(ZC + dt*4)
            out.append(f"{MF} {c}, {vr(acc(2*m, 2+dt))}, v[22:25], {'0' if m == 0 else c}")
            for et in range(2):
                c = vr(KV + dt*8 + et*4)
                out.append(f"{MF} {c}, {vr(acc(2*m, 2+dt))}, {vr(acc(2*m, 4+et))}, {'0' if m == 0 else c}")
        return out
    if IL:
        h = -(-len(b58) // 2)
        t1 = {0: b58[:h], 1: b58[h:], 3: t1[2]}
        rf[0] = rf[0][1:]
        rf[0] = [("needds", regs_of(ar(RES[7], 16)))] + rf[0]
        for k in range(4):
            t1[4 + k] = rf[3*k:3*k+3]
        if opt.get("x_nob"):
            t1 = {}
        if opt.get("x_norf"):
            for k in range(4): t1[4 + k] = []
        if opt.get("x_nowait"):
            t1[3][0] = t1[3][0][1:]
        for j in range(8):
            if opt.get("tstamps"):
                stamp(a, opt, 48 + j)
            m, dt = j // 2, j % 2
            if j < 4:
                mfs = mf(15, 2*j, [4, 5], lambda ks: fXR(2*j, ks)) + mf(15, 2*j + 1, [4, 5], lambda ks: fXR(2*j + 1, ks))
            elif j < 7:
                mfs = kvz(j - 4)
            else:
                mfs = []
            phi8(acc(2*m, 2 + dt), acc(2*m + 1, 2 + dt), acc(2*m, 2 + dt), inter=t1.get(j, []), mfs=mfs)
            if 1 <= j <= 4:
                for et in range(2):
                    pack8(acc(2*(j-1), 4 + et), acc(2*(j-1) + 1, 4 + et), acc(2*(j-1), 4 + et))
        if opt.get("tstamps"):
            stamp(a, opt, 56)
        for x in kvz(3):
            a(x)
        a("s_nop 3")
    else:
        for m in range(4):
            for dt in range(2):
                phi8(acc(2*m, 2 + dt), acc(2*m + 1, 2 + dt), acc(2*m, 2 + dt), inter=t1.get(m*2 + dt, []))
        lq.drained()
        kvm = []
        for m in range(4):
            for dt in range(2):
                c = vr(ZC + dt*4)
                kvm.append(f"{MF} {c}, {vr(acc(2*m, 2+dt))}, v[22:25], {'0' if m == 0 else c}")
        for m in range(4):
            for et in range(2):
                pack8(acc(2*m, 4 + et), acc(2*m + 1, 4 + et), acc(2*m, 4 + et))
                a(kvm.pop(0))
        for m in range(4):
            for dt in range(2):
                for et in range(2):
                    c = vr(KV + dt*8 + et*4)
                    a(f"{MF} {c}, {vr(acc(2*m, 2+dt))}, {vr(acc(2*m, 4+et))}, {'0' if m == 0 else c}")
        a("s_lshl_b32 s56, s38, 12")
        a(f"s_add_u32 s56, s56, {EX}")
        a("v_add_u32 v10, s56, v26")
        a("v_xor_b32 v11, 4096, v10")
    a("s_cmp_eq_u32 s39, 0")
    a("s_cbranch_scc1 K_EXW0")
    a(f"ds_write_b128 v10, {vr(ZC)} offset:2048")
    a(f"ds_write_b128 v10, {vr(KV)}")
    a(f"ds_write_b128 v10, {vr(KV+4)} offset:1024")
    a("s_waitcnt lgkmcnt(0)")
    for i in range(0, 8, 2):
        a(f"v_pk_mov_b32 {vr(KV+i, 2)}, {vr(KV+8+i, 2)}, {vr(KV+8+i, 2)} op_sel:[0,1]")
    for i in range(0, 4, 2):
        a(f"v_pk_mov_b32 {vr(ZC+i, 2)}, {vr(ZC+4+i, 2)}, {vr(ZC+4+i, 2)} op_sel:[0,1]")
    a("s_branch K_EXW1")
    a.label("K_EXW0")
    a(f"ds_write_b128 v10, {vr(ZC+4)} offset:2048")
    a("s_nop 2")
    a(f"ds_write_b128 v10, {vr(KV+8)}")
    a(f"ds_write_b128 v10, {vr(KV+12)} offset:1024")
    a("s_waitcnt lgkmcnt(0)")
    a.label("K_EXW1")
    lq.drained()
    if opt.get("tstamps"):
        stamp(a, opt, 57)
    a("s_barrier")
    if opt.get("tstamps"):
        stamp(a, opt, 58)
    a(f"ds_read_b128 {vr(KV+8)}, v11")
    a(f"ds_read_b128 {vr(KV+12)}, v11 offset:1024")
    a(f"ds_read_b128 {vr(ZC+4)}, v11 offset:2048")
    a("s_mov_b32 s56, 0x00010001")
    a("s_mov_b32 s57, 0x00010001")
    a("s_waitcnt lgkmcnt(0)")
    for i in range(0, 8, 2):
        a(f"v_pk_add_f32 {vr(KV+i, 2)}, {vr(KV+i, 2)}, {vr(KV+8+i, 2)}")
    for i in range(0, 4, 2):
        a(f"v_pk_add_f32 {vr(ZC+i, 2)}, {vr(ZC+i, 2)}, {vr(ZC+4+i, 2)}")
    for r in list(range(KV, KV + 8)) + list(range(ZC, ZC + 4)):
        a(f"v_min_u32 v{r}, -2, v{r}")
    vq.issue(f"buffer_store_dwordx4 {vr(KV)}, v26, s[24:27], s62 offen sc1", "P")
    vq.issue(f"buffer_store_dwordx4 {vr(KV+4)}, v26, s[24:27], s62 offen offset:1024 sc1", "P")
    a("s_mov_b64 exec, s[56:57]")
    vq.issue(f"buffer_store_dwordx4 {vr(ZC)}, v27, s[24:27], s62 offen offset:2048 sc1", "P")
    a("s_mov_b64 exec, -1")
    stamp(a, opt, 4)
    vq.need("C")
    a("s_mov_b32 s58, -1")
    a("s_mov_b32 s59, 0")
    a.label("K_HS")
    if opt.get("thr"):
        a("v_cmp_ne_u32 vcc, s99, v28")
        a("s_mov_b32 s97, vcc_lo")
        a("v_and_b32 v28, 0xfff, v28")
    a("v_cmp_eq_u32 vcc, 8, v28")
    a("s_cmp_eq_u64 vcc, s[58:59]")
    a("s_cbranch_scc1 K_HSOK")
    a("s_sleep 2")
    a("v_lshlrev_b32 v10, 3, v1")
    a("buffer_load_dword v28, v10, s[28:31], 0 offen sc1")
    a("s_waitcnt vmcnt(0)")
    a("s_branch K_HS")
    a.label("K_HSOK")
    PB = [acc(p, 2) for p in range(8)]
    ZG = 48
    def gather_ops():
        ops = []
        for p in range(8):
            for k in range(2):
                ops.append(([f"s_add_u32 s56, s61, {p * 16384}"] if k == 0 else []) +
                           [("vm", f"buffer_load_dwordx4 {vr(PB[p] + 4*k)}, v26, s[24:27], s56 offen offset:{k*1024} sc1", "H")])
        ops.append([("vm", f"buffer_load_dwordx4 {vr(ZG)}, v30, s[24:27], s61 offen offset:2048 sc1", "H")])
        return ops
    def gather(track):
        for op in gather_ops():
            for x in op:
                a(x[1] if isinstance(x, tuple) else x)
    gops = gather_ops()
    if BQ:
        rd = breads(5, RES[5], True) + breads(6, RES[6], True) + breads(7, RES[7], True)
        rf[0] = rf[0][1:]
        rf[0] = [("needds", regs_of(ar(RES[5], 16)))] + rf[0]
        rf[4] = [("needds", regs_of(ar(RES[6], 16)))] + rf[4]
        rf[8] = [("needds", regs_of(ar(RES[7], 16)))] + rf[8]
        qfill = [[("needvm", ["B7"])] + rd[:1]] + [[x] for x in rd[1:]]
        qb = None
    else:
        qb = dmaB(12, 32768) + dmaB(13, 32768 + 4096)
    GQ = opt.get("gather_in_q", 0)
    ILQ = opt.get("ilq", 0)
    if ILQ:
        LA = opt.get("qla", 2)
        def qm(rt):
            return mf(15, rt, [0, 1], lambda ks: fXR(rt, ks)) + mf(14, rt, [0, 1], lambda ks: fX(rt % 2, ks))
        def xr(rt):
            return rdX(14, rt, lambda ks: fX(rt % 2, ks)) if rt < 8 else []
        for x in xr(0):
            put(x)
        for rt in range(LA):
            k = -(-len(qb) // (LA - rt)) if opt.get("qb_front", 1) else 0
            fill = {1: xr(rt + 1)}
            spread(fill, qb[:k], 2, 8); qb = qb[k:]
            weave(qm(rt), fill)
        stamp(a, opt, 13)
        G0, G1 = opt.get("g0", 2), opt.get("g1", 7)
        for rt in range(8):
            inter = []
            if rt + LA < 8:
                inter.append(xr(rt + LA + 1))
            if rt < G0 and qb:
                k = -(-len(qb) // (G0 - rt)); inter += qb[:k]; qb = qb[k:]
            if G0 <= rt < G1:
                k = -(-len(gops) // (G1 - rt)); inter += gops[:k]; gops = gops[k:]
            phi8(acc(rt, 0), acc(rt, 1), acc(rt, 0), inter=inter, mfs=qm(rt + LA) if rt + LA < 8 else [])
        assert not gops and not qb
    else:
        if DEFER >= 2:
            for x in rdX(14, 0, lambda ks: fX(0, ks)):
                put(x)
        for rt in range(8):
            fill = {}
            ms = mf(15, rt, [0, 1], lambda ks: fXR(rt, ks)) if DEFER >= 1 else []
            if DEFER >= 2:
                ms += mf(14, rt, [0, 1], lambda ks: fX(rt % 2, ks))
                if rt < 7:
                    fill[1] = rdX(14, rt + 1, lambda ks: fX((rt + 1) % 2, ks))
            if BQ:
                if rt < 3:
                    spread(fill, qfill[8*rt:8*rt+8], 0, len(ms))
                if rt >= 2:
                    spread(fill, rf[2*(rt-2):2*(rt-2)+2], 2, len(ms))
            else:
                fill.setdefault(2, []).extend(qb[rt])
            per = len(ms) // 4
            first_rt = 8 - -(-GQ // max(per, 1))
            if GQ and rt >= first_rt:
                k = min(per, GQ - (17 - len(gops)))
                spread(fill, gops[:k], 0, len(ms)); gops = gops[k:]
            weave(ms, fill)
        stamp(a, opt, 13)
        GSP = opt.get("gather_span", 7)
        for rt in range(8):
            k = -(-len(gops) // (GSP - rt)) if rt < GSP else 0
            phi8(acc(rt, 0), acc(rt, 1), acc(rt, 0), inter=gops[:k]); gops = gops[k:]
    gate_ld = [[("vm", f"buffer_load_dwordx4 {vr(acc(i, 1))}, v26, s[16:19], s60 offen offset:{i*1024}", "G")] for i in range(4)]
    gate_ld += [[("vm", f"buffer_load_dwordx4 {vr(acc(4 + i, 1))}, v26, s[32:35], 0 offen offset:{i*1024}", "G")] for i in range(2)]
    emit(gate_ld)
    stamp(a, opt, 5)
    S = 40
    vq.need("H")
    a.label("K_SUM")
    for i in range(0, 8, 2):
        a(f"v_pk_add_f32 {vr(S+i, 2)}, {vr(PB[0]+i, 2)}, {vr(PB[1]+i, 2)}")
    for i in range(4):
        a(f"v_add_f32_dpp v{52+i}, v{ZG+i}, v{ZG+i} quad_perm:[1,0,3,2] row_mask:0xf bank_mask:0xf")
    for p in range(2, 8):
        for i in range(0, 8, 2):
            a(f"v_pk_add_f32 {vr(S+i, 2)}, {vr(S+i, 2)}, {vr(PB[p]+i, 2)}")
        if p in (2, 3):
            ctrl = "quad_perm:[2,3,0,1]" if p == 2 else "row_half_mirror"
            for i in range(4):
                a(f"v_add_f32_dpp v{52+i}, v{52+i}, v{52+i} {ctrl} row_mask:0xf bank_mask:0xf")
    a(f"v_pk_add_f32 v[2:3], {vr(S, 2)}, {vr(S+2, 2)}")
    a(f"v_pk_add_f32 v[4:5], {vr(S+4, 2)}, {vr(S+6, 2)}")
    a(f"v_pk_add_f32 v[6:7], v[52:53], v[54:55]")
    a("v_pk_add_f32 v[2:3], v[2:3], v[4:5]")
    a("v_pk_add_f32 v[2:3], v[2:3], v[6:7]")
    a("v_cmp_u_f32 vcc, v2, v3")
    a("s_cbranch_vccz K_GOK")
    regs = [PB[p] + i for p in range(8) for i in range(8)] + [ZG + i for i in range(4)]
    a(f"v_max3_u32 v2, v{regs[0]}, v{regs[1]}, v{regs[2]}")
    regs = regs[3:]
    while regs:
        if len(regs) >= 2:
            a(f"v_max3_u32 v2, v2, v{regs[0]}, v{regs[1]}"); regs = regs[2:]
        else:
            a(f"v_max_u32 v2, v2, v{regs[0]}"); regs = regs[1:]
    a("v_cmp_eq_u32 vcc, -1, v2")
    a("s_cbranch_vccz K_GOK")
    if opt.get("stamps"):
        a("v_readlane_b32 s56, v31, 24")
        a("s_add_u32 s56, s56, 1")
        a("v_writelane_b32 v31, s56, 24")
    gather(False)
    a("s_waitcnt vmcnt(0)")
    a("s_branch K_SUM")
    a.label("K_GOK")
    stamp(a, opt, 6)
    for i in range(4):
        a(f"v_cvt_pk_bf16_f32 v{2+i}, v{S+2*i}, v{S+2*i+1}")
    a("v_cvt_pk_bf16_f32 v6, v52, v53")
    a("v_cvt_pk_bf16_f32 v7, v54, v55")
    a("s_mul_i32 s56, s40, 3072")
    a(f"s_add_u32 s56, s56, {EX2}")
    a("v_add_u32 v11, s56, v26")
    a("s_lshl_b32 s57, s39, 3")
    a("v_add_u32 v10, s57, v11")
    a("ds_write_b64 v10, v[6:7] offset:2048")
    a("ds_write_b64 v10, v[2:3]")
    a("ds_write_b64 v10, v[4:5] offset:1024")
    a("s_waitcnt lgkmcnt(0)")
    lq.drained()
    a("s_barrier")
    OPR = 40
    a(f"ds_read_b128 {vr(OPR+8)}, v11 offset:2048")
    a(f"ds_read_b128 {vr(OPR)}, v11")
    a(f"ds_read_b128 {vr(OPR+4)}, v11 offset:1024")
    a("s_waitcnt lgkmcnt(2)")
    eb = dmaB(14, 0) + dmaB(15, 4096) if opt.get("early14", 1) else []
    for rt in range(8):
        a(f"{MF} {vr(acc(rt, 4))}, {vr(OPR+8)}, {vr(acc(rt, 0))}, 0")
        if eb and rt % 2 == 0:
            emit(eb[:1]); eb = eb[1:]
    a("s_waitcnt lgkmcnt(0)")
    for rt in range(8):
        a(f"{MF} {vr(acc(rt, 2))}, {vr(OPR)}, {vr(acc(rt, 0))}, 0")
        a(f"{MF} {vr(acc(rt, 3))}, {vr(OPR+4)}, {vr(acc(rt, 0))}, 0")
        D = acc(rt, 4)
        a(f"v_add_f32 v{D}, v36, v{D}")
        a(f"v_rcp_f32 v{D}, v{D}")
        if eb and rt % 2 == 0:
            emit(eb[:1]); eb = eb[1:]
    a("s_add_u32 s63, s65, 4096")
    for rt in range(8):
        N, D = acc(rt, 2), acc(rt, 4)
        for r in range(0, 8, 2):
            a(f"v_pk_mul_f32 {vr(N+r, 2)}, {vr(N+r, 2)}, {vr(D, 2)} op_sel_hi:[1,0]")
        for r in range(0, 8, 2):
            a(f"v_cvt_pk_bf16_f32 v{D+4+r//2}, v{N+r}, v{N+r+1}")
        vq.issue(f"buffer_store_dwordx4 {vr(D+4)}, v26, s[24:27], {'s65' if rt < 4 else 's63'} offen offset:{(rt % 4)*1024} sc1", "O")
    stamp(a, opt, 7)
    if BQ:
        emit(dmaB(12, 32768) + dmaB(13, 32768 + 4096))
    if not opt.get("early14", 1):
        emit(dmaB(14, 0) + dmaB(15, 4096))
    for k in range(4):
        a(f"s_add_u32 s56, s38, {k + 1}")
        a("s_and_b32 s56, s56, 3")
        a("s_lshl_b32 s56, s56, 11")
        a(f"v_add_u32 v{2+k}, s56, v26")
    a("v_bfe_u32 v6, v1, 1, 4")
    a(f"v_lshlrev_b32 v6, {FS}, v6")
    a("v_and_b32 v7, 1, v1")
    a("v_lshl_add_u32 v6, v7, 2, v6")
    vq.need("G")
    for x in gate[1:] + gate2:
        a(x)
    srd(a, 16, 70, 2048 * 1024 * 2)
    a("v_add_u32 v7, s48, v26")
    a("v_add_u32 v8, 0x10000, v7")
    for j in range(3):
        a(f"s_xor_b32 s56, s38, {j + 1}")
        a("s_sub_u32 s57, s38, s56")
        a("s_sub_u32 s57, s57, 1")
        a("s_and_b32 s57, s57, 3")
        a("s_lshl_b32 s57, s57, 15")
        a("s_lshl_b32 s56, s56, 13")
        a("s_add_u32 s56, s56, s57")
        a(f"v_add_u32 v{9+j}, s56, v26")
    a("v_and_b32 v24, 15, v1")
    a("v_lshrrev_b32 v25, 4, v1")
    a("v_and_b32 v28, 1, v25")
    a("v_lshlrev_b32 v28, 5, v28")
    a("v_lshrrev_b32 v25, 1, v25")
    a("v_lshl_add_u32 v28, v25, 4, v28")
    FL = opt.get("fullline", 1)
    if FL:
        a("v_and_b32 v24, 7, v1")
        a("v_bfe_u32 v25, v1, 3, 1")
        a("v_lshl_add_u32 v28, v25, 6, v28")
    a("v_lshl_add_u32 v14, v24, 11, v28")
    if FL:
        a("v_add_u32 v15, 0x4000, v14")
    a("s_lshl_b32 s56, s50, 18")
    a("s_lshl_b32 s57, s38, 16")
    a("s_add_u32 s56, s56, s57")
    a("s_lshl_b32 s57, s51, 7")
    a("s_add_u32 s61, s56, s57")
    a(f"s_add_u32 s62, s61, {16*2048}")
    a("s_mov_b32 s60, 0")
    a("s_getpc_b64 s[66:67]")
    a.label("K_PC")
    a("s_add_u32 s66, s66, K_WAIT-K_PC")
    a("s_addc_u32 s67, s67, 0")
    D = opt.get("depth", 4)
    P2 = 128
    def acc2(i, ct): return P2 + (i * 4 + ct) * 4
    def fA(slot, i): return AQ[slot * 8 + i]
    def fB(s_, ct): return 64 + s_ * 16 + ct * 4
    order = list(range(8, 16)) + list(range(8))
    for ct in range(4):
        a(f"v_subrev_u32 v{16+ct}, 0x10000, v{32+ct}")
    vq.need("B8")
    for x in breads(order[0], fB(0, 0), False):
        put(x)
    if opt.get("atouch", 0):
        a("v_lshrrev_b32 v46, 3, v1")
        a("v_lshlrev_b32 v46, 13, v46")
        a("v_and_b32 v47, 7, v1")
        a("v_lshl_add_u32 v46, v47, 7, v46")
        a("s_and_b32 s56, s51, 7")
        a("s_lshl_b32 s56, s56, 10")
        a("v_add_u32 v46, s56, v46")
    EP = opt.get("early_poll", 0) and not NS
    if EP:
        vq.issue("buffer_load_dword v44, v6, s[24:27], s54 offen sc1", "E")
    def flag():
        a("s_mov_b64 exec, 1")
        a("buffer_store_dwordx2 v[38:39], v29, s[24:27], s55 offen sc1")
        a("s_mov_b64 exec, -1")
    FAST = opt.get("fast", 0)
    if not FAST and not NS:
        vq.need("O")
        flag()
        stamp(a, opt, 8)
        if EP:
            a("s_waitcnt vmcnt(1)"); vq.drained()
            a("v_cmp_ne_u32 vcc, -1, v44")
            a("s_lshr_b32 s57, vcc_lo, 1"); a("s_and_b32 s57, s57, vcc_lo"); a("s_or_b32 s60, s60, s57")
        if opt.get("fsleep"):
            a(f"s_sleep {opt['fsleep']}")
        if opt.get("fwait", 1):
            a("s_waitcnt vmcnt(0)"); vq.drained()
        PP = opt.get("pp", 0)
        if PP:
            want = sum(1 << (2*order[k]) for k in range(opt.get("pp_heads", 2)))
            a(f"s_and_b32 s57, s60, 0x{want:x}")
            a(f"s_cmp_eq_u32 s57, 0x{want:x}")
            a("s_cbranch_scc1 K_PPOK")
            for k in range(PP):
                a(f"buffer_load_dword v{48+k}, v6, s[24:27], s54 offen sc1")
                if k < PP - 1:
                    a(f"s_sleep {opt.get('pp_sleep', 3)}")
            a.label("K_PPL")
            for k in range(PP):
                a(f"s_waitcnt vmcnt({PP-1})")
                a(f"v_cmp_ne_u32 vcc, -1, v{48+k}")
                a("s_lshr_b32 s57, vcc_lo, 1"); a("s_and_b32 s57, s57, vcc_lo"); a("s_or_b32 s60, s60, s57")
                a(f"s_and_b32 s57, s60, 0x{want:x}")
                a(f"s_cmp_eq_u32 s57, 0x{want:x}")
                a("s_cbranch_scc1 K_PPOK")
                a(f"buffer_load_dword v{48+k}, v6, s[24:27], s54 offen sc1")
            a("s_branch K_PPL")
            a.label("K_PPOK")
    SC = " sc1" if opt.get("a_sc1", 1) else ""
    NT = opt.get("ntail", 3)
    N0 = 16 - NT
    FR = {}
    for n in range(N0):
        for i in range(8):
            FR[(n, i)] = (n, i)
    seq = [(n, i) for i in range(8) for n in range(N0, 16)]
    for k, f in enumerate(seq):
        FR[f] = (N0 + k // 8, k % 8)
    GRP = {}
    for f, (g, j) in FR.items():
        GRP.setdefault(g, {})[j] = f
    def areg(n, i):
        g, j = FR[(n, i)]
        return AQ[(g % 4) * 8 + j]
    def loadsA(g):
        ops = []
        for j in range(8):
            n, i = GRP[g][j]
            b = order[n]
            if g < N0:
                pre = [f"s_add_u32 s43, s53, {b*8192}"] if j == 0 else []
                so = "s43"
            else:
                pre = [f"s_add_u32 s{4 + m - N0}, s53, {order[m]*8192}" for m in range(N0, 16)] if (g == N0 and j == 0) else []
                so = f"s{4 + n - N0}"
            off = " offset:1024" if i % 2 else ""
            ops.append(pre + [("vm", f"buffer_load_dwordx4 {ar(areg(n, i))}, v{2 + i // 2}, s[24:27], {so} offen{off}{SC}", f"A{n}_{i}")])
        return ops
    def check(n):
        b = order[n]
        out = [f"s_bitcmp1_b32 s60, {2*b}", f"s_cbranch_scc1 K_RDY{n}", f"s_mov_b32 s59, {2*b}", "s_swappc_b64 s[68:69], s[66:67]", f"K_RDY{n}:"]
        return out
    def poll(g):
        return [("vm", f"buffer_load_dword v{40 + g % 4}, v6, s[24:27], s54 offen sc1", f"P{g}")]
    def upd(g):
        return [f"v_cmp_ne_u32 vcc, -1, v{40 + g % 4}"], ["s_lshr_b32 s57, vcc_lo, 1", "s_and_b32 s57, s57, vcc_lo", "s_or_b32 s60, s60, s57"]
    def gate_grp(g):
        out = []
        if NS:
            if g < N0:
                out += check(g)
            elif g == N0:
                for m in list(range(N0, 16)) + list(range(NS)):
                    out += check(m)
                out += [("vm", "buffer_load_dword v20, v6, s[24:27], s54 offen sc1", "GF")]
            return out
        if g < N0:
            out += check(g)
        elif g == N0:
            for m in range(N0, 16):
                out += check(m)
            out += [("vm", "buffer_load_dword v20, v6, s[24:27], s54 offen sc1", "GF")]
        if g + 3 <= N0 and g in PSET:
            out += poll(g)
        return out
    TA = opt.get("atouch", 0)
    PSET = opt.get("pset", [3])
    def touchA(n0, n1):
        b0 = order[n0]
        cnt = (n1 - n0) * 8
        return [f"s_add_u32 s56, s53, {b0*8192}", f"s_mov_b64 exec, 0x{(1 << cnt) - 1:x}" if cnt < 32 else "s_mov_b32 exec_hi, 0",
                ("vm", "buffer_load_dword v45, v46, s[24:27], s56 offen sc1", "T"), "s_mov_b64 exec, -1"]
    if FAST:
        vq.need("E")
        stamp(a, opt, 8)
        a("v_cmp_ne_u32 vcc, -1, v44")
        a("s_lshr_b32 s57, vcc_lo, 1"); a("s_and_b32 s60, s57, vcc_lo")
        want = (1 << (2*order[0])) | (1 << (2*order[1]))
        a(f"s_and_b32 s57, s60, 0x{want:x}")
        a(f"s_cmp_eq_u32 s57, 0x{want:x}")
        a("s_cbranch_scc0 K_SLOW")
        q0 = list(vq.q)
        for g in range(2):
            emit([poll(g)])
            emit(loadsA(g))
        flag()
        stamp(a, opt, 9)
        a("s_branch K_GO")
        a.label("K_SLOW")
        vq.q = q0
        flag()
    if NS:
        vq.need("O")
        stamp(a, opt, 8)
        if opt.get("spec_sleep"):
            a(f"s_sleep {opt['spec_sleep']}")
        FPOS = opt.get("fpos", 2)
        for g in range(NS):
            if g == FPOS:
                flag(); vq.q.append("F")
            emit(loadsA(g))
        if FPOS >= NS:
            flag(); vq.q.append("F")
        stamp(a, opt, 9)
    for g in range(0 if NS else 2):
        emit([gate_grp(g)])
        if g == 0:
            stamp(a, opt, 9)
        emit(loadsA(g))
    if FAST:
        a.label("K_GO")
    def redw(i):
        k = i // 2
        return [f"ds_write_b128 {'v7' if k < 2 else 'v8'}, {vr(acc2(i, ct))} offset:{(k % 2)*32768 + (i % 2)*4096 + ct*1024}" for ct in range(4)]
    def Bop(n, ct):
        b = order[n]
        return vr(fB(n % 2, ct)) if b >= 8 else ar(RES[b] + ct * 4)
    issued = set()
    NPOLL = opt.get("npoll", 5)
    for n in range(N0 if NS else 0):
        if n < NS:
            lq.need(regs_of(Bop(n, 0)))
            for i in range(8):
                vq.need(f"A{n}_{i}")
                a(f"{MF} v[48:51], {Bop(n, 0)}, {ar(areg(n, i))}, {'0' if i == 0 else 'v[48:51]'}")
            a("v_cmp_u_f32 vcc, v48, v48")
            a(f"s_cbranch_vccz K_VOK{n}")
            if opt.get("stamps"):
                a("v_readlane_b32 s56, v31, 22")
                a("s_add_u32 s56, s56, 1")
                a("v_writelane_b32 v31, s56, 22")
            a(f"s_mov_b32 s59, {2*order[n]}")
            a("s_swappc_b64 s[68:69], s[66:67]")
            for op in loadsA(n):
                for x in op:
                    a(x[1] if isinstance(x, tuple) else x)
            a("s_waitcnt vmcnt(0)")
            a.label(f"K_VOK{n}")
        else:
            vq.need(f"A{n}_7")
        if n == 0:
            stamp(a, opt, 12)
        if opt.get("pstamps"):
            stamp(a, opt, 32 + n)
        ms = []
        for i in range(8):
            for ct in range(4):
                c = vr(acc2(i, ct))
                ms.append(f"{MF} {c}, {Bop(n, ct)}, {ar(areg(n, i))}, {'0' if n == 0 else c}")
        fill = {}
        if 1 <= n <= NPOLL:
            u1, u2 = upd(n - 1)
            fill[0] = [("needvm", [f"P{n-1}"])] + u1; fill[1] = u2
        if n < NPOLL:
            fill.setdefault(2, []).extend(poll(n))
        if n + 1 < 8:
            spread(fill, [[x] for x in breads(order[n + 1], fB((n + 1) % 2, 0), False)], 4, 20)
        gs = [g for g in range(NS, n + 4) if g not in issued] if n >= 1 else []
        items = []
        for g in gs:
            items += [gate_grp(g)] + loadsA(g); issued.add(g)
        if items:
            spread(fill, items, 3, 30)
        weave(ms, fill)
    for n in range(0 if NS else N0):
        FINE = n < opt.get("fine", 2)
        if not FINE:
            vq.need(f"A{n}_7")
        else:
            vq.need(f"A{n}_0")
        if n == 0:
            stamp(a, opt, 12)
        if opt.get("pstamps"):
            stamp(a, opt, 32 + n)
        ms = []
        for i in range(8):
            for ct in range(4):
                c = vr(acc2(i, ct))
                ms.append(f"{MF} {c}, {Bop(n, ct)}, {ar(areg(n, i))}, {'0' if n == 0 else c}")
        fill = {}
        if n + 3 <= N0 and n in PSET:
            u1, u2 = upd(n)
            fill[0] = u1; fill[1] = u2
        if n + 1 < 8:
            spread(fill, [[x] for x in breads(order[n + 1], fB((n + 1) % 2, 0), False)], 4, 20)
        if n == 0:
            spread(fill, [gate_grp(2)] + loadsA(2), 2, 16)
            spread(fill, [gate_grp(3)] + loadsA(3), 16, 31)
            if TA:
                fill.setdefault(31, []).extend(touchA(4, TA))
        else:
            spread(fill, [gate_grp(n + 3)] + loadsA(n + 3), 2, opt.get("lspan", 28))
        if TA and n + TA < 16:
            fill.setdefault(31, []).extend(touchA(n + TA, n + TA + 1))
        if FINE:
            for i in range(1, 8):
                fill.setdefault(4 * i - 1, []).append(("needvm", [f"A{n}_{i}"]))
        weave(ms, fill)
    if opt.get("pstamps"):
        stamp(a, opt, 32 + N0)
    gf = [("needvm", ["GF"]), "v_mov_b32 v22, v20", "v_permlane16_swap_b32 v20, v22"]
    for r in (20, 22):
        gf += [f"v_sub_f32 v{r+1}, 1.0, v{r}", f"v_cvt_pk_bf16_f32 v{r+1}, v{r+1}, v{r+1}", f"v_and_b32 v{r+1}, 0xffff0000, v{r+1}"]
    gf += [["s_cmp_lt_u32 s38, 2", "s_cbranch_scc1 K_NOSWAP", "v_swap_b32 v20, v21", "v_swap_b32 v22, v23", "K_NOSWAP:"]]
    R = 128
    rds = [f"ds_read_b128 {vr(R + k*32 + j*4)}, v{9+k} offset:{j*1024}" for k in range(3) for j in range(8)]
    for i in range(8):
        vq.need(*[f"A{n}_{i}" for n in range(N0, 16)])
        ms = [f"{MF} {vr(acc2(i, ct))}, {Bop(n, ct)}, {ar(areg(n, i))}, {vr(acc2(i, ct))}" for ct in range(4) for n in range(N0, 16)]
        fill = {}
        if i == 0:
            spread(fill, [x if isinstance(x, list) else [x] for x in gf], 0, len(ms))
        if 1 <= i <= 6:
            spread(fill, [[w] for w in redw(i - 1)], min(2, len(ms) - 4), len(ms))
        if i == 7:
            stamp(a, opt, 14)
            a("s_waitcnt lgkmcnt(0)")
            if opt.get("pstamps"): stamp(a, opt, 17)
            a("s_barrier")
            if opt.get("pstamps"): stamp(a, opt, 18)
            spread(fill, [[r] for r in rds], 0, len(ms))
        weave(ms, fill)
    OWN = acc2(6, 0)
    if opt.get("thr"):
        a("s_memrealtime s[98:99]")
        a("s_waitcnt lgkmcnt(0)")
        a("s_sub_u32 s98, s98, s96")
        a("s_cmp_eq_u32 s97, 0")
        a("s_cselect_b32 s98, s98, 0")
        a(f"s_cmp_gt_u32 s98, {int(opt['thr']*100)}")
        a("s_cbranch_scc1 K_END")
    if opt.get("pstamps"): stamp(a, opt, 19)
    a("s_waitcnt lgkmcnt(15)")
    for j in range(0, 32, 2):
        a(f"v_pk_add_f32 {vr(OWN+j, 2)}, {vr(OWN+j, 2)}, {vr(R+j, 2)}")
    for j in range(0, 32, 2):
        gsel = 20 if j < 16 else 22
        a(f"v_pk_mul_f32 {vr(OWN+j, 2)}, {vr(OWN+j, 2)}, {vr(gsel, 2)} op_sel_hi:[1,0]")
    a("s_waitcnt lgkmcnt(0)")
    for pr in range(4):
        for j in range(8 * pr, 8 * pr + 8, 2):
            a(f"v_pk_add_f32 {vr(R+32+j, 2)}, {vr(R+32+j, 2)}, {vr(R+64+j, 2)}")
        for j in range(8 * pr, 8 * pr + 8, 2):
            gsel = 20 if j < 16 else 22
            a(f"v_pk_fma_f32 {vr(OWN+j, 2)}, {vr(R+32+j, 2)}, {vr(gsel, 2)}, {vr(OWN+j, 2)} op_sel:[0,1,0] op_sel_hi:[1,1,1]")
        b = 64 + 4 * pr
        for j in range(4):
            a(f"v_cvt_pk_bf16_f32 v{b+j}, v{OWN+8*pr+2*j}, v{OWN+8*pr+2*j+1}")
        a(f"v_permlane16_swap_b32 v{b}, v{b+2}")
        a(f"v_permlane16_swap_b32 v{b+1}, v{b+3}")
        if not FL:
            a(f"buffer_store_dwordx4 {vr(b)}, v14, s[16:19], {'s61' if pr < 2 else 's62'} offen offset:{(pr % 2)*64}{opt.get('ost', ' sc1')}")
        elif pr % 2 == 1:
            for j in range(4):
                a(f"v_mov_b32 v{80+j}, v{b-4+j}")
            for j in range(4):
                a(f"v_mov_b32_dpp v{b-4+j}, v{b+j} row_ror:8 row_mask:0xf bank_mask:0xc")
            for j in range(4):
                a(f"v_mov_b32_dpp v{b+j}, v{80+j} row_ror:8 row_mask:0xf bank_mask:0x3")
            so = 's61' if pr < 2 else 's62'
            a(f"buffer_store_dwordx4 {vr(b-4)}, v14, s[16:19], {so} offen{opt.get('ost', ' sc1')}")
            a(f"buffer_store_dwordx4 {vr(b)}, v15, s[16:19], {so} offen{opt.get('ost', ' sc1')}")
    stamp(a, opt, 15)
    stamp_out(a, opt, 0)
    if opt.get("dbgout"):
        a(f"s_cmp_eq_u32 s2, {opt.get('dbgwg', 0)}")
        a("s_cbranch_scc0 K_END")
        a("s_cmp_eq_u32 s38, 0")
        a("s_cbranch_scc0 K_END")
        a("v_readlane_b32 s56, v31, 30")
        for k, sl in enumerate([2, 32, 36, 3, 7, 12, 14, 29]):
            a(f"v_readlane_b32 s57, v31, {sl}")
            a("s_sub_u32 s57, s57, s56")
            a(f"v_writelane_b32 v30, s57, {k}")
        a("v_lshlrev_b32 v27, 3, v1")
        a("s_mov_b64 exec, 0xff")
        a("buffer_store_dword v30, v27, s[28:31], 0 offen offset:4")
    a.label("K_END")
    a("s_endpgm")
    a.label("K_WAIT")
    a("buffer_load_dword v44, v6, s[24:27], s54 offen sc1")
    if opt.get("stamps"):
        a("v_readlane_b32 s56, v31, 23")
        a("s_add_u32 s56, s56, 1")
        a("v_writelane_b32 v31, s56, 23")
    a("s_waitcnt vmcnt(0)")
    a("v_cmp_ne_u32 vcc, -1, v44")
    a("s_lshr_b32 s57, vcc_lo, 1"); a("s_and_b32 s57, s57, vcc_lo"); a("s_or_b32 s60, s60, s57")
    a("s_bitcmp1_b32 s60, s59")
    if opt.get("wsleep"):
        a("s_cbranch_scc1 K_LAST")
        a(f"s_sleep {opt['wsleep']}")
        a("s_branch K_WAIT")
    else:
        a("s_cbranch_scc0 K_WAIT")
    a.label("K_LAST")
    a("s_setpc_b64 s[68:69]")

def build(opt):
    a = Asm()
    gen(a, opt)
    out = HEADER + "; @launch grid=(256,1,1) block=(256,1,1) lds=163840\n"
    out += '.amdgcn_target "amdgcn-amd-amdhsa--gfx950"\n.text\n' + a.text() + '.section .rodata,"a"\n' + kd(KNAME, 512, 100 if opt.get('thr') else 96, 256)
    return out

if __name__ == "__main__":
    opt = {}
    for kv in sys.argv[2:]:
        k, v = kv.split("=")
        try:
            v = eval(v)
        except Exception:
            pass
        opt[k] = v
    open(sys.argv[1], "w").write(build(opt))
```

```python
import sys, struct
from asmlib import Asm, Ins, regs_of
from gen import f2u, LdsQ, kd, srd, stamp, stamp_out, HEADER, WS_DIAG, WS_SIZE, WS_SLOT, WS_G, LOG2E, EPS

MF = "v_mfma_f32_16x16x32_bf16"
WS_WOF = 16 << 20
WS_TOT = 20 << 20
KNAME = "gated_mix__linear_attn_block__linear_attn_block__prompt_kernel"
def vr(b, n=4): return f"v[{b}:{b+n-1}]"
def ar(b, n=4): return f"a[{b}:{b+n-1}]"

class VmQ:
    def __init__(self, a):
        self.a = a; self.q = []
    def issue(self, text, tag):
        self.a(text); self.q.append(tag)
    def count(self, tags):
        idx = -1
        for i, t in enumerate(self.q):
            if t in tags:
                idx = i
        if idx < 0:
            return None
        return min(len(self.q) - idx - 1, 63)
    def need(self, *tags, extra=""):
        n = self.count(tags)
        if n is None:
            if extra:
                self.a(f"s_waitcnt {extra}")
            return
        self.a(f"s_waitcnt vmcnt({n}) {extra}".rstrip())
        self.q = self.q[len(self.q) - n:] if n else []
    def drained(self):
        self.q = []

def gen(a, opt):
    lq = LdsQ(a); vq = VmQ(a)
    ABL = [""]
    def put(x):
        if ABL[0] and isinstance(x, tuple):
            if "x" in ABL[0] and x[0] == "ds" and "b128" in x[1]: return
            if "w" in ABL[0] and x[0] == "ds" and "tr_b16" in x[1]: return
            if "d" in ABL[0] and x[0] == "vm" and x[2][0] in "XW": return
            if "X" in ABL[0] and x[0] == "vm" and x[2][0] == "X": return
        if isinstance(x, tuple):
            if x[0] == "ds":
                lq.issue(x[1])
            elif x[0] == "vm":
                vq.issue(x[1], x[2])
            elif x[0] == "needvm":
                vq.need(*x[1])
            elif x[0] == "needds":
                lq.need(x[1])
        else:
            a(x)
    def weave(mf, fill):
        for g, m in enumerate(mf):
            lq.need(Ins(m).srcAB)
            a(m)
            for x in fill.get(g, []):
                put(x)
    def spread(fill, items, start, end):
        n = len(items)
        for i, it in enumerate(items):
            fill.setdefault(start + (i * (end - start)) // n, []).extend(it)

    XB = [0, 32768]
    WB = [65536 + 24576 * s for s in range(3)]
    EX = 139264
    EX2 = EX + 16384
    ACC = 64
    def acc(rt, ct): return ACC + (rt * 6 + ct) * 4
    def fW(st, ct, ks): return 48 * (st % 2) + (ct * 2 + ks) * 4
    def fX(e, ks): return 96 + e * 8 + ks * 4
    def fXR(rt, ks): return 112 + rt * 8 + ks * 4
    a.raw(f".globl {KNAME}\n.p2align 8\n.type {KNAME},@function")
    a.label(KNAME)
    a("s_cmp_ge_u32 s2, 256")
    a("s_cbranch_scc1 K_END")
    if opt.get("badmap"):
        a("s_lshr_b32 s3, s2, 5")
        a("s_and_b32 s2, s2, 31")
        a("s_lshl_b32 s2, s2, 3")
        a("s_or_b32 s2, s2, s3")
    a("s_load_dwordx4 s[4:7], s[0:1], 0")
    a("s_load_dwordx2 s[8:9], s[0:1], 32")
    a("s_load_dwordx4 s[68:71], s[0:1], 48")
    a("s_load_dwordx4 s[12:15], s[0:1], 64")
    a("s_load_dwordx2 s[74:75], s[0:1], 16")
    a("s_load_dwordx2 s[76:77], s[0:1], 40")
    if opt.get("thr"):
        a("s_memrealtime s[96:97]")
    if opt.get("stamps"):
        a("v_mov_b32 v31, 0")
    stamp(a, opt, 30, real=True)
    stamp(a, opt, 0)
    a("v_lshrrev_b32 v21, 6, v0")
    a("v_and_b32 v1, 63, v0")
    a("v_readfirstlane_b32 s38, v21")
    a("s_and_b32 s56, s2, 7")
    a("s_lshr_b32 s57, s2, 3")
    if opt.get("k1map", "A") == "A":
        a("s_and_b32 s36, s57, 7")
        a("s_lshr_b32 s58, s57, 3")
        a("s_lshl_b32 s37, s56, 2")
        a("s_add_u32 s37, s37, s58")
    else:
        a("s_and_b32 s36, s56, 1")
        a("s_lshl_b32 s36, s36, 2")
        a("s_and_b32 s58, s57, 3")
        a("s_add_u32 s36, s36, s58")
        a("s_lshr_b32 s37, s56, 1")
        a("s_lshl_b32 s37, s37, 3")
        a("s_lshr_b32 s58, s57, 2")
        a("s_add_u32 s37, s37, s58")
    a("s_and_b32 s39, s38, 1")
    a("s_lshr_b32 s40, s38, 1")
    a("s_and_b32 s41, s37, 15")
    a("s_lshr_b32 s42, s37, 4")
    a("v_lshrrev_b32 v21, 3, v1")
    a("v_and_b32 v22, 7, v1")
    a("v_lshrrev_b32 v23, 4, v1")
    a("v_and_b32 v24, 1, v23")
    a("v_lshlrev_b32 v24, 2, v24")
    a("v_xor_b32 v24, v22, v24")
    a("v_lshlrev_b32 v24, 4, v24")
    a("v_mul_u32_u24 v25, 6144, v21")
    a("v_add_u32 v24, v24, v25")
    a("v_xor_b32 v25, 32, v24")
    a("s_mul_i32 s56, s38, 6")
    a("s_lshl_b32 s59, s41, 7")
    for i in range(6):
        a(f"s_add_u32 s57, s56, {i}")
        a("s_lshr_b32 s58, s57, 3")
        a("s_and_b32 s57, s57, 7")
        a(f"s_mul_i32 s57, s57, {8*6144}")
        a("s_lshl_b32 s58, s58, 11")
        a("s_add_u32 s57, s57, s58")
        a("s_add_u32 s57, s57, s59")
        if i % 4:
            a(f"s_sub_u32 s57, s57, {(i % 4) * 1024}")
        a(f"v_add_u32 v{10+i}, s57, {'v24' if i % 2 == 0 else 'v25'}")
    a("v_xor_b32 v24, v22, v23")
    a("v_lshlrev_b32 v24, 4, v24")
    a("v_lshl_add_u32 v24, v21, 11, v24")
    a("s_lshl_b32 s56, s36, 19")
    a("s_lshl_b32 s57, s40, 18")
    a("s_add_u32 s56, s56, s57")
    a("s_lshl_b32 s57, s39, 16")
    a("s_add_u32 s56, s56, s57")
    a("v_add_u32 v2, s56, v24")
    a("v_xor_b32 v25, 64, v2")
    for i in range(1, 8):
        src = "v2" if i % 2 == 0 else "v25"
        a(f"v_add_u32 v{2+i}, {(i % 4)*16384 + (i // 4)*131072 - (i % 4) * 1024}, {src}")
    a("s_lshl_b32 s48, s38, 13")
    a("s_lshl_b32 s45, s40, 14")
    a("s_lshl_b32 s57, s39, 12")
    a("s_add_u32 s45, s45, s57")
    a("s_mov_b32 s72, 0")
    a("s_mul_i32 s49, s38, 6144")
    a("s_mov_b32 s43, 0")
    a("s_mov_b32 s44, 0")
    a("s_waitcnt lgkmcnt(0)")
    srd(a, 16, 4, 2048 * 1024 * 2)
    a("s_cmp_eq_u32 s42, 0")
    a("s_cselect_b32 s56, s6, s8")
    a("s_cselect_b32 s57, s7, s9")
    srd(a, 20, 56, 1024 * 3072 * 2)
    stamp(a, opt, 10)

    def dmaXh(t, h):
        ops = []
        so = "s43" if h == 0 else "s72"
        for i in range(4 * h, 4 * h + 4):
            pre = [f"s_add_u32 m0, s45, {XB[t % 2] + h * 8192}"] if i % 4 == 0 else []
            off = f" offset:{(i % 4) * 1024}" if i % 4 else ""
            ops.append(pre + [("vm", f"buffer_load_dwordx4 v{2+i}, s[16:19], {so} offen{off}{opt.get('dpol', '')} lds", f"X{t}{'ab'[h]}")])
        ops[3].append(f"s_add_u32 {so}, {so}, 128")
        return ops
    def dmaX(t):
        return dmaXh(t, 0) + dmaXh(t, 1)
    def dmaW(t):
        ops = []
        for i in range(6):
            pre = [f"s_add_u32 m0, s49, {WB[t % 3] + (i // 4) * 4096}"] if i % 4 == 0 else []
            off = f" offset:{(i % 4) * 1024}" if i % 4 else ""
            ops.append(pre + [("vm", f"buffer_load_dwordx4 v{10+i}, s[20:23], s44 offen{off}{opt.get('dpol', '')} lds", f"W{t}")])
        ops[5].append(f"s_add_u32 s44, s44, {64*6144}")
        return ops
    def emit(groups):
        for op in groups:
            for x in op:
                put(x)
    def xfirst():
        m = opt.get("xf", 0x0f)
        a("v_lshlrev_b32 v38, 7, v1")
        a("s_lshl_b32 s58, s2, 2")
        a("s_add_u32 s58, s58, s38")
        a("s_lshl_b32 s58, s58, 12")
        a(f"s_mov_b32 exec_lo, 0x{m | (m << 16):x}")
        a("s_mov_b32 exec_hi, 0")
        vq.issue("buffer_load_dword v39, v38, s[16:19], s58 offen", "T")
        a("s_mov_b64 exec, -1")
    if opt.get("xf", 0x0f) and opt.get("xf_pos", 0) == 0: xfirst()
    emit(dmaW(0))
    if opt.get("xf", 0x0f) and opt.get("xf_pos", 0) == 1: xfirst()
    emit(dmaX(0))
    if opt.get("xf", 0x0f) and opt.get("xf_pos", 0) == 2: xfirst()
    LX, LW = opt.get("lx", 0), opt.get("lw", 0)
    if LX or LW:
        a("s_lshr_b32 s58, s2, 3")
        a("s_lshl_b32 s58, s58, 2")
        a("s_add_u32 s58, s58, s38")
    def ltw():
        a("v_bfe_u32 v40, v1, 2, 2")
        a("v_lshlrev_b32 v40, 11, v40")
        a("v_and_b32 v41, 3, v1")
        a("v_lshl_add_u32 v40, v41, 7, v40")
        a(f"v_mul_u32_u24 v41, {128*6144}, v23")
        a("v_add_u32 v40, v40, v41")
        a(f"s_add_u32 s56, s58, {opt.get('lw0', 64)}")
        a("s_mul_i32 s56, s56, 6144")
        a("s_and_b32 s57, s41, 12")
        a("s_lshl_b32 s57, s57, 7")
        a("s_add_u32 s56, s56, s57")
        m = sum(0xfff << (16 * k) for k in range(LW))
        a(f"s_mov_b32 exec_lo, 0x{m & 0xffffffff:x}")
        a(f"s_mov_b32 exec_hi, 0x{m >> 32:x}")
        vq.issue("buffer_load_dword v39, v40, s[20:23], s56 offen", "T")
        a("s_mov_b64 exec, -1")
    def ltx():
        a("v_and_b32 v42, 15, v1")
        a("v_lshlrev_b32 v42, 11, v42")
        a("v_lshl_add_u32 v42, v23, 7, v42")
        a("s_lshl_b32 s56, s58, 15")
        m = (1 << (16 * LX)) - 1
        a(f"s_mov_b32 exec_lo, 0x{m & 0xffffffff:x}")
        a(f"s_mov_b32 exec_hi, 0x{m >> 32:x}")
        vq.issue("buffer_load_dword v39, v42, s[16:19], s56 offen offset:128", "T")
        a("s_mov_b64 exec, -1")
    if LW: ltw()
    if LX: ltx()
    if opt.get("pre0"):
        emit(dmaW(1))
    stamp(a, opt, 11)
    srd(a, 24, 14, WS_TOT)
    srd(a, 28, 12, 256)
    srd(a, 32, 68, 2048)
    a("v_lshlrev_b32 v26, 4, v1")
    a("s_lshl_b32 s46, s37, 1")
    a("s_add_u32 s46, s46, s40")
    a("s_lshl_b32 s47, s36, 1")
    a("s_add_u32 s47, s47, s39")
    a("s_lshl_b32 s56, s47, 7")
    a("s_lshl_b32 s57, s46, 1")
    a("s_add_u32 s56, s56, s57")
    a("s_lshl_b32 s60, s56, 11")
    FS = opt.get("fs", 3)
    GB = WS_G if FS == 3 else WS_WOF
    a(f"s_lshl_b32 s55, s56, {FS - 1}")
    a(f"s_add_u32 s55, s55, {GB}")
    a("s_lshl_b32 s56, s47, 19")
    a("s_lshl_b32 s57, s46, 13")
    a("s_add_u32 s65, s56, s57")
    a("s_lshl_b32 s56, s37, 17")
    a("s_lshl_b32 s57, s38, 12")
    a("s_add_u32 s61, s56, s57")
    a(f"s_add_u32 s61, s61, {WS_SLOT}")
    a("s_lshl_b32 s57, s36, 14")
    a("s_add_u32 s62, s61, s57")
    a("v_lshrrev_b32 v27, 4, v1")
    a("v_lshlrev_b32 v27, 4, v27")
    a("v_and_b32 v30, 7, v1")
    a("v_lshl_add_u32 v30, v30, 14, v27")
    a("s_lshl_b32 s63, s37, 3")
    for i in range(4):
        a(f"v_mov_b32 v{32+i}, -1")
    a("v_lshlrev_b32 v38, 7, v1")
    a("v_mov_b32 v28, 1")
    if opt.get("thr"):
        a("s_getreg_b32 s56, hwreg(HW_REG_XCC_ID)")
        a("s_sub_u32 s56, s56, s2")
        a("s_and_b32 s56, s56, 7")
        a("s_mul_i32 s57, s56, s56")
        a("s_lshl_b32 s57, s57, 20")
        a("s_lshl_b32 s56, s56, 12")
        a("s_add_u32 s56, s56, s57")
        a("s_lshl_b32 s99, s56, 3")
        a("s_add_u32 s99, s99, 8")
        a("s_add_u32 s56, s56, 1")
        a("v_mov_b32 v28, s56")
    a("v_mov_b32 v29, 0")
    sent = [[("vm", "buffer_store_dwordx4 v[32:35], v26, s[24:27], s62 offen sc1", "S")],
            [("vm", "buffer_store_dwordx4 v[32:35], v26, s[24:27], s62 offen offset:1024 sc1", "S")],
            [("vm", "buffer_store_dwordx4 v[32:35], v27, s[24:27], s62 offen offset:2048 sc1", "S")],
            [("vm", "buffer_store_dwordx2 v[32:33], v29, s[24:27], s55 offen sc1", "S")]]
    NS = opt.get("spec", 0)
    if NS:
        a("s_lshl_b32 s56, s2, 2")
        a("s_add_u32 s56, s56, s38")
        a("s_lshr_b32 s57, s56, 4")
        a("s_lshl_b32 s57, s57, 17")
        a("s_and_b32 s56, s56, 15")
        a(f"s_mul_i32 s56, s56, {NS*512}")
        a("s_add_u32 s3, s56, s57")
        a("s_add_u32 s3, s3, 65536")
        for k in range(NS // 2):
            sent.append([("vm", f"buffer_store_dwordx4 v[32:35], v26, s[24:27], s3 offen offset:{k*1024} sc1", "S")])
    if opt.get("sent_pro"):
        emit(sent)
    a("v_and_b32 v21, 15, v1")
    a("v_lshrrev_b32 v22, 4, v1")
    a("v_bfe_u32 v23, v1, 1, 3")
    a("v_xor_b32 v23, v23, v22")
    a("v_lshlrev_b32 v23, 4, v23")
    a("v_lshl_add_u32 v23, v21, 7, v23")
    a("s_lshl_b32 s56, s39, 14")
    a("v_add_u32 v16, s56, v23")
    a("v_xor_b32 v17, 64, v16")
    a("v_bfe_u32 v23, v1, 2, 2")
    a("v_lshl_add_u32 v24, v22, 3, v23")
    a("v_lshlrev_b32 v24, 7, v24")
    a("v_bfe_u32 v25, v1, 1, 1")
    a("s_lshl_b32 s56, s40, 2")
    a("v_or_b32 v25, s56, v25")
    a("v_and_b32 v36, 2, v23")
    a("v_lshlrev_b32 v36, 1, v36")
    a("v_xor_b32 v25, v25, v36")
    a("v_and_b32 v36, 1, v22")
    a("v_lshlrev_b32 v36, 1, v36")
    a("v_xor_b32 v25, v25, v36")
    a("v_lshl_add_u32 v24, v25, 4, v24")
    a("v_and_b32 v36, 1, v1")
    a("v_lshl_add_u32 v24, v36, 3, v24")
    ES = opt.get("es", 1)
    if ES:
        a("s_lshl_b32 s56, s39, 5")
        a("v_xor_b32 v24, s56, v24")
    a("v_xor_b32 v25, 32, v24")
    for s in range(3):
        a(f"v_add_u32 v{18+2*s}, {WB[s]}, v24")
        a(f"v_add_u32 v{19+2*s}, {WB[s]}, v25")
    a(f"v_mov_b32 v36, 0x{f2u(EPS):08x}")
    a(f"v_mov_b32 v37, v36")
    for rt in range(8):
        for r in range(0, 16, 2):
            a(f"v_pk_mov_b32 {vr(acc(rt, 0) + r, 2)}, v[36:37], v[36:37]")
    if opt.get("wpace", 6):
        a("s_lshl_b32 s56, s2, 2")
        a("s_add_u32 s56, s56, s38")
        a("s_bitcmp1_b32 s56, 3")
        a("s_cselect_b32 s84, s8, s6")
        a("s_cselect_b32 s85, s9, s7")
        a("s_and_b32 s85, s85, 0xffff")
        a(f"s_mov_b32 s86, {1024*3072*2}")
        a("s_mov_b32 s87, 0x00020000")
        a("s_lshr_b32 s57, s56, 4")
        a(f"s_add_u32 s57, s57, {64*opt.get('wpace', 6)}")
        a("s_mul_i32 s73, s57, 6144")
        a("s_and_b32 s57, s56, 7")
        a("s_mul_i32 s57, s57, 768")
        a("s_add_u32 s73, s73, s57")
        pass
    PRE = opt.get("pre", "W1")
    pre_list = {"none": [], "W1": dmaW(1), "W1X1": dmaW(1) + dmaX(1)}[PRE]
    if opt.get("pre0"):
        pre_list = pre_list[6:]
    if opt.get("pre_first"):
        emit(pre_list); pre_list = []
    ET = opt.get("etouch", 1)
    if ET == 1:
        a("s_lshl_b32 s56, s2, 2")
        a("s_add_u32 s56, s56, s38")
        a("s_lshr_b32 s57, s56, 4")
        a("s_lshl_b32 s57, s57, 3")
        a("s_and_b32 s58, s56, 7")
        a("s_add_u32 s57, s57, s58")
        a(f"s_add_u32 s57, s57, {opt.get('et_row0', 0)}")
        a(f"s_cmp_lt_u32 s57, {64*opt.get('wpace', 6)}")
        a("s_cselect_b32 s57, s57, 1024")
        a("s_mul_i32 s57, s57, 6144")
        a("v_lshlrev_b32 v40, 10, v1")
        a("s_mov_b64 exec, 0x3f")
        vq.issue("buffer_load_dword v39, v40, s[84:87], s57 offen offset:384", "T")
        a("s_mov_b64 exec, -1")
    if ET == 2:
        for st in range(opt.get("et0", 2), opt.get("wpace", 6)):
            a(f"s_sub_u32 s57, s73, {(opt.get('wpace', 6) - st)*64*6144}")
            a("s_mov_b64 exec, 0x3f")
            vq.issue("buffer_load_dword v39, v38, s[84:87], s57 offen", "T")
            a("s_mov_b64 exec, -1")
    if opt.get("ctouch", 1):
        a("s_getpc_b64 s[56:57]")
        a.label("K_CT")
        a(f"s_sub_u32 s56, s56, K_CT-{KNAME}")
        a("s_subb_u32 s57, s57, 0")
        a("s_mov_b64 s[88:89], s[56:57]")
        a("s_lshr_b32 s58, s2, 3")
        a("s_lshl_b32 s58, s58, 2")
        a("s_add_u32 s58, s58, s38")
        a("s_lshl_b32 s79, s58, 7")
        a("s_mul_i32 s58, s58, 384")
        a("v_add_u32 v40, s58, v38")
        a(f"v_min_u32 v40, K_LAST-{KNAME}, v40")
        a("s_mov_b64 exec, 7")
        vq.issue("global_load_dword v39, v40, s[56:57]", "T")
        a("s_mov_b64 exec, -1")
    emit(pre_list)
    if opt.get("xsp", 0x30):
        m = opt.get("xsp", 0x30)
        emit([[f"s_mov_b32 exec_lo, 0x{m | (m << 16):x}", "s_mov_b32 exec_hi, 0", ("vm", "buffer_load_dword v39, v38, s[16:19], s60 offen", "T"), "s_mov_b64 exec, -1"]])
    stamp(a, opt, 1)

    def rdW(t):
        ops = []
        for ct in range(6):
            for ks in range(2):
                for sub in range(2):
                    r = fW(t, ct, ks) + 2 * sub
                    ops.append(("ds", f"ds_read_b64_tr_b16 {ar(r, 2)}, v{18 + 2*(t % 3) + (ct & 1)} offset:{(ct >> 1)*8192 + ks*4096 + sub*512}"))
        return ops
    def rdX(t, rt, dst):
        return [("ds", f"ds_read_b128 {ar(dst(ks))}, v{16+ks} offset:{XB[t % 2] + rt*2048}") for ks in range(2)]
    def mf(t, rt, cts, X):
        out = []
        for ct in cts:
            for ks in range(2):
                W = ar(fW(t, ct, ks))
                A, B = (W, ar(X(ks))) if ct < 2 else (ar(X(ks)), W)
                c = vr(acc(rt, ct))
                cin = "0" if (t == 0 and ks == 0 and ct >= 4) else c
                out.append(f"{MF} {c}, {A}, {B}, {cin}")
        return out
    DEFER = opt.get("defer", 2)
    HST = opt.get("hst", 8)
    DSP = opt.get("dma_per_block", 2)
    IL = opt.get("il", 1)
    def cts_of(t):
        if IL and t == 15:
            return [2, 3]
        return [2, 3, 4, 5] if t >= 16 - DEFER else [0, 1, 2, 3, 4, 5]
    def Xreg(t, rt): return (lambda ks: fXR(rt, ks)) if t == 15 else (lambda ks: fX(rt % 2, ks))
    def blocks2(seq, pend, wreads, front=None, valu=()):
        CAP = opt.get("cap", 2)
        VC = opt.get("vcost", 2)
        nbs = [len(cts_of(t)) * 2 for t, _ in seq]
        starts = [sum(nbs[:i]) for i in range(len(seq))]
        G = sum(nbs)
        load = [0] * (G + 64)
        fill = {}
        def cost(x):
            if isinstance(x, tuple):
                return VC if x[0] == "vm" else (1 if x[0] == "ds" else 0)
            return 0 if x.endswith(":") else 1
        def place(g, grp, lim=None):
            c = sum(cost(x) for x in grp)
            lim = G - 1 if lim is None else lim
            g0 = g
            while g < lim and load[g] + min(c, CAP) > CAP:
                g += 1
            g = min(g, lim)
            load[g] += c
            fill.setdefault(g, []).extend(grp)
            return g
        if front:
            fill[0] = list(front); load[0] = 99
        for n, (t, rt) in enumerate(seq):
            if rt < 7: nx = rdX(t, rt + 1, Xreg(t, rt + 1))
            elif t < 15: nx = rdX(t + 1, 0, Xreg(t + 1, 0))
            else: nx = []
            for k, x in enumerate(nx):
                fill.setdefault(starts[n] + k, []).append(x); load[starts[n] + k] += 1
            if n: load[starts[n] - 1] += 1
        stream = []
        for grp in pend:
            atomic = any(isinstance(x, str) and ("exec" in x or x.endswith(":") or "cbranch" in x) for x in grp)
            if atomic: stream.append((grp, True))
            else:
                for x in grp: stream.append(([x], isinstance(x, tuple) and x[0] == "vm"))
        nv = sum(1 for _, v in stream if v)
        if nv:
            step = min(max(nbs) / DSP, (G - 3) / nv)
            pos = 2.0; last = 0
            for idx, (grp, isv) in enumerate(stream):
                if isv:
                    last = place(max(last, int(pos)), grp) ; pos = max(pos + step, last + 1.0)
                    last_v = last
                else:
                    nxt_v = idx + 1 < len(stream) and (stream[idx + 1][1] or not stream[idx+1][1]) and "m0" in grp[0]
                    tgt = max(last, int(pos) - 1) if nxt_v else last
                    last = place(tgt, grp)
                    if nxt_v: pos = max(pos, last + 1.0)
        ok = [starts[n] + g for n, (t, rt) in enumerate(seq) if rt < 7 for g in range(nbs[n])]
        if wreads:
            WEND = opt.get("wend", 8)
            ok2 = ok[:max(len(wreads) // 2, len(ok) - WEND)]
            last = ok2[0]
            for k, x in enumerate(wreads):
                last = place(max(last, ok2[(k * len(ok2)) // len(wreads)]), [x], lim=ok[-1])
        valu = [x if isinstance(x, list) else [x] for x in valu]
        last = 0
        for k, grp in enumerate(valu):
            last = place(max(last, (k * (G - 4)) // len(valu)), grp)
        for n, (t, rt) in enumerate(seq):
            lq.need(regs_of(ar(Xreg(t, rt)(0), 8)))
            weave(mf(t, rt, cts_of(t), Xreg(t, rt)), {g - starts[n]: v for g, v in fill.items() if starts[n] <= g < starts[n] + nbs[n]})

    def blocks(seq, pend, wreads, front=None, valu=()):
        if opt.get("sched2", 1):
            return blocks2(seq, pend, wreads, front, valu)
        pend = list(pend); wreads = list(wreads); valu = list(valu)
        for n, (t, rt) in enumerate(seq):
            cts = cts_of(t)
            nb = len(cts) * 2
            fill = {}
            if rt < 7:
                nx = rdX(t, rt + 1, Xreg(t, rt + 1))
            elif t < 15:
                nx = rdX(t + 1, 0, Xreg(t + 1, 0))
            else:
                nx = []
            items = [[x] for x in nx]
            left_w = len([1 for (_, r) in seq[n:] if r < 7])
            if rt < 7 and wreads:
                k = -(-len(wreads) // left_w)
                items += [[x] for x in wreads[:k]]
                wreads = wreads[k:]
            if n == 0 and front:
                fill[0] = list(front)
            spread(fill, items, 0, nb - 1)
            k = min(len(pend), max(DSP, -(-len(pend) // (len(seq) - n))))
            spread(fill, pend[:k], 1, nb)
            pend = pend[k:]
            k = -(-len(valu) // (len(seq) - n))
            spread(fill, [x if isinstance(x, list) else [x] for x in valu[:k]], 0, nb)
            valu = valu[k:]
            weave(mf(t, rt, cts, Xreg(t, rt)), fill)
        assert not pend and not wreads and not valu

    vq.need("W0", "X0a")
    a("s_barrier")
    stamp(a, opt, 2)
    stamp(a, opt, 25, real=True)
    w0 = rdW(0)
    for x in w0[:4] + rdX(0, 0, lambda ks: fX(0, ks)) + w0[4:13]:
        put(x)
    rest0 = ([] if PRE != "none" else dmaW(1)) + ([] if PRE == "W1X1" else dmaXh(1, 0)) + dmaW(2) + ([] if PRE == "W1X1" else dmaXh(1, 1))
    k0 = min(len(rest0), opt.get("k0", 10))
    blocks([(0, r) for r in range(3)], rest0[:k0], [], front=w0[13:])
    vq.need("W1", "X0b", extra="lgkmcnt(0)")
    lq.drained()
    a("s_barrier")
    x0 = []
    if opt.get("xs0"):
        m = opt["xs0"]
        x0 = [[f"s_mov_b32 exec_lo, 0x{m | (m << 16):x}", "s_mov_b32 exec_hi, 0", ("vm", "buffer_load_dword v39, v38, s[16:19], s60 offen", "T"), "s_mov_b64 exec, -1"]]
    blocks([(0, r) for r in range(3, 7)], rest0[k0:] + dmaXh(2, 0) + dmaW(3) + x0, rdW(1))

    def window1(t, extra=(), last=False, valu=(), first=()):
        ABL[0] = opt.get("abl", "") if 1 <= t <= 12 else ""
        vq.need(f"X{t+1}a", f"X{t+1}b", f"W{t+2}", *( ["S"] if t == HST else []), extra="lgkmcnt(0)")
        lq.drained()
        a("s_barrier")
        if opt.get("wstamps"):
            stamp(a, opt, 32 + t)
        pend = list(first)
        if t + 2 <= 15:
            pend += dmaX(t + 2) if t > 0 else dmaXh(2, 1)
        if t + 4 <= 15:
            pend += dmaW(t + 4)
        pend += list(extra)
        seq = [(t, 7)] + [(t + 1, r) for r in range(8 if last else 7)]
        blocks(seq, pend, rdW(t + 2) if t + 2 <= 15 else [], valu=valu)

    def window(t, extra=(), last=False, valu=(), first=()):
        if not opt.get("mid", 0):
            return window1(t, extra, last, valu, first)
        vq.need(f"X{t+1}a", f"W{t+2}", *( ["S"] if t == HST else []), extra="lgkmcnt(0)")
        lq.drained()
        a("s_barrier")
        if opt.get("wstamps"):
            stamp(a, opt, 32 + t)
        pend = list(first)
        if t + 2 <= 15:
            pend += dmaXh(t + 2, 1)
        wd = dmaW(t + 4) if t + 4 <= 15 else []
        pend += wd[:4]
        wr = rdW(t + 2) if t + 2 <= 15 else []
        valu = list(valu); extra = list(extra)
        nv = len(valu) // 2
        ne = len(extra) // 2 if last else 0
        blocks([(t, 7)] + [(t + 1, r) for r in range(3)], pend + extra[:ne], wr[:10], valu=valu[:nv])
        vq.need(f"X{t+1}b")
        lq.need(regs_of(ar(Xreg(t + 1, 3)(0), 8)))
        a("s_barrier")
        pend = []
        if t + 3 <= 15:
            pend += dmaXh(t + 3, 0)
        if wd:
            wd[4] = [f"s_add_u32 m0, s49, {WB[(t + 4) % 3] + 4096}"] + wd[4][1:]
        pend += wd[4:] + extra[ne:]
        blocks([(t + 1, r) for r in range(3, 8 if last else 7)], pend, wr[10:], valu=valu[nv:])

    hs = ["s_cmp_lg_u32 s38, 0", "s_cbranch_scc1 K_NOATOM", "s_mov_b64 exec, 1",
          "buffer_atomic_add v28, v29, s[28:31], s63 offen sc1", "s_mov_b64 exec, -1", "K_NOATOM:"]
    G = 64
    gate = [("needvm", ["G"]), "v_mov_b32 v38, 0", "v_mov_b32 v39, 0"]
    for i in range(8):
        gr = lambda j: acc(j // 4, 1) + j % 4
        gate.append(f"v_dot2_f32_bf16 v38, v{gr(i)}, v{gr(16+i)}, v38")
        gate.append(f"v_dot2_f32_bf16 v39, v{gr(8+i)}, v{gr(16+i)}, v39")
    for ctrl in ("quad_perm:[1,0,3,2]", "quad_perm:[2,3,0,1]", "row_half_mirror", "row_mirror"):
        for r in (38, 39):
            gate.append(f"v_add_f32_dpp v{r}, v{r}, v{r} {ctrl} row_mask:0xf bank_mask:0xf")
    gate2 = []
    for r in (38, 39):
        for k, ln in enumerate((0, 16, 32, 48)):
            gate2.append(f"v_readlane_b32 s{4 + (r-38)*4 + k}, v{r}, {ln}")
    for r, s0 in ((38, 4), (39, 8)):
        gate2 += [f"v_mov_b32 v{r}, s{s0}", f"v_add_f32 v{r}, s{s0+1}, v{r}", f"v_add_f32 v{r}, s{s0+2}, v{r}", f"v_add_f32 v{r}, s{s0+3}, v{r}"]
    for ops in (["v_cvt_pk_bf16_f32 v{r}, v{r}, v{r}", "v_and_b32 v{r}, 0xffff0000, v{r}", "v_mul_f32 v{r}, 0x%08x, v{r}" % f2u(-LOG2E),
                 "v_exp_f32 v{r}, v{r}", "v_add_f32 v{r}, 1.0, v{r}", "v_rcp_f32 v{r}, v{r}", "v_cvt_pk_bf16_f32 v{r}, v{r}, v{r}",
                 "v_and_b32 v{r}, 0xffff0000, v{r}"]):
        for r in (38, 39):
            gate2.append(ops.format(r=r))

    LM = opt.get("lm", 2)
    p2 = ["s_and_b32 s56, s2, 7", "s_lshr_b32 s57, s2, 3",
          f"s_and_b32 s50, s56, {(16 >> LM) - 1}", f"s_lshl_b32 s50, s50, {LM}", f"s_and_b32 s58, s57, {(1 << LM) - 1}", "s_add_u32 s50, s50, s58",
          f"s_lshr_b32 s51, s56, {4 - LM}", f"s_lshl_b32 s51, s51, {5 - LM}", f"s_lshr_b32 s58, s57, {LM}", "s_add_u32 s51, s51, s58",
          ["s_cmp_lt_u32 s38, 2", "s_cselect_b32 s80, s74, s76", "s_cselect_b32 s81, s75, s77"],
          "s_and_b32 s81, s81, 0xffff", f"s_mov_b32 s82, {1024*1024*2}", "s_mov_b32 s83, 0x00020000",
          "s_lshl_b32 s52, s39, 20", "s_lshl_b32 s56, s51, 7", "s_add_u32 s52, s52, s56",
          "s_lshl_b32 s53, s50, 19", "s_lshl_b32 s56, s38, 17", "s_add_u32 s53, s53, s56",
          f"s_lshl_b32 s56, s50, {6 + FS}", f"s_lshl_b32 s57, s38, {4 + FS}", "s_add_u32 s56, s56, s57", f"s_add_u32 s54, s56, {GB}",
          "v_lshrrev_b32 v48, 3, v1", "v_and_b32 v49, 7, v1", "v_bfe_u32 v50, v1, 4, 1", "v_lshlrev_b32 v50, 2, v50",
          "v_xor_b32 v49, v49, v50", "v_bfe_u32 v50, v1, 5, 1", "v_lshlrev_b32 v50, 1, v50", "v_xor_b32 v49, v49, v50",
          "v_lshlrev_b32 v49, 4, v49", "v_lshl_add_u32 v40, v48, 11, v49"]
    p2 += [f"v_add_u32 v{40+i}, {i*(8*2048 - 1024)}, v40" for i in range(1, 4)]
    HS = opt.get("halfst", 1)
    p2 += ["s_mul_i32 s64, s38, 6144" if HS else "s_lshl_b32 s64, s38, 12", f"s_add_u32 s64, s64, {EX}"]
    p2b = ["v_lshrrev_b32 v48, 4, v1", "v_bfe_u32 v49, v1, 2, 2", "v_lshl_add_u32 v50, v48, 2, v49", "v_lshlrev_b32 v50, 7, v50",
           "v_bfe_u32 v51, v1, 1, 1", "v_and_b32 v52, 2, v49", "v_lshlrev_b32 v52, 1, v52", "v_xor_b32 v51, v51, v52",
           "v_and_b32 v52, 1, v48", "v_lshlrev_b32 v52, 1, v52", "v_xor_b32 v51, v51, v52", "v_lshl_add_u32 v50, v51, 4, v50",
           "v_and_b32 v52, 1, v1", "v_lshl_add_u32 v50, v52, 3, v50", "v_add_u32 v44, s64, v50"]
    p2b += [f"v_xor_b32 v{44+ct}, {ct*32}, v44" for ct in range(1, 4)]
    p2b += ["v_lshlrev_b32 v53, 3, v1"]
    p2c = [f"v_mov_b32 v{12+i}, v{40+i}" for i in range(4)] + ["s_add_u32 s56, s48, 0x10000", "v_add_u32 v32, s56, v50"]
    p2c += [f"v_xor_b32 v{32+ct}, {ct*32}, v32" for ct in range(1, 4)]
    SLOT = {}
    RES = {0: 176, 1: 192, 2: 208, 3: 224, 4: 240, 5: 16, 6: 32, 7: 64}
    AQ = [q for q in range(0, 256, 4) if not any(r <= q < r + 16 for r in RES.values())]
    assert len(AQ) == 32
    def dmaB(b, slot):
        SLOT[b] = slot
        ops = []
        for j in range(4):
            off = f" offset:{j*1024}" if j else ""
            m0 = "s_mov_b32 m0, s64" if slot is None else f"s_add_u32 m0, s48, {slot}"
            ops.append(([m0] if j == 0 else []) +
                       [("vm", f"buffer_load_dwordx4 v{(40 if slot is None else 12)+j}, s[80:83], s52 offen{off} lds", f"B{b}")])
        ops[-1].append("s_add_u32 s52, s52, 65536")
        return ops
    def breads(b, dst, agpr):
        sl = SLOT[b]
        base = 44 if sl is None else (32 if sl >= 65536 else 16)
        o = 0 if sl is None else sl % 65536
        return [("ds", f"ds_read_b64_tr_b16 {(ar if agpr else vr)(dst + ct*4 + 2*sub, 2)}, v{base+ct} offset:{o + sub*2048}")
                for ct in range(4) for sub in range(2)]
    PD = opt.get("wpace", 6)
    def wp():
        return ["s_mov_b64 exec, 0x3f", ("vm", "buffer_load_dword v39, v38, s[84:87], s73 offen", "T"), "s_mov_b64 exec, -1",
                f"s_add_u32 s73, s73, {64*6144}"]
    wt_setup = [["s_bitcmp1_b32 s38, 0", "s_cselect_b32 s92, s76, s74", "s_cselect_b32 s93, s77, s75"], "s_and_b32 s93, s93, 0xffff",
                f"s_mov_b32 s94, {1024*1024*2}", "s_mov_b32 s95, 0x00020000",
                "s_lshl_b32 s78, s2, 1", "s_add_u32 s78, s78, s40", "s_lshl_b32 s78, s78, 12"]
    WTN, WT0 = opt.get("wtn", 4), opt.get("wt0", 9)
    def wt(k):
        n = 32 // WTN
        return [f"s_mov_b64 exec, 0x{(1 << n) - 1:x}",
                ("vm", f"buffer_load_dword v39, v38, s[92:95], s78 offen offset:{k*n*128}", "T"), "s_mov_b64 exec, -1"]
    xs = opt.get("xsplit", {0: 0xc0, 1: 0x300, 2: 0xc00, 3: 0x3000, 4: 0xc000})
    ST0 = opt.get("st0", 2 if HS else 3)
    sw = opt.get("sent_w", [4, 5, 6, 6, 4, 5]) if not opt.get("sent_pro") else [-1] * 6
    for t in range(15):
        kw = {"extra": [], "valu": []}
        if xs and t in xs:
            m = xs[t]
            kw["extra"] += [[f"s_mov_b32 exec_lo, 0x{m | (m << 16):x}", "s_mov_b32 exec_hi, 0", ("vm", "buffer_load_dword v39, v38, s[16:19], s60 offen", "T"), "s_mov_b64 exec, -1"]]
        if PD and t + PD <= 15: kw["extra"] += [wp()]
        if t == ST0 - 2: kw["valu"] += p2
        if t == ST0 - 1: kw["valu"] += p2b
        for k in range(len(sent)):
            if sw[k] == t: kw["extra"] += [sent[k]]
        if t == HST: kw["extra"] += [hs]
        TL = opt.get("tlb", "")
        if TL and t == opt.get("tlb_w", 12):
            grp = ["s_mov_b64 exec, 1"]
            if "o" in TL: grp.append(("vm", "buffer_load_dword v39, v29, s[24:27], s65 offen sc1", "T"))
            if "a" in TL: grp.append(("vm", "buffer_load_dword v39, v29, s[24:27], s53 offen sc1", "T"))
            if "A" in TL:
                grp += ["s_mov_b64 exec, 3", "v_lshlrev_b32 v54, 16, v1", ("vm", "buffer_load_dword v39, v54, s[24:27], s53 offen sc1", "T"), "s_mov_b64 exec, 1"]
            if "u" in TL:
                grp += ["s_lshl_b32 s59, s50, 18", "s_lshl_b32 s58, s38, 16", "s_add_u32 s59, s59, s58", "v_mov_b32 v54, s59",
                        ("vm", "global_load_dword v39, v54, s[70:71]", "T")]
            kw["extra"] += [grp + ["s_mov_b64 exec, -1"]]
        for (tw, lab, nl) in opt.get("ct2", [(4, "K_W7", 1), (12, "K_TAIL", 2)]):
            if t == tw:
                kw["extra"] += [[f"s_add_u32 s59, s79, {lab}-{KNAME}", "v_lshlrev_b32 v54, 14, v1", "v_add_u32 v54, s59, v54",
                                 f"v_min_u32 v54, K_LAST-{KNAME}, v54", f"s_mov_b64 exec, {(1 << nl) - 1}",
                                 ("vm", "global_load_dword v39, v54, s[88:89]", "T"), "s_mov_b64 exec, -1"]]
        a.label(f"K_W{t}")
        if t == WT0 - 1: kw["valu"] += wt_setup
        if WT0 <= t < WT0 + WTN: kw["extra"] += [wt(t - WT0)]
        LT = opt.get("lt")
        if LT:
            if t == min(LT) - 1:
                kw["valu"] += ["v_lshrrev_b32 v55, 3, v1", "v_lshlrev_b32 v55, 16, v55", "v_and_b32 v56, 7, v1", "v_lshl_add_u32 v55, v56, 7, v55",
                               "s_lshl_b32 s3, s39, 20", "s_lshr_b32 s56, s2, 3", "s_lshl_b32 s56, s56, 11", "s_add_u32 s3, s3, s56",
                               "s_and_b32 s56, s2, 4", "s_lshl_b32 s56, s56, 8", "s_add_u32 s3, s3, s56"]
            if t in LT:
                b0, nb_ = LT[t]
                kw["extra"] += [[f"s_add_u32 s56, s3, {b0*65536}", f"s_mov_b32 exec_lo, 0x{(1 << (8*nb_)) - 1:x}", "s_mov_b32 exec_hi, 0",
                                 ("vm", "buffer_load_dword v39, v55, s[80:83], s56 offen", "T"), "s_mov_b64 exec, -1"]]
        if HS:
            h = t - ST0
            if 0 <= h < 10:
                sub = h % 2
                grp = []
                for j in (2*sub, 2*sub + 1):
                    off = f" offset:{j*1024}" if j else ""
                    grp.append(([f"s_add_u32 m0, s64, {(h % 3)*2048 - sub*2048}"] if j % 2 == 0 else []) +
                               [("vm", f"buffer_load_dwordx4 v{40+j}, s[80:83], s52 offen{off} lds", f"H{h}")])
                if sub:
                    grp[-1].append("s_add_u32 s52, s52, 65536")
                kw["extra"] += grp
            h = t - ST0 - 2
            if 0 <= h < 10:
                kw["valu"] += [("needvm", [f"H{h}"])] + [("ds", f"ds_read_b64_tr_b16 {ar(RES[h // 2] + ct*4 + 2*(h % 2), 2)}, v{44+ct} offset:{(h % 3)*2048}") for ct in range(4)]
        elif ST0 <= t < ST0 + 10:
            b = (t - ST0) // 2
            if (t - ST0) % 2 == 0:
                kw["extra"] += dmaB(b, None)
            else:
                kw["valu"] += [[]] * 12 + [("needvm", [f"B{b}"])] + breads(b, RES[b], True)
        if t == 13:
            kw["valu"] += p2c
            kw["extra"] += [[("vm", "buffer_load_dword v28, v53, s[28:31], 0 offen sc1", "C")]]
        if t == 14:
            b58 = dmaB(5, 65536) + dmaB(6, 65536 + 4096) + dmaB(7, 98304) + dmaB(8, 98304 + 4096)
            NW14 = opt.get("nw14", 10) if IL else 16
            kw["extra"] += b58[:NW14]; b58 = b58[NW14:]
            kw["last"] = True
            if IL:
                kw["valu"] += [f"s_mov_b32 s66, 0x{f2u(LOG2E):08x}", f"s_mov_b32 s67, 0x{f2u(LOG2E):08x}",
                               f"v_mov_b32 v20, 0x{f2u(-EPS * LOG2E):08x}", "v_mov_b32 v21, v20"] + [f"v_mov_b32 v{22+i}, 0x3f803f80" for i in range(4)]
                kw["valu"] += [["s_lshl_b32 s56, s38, 12", f"s_add_u32 s56, s56, {EX}", "v_add_u32 v10, s56, v26"], "v_xor_b32 v11, 4096, v10"]
                DSP = 1
        window(t, **kw)
    stamp(a, opt, 3)
    stamp(a, opt, 26, real=True)

    a.label("K_TAIL")
    if not IL:
        a(f"s_mov_b32 s66, 0x{f2u(LOG2E):08x}")
        a(f"s_mov_b32 s67, 0x{f2u(LOG2E):08x}")
        a(f"v_mov_b32 v20, 0x{f2u(-EPS * LOG2E):08x}")
        a("v_mov_b32 v21, v20")
        for i in range(4):
            a(f"v_mov_b32 v{22+i}, 0x3f803f80")
    KV, ZC = 40, 56
    T0 = 2
    MSL = opt.get("mslots", [4, 6, 8, 10, 12, 14, 17, 24])
    def phi8(b0, b1, dst, inter=(), mfs=()):
        src = [b0, b0 + 2, b1, b1 + 2]
        L = []
        for i, s in enumerate(src):
            L.append(f"v_pk_fma_f32 {vr(T0 + 2*i, 2)}, {vr(s, 2)}, s[66:67], v[20:21]")
        for i in range(8):
            L.append(f"v_exp_f32_e64 v{T0+i}, v{T0+i} clamp")
        for s in src:
            L.append(f"v_max_f32 v{s}, v36, v{s}")
            L.append(f"v_max_f32 v{s+1}, v36, v{s+1}")
        for i, s in enumerate(src):
            L.append(f"v_pk_add_f32 {vr(T0 + 2*i, 2)}, {vr(s, 2)}, {vr(T0 + 2*i, 2)}")
        for i in range(4):
            L.append(f"v_cvt_pk_bf16_f32 v{dst+i}, v{T0+2*i}, v{T0+2*i+1}")
        pos = {0: [], 8: [], 18: []}
        for n, it in enumerate(inter):
            pos[(0, 8, 18)[(n * 3) // max(len(inter), 1)]].append(it)
        mfs = list(mfs)
        assert len(mfs) <= len(MSL)
        for n, x in enumerate(L):
            if n in pos:
                emit(pos[n])
            if n in MSL and mfs:
                m_ = mfs.pop(0)
                lq.need(Ins(m_).srcAB)
                a(m_)
            a(x)
    def pack8(b0, b1, dst):
        for i, s in enumerate([b0, b0 + 2, b1, b1 + 2]):
            a(f"v_cvt_pk_bf16_f32 v{dst+i}, v{s}, v{s+1}")
    t1 = {2: [[("needvm", ["B7"])] + breads(5, RES[5], True), breads(6, RES[6], True), breads(7, RES[7], True)]}
    rf = dmaB(9, SLOT[5]) + dmaB(10, SLOT[6]) + dmaB(11, SLOT[7])
    rf[0] = ["s_waitcnt lgkmcnt(0)"] + rf[0]
    for k in range(4):
        t1[3 + k] = rf[3*k:3*k+3]
    BQ = opt.get("bq", 0)
    if BQ:
        t1 = {}
    def kvz(m):
        out = []
        for dt in range(2):
            c = vr(ZC + dt*4)
            out.append(f"{MF} {c}, {vr(acc(2*m, 2+dt))}, v[22:25], {'0' if m == 0 else c}")
            for et in range(2):
                c = vr(KV + dt*8 + et*4)
                out.append(f"{MF} {c}, {vr(acc(2*m, 2+dt))}, {vr(acc(2*m, 4+et))}, {'0' if m == 0 else c}")
        return out
    if IL:
        h = -(-len(b58) // 2)
        t1 = {0: b58[:h], 1: b58[h:], 3: t1[2]}
        rf[0] = rf[0][1:]
        rf[0] = [("needds", regs_of(ar(RES[7], 16)))] + rf[0]
        for k in range(4):
            t1[4 + k] = rf[3*k:3*k+3]
        if opt.get("x_nob"):
            t1 = {}
        if opt.get("x_norf"):
            for k in range(4): t1[4 + k] = []
        if opt.get("x_nowait"):
            t1[3][0] = t1[3][0][1:]
        if ES:
            send = [x for m in range(4) for x in kvz(m)[3:]]
            own = [kvz(m)[:3] for m in range(4)]
            plan = {4: send[:8], 5: send[8:] + own[0], 6: own[1], 7: own[2]}
            wr_ = [[f"ds_write_b128 v10, {vr(ZC+4)} offset:2048", f"ds_write_b128 v10, {vr(KV+8)}", f"ds_write_b128 v10, {vr(KV+12)} offset:1024"]]
            t1[6] = t1[6][:1] + wr_ + t1[6][1:]
            for j in range(8):
                m, dt = j % 4, 1 - j // 4
                if j < 4:
                    mfs = mf(15, 2*j, [4, 5], lambda ks: fXR(2*j, ks)) + mf(15, 2*j + 1, [4, 5], lambda ks: fXR(2*j + 1, ks))
                else:
                    mfs = plan[j]
                if j == 7:
                    a("s_waitcnt lgkmcnt(0)")
                    lq.drained()
                    a("s_barrier")
                    a(f"ds_read_b128 {vr(KV+8)}, v11 offset:1024")
                    a(f"ds_read_b128 {vr(KV+12)}, v11")
                    a(f"ds_read_b128 {vr(ZC+4)}, v11 offset:2048")
                    a("s_lshl_b32 s56, s39, 10")
                    a("s_add_u32 s58, s62, s56")
                    a("s_xor_b32 s59, s58, 1024")
                    a("s_mov_b32 s56, 0x00010001")
                    a("s_mov_b32 s57, 0x00010001")
                phi8(acc(2*m, 2 + dt), acc(2*m + 1, 2 + dt), acc(2*m, 2 + dt), inter=t1.get(j, []), mfs=mfs)
                if 1 <= j <= 3:
                    for et in range(2):
                        pack8(acc(2*(j-1), 4 + et), acc(2*(j-1) + 1, 4 + et), acc(2*(j-1), 4 + et))
                if j == 3:
                    for et in range(2):
                        pack8(acc(6, 4 + et), acc(7, 4 + et), acc(6, 4 + et))
            for x in (own[3][1], own[3][2], own[3][0]):
                a(x)
            a("s_waitcnt lgkmcnt(0)")
        if not ES:
            for j in range(8):
                if opt.get("tstamps"):
                    stamp(a, opt, 48 + j)
                m, dt = j // 2, j % 2
                if j < 4:
                    mfs = mf(15, 2*j, [4, 5], lambda ks: fXR(2*j, ks)) + mf(15, 2*j + 1, [4, 5], lambda ks: fXR(2*j + 1, ks))
                elif j < 7:
                    mfs = kvz(j - 4)
                else:
                    mfs = []
                phi8(acc(2*m, 2 + dt), acc(2*m + 1, 2 + dt), acc(2*m, 2 + dt), inter=t1.get(j, []), mfs=mfs)
                if 1 <= j <= 4:
                    for et in range(2):
                        pack8(acc(2*(j-1), 4 + et), acc(2*(j-1) + 1, 4 + et), acc(2*(j-1), 4 + et))
            if opt.get("tstamps"):
                stamp(a, opt, 56)
            for x in kvz(3):
                a(x)
            a("s_nop 3")
    else:
        for m in range(4):
            for dt in range(2):
                phi8(acc(2*m, 2 + dt), acc(2*m + 1, 2 + dt), acc(2*m, 2 + dt), inter=t1.get(m*2 + dt, []))
        lq.drained()
        kvm = []
        for m in range(4):
            for dt in range(2):
                c = vr(ZC + dt*4)
                kvm.append(f"{MF} {c}, {vr(acc(2*m, 2+dt))}, v[22:25], {'0' if m == 0 else c}")
        for m in range(4):
            for et in range(2):
                pack8(acc(2*m, 4 + et), acc(2*m + 1, 4 + et), acc(2*m, 4 + et))
                a(kvm.pop(0))
        for m in range(4):
            for dt in range(2):
                for et in range(2):
                    c = vr(KV + dt*8 + et*4)
                    a(f"{MF} {c}, {vr(acc(2*m, 2+dt))}, {vr(acc(2*m, 4+et))}, {'0' if m == 0 else c}")
        a("s_lshl_b32 s56, s38, 12")
        a(f"s_add_u32 s56, s56, {EX}")
        a("v_add_u32 v10, s56, v26")
        a("v_xor_b32 v11, 4096, v10")
    if not ES:
        a("s_cmp_eq_u32 s39, 0")
        a("s_cbranch_scc1 K_EXW0")
        a(f"ds_write_b128 v10, {vr(ZC)} offset:2048")
        a(f"ds_write_b128 v10, {vr(KV)}")
        a(f"ds_write_b128 v10, {vr(KV+4)} offset:1024")
        a("s_waitcnt lgkmcnt(0)")
        for i in range(0, 8, 2):
            a(f"v_pk_mov_b32 {vr(KV+i, 2)}, {vr(KV+8+i, 2)}, {vr(KV+8+i, 2)} op_sel:[0,1]")
        for i in range(0, 4, 2):
            a(f"v_pk_mov_b32 {vr(ZC+i, 2)}, {vr(ZC+4+i, 2)}, {vr(ZC+4+i, 2)} op_sel:[0,1]")
        a("s_branch K_EXW1")
        a.label("K_EXW0")
        a(f"ds_write_b128 v10, {vr(ZC+4)} offset:2048")
        a("s_nop 2")
        a(f"ds_write_b128 v10, {vr(KV+8)}")
        a(f"ds_write_b128 v10, {vr(KV+12)} offset:1024")
        a("s_waitcnt lgkmcnt(0)")
        a.label("K_EXW1")
        lq.drained()
        if opt.get("tstamps"):
            stamp(a, opt, 57)
        a("s_barrier")
        if opt.get("tstamps"):
            stamp(a, opt, 58)
        a(f"ds_read_b128 {vr(KV+8)}, v11")
        a(f"ds_read_b128 {vr(KV+12)}, v11 offset:1024")
        a(f"ds_read_b128 {vr(ZC+4)}, v11 offset:2048")
        a("s_mov_b32 s56, 0x00010001")
        a("s_mov_b32 s57, 0x00010001")
        a("s_waitcnt lgkmcnt(0)")
    for i in range(0, 8, 2):
        a(f"v_pk_add_f32 {vr(KV+i, 2)}, {vr(KV+i, 2)}, {vr(KV+8+i, 2)}")
    for i in range(0, 4, 2):
        a(f"v_pk_add_f32 {vr(ZC+i, 2)}, {vr(ZC+i, 2)}, {vr(ZC+4+i, 2)}")
    for r in list(range(KV, KV + 8)) + list(range(ZC, ZC + 4)):
        a(f"v_min_u32 v{r}, -2, v{r}")
    if ES:
        vq.issue(f"buffer_store_dwordx4 {vr(KV)}, v26, s[24:27], s58 offen sc1", "P")
        vq.issue(f"buffer_store_dwordx4 {vr(KV+4)}, v26, s[24:27], s59 offen sc1", "P")
    else:
        vq.issue(f"buffer_store_dwordx4 {vr(KV)}, v26, s[24:27], s62 offen sc1", "P")
        vq.issue(f"buffer_store_dwordx4 {vr(KV+4)}, v26, s[24:27], s62 offen offset:1024 sc1", "P")
    a("s_mov_b64 exec, s[56:57]")
    vq.issue(f"buffer_store_dwordx4 {vr(ZC)}, v27, s[24:27], s62 offen offset:2048 sc1", "P")
    a("s_mov_b64 exec, -1")
    stamp(a, opt, 4)
    vq.need("C")
    a("s_mov_b32 s58, -1")
    a("s_mov_b32 s59, 0")
    a.label("K_HS")
    if opt.get("thr"):
        a("v_cmp_ne_u32 vcc, s99, v28")
        a("s_mov_b32 s97, vcc_lo")
        a("v_and_b32 v28, 0xfff, v28")
    a("v_cmp_eq_u32 vcc, 8, v28")
    a("s_cmp_eq_u64 vcc, s[58:59]")
    a("s_cbranch_scc1 K_HSOK")
    a("s_sleep 2")
    a("v_lshlrev_b32 v10, 3, v1")
    a("buffer_load_dword v28, v10, s[28:31], 0 offen sc1")
    a("s_waitcnt vmcnt(0)")
    a("s_branch K_HS")
    a.label("K_HSOK")
    if ES:
        a("s_lshl_b32 s56, s38, 11")
        a(f"s_add_u32 s56, s56, {EX2}")
        a("v_lshl_add_u32 v10, v1, 3, s56")
        a("v_xor_b32 v11, 2048, v10")
    PB = [acc(p, 2) for p in range(8)]
    ZG = 48
    def gather_ops():
        ops = []
        for p in range(8):
            for k in range(2):
                ops.append(([f"s_add_u32 s56, s61, {p * 16384}"] if k == 0 else []) +
                           [("vm", f"buffer_load_dwordx4 {vr(PB[p] + 4*k)}, v26, s[24:27], s56 offen offset:{k*1024} sc1", "H")])
        ops.append([("vm", f"buffer_load_dwordx4 {vr(ZG)}, v30, s[24:27], s61 offen offset:2048 sc1", "H")])
        return ops
    def gather(track):
        for op in gather_ops():
            for x in op:
                a(x[1] if isinstance(x, tuple) else x)
    gops = gather_ops()
    if BQ:
        rd = breads(5, RES[5], True) + breads(6, RES[6], True) + breads(7, RES[7], True)
        rf[0] = rf[0][1:]
        rf[0] = [("needds", regs_of(ar(RES[5], 16)))] + rf[0]
        rf[4] = [("needds", regs_of(ar(RES[6], 16)))] + rf[4]
        rf[8] = [("needds", regs_of(ar(RES[7], 16)))] + rf[8]
        qfill = [[("needvm", ["B7"])] + rd[:1]] + [[x] for x in rd[1:]]
        qb = None
    else:
        qb = dmaB(12, 32768) + dmaB(13, 32768 + 4096)
    GQ = opt.get("gather_in_q", 0)
    ILQ = opt.get("ilq", 1)
    if ILQ:
        LA = opt.get("qla", 2)
        def qm(rt):
            return mf(15, rt, [0, 1], lambda ks: fXR(rt, ks)) + mf(14, rt, [0, 1], lambda ks: fX(rt % 2, ks))
        def xr(rt):
            return rdX(14, rt, lambda ks: fX(rt % 2, ks)) if rt < 8 else []
        for x in xr(0):
            put(x)
        for rt in range(LA):
            k = -(-len(qb) // (LA - rt)) if opt.get("qb_front", 1) else 0
            fill = {1: xr(rt + 1)}
            spread(fill, qb[:k], 2, 8); qb = qb[k:]
            weave(qm(rt), fill)
        stamp(a, opt, 13)
        G0, G1 = opt.get("g0", 3), opt.get("g1", 7)
        for rt in range(8):
            inter = []
            if rt + LA < 8:
                inter.append(xr(rt + LA + 1))
            if rt < G0 and qb:
                k = -(-len(qb) // (G0 - rt)); inter += qb[:k]; qb = qb[k:]
            if G0 <= rt < G1:
                k = -(-len(gops) // (G1 - rt)); inter += gops[:k]; gops = gops[k:]
            phi8(acc(rt, 0), acc(rt, 1), acc(rt, 0), inter=inter, mfs=qm(rt + LA) if rt + LA < 8 else [])
        assert not gops and not qb
    else:
        if DEFER >= 2:
            for x in rdX(14, 0, lambda ks: fX(0, ks)):
                put(x)
        for rt in range(8):
            fill = {}
            ms = mf(15, rt, [0, 1], lambda ks: fXR(rt, ks)) if DEFER >= 1 else []
            if DEFER >= 2:
                ms += mf(14, rt, [0, 1], lambda ks: fX(rt % 2, ks))
                if rt < 7:
                    fill[1] = rdX(14, rt + 1, lambda ks: fX((rt + 1) % 2, ks))
            if BQ:
                if rt < 3:
                    spread(fill, qfill[8*rt:8*rt+8], 0, len(ms))
                if rt >= 2:
                    spread(fill, rf[2*(rt-2):2*(rt-2)+2], 2, len(ms))
            else:
                fill.setdefault(2, []).extend(qb[rt])
            per = len(ms) // 4
            first_rt = 8 - -(-GQ // max(per, 1))
            if GQ and rt >= first_rt:
                k = min(per, GQ - (17 - len(gops)))
                spread(fill, gops[:k], 0, len(ms)); gops = gops[k:]
            weave(ms, fill)
        stamp(a, opt, 13)
        GSP = opt.get("gather_span", 7)
        for rt in range(8):
            k = -(-len(gops) // (GSP - rt)) if rt < GSP else 0
            phi8(acc(rt, 0), acc(rt, 1), acc(rt, 0), inter=gops[:k]); gops = gops[k:]
    gate_ld = [[("vm", f"buffer_load_dwordx4 {vr(acc(i, 1))}, v26, s[16:19], s60 offen offset:{i*1024}", "G")] for i in range(4)]
    gate_ld += [[("vm", f"buffer_load_dwordx4 {vr(acc(4 + i, 1))}, v26, s[32:35], 0 offen offset:{i*1024}", "G")] for i in range(2)]
    emit(gate_ld)
    stamp(a, opt, 5)
    S = 40
    vq.need("H")
    a.label("K_SUM")
    for i in range(0, 8, 2):
        a(f"v_pk_add_f32 {vr(S+i, 2)}, {vr(PB[0]+i, 2)}, {vr(PB[1]+i, 2)}")
    for i in range(4):
        a(f"v_add_f32_dpp v{52+i}, v{ZG+i}, v{ZG+i} quad_perm:[1,0,3,2] row_mask:0xf bank_mask:0xf")
    for p in range(2, 8):
        for i in range(0, 8, 2):
            a(f"v_pk_add_f32 {vr(S+i, 2)}, {vr(S+i, 2)}, {vr(PB[p]+i, 2)}")
        if p in (2, 3):
            ctrl = "quad_perm:[2,3,0,1]" if p == 2 else "row_half_mirror"
            for i in range(4):
                a(f"v_add_f32_dpp v{52+i}, v{52+i}, v{52+i} {ctrl} row_mask:0xf bank_mask:0xf")
    a(f"v_pk_add_f32 v[2:3], {vr(S, 2)}, {vr(S+2, 2)}")
    a(f"v_pk_add_f32 v[4:5], {vr(S+4, 2)}, {vr(S+6, 2)}")
    a(f"v_pk_add_f32 v[6:7], v[52:53], v[54:55]")
    a("v_pk_add_f32 v[2:3], v[2:3], v[4:5]")
    a("v_pk_add_f32 v[2:3], v[2:3], v[6:7]")
    a("v_cmp_u_f32 vcc, v2, v3")
    a("s_cbranch_vccz K_GOK")
    regs = [PB[p] + i for p in range(8) for i in range(8)] + [ZG + i for i in range(4)]
    a(f"v_max3_u32 v2, v{regs[0]}, v{regs[1]}, v{regs[2]}")
    regs = regs[3:]
    while regs:
        if len(regs) >= 2:
            a(f"v_max3_u32 v2, v2, v{regs[0]}, v{regs[1]}"); regs = regs[2:]
        else:
            a(f"v_max_u32 v2, v2, v{regs[0]}"); regs = regs[1:]
    a("v_cmp_eq_u32 vcc, -1, v2")
    a("s_cbranch_vccz K_GOK")
    if opt.get("stamps"):
        a("v_readlane_b32 s56, v31, 24")
        a("s_add_u32 s56, s56, 1")
        a("v_writelane_b32 v31, s56, 24")
    gather(False)
    a("s_waitcnt vmcnt(0)")
    a("s_branch K_SUM")
    a.label("K_GOK")
    stamp(a, opt, 6)
    if ES:
        OP0, OP1, OPZ = 56, 60, 2
        a(f"v_cvt_pk_bf16_f32 v{OPZ}, v52, v53")
        a(f"v_cvt_pk_bf16_f32 v{OPZ+1}, v54, v55")
        a(f"ds_write_b64 v10, {vr(OPZ, 2)} offset:1024")
        for k, d in enumerate((OP0, OP0 + 1, OP1, OP1 + 1)):
            a(f"v_cvt_pk_bf16_f32 v{d}, v{S+2*k}, v{S+2*k+1}")
        a(f"ds_write_b64 v10, {vr(OP0, 2)}")
        a(f"ds_write_b64 v10, {vr(OP1, 2)} offset:512")
        a("s_waitcnt lgkmcnt(0)")
        lq.drained()
        a("s_barrier")
        a(f"ds_read_b64 {vr(OPZ+2, 2)}, v11 offset:1024")
        a(f"ds_read_b64 {vr(OP0+2, 2)}, v11")
        a(f"ds_read_b64 {vr(OP1+2, 2)}, v11 offset:512")
        a("s_waitcnt lgkmcnt(2)")
    else:
        for i in range(4):
            a(f"v_cvt_pk_bf16_f32 v{2+i}, v{S+2*i}, v{S+2*i+1}")
        a("v_cvt_pk_bf16_f32 v6, v52, v53")
        a("v_cvt_pk_bf16_f32 v7, v54, v55")
        a("s_mul_i32 s56, s40, 3072")
        a(f"s_add_u32 s56, s56, {EX2}")
        a("v_add_u32 v11, s56, v26")
        a("s_lshl_b32 s57, s39, 3")
        a("v_add_u32 v10, s57, v11")
        a("ds_write_b64 v10, v[6:7] offset:2048")
        a("ds_write_b64 v10, v[2:3]")
        a("ds_write_b64 v10, v[4:5] offset:1024")
        a("s_waitcnt lgkmcnt(0)")
        lq.drained()
        a("s_barrier")
        OPR = 40
        a(f"ds_read_b128 {vr(OPR+8)}, v11 offset:2048")
        a(f"ds_read_b128 {vr(OPR)}, v11")
        a(f"ds_read_b128 {vr(OPR+4)}, v11 offset:1024")
        a("s_waitcnt lgkmcnt(2)")
        OP0, OP1, OPZ = OPR, OPR + 4, OPR + 8
    eb = dmaB(14, 0) + dmaB(15, 4096) if opt.get("early14", 1) else []
    if opt.get("opipe", 0):
        a("s_add_u32 s63, s65, 4096")
        def mm(rt):
            return [f"{MF} {vr(acc(rt, 4))}, {vr(OPZ)}, {vr(acc(rt, 0))}, 0", f"{MF} {vr(acc(rt, 2))}, {vr(OP0)}, {vr(acc(rt, 0))}, 0",
                    f"{MF} {vr(acc(rt, 3))}, {vr(OP1)}, {vr(acc(rt, 0))}, 0"] if rt < 8 else []
        a(mm(0)[0]); a(mm(1)[0])
        a("s_waitcnt lgkmcnt(0)")
        for x in mm(0)[1:] + mm(1)[1:]:
            a(x)
        for rt in range(8):
            N, D = acc(rt, 2), acc(rt, 4)
            nx = mm(rt + 2)
            L = [f"v_add_f32 v{D}, v36, v{D}", f"v_rcp_f32 v{D}, v{D}"]
            if nx:
                L += [f"v_mul_f32 v{N+r}, v{N+r}, v{D}" for r in range(8)]
            else:
                L += [f"v_pk_mul_f32 {vr(N+r, 2)}, {vr(N+r, 2)}, {vr(D, 2)} op_sel_hi:[1,0]" for r in range(0, 8, 2)]
            L += [f"v_cvt_pk_bf16_f32 v{D+4+r//2}, v{N+r}, v{N+r+1}" for r in range(0, 8, 2)]
            for k, x in enumerate(L):
                if nx and k in (2, 6, 10):
                    a(nx.pop(0))
                a(x)
            vq.issue(f"buffer_store_dwordx4 {vr(D+4)}, v26, s[24:27], {'s65' if rt < 4 else 's63'} offen offset:{(rt % 4)*1024} sc1", "O")
        emit(eb)
    else:
        for rt in range(8):
            a(f"{MF} {vr(acc(rt, 4))}, {vr(OPZ)}, {vr(acc(rt, 0))}, 0")
            if eb and rt % 2 == 0:
                emit(eb[:1]); eb = eb[1:]
        a("s_waitcnt lgkmcnt(0)")
        for rt in range(8):
            a(f"{MF} {vr(acc(rt, 2))}, {vr(OP0)}, {vr(acc(rt, 0))}, 0")
            a(f"{MF} {vr(acc(rt, 3))}, {vr(OP1)}, {vr(acc(rt, 0))}, 0")
            D = acc(rt, 4)
            a(f"v_add_f32 v{D}, v36, v{D}")
            a(f"v_rcp_f32 v{D}, v{D}")
            if eb and rt % 2 == 0:
                emit(eb[:1]); eb = eb[1:]
        a("s_add_u32 s63, s65, 4096")
        for rt in range(8):
            N, D = acc(rt, 2), acc(rt, 4)
            for r in range(0, 8, 2):
                a(f"v_pk_mul_f32 {vr(N+r, 2)}, {vr(N+r, 2)}, {vr(D, 2)} op_sel_hi:[1,0]")
            for r in range(0, 8, 2):
                a(f"v_cvt_pk_bf16_f32 v{D+4+r//2}, v{N+r}, v{N+r+1}")
            vq.issue(f"buffer_store_dwordx4 {vr(D+4)}, v26, s[24:27], {'s65' if rt < 4 else 's63'} offen offset:{(rt % 4)*1024} sc1", "O")
    stamp(a, opt, 7)
    if BQ:
        emit(dmaB(12, 32768) + dmaB(13, 32768 + 4096))
    if not opt.get("early14", 1):
        emit(dmaB(14, 0) + dmaB(15, 4096))
    for k in range(4):
        a(f"s_add_u32 s56, s38, {k + 1}")
        a("s_and_b32 s56, s56, 3")
        a("s_lshl_b32 s56, s56, 11")
        a(f"v_add_u32 v{2+k}, s56, v26")
    a("v_bfe_u32 v6, v1, 1, 4")
    a(f"v_lshlrev_b32 v6, {FS}, v6")
    a("v_and_b32 v7, 1, v1")
    a("v_lshl_add_u32 v6, v7, 2, v6")
    vq.need("G")
    for x in gate[1:] + gate2:
        a(x)
    srd(a, 16, 70, 2048 * 1024 * 2)
    a("v_add_u32 v7, s48, v26")
    a("v_add_u32 v8, 0x10000, v7")
    for j in range(3):
        a(f"s_xor_b32 s56, s38, {j + 1}")
        a("s_sub_u32 s57, s38, s56")
        a("s_sub_u32 s57, s57, 1")
        a("s_and_b32 s57, s57, 3")
        a("s_lshl_b32 s57, s57, 15")
        a("s_lshl_b32 s56, s56, 13")
        a("s_add_u32 s56, s56, s57")
        a(f"v_add_u32 v{9+j}, s56, v26")
    a("v_and_b32 v24, 15, v1")
    a("v_lshrrev_b32 v25, 4, v1")
    a("v_and_b32 v28, 1, v25")
    a("v_lshlrev_b32 v28, 5, v28")
    a("v_lshrrev_b32 v25, 1, v25")
    a("v_lshl_add_u32 v28, v25, 4, v28")
    FL = opt.get("fullline", 1)
    if FL:
        a("v_and_b32 v24, 7, v1")
        a("v_bfe_u32 v25, v1, 3, 1")
        a("v_lshl_add_u32 v28, v25, 6, v28")
    a("v_lshl_add_u32 v14, v24, 11, v28")
    if FL:
        a("v_add_u32 v15, 0x4000, v14")
    a("s_lshl_b32 s56, s50, 18")
    a("s_lshl_b32 s57, s38, 16")
    a("s_add_u32 s56, s56, s57")
    a("s_lshl_b32 s57, s51, 7")
    a("s_add_u32 s61, s56, s57")
    a(f"s_add_u32 s62, s61, {16*2048}")
    a("s_mov_b32 s60, 0")
    a("s_getpc_b64 s[66:67]")
    a.label("K_PC")
    a("s_add_u32 s66, s66, K_WAIT-K_PC")
    a("s_addc_u32 s67, s67, 0")
    D = opt.get("depth", 4)
    P2 = 128
    def acc2(i, ct): return P2 + (i * 4 + ct) * 4
    def fA(slot, i): return AQ[slot * 8 + i]
    def fB(s_, ct): return 64 + s_ * 16 + ct * 4
    order = list(range(8, 16)) + list(range(8))
    for ct in range(4):
        a(f"v_subrev_u32 v{16+ct}, 0x10000, v{32+ct}")
    vq.need("B8")
    for x in breads(order[0], fB(0, 0), False):
        put(x)
    if opt.get("atouch", 0):
        a("v_lshrrev_b32 v46, 3, v1")
        a("v_lshlrev_b32 v46, 13, v46")
        a("v_and_b32 v47, 7, v1")
        a("v_lshl_add_u32 v46, v47, 7, v46")
        a("s_and_b32 s56, s51, 7")
        a("s_lshl_b32 s56, s56, 10")
        a("v_add_u32 v46, s56, v46")
    EP = opt.get("early_poll", 0) and not NS
    if EP:
        vq.issue("buffer_load_dword v44, v6, s[24:27], s54 offen sc1", "E")
    def flag():
        a("s_mov_b64 exec, 1")
        a("buffer_store_dwordx2 v[38:39], v29, s[24:27], s55 offen sc1")
        a("s_mov_b64 exec, -1")
    FAST = opt.get("fast", 0)
    if not FAST and not NS:
        vq.need("O")
        flag()
        stamp(a, opt, 8)
        if EP:
            a("s_waitcnt vmcnt(1)"); vq.drained()
            a("v_cmp_ne_u32 vcc, -1, v44")
            a("s_lshr_b32 s57, vcc_lo, 1"); a("s_and_b32 s57, s57, vcc_lo"); a("s_or_b32 s60, s60, s57")
        if opt.get("fsleep"):
            a(f"s_sleep {opt['fsleep']}")
        if opt.get("fwait", 1):
            a("s_waitcnt vmcnt(0)"); vq.drained()
        PP = opt.get("pp", 0)
        if PP:
            want = sum(1 << (2*order[k]) for k in range(opt.get("pp_heads", 2)))
            a(f"s_and_b32 s57, s60, 0x{want:x}")
            a(f"s_cmp_eq_u32 s57, 0x{want:x}")
            a("s_cbranch_scc1 K_PPOK")
            for k in range(PP):
                a(f"buffer_load_dword v{48+k}, v6, s[24:27], s54 offen sc1")
                if k < PP - 1:
                    a(f"s_sleep {opt.get('pp_sleep', 3)}")
            a.label("K_PPL")
            for k in range(PP):
                a(f"s_waitcnt vmcnt({PP-1})")
                a(f"v_cmp_ne_u32 vcc, -1, v{48+k}")
                a("s_lshr_b32 s57, vcc_lo, 1"); a("s_and_b32 s57, s57, vcc_lo"); a("s_or_b32 s60, s60, s57")
                a(f"s_and_b32 s57, s60, 0x{want:x}")
                a(f"s_cmp_eq_u32 s57, 0x{want:x}")
                a("s_cbranch_scc1 K_PPOK")
                a(f"buffer_load_dword v{48+k}, v6, s[24:27], s54 offen sc1")
            a("s_branch K_PPL")
            a.label("K_PPOK")
    SC = " sc1" if opt.get("a_sc1", 1) else ""
    NT = opt.get("ntail", 3)
    N0 = 16 - NT
    FR = {}
    for n in range(N0):
        for i in range(8):
            FR[(n, i)] = (n, i)
    seq = [(n, i) for i in range(8) for n in range(N0, 16)]
    for k, f in enumerate(seq):
        FR[f] = (N0 + k // 8, k % 8)
    GRP = {}
    for f, (g, j) in FR.items():
        GRP.setdefault(g, {})[j] = f
    def areg(n, i):
        g, j = FR[(n, i)]
        return AQ[(g % 4) * 8 + j]
    def loadsA(g):
        ops = []
        for j in range(8):
            n, i = GRP[g][j]
            b = order[n]
            if g < N0:
                pre = [f"s_add_u32 s43, s53, {b*8192}"] if j == 0 else []
                so = "s43"
            else:
                pre = [f"s_add_u32 s{4 + m - N0}, s53, {order[m]*8192}" for m in range(N0, 16)] if (g == N0 and j == 0) else []
                so = f"s{4 + n - N0}"
            off = " offset:1024" if i % 2 else ""
            ops.append(pre + [("vm", f"buffer_load_dwordx4 {ar(areg(n, i))}, v{2 + i // 2}, s[24:27], {so} offen{off}{SC}", f"A{n}_{i}")])
        return ops
    def check(n):
        b = order[n]
        out = [f"s_bitcmp1_b32 s60, {2*b}", f"s_cbranch_scc1 K_RDY{n}", f"s_mov_b32 s59, {2*b}", "s_swappc_b64 s[68:69], s[66:67]", f"K_RDY{n}:"]
        return out
    def poll(g):
        return [("vm", f"buffer_load_dword v{40 + g % 4}, v6, s[24:27], s54 offen sc1", f"P{g}")]
    def upd(g):
        return [f"v_cmp_ne_u32 vcc, -1, v{40 + g % 4}"], ["s_lshr_b32 s57, vcc_lo, 1", "s_and_b32 s57, s57, vcc_lo", "s_or_b32 s60, s60, s57"]
    def gate_grp(g):
        out = []
        if NS:
            if g < N0:
                out += check(g)
            elif g == N0:
                for m in list(range(N0, 16)) + list(range(NS)):
                    out += check(m)
                out += [("vm", "buffer_load_dword v20, v6, s[24:27], s54 offen sc1", "GF")]
            return out
        if g < N0:
            out += check(g)
        elif g == N0:
            for m in range(N0, 16):
                out += check(m)
            out += [("vm", "buffer_load_dword v20, v6, s[24:27], s54 offen sc1", "GF")]
        if g + 3 <= N0 and g in PSET:
            out += poll(g)
        return out
    TA = opt.get("atouch", 0)
    PSET = opt.get("pset", [3])
    def touchA(n0, n1):
        b0 = order[n0]
        cnt = (n1 - n0) * 8
        return [f"s_add_u32 s56, s53, {b0*8192}", f"s_mov_b64 exec, 0x{(1 << cnt) - 1:x}" if cnt < 32 else "s_mov_b32 exec_hi, 0",
                ("vm", "buffer_load_dword v45, v46, s[24:27], s56 offen sc1", "T"), "s_mov_b64 exec, -1"]
    if FAST:
        vq.need("E")
        stamp(a, opt, 8)
        a("v_cmp_ne_u32 vcc, -1, v44")
        a("s_lshr_b32 s57, vcc_lo, 1"); a("s_and_b32 s60, s57, vcc_lo")
        want = (1 << (2*order[0])) | (1 << (2*order[1]))
        a(f"s_and_b32 s57, s60, 0x{want:x}")
        a(f"s_cmp_eq_u32 s57, 0x{want:x}")
        a("s_cbranch_scc0 K_SLOW")
        q0 = list(vq.q)
        for g in range(2):
            emit([poll(g)])
            emit(loadsA(g))
        flag()
        stamp(a, opt, 9)
        a("s_branch K_GO")
        a.label("K_SLOW")
        vq.q = q0
        flag()
    if NS:
        vq.need("O")
        stamp(a, opt, 8)
        if opt.get("spec_sleep"):
            a(f"s_sleep {opt['spec_sleep']}")
        FPOS = opt.get("fpos", 2)
        for g in range(NS):
            if g == FPOS:
                flag(); vq.q.append("F")
            emit(loadsA(g))
        if FPOS >= NS:
            flag(); vq.q.append("F")
        stamp(a, opt, 9)
    for g in range(0 if NS else 2):
        emit([gate_grp(g)])
        if g == 0:
            stamp(a, opt, 9)
        emit(loadsA(g))
    if FAST:
        a.label("K_GO")
    def redw(i):
        k = i // 2
        return [f"ds_write_b128 {'v7' if k < 2 else 'v8'}, {vr(acc2(i, ct))} offset:{(k % 2)*32768 + (i % 2)*4096 + ct*1024}" for ct in range(4)]
    def Bop(n, ct):
        b = order[n]
        return vr(fB(n % 2, ct)) if b >= 8 else ar(RES[b] + ct * 4)
    issued = set()
    NPOLL = opt.get("npoll", 5)
    for n in range(N0 if NS else 0):
        if n < NS:
            lq.need(regs_of(Bop(n, 0)))
            for i in range(8):
                vq.need(f"A{n}_{i}")
                a(f"{MF} v[48:51], {Bop(n, 0)}, {ar(areg(n, i))}, {'0' if i == 0 else 'v[48:51]'}")
            a("v_cmp_u_f32 vcc, v48, v48")
            a(f"s_cbranch_vccz K_VOK{n}")
            if opt.get("stamps"):
                a("v_readlane_b32 s56, v31, 22")
                a("s_add_u32 s56, s56, 1")
                a("v_writelane_b32 v31, s56, 22")
            a(f"s_mov_b32 s59, {2*order[n]}")
            a("s_swappc_b64 s[68:69], s[66:67]")
            for op in loadsA(n):
                for x in op:
                    a(x[1] if isinstance(x, tuple) else x)
            a("s_waitcnt vmcnt(0)")
            a.label(f"K_VOK{n}")
        else:
            vq.need(f"A{n}_7")
        if n == 0:
            stamp(a, opt, 12)
        if opt.get("pstamps"):
            stamp(a, opt, 32 + n)
        ms = []
        for i in range(8):
            for ct in range(4):
                c = vr(acc2(i, ct))
                ms.append(f"{MF} {c}, {Bop(n, ct)}, {ar(areg(n, i))}, {'0' if n == 0 else c}")
        fill = {}
        if 1 <= n <= NPOLL:
            u1, u2 = upd(n - 1)
            fill[0] = [("needvm", [f"P{n-1}"])] + u1; fill[1] = u2
        if n < NPOLL:
            fill.setdefault(2, []).extend(poll(n))
        if n + 1 < 8:
            spread(fill, [[x] for x in breads(order[n + 1], fB((n + 1) % 2, 0), False)], 4, 20)
        gs = [g for g in range(NS, n + 4) if g not in issued] if n >= 1 else []
        items = []
        for g in gs:
            items += [gate_grp(g)] + loadsA(g); issued.add(g)
        if items:
            spread(fill, items, 3, 30)
        weave(ms, fill)
    for n in range(0 if NS else N0):
        FINE = n < opt.get("fine", 2)
        if not FINE:
            vq.need(f"A{n}_7")
        else:
            vq.need(f"A{n}_0")
        if n == 0:
            stamp(a, opt, 12)
        if opt.get("pstamps"):
            stamp(a, opt, 32 + n)
        ms = []
        for i in range(8):
            for ct in range(4):
                c = vr(acc2(i, ct))
                ms.append(f"{MF} {c}, {Bop(n, ct)}, {ar(areg(n, i))}, {'0' if n == 0 else c}")
        fill = {}
        if n + 3 <= N0 and n in PSET:
            u1, u2 = upd(n)
            fill[0] = u1; fill[1] = u2
        if n + 1 < 8:
            spread(fill, [[x] for x in breads(order[n + 1], fB((n + 1) % 2, 0), False)], 4, 20)
        if n == 0:
            spread(fill, [gate_grp(2)] + loadsA(2), 2, 16)
            spread(fill, [gate_grp(3)] + loadsA(3), 16, 31)
            if TA:
                fill.setdefault(31, []).extend(touchA(4, TA))
        else:
            spread(fill, [gate_grp(n + 3)] + loadsA(n + 3), 2, opt.get("lspan", 22))
        if TA and n + TA < 16:
            fill.setdefault(31, []).extend(touchA(n + TA, n + TA + 1))
        if FINE:
            for i in range(1, 8):
                fill.setdefault(4 * i - 1, []).append(("needvm", [f"A{n}_{i}"]))
        weave(ms, fill)
    if opt.get("pstamps"):
        stamp(a, opt, 32 + N0)
    gf = [("needvm", ["GF"]), "v_mov_b32 v22, v20", "v_permlane16_swap_b32 v20, v22"]
    for r in (20, 22):
        gf += [f"v_sub_f32 v{r+1}, 1.0, v{r}", f"v_cvt_pk_bf16_f32 v{r+1}, v{r+1}, v{r+1}", f"v_and_b32 v{r+1}, 0xffff0000, v{r+1}"]
    gf += [["s_cmp_lt_u32 s38, 2", "s_cbranch_scc1 K_NOSWAP", "v_swap_b32 v20, v21", "v_swap_b32 v22, v23", "K_NOSWAP:"]]
    R = 128
    rds = [f"ds_read_b128 {vr(R + k*32 + j*4)}, v{9+k} offset:{j*1024}" for k in range(3) for j in range(8)]
    for i in range(8):
        vq.need(*[f"A{n}_{i}" for n in range(N0, 16)])
        ms = [f"{MF} {vr(acc2(i, ct))}, {Bop(n, ct)}, {ar(areg(n, i))}, {vr(acc2(i, ct))}" for ct in range(4) for n in range(N0, 16)]
        fill = {}
        if i == 0:
            spread(fill, [x if isinstance(x, list) else [x] for x in gf], 0, len(ms))
        if 1 <= i <= 6:
            spread(fill, [[w] for w in redw(i - 1)], min(2, len(ms) - 4), len(ms))
        if i == 7:
            stamp(a, opt, 14)
            a("s_waitcnt lgkmcnt(0)")
            if opt.get("pstamps"): stamp(a, opt, 17)
            a("s_barrier")
            if opt.get("pstamps"): stamp(a, opt, 18)
            spread(fill, [[r] for r in rds], 0, len(ms))
        weave(ms, fill)
    OWN = acc2(6, 0)
    if opt.get("thr"):
        a("s_memrealtime s[98:99]")
        a("s_waitcnt lgkmcnt(0)")
        a("s_sub_u32 s98, s98, s96")
        a("s_cmp_eq_u32 s97, 0")
        a("s_cselect_b32 s98, s98, 0")
        a(f"s_cmp_gt_u32 s98, {int(opt['thr']*100)}")
        a("s_cbranch_scc1 K_END")
    if opt.get("pstamps"): stamp(a, opt, 19)
    a("s_waitcnt lgkmcnt(15)")
    for j in range(0, 32, 2):
        a(f"v_pk_add_f32 {vr(OWN+j, 2)}, {vr(OWN+j, 2)}, {vr(R+j, 2)}")
    for j in range(0, 32, 2):
        gsel = 20 if j < 16 else 22
        a(f"v_pk_mul_f32 {vr(OWN+j, 2)}, {vr(OWN+j, 2)}, {vr(gsel, 2)} op_sel_hi:[1,0]")
    a("s_waitcnt lgkmcnt(0)")
    for pr in range(4):
        for j in range(8 * pr, 8 * pr + 8, 2):
            a(f"v_pk_add_f32 {vr(R+32+j, 2)}, {vr(R+32+j, 2)}, {vr(R+64+j, 2)}")
        for j in range(8 * pr, 8 * pr + 8, 2):
            gsel = 20 if j < 16 else 22
            a(f"v_pk_fma_f32 {vr(OWN+j, 2)}, {vr(R+32+j, 2)}, {vr(gsel, 2)}, {vr(OWN+j, 2)} op_sel:[0,1,0] op_sel_hi:[1,1,1]")
        b = 64 + 4 * pr
        for j in range(4):
            a(f"v_cvt_pk_bf16_f32 v{b+j}, v{OWN+8*pr+2*j}, v{OWN+8*pr+2*j+1}")
        a(f"v_permlane16_swap_b32 v{b}, v{b+2}")
        a(f"v_permlane16_swap_b32 v{b+1}, v{b+3}")
        if not FL:
            a(f"buffer_store_dwordx4 {vr(b)}, v14, s[16:19], {'s61' if pr < 2 else 's62'} offen offset:{(pr % 2)*64}{opt.get('ost', ' sc1')}")
        elif pr % 2 == 1:
            for j in range(4):
                a(f"v_mov_b32 v{80+j}, v{b-4+j}")
            for j in range(4):
                a(f"v_mov_b32_dpp v{b-4+j}, v{b+j} row_ror:8 row_mask:0xf bank_mask:0xc")
            for j in range(4):
                a(f"v_mov_b32_dpp v{b+j}, v{80+j} row_ror:8 row_mask:0xf bank_mask:0x3")
            so = 's61' if pr < 2 else 's62'
            a(f"buffer_store_dwordx4 {vr(b-4)}, v14, s[16:19], {so} offen{opt.get('ost', ' sc1')}")
            a(f"buffer_store_dwordx4 {vr(b)}, v15, s[16:19], {so} offen{opt.get('ost', ' sc1')}")
    stamp(a, opt, 15)
    stamp_out(a, opt, 0)
    if opt.get("dbgout"):
        a(f"s_cmp_eq_u32 s2, {opt.get('dbgwg', 0)}")
        a("s_cbranch_scc0 K_END")
        a("s_cmp_eq_u32 s38, 0")
        a("s_cbranch_scc0 K_END")
        a("v_readlane_b32 s56, v31, 30")
        for k, sl in enumerate([2, 32, 36, 3, 7, 12, 14, 29]):
            a(f"v_readlane_b32 s57, v31, {sl}")
            a("s_sub_u32 s57, s57, s56")
            a(f"v_writelane_b32 v30, s57, {k}")
        a("v_lshlrev_b32 v27, 3, v1")
        a("s_mov_b64 exec, 0xff")
        a("buffer_store_dword v30, v27, s[28:31], 0 offen offset:4")
    a.label("K_END")
    a("s_endpgm")
    a.label("K_WAIT")
    a("buffer_load_dword v44, v6, s[24:27], s54 offen sc1")
    if opt.get("stamps"):
        a("v_readlane_b32 s56, v31, 23")
        a("s_add_u32 s56, s56, 1")
        a("v_writelane_b32 v31, s56, 23")
    a("s_waitcnt vmcnt(0)")
    a("v_cmp_ne_u32 vcc, -1, v44")
    a("s_lshr_b32 s57, vcc_lo, 1"); a("s_and_b32 s57, s57, vcc_lo"); a("s_or_b32 s60, s60, s57")
    a("s_bitcmp1_b32 s60, s59")
    if opt.get("wsleep"):
        a("s_cbranch_scc1 K_LAST")
        a(f"s_sleep {opt['wsleep']}")
        a("s_branch K_WAIT")
    else:
        a("s_cbranch_scc0 K_WAIT")
    a.label("K_LAST")
    a("s_setpc_b64 s[68:69]")

def build(opt):
    a = Asm()
    gen(a, opt)
    out = HEADER + "; @launch grid=(256,1,1) block=(256,1,1) lds=163840\n"
    out += '.amdgcn_target "amdgcn-amd-amdhsa--gfx950"\n.text\n' + a.text() + '.section .rodata,"a"\n' + kd(KNAME, 512, 100 if opt.get('thr') else 96, 256)
    return out

if __name__ == "__main__":
    opt = {}
    for kv in sys.argv[2:]:
        k, v = kv.split("=")
        try:
            v = eval(v)
        except Exception:
            pass
        opt[k] = v
    open(sys.argv[1], "w").write(build(opt))
```

```python
import sys, struct
from asmlib import Asm, Ins, regs_of
from gen import f2u, LdsQ, kd, srd, stamp, stamp_out, HEADER, WS_DIAG, WS_SIZE, WS_SLOT, WS_G, LOG2E, EPS

MF = "v_mfma_f32_16x16x32_bf16"
WS_WOF = 16 << 20
WS_TOT = 20 << 20
KNAME = "gated_mix__linear_attn_block__linear_attn_block__prompt_kernel"
def vr(b, n=4): return f"v[{b}:{b+n-1}]"
def ar(b, n=4): return f"a[{b}:{b+n-1}]"

class VmQ:
    def __init__(self, a):
        self.a = a; self.q = []
    def issue(self, text, tag):
        self.a(text); self.q.append(tag)
    def count(self, tags):
        idx = -1
        for i, t in enumerate(self.q):
            if t in tags:
                idx = i
        if idx < 0:
            return None
        return min(len(self.q) - idx - 1, 63)
    def need(self, *tags, extra=""):
        n = self.count(tags)
        if n is None:
            if extra:
                self.a(f"s_waitcnt {extra}")
            return
        self.a(f"s_waitcnt vmcnt({n}) {extra}".rstrip())
        self.q = self.q[len(self.q) - n:] if n else []
    def drained(self):
        self.q = []

def gen(a, opt):
    global stamp
    _stamp = stamp
    def stamp(a_, opt_, slot, **kw):
        if opt.get("probe") and opt["probe"][0] == slot and not kw.get("real"):
            a("s_memrealtime s[98:99]")
            a("s_waitcnt lgkmcnt(0)")
            a("s_sub_u32 s97, s98, s96")
        return _stamp(a_, opt_, slot, **kw)
    lq = LdsQ(a); vq = VmQ(a)
    ABL = [""]
    def put(x):
        if ABL[0] and isinstance(x, tuple):
            if "x" in ABL[0] and x[0] == "ds" and "b128" in x[1]: return
            if "w" in ABL[0] and x[0] == "ds" and "tr_b16" in x[1]: return
            if "d" in ABL[0] and x[0] == "vm" and x[2][0] in "XW": return
            if "X" in ABL[0] and x[0] == "vm" and x[2][0] == "X": return
        if isinstance(x, tuple):
            if x[0] == "ds":
                lq.issue(x[1])
            elif x[0] == "vm":
                vq.issue(x[1], x[2])
            elif x[0] == "needvm":
                vq.need(*x[1])
            elif x[0] == "needds":
                lq.need(x[1])
        else:
            a(x)
    def weave(mf, fill):
        for g, m in enumerate(mf):
            lq.need(Ins(m).srcAB)
            a(m)
            for x in fill.get(g, []):
                put(x)
    def spread(fill, items, start, end):
        n = len(items)
        for i, it in enumerate(items):
            fill.setdefault(start + (i * (end - start)) // n, []).extend(it)

    XB = [0, 32768]
    WB = [65536 + 24576 * s for s in range(3)]
    EX = 139264
    EX2 = EX + 16384
    ACC = 64
    def acc(rt, ct): return ACC + (rt * 6 + ct) * 4
    def fW(st, ct, ks): return 48 * (st % 2) + (ct * 2 + ks) * 4
    def fX(e, ks): return 96 + e * 8 + ks * 4
    def fXR(rt, ks): return 112 + rt * 8 + ks * 4
    a.raw(f".globl {KNAME}\n.p2align 8\n.type {KNAME},@function")
    a.label(KNAME)
    a("s_cmp_ge_u32 s2, 256")
    a("s_cbranch_scc1 K_END")
    if opt.get("badmap"):
        a("s_lshr_b32 s3, s2, 5")
        a("s_and_b32 s2, s2, 31")
        a("s_lshl_b32 s2, s2, 3")
        a("s_or_b32 s2, s2, s3")
    a("s_load_dwordx4 s[4:7], s[0:1], 0")
    a("s_load_dwordx2 s[8:9], s[0:1], 32")
    a("s_load_dwordx4 s[68:71], s[0:1], 48")
    a("s_load_dwordx4 s[12:15], s[0:1], 64")
    a("s_load_dwordx2 s[74:75], s[0:1], 16")
    a("s_load_dwordx2 s[76:77], s[0:1], 40")
    if opt.get("thr") or opt.get("probe"):
        a("s_memrealtime s[96:97]")
    if opt.get("stamps"):
        a("v_mov_b32 v31, 0")
    stamp(a, opt, 30, real=True)
    stamp(a, opt, 0)
    a("v_lshrrev_b32 v21, 6, v0")
    a("v_and_b32 v1, 63, v0")
    a("v_readfirstlane_b32 s38, v21")
    a("s_and_b32 s56, s2, 7")
    a("s_lshr_b32 s57, s2, 3")
    if opt.get("k1map", "A") == "A":
        a("s_and_b32 s36, s57, 7")
        a("s_lshr_b32 s58, s57, 3")
        a("s_lshl_b32 s37, s56, 2")
        a("s_add_u32 s37, s37, s58")
    else:
        a("s_and_b32 s36, s56, 1")
        a("s_lshl_b32 s36, s36, 2")
        a("s_and_b32 s58, s57, 3")
        a("s_add_u32 s36, s36, s58")
        a("s_lshr_b32 s37, s56, 1")
        a("s_lshl_b32 s37, s37, 3")
        a("s_lshr_b32 s58, s57, 2")
        a("s_add_u32 s37, s37, s58")
    a("s_and_b32 s39, s38, 1")
    a("s_lshr_b32 s40, s38, 1")
    a("s_and_b32 s41, s37, 15")
    a("s_lshr_b32 s42, s37, 4")
    a("v_lshrrev_b32 v21, 3, v1")
    a("v_and_b32 v22, 7, v1")
    a("v_lshrrev_b32 v23, 4, v1")
    a("v_and_b32 v24, 1, v23")
    a("v_lshlrev_b32 v24, 2, v24")
    a("v_xor_b32 v24, v22, v24")
    a("v_lshlrev_b32 v24, 4, v24")
    a("v_mul_u32_u24 v25, 6144, v21")
    a("v_add_u32 v24, v24, v25")
    a("v_xor_b32 v25, 32, v24")
    a("s_mul_i32 s56, s38, 6")
    a("s_lshl_b32 s59, s41, 7")
    for i in range(6):
        a(f"s_add_u32 s57, s56, {i}")
        a("s_lshr_b32 s58, s57, 3")
        a("s_and_b32 s57, s57, 7")
        a(f"s_mul_i32 s57, s57, {8*6144}")
        a("s_lshl_b32 s58, s58, 11")
        a("s_add_u32 s57, s57, s58")
        a("s_add_u32 s57, s57, s59")
        if i % 4:
            a(f"s_sub_u32 s57, s57, {(i % 4) * 1024}")
        a(f"v_add_u32 v{10+i}, s57, {'v24' if i % 2 == 0 else 'v25'}")
    a("v_xor_b32 v24, v22, v23")
    a("v_lshlrev_b32 v24, 4, v24")
    a("v_lshl_add_u32 v24, v21, 11, v24")
    a("s_lshl_b32 s56, s36, 19")
    a("s_lshl_b32 s57, s40, 18")
    a("s_add_u32 s56, s56, s57")
    a("s_lshl_b32 s57, s39, 16")
    a("s_add_u32 s56, s56, s57")
    a("v_add_u32 v2, s56, v24")
    a("v_xor_b32 v25, 64, v2")
    for i in range(1, 8):
        src = "v2" if i % 2 == 0 else "v25"
        a(f"v_add_u32 v{2+i}, {(i % 4)*16384 + (i // 4)*131072 - (i % 4) * 1024}, {src}")
    a("s_lshl_b32 s48, s38, 13")
    a("s_lshl_b32 s45, s40, 14")
    a("s_lshl_b32 s57, s39, 12")
    a("s_add_u32 s45, s45, s57")
    a("s_mov_b32 s72, 0")
    a("s_mul_i32 s49, s38, 6144")
    a("s_mov_b32 s43, 0")
    a("s_mov_b32 s44, 0")
    a("s_waitcnt lgkmcnt(0)")
    srd(a, 16, 4, 2048 * 1024 * 2)
    a("s_cmp_eq_u32 s42, 0")
    a("s_cselect_b32 s56, s6, s8")
    a("s_cselect_b32 s57, s7, s9")
    srd(a, 20, 56, 1024 * 3072 * 2)
    stamp(a, opt, 10)

    def dmaXh(t, h):
        ops = []
        so = "s43" if h == 0 else "s72"
        for i in range(4 * h, 4 * h + 4):
            pre = [f"s_add_u32 m0, s45, {XB[t % 2] + h * 8192}"] if i % 4 == 0 else []
            off = f" offset:{(i % 4) * 1024}" if i % 4 else ""
            ops.append(pre + [("vm", f"buffer_load_dwordx4 v{2+i}, s[16:19], {so} offen{off}{opt.get('dpol', '')} lds", f"X{t}{'ab'[h]}")])
        ops[3].append(f"s_add_u32 {so}, {so}, 128")
        return ops
    def dmaX(t):
        return dmaXh(t, 0) + dmaXh(t, 1)
    def dmaW(t):
        ops = []
        for i in range(6):
            pre = [f"s_add_u32 m0, s49, {WB[t % 3] + (i // 4) * 4096}"] if i % 4 == 0 else []
            off = f" offset:{(i % 4) * 1024}" if i % 4 else ""
            ops.append(pre + [("vm", f"buffer_load_dwordx4 v{10+i}, s[20:23], s44 offen{off}{opt.get('dpol', '')} lds", f"W{t}")])
        ops[5].append(f"s_add_u32 s44, s44, {64*6144}")
        return ops
    def emit(groups):
        for op in groups:
            for x in op:
                put(x)
    def xfirst():
        m = opt.get("xf", 0x0f)
        a("v_lshlrev_b32 v38, 7, v1")
        a("s_lshl_b32 s58, s2, 2")
        a("s_add_u32 s58, s58, s38")
        a("s_lshl_b32 s58, s58, 12")
        a(f"s_mov_b32 exec_lo, 0x{m | (m << 16):x}")
        a("s_mov_b32 exec_hi, 0")
        vq.issue("buffer_load_dword v39, v38, s[16:19], s58 offen", "T")
        a("s_mov_b64 exec, -1")
    if opt.get("xf", 0x0f) and opt.get("xf_pos", 0) == 0: xfirst()
    emit(dmaW(0))
    if opt.get("xf", 0x0f) and opt.get("xf_pos", 0) == 1: xfirst()
    emit(dmaX(0))
    if opt.get("xf", 0x0f) and opt.get("xf_pos", 0) == 2: xfirst()
    LX, LW = opt.get("lx", 0), opt.get("lw", 0)
    if LX or LW:
        a("s_lshr_b32 s58, s2, 3")
        a("s_lshl_b32 s58, s58, 2")
        a("s_add_u32 s58, s58, s38")
    def ltw():
        a("v_bfe_u32 v40, v1, 2, 2")
        a("v_lshlrev_b32 v40, 11, v40")
        a("v_and_b32 v41, 3, v1")
        a("v_lshl_add_u32 v40, v41, 7, v40")
        a(f"v_mul_u32_u24 v41, {128*6144}, v23")
        a("v_add_u32 v40, v40, v41")
        a(f"s_add_u32 s56, s58, {opt.get('lw0', 64)}")
        a("s_mul_i32 s56, s56, 6144")
        a("s_and_b32 s57, s41, 12")
        a("s_lshl_b32 s57, s57, 7")
        a("s_add_u32 s56, s56, s57")
        m = sum(0xfff << (16 * k) for k in range(LW))
        a(f"s_mov_b32 exec_lo, 0x{m & 0xffffffff:x}")
        a(f"s_mov_b32 exec_hi, 0x{m >> 32:x}")
        vq.issue("buffer_load_dword v39, v40, s[20:23], s56 offen", "T")
        a("s_mov_b64 exec, -1")
    def ltx():
        a("v_and_b32 v42, 15, v1")
        a("v_lshlrev_b32 v42, 11, v42")
        a("v_lshl_add_u32 v42, v23, 7, v42")
        a("s_lshl_b32 s56, s58, 15")
        m = (1 << (16 * LX)) - 1
        a(f"s_mov_b32 exec_lo, 0x{m & 0xffffffff:x}")
        a(f"s_mov_b32 exec_hi, 0x{m >> 32:x}")
        vq.issue("buffer_load_dword v39, v42, s[16:19], s56 offen offset:128", "T")
        a("s_mov_b64 exec, -1")
    if LW: ltw()
    if LX: ltx()
    if opt.get("pre0"):
        emit(dmaW(1))
    stamp(a, opt, 11)
    srd(a, 24, 14, WS_TOT)
    srd(a, 28, 12, 256)
    srd(a, 32, 68, 2048)
    a("v_lshlrev_b32 v26, 4, v1")
    a("s_lshl_b32 s46, s37, 1")
    a("s_add_u32 s46, s46, s40")
    a("s_lshl_b32 s47, s36, 1")
    a("s_add_u32 s47, s47, s39")
    a("s_lshl_b32 s56, s47, 7")
    a("s_lshl_b32 s57, s46, 1")
    a("s_add_u32 s56, s56, s57")
    a("s_lshl_b32 s60, s56, 11")
    FS = opt.get("fs", 3)
    GB = WS_G if FS == 3 else WS_WOF
    a(f"s_lshl_b32 s55, s56, {FS - 1}")
    a(f"s_add_u32 s55, s55, {GB}")
    a("s_lshl_b32 s56, s47, 19")
    a("s_lshl_b32 s57, s46, 13")
    a("s_add_u32 s65, s56, s57")
    a("s_lshl_b32 s56, s37, 17")
    a("s_lshl_b32 s57, s38, 12")
    a("s_add_u32 s61, s56, s57")
    a(f"s_add_u32 s61, s61, {WS_SLOT}")
    a("s_lshl_b32 s57, s36, 14")
    a("s_add_u32 s62, s61, s57")
    a("v_lshrrev_b32 v27, 4, v1")
    a("v_lshlrev_b32 v27, 4, v27")
    a("v_and_b32 v30, 7, v1")
    a("v_lshl_add_u32 v30, v30, 14, v27")
    a("s_lshl_b32 s63, s37, 3")
    for i in range(4):
        a(f"v_mov_b32 v{32+i}, -1")
    a("v_lshlrev_b32 v38, 7, v1")
    a("v_mov_b32 v28, 1")
    if opt.get("thr"):
        a("s_getreg_b32 s56, hwreg(HW_REG_XCC_ID)")
        a("s_sub_u32 s56, s56, s2")
        a("s_and_b32 s56, s56, 7")
        a("s_mul_i32 s57, s56, s56")
        a("s_lshl_b32 s57, s57, 20")
        a("s_lshl_b32 s56, s56, 12")
        a("s_add_u32 s56, s56, s57")
        a("s_lshl_b32 s99, s56, 3")
        a("s_add_u32 s99, s99, 8")
        a("s_add_u32 s56, s56, 1")
        a("v_mov_b32 v28, s56")
    a("v_mov_b32 v29, 0")
    sent = [[("vm", "buffer_store_dwordx4 v[32:35], v26, s[24:27], s62 offen sc1", "S")],
            [("vm", "buffer_store_dwordx4 v[32:35], v26, s[24:27], s62 offen offset:1024 sc1", "S")],
            [("vm", "buffer_store_dwordx4 v[32:35], v27, s[24:27], s62 offen offset:2048 sc1", "S")],
            [("vm", "buffer_store_dwordx2 v[32:33], v29, s[24:27], s55 offen sc1", "S")]]
    NS = opt.get("spec", 0)
    if NS:
        a("s_lshl_b32 s56, s2, 2")
        a("s_add_u32 s56, s56, s38")
        a("s_lshr_b32 s57, s56, 4")
        a("s_lshl_b32 s57, s57, 17")
        a("s_and_b32 s56, s56, 15")
        a(f"s_mul_i32 s56, s56, {NS*512}")
        a("s_add_u32 s3, s56, s57")
        a("s_add_u32 s3, s3, 65536")
        for k in range(NS // 2):
            sent.append([("vm", f"buffer_store_dwordx4 v[32:35], v26, s[24:27], s3 offen offset:{k*1024} sc1", "S")])
    if opt.get("sent_pro"):
        emit(sent)
    a("v_and_b32 v21, 15, v1")
    a("v_lshrrev_b32 v22, 4, v1")
    a("v_bfe_u32 v23, v1, 1, 3")
    a("v_xor_b32 v23, v23, v22")
    a("v_lshlrev_b32 v23, 4, v23")
    a("v_lshl_add_u32 v23, v21, 7, v23")
    a("s_lshl_b32 s56, s39, 14")
    a("v_add_u32 v16, s56, v23")
    a("v_xor_b32 v17, 64, v16")
    a("v_bfe_u32 v23, v1, 2, 2")
    a("v_lshl_add_u32 v24, v22, 3, v23")
    a("v_lshlrev_b32 v24, 7, v24")
    a("v_bfe_u32 v25, v1, 1, 1")
    a("s_lshl_b32 s56, s40, 2")
    a("v_or_b32 v25, s56, v25")
    a("v_and_b32 v36, 2, v23")
    a("v_lshlrev_b32 v36, 1, v36")
    a("v_xor_b32 v25, v25, v36")
    a("v_and_b32 v36, 1, v22")
    a("v_lshlrev_b32 v36, 1, v36")
    a("v_xor_b32 v25, v25, v36")
    a("v_lshl_add_u32 v24, v25, 4, v24")
    a("v_and_b32 v36, 1, v1")
    a("v_lshl_add_u32 v24, v36, 3, v24")
    ES = opt.get("es", 1)
    if ES:
        a("s_lshl_b32 s56, s39, 5")
        a("v_xor_b32 v24, s56, v24")
    a("v_xor_b32 v25, 32, v24")
    for s in range(3):
        a(f"v_add_u32 v{18+2*s}, {WB[s]}, v24")
        a(f"v_add_u32 v{19+2*s}, {WB[s]}, v25")
    a(f"v_mov_b32 v36, 0x{f2u(EPS):08x}")
    a(f"v_mov_b32 v37, v36")
    for rt in range(8):
        for r in range(0, 16, 2):
            a(f"v_pk_mov_b32 {vr(acc(rt, 0) + r, 2)}, v[36:37], v[36:37]")
    if opt.get("wpace", 6):
        a("s_lshl_b32 s56, s2, 2")
        a("s_add_u32 s56, s56, s38")
        a("s_bitcmp1_b32 s56, 3")
        a("s_cselect_b32 s84, s8, s6")
        a("s_cselect_b32 s85, s9, s7")
        a("s_and_b32 s85, s85, 0xffff")
        a(f"s_mov_b32 s86, {1024*3072*2}")
        a("s_mov_b32 s87, 0x00020000")
        a("s_lshr_b32 s57, s56, 4")
        a(f"s_add_u32 s57, s57, {64*opt.get('wpace', 6)}")
        a("s_mul_i32 s73, s57, 6144")
        a("s_and_b32 s57, s56, 7")
        a("s_mul_i32 s57, s57, 768")
        a("s_add_u32 s73, s73, s57")
        pass
    PRE = opt.get("pre", "W1")
    pre_list = {"none": [], "W1": dmaW(1), "W1X1": dmaW(1) + dmaX(1)}[PRE]
    if opt.get("pre0"):
        pre_list = pre_list[6:]
    if opt.get("pre_first"):
        emit(pre_list); pre_list = []
    ET = opt.get("etouch", 1)
    if ET == 1:
        a("s_lshl_b32 s56, s2, 2")
        a("s_add_u32 s56, s56, s38")
        a("s_lshr_b32 s57, s56, 4")
        a("s_lshl_b32 s57, s57, 3")
        a("s_and_b32 s58, s56, 7")
        a("s_add_u32 s57, s57, s58")
        a(f"s_add_u32 s57, s57, {opt.get('et_row0', 0)}")
        a(f"s_cmp_lt_u32 s57, {64*opt.get('wpace', 6)}")
        a("s_cselect_b32 s57, s57, 1024")
        a("s_mul_i32 s57, s57, 6144")
        a("v_lshlrev_b32 v40, 10, v1")
        a("s_mov_b64 exec, 0x3f")
        vq.issue("buffer_load_dword v39, v40, s[84:87], s57 offen offset:384", "T")
        a("s_mov_b64 exec, -1")
    if ET == 2:
        for st in range(opt.get("et0", 2), opt.get("wpace", 6)):
            a(f"s_sub_u32 s57, s73, {(opt.get('wpace', 6) - st)*64*6144}")
            a("s_mov_b64 exec, 0x3f")
            vq.issue("buffer_load_dword v39, v38, s[84:87], s57 offen", "T")
            a("s_mov_b64 exec, -1")
    if opt.get("ctouch", 1):
        a("s_getpc_b64 s[56:57]")
        a.label("K_CT")
        a(f"s_sub_u32 s56, s56, K_CT-{KNAME}")
        a("s_subb_u32 s57, s57, 0")
        a("s_mov_b64 s[88:89], s[56:57]")
        a("s_lshr_b32 s58, s2, 3")
        a("s_lshl_b32 s58, s58, 2")
        a("s_add_u32 s58, s58, s38")
        a("s_lshl_b32 s79, s58, 7")
        a("s_mul_i32 s58, s58, 384")
        a("v_add_u32 v40, s58, v38")
        a(f"v_min_u32 v40, K_LAST-{KNAME}, v40")
        a("s_mov_b64 exec, 7")
        vq.issue("global_load_dword v39, v40, s[56:57]", "T")
        a("s_mov_b64 exec, -1")
    emit(pre_list)
    if opt.get("xsp", 0x30):
        m = opt.get("xsp", 0x30)
        emit([[f"s_mov_b32 exec_lo, 0x{m | (m << 16):x}", "s_mov_b32 exec_hi, 0", ("vm", "buffer_load_dword v39, v38, s[16:19], s60 offen", "T"), "s_mov_b64 exec, -1"]])
    stamp(a, opt, 1)

    def rdW(t):
        ops = []
        for ct in range(6):
            for ks in range(2):
                for sub in range(2):
                    r = fW(t, ct, ks) + 2 * sub
                    ops.append(("ds", f"ds_read_b64_tr_b16 {ar(r, 2)}, v{18 + 2*(t % 3) + (ct & 1)} offset:{(ct >> 1)*8192 + ks*4096 + sub*512}"))
        return ops
    def rdX(t, rt, dst):
        return [("ds", f"ds_read_b128 {ar(dst(ks))}, v{16+ks} offset:{XB[t % 2] + rt*2048}") for ks in range(2)]
    def mf(t, rt, cts, X):
        out = []
        for ct in cts:
            for ks in range(2):
                W = ar(fW(t, ct, ks))
                A, B = (W, ar(X(ks))) if ct < 2 else (ar(X(ks)), W)
                c = vr(acc(rt, ct))
                cin = "0" if (t == 0 and ks == 0 and ct >= 4) else c
                out.append(f"{MF} {c}, {A}, {B}, {cin}")
        return out
    DEFER = opt.get("defer", 2)
    HST = opt.get("hst", 8)
    DSP = opt.get("dma_per_block", 2)
    IL = opt.get("il", 1)
    def cts_of(t):
        if IL and t == 15:
            return [2, 3]
        return [2, 3, 4, 5] if t >= 16 - DEFER else [0, 1, 2, 3, 4, 5]
    def Xreg(t, rt): return (lambda ks: fXR(rt, ks)) if t == 15 else (lambda ks: fX(rt % 2, ks))
    def blocks2(seq, pend, wreads, front=None, valu=()):
        CAP = opt.get("cap", 2)
        VC = opt.get("vcost", 2)
        nbs = [len(cts_of(t)) * 2 for t, _ in seq]
        starts = [sum(nbs[:i]) for i in range(len(seq))]
        G = sum(nbs)
        load = [0] * (G + 64)
        fill = {}
        def cost(x):
            if isinstance(x, tuple):
                return VC if x[0] == "vm" else (1 if x[0] == "ds" else 0)
            return 0 if x.endswith(":") else 1
        def place(g, grp, lim=None):
            c = sum(cost(x) for x in grp)
            lim = G - 1 if lim is None else lim
            g0 = g
            while g < lim and load[g] + min(c, CAP) > CAP:
                g += 1
            g = min(g, lim)
            load[g] += c
            fill.setdefault(g, []).extend(grp)
            return g
        if front:
            fill[0] = list(front); load[0] = 99
        for n, (t, rt) in enumerate(seq):
            if rt < 7: nx = rdX(t, rt + 1, Xreg(t, rt + 1))
            elif t < 15: nx = rdX(t + 1, 0, Xreg(t + 1, 0))
            else: nx = []
            for k, x in enumerate(nx):
                fill.setdefault(starts[n] + k, []).append(x); load[starts[n] + k] += 1
            if n: load[starts[n] - 1] += 1
        stream = []
        for grp in pend:
            atomic = any(isinstance(x, str) and ("exec" in x or x.endswith(":") or "cbranch" in x) for x in grp)
            if atomic: stream.append((grp, True))
            else:
                for x in grp: stream.append(([x], isinstance(x, tuple) and x[0] == "vm"))
        nv = sum(1 for _, v in stream if v)
        if nv:
            step = min(max(nbs) / DSP, (G - 3) / nv)
            pos = 2.0; last = 0
            for idx, (grp, isv) in enumerate(stream):
                if isv:
                    last = place(max(last, int(pos)), grp) ; pos = max(pos + step, last + 1.0)
                    last_v = last
                else:
                    nxt_v = idx + 1 < len(stream) and (stream[idx + 1][1] or not stream[idx+1][1]) and "m0" in grp[0]
                    tgt = max(last, int(pos) - 1) if nxt_v else last
                    last = place(tgt, grp)
                    if nxt_v: pos = max(pos, last + 1.0)
        ok = [starts[n] + g for n, (t, rt) in enumerate(seq) if rt < 7 for g in range(nbs[n])]
        if wreads:
            WEND = opt.get("wend", 8)
            ok2 = ok[:max(len(wreads) // 2, len(ok) - WEND)]
            last = ok2[0]
            for k, x in enumerate(wreads):
                last = place(max(last, ok2[(k * len(ok2)) // len(wreads)]), [x], lim=ok[-1])
        valu = [x if isinstance(x, list) else [x] for x in valu]
        last = 0
        for k, grp in enumerate(valu):
            last = place(max(last, (k * (G - 4)) // len(valu)), grp)
        for n, (t, rt) in enumerate(seq):
            lq.need(regs_of(ar(Xreg(t, rt)(0), 8)))
            weave(mf(t, rt, cts_of(t), Xreg(t, rt)), {g - starts[n]: v for g, v in fill.items() if starts[n] <= g < starts[n] + nbs[n]})

    def blocks(seq, pend, wreads, front=None, valu=()):
        if opt.get("sched2", 1):
            return blocks2(seq, pend, wreads, front, valu)
        pend = list(pend); wreads = list(wreads); valu = list(valu)
        for n, (t, rt) in enumerate(seq):
            cts = cts_of(t)
            nb = len(cts) * 2
            fill = {}
            if rt < 7:
                nx = rdX(t, rt + 1, Xreg(t, rt + 1))
            elif t < 15:
                nx = rdX(t + 1, 0, Xreg(t + 1, 0))
            else:
                nx = []
            items = [[x] for x in nx]
            left_w = len([1 for (_, r) in seq[n:] if r < 7])
            if rt < 7 and wreads:
                k = -(-len(wreads) // left_w)
                items += [[x] for x in wreads[:k]]
                wreads = wreads[k:]
            if n == 0 and front:
                fill[0] = list(front)
            spread(fill, items, 0, nb - 1)
            k = min(len(pend), max(DSP, -(-len(pend) // (len(seq) - n))))
            spread(fill, pend[:k], 1, nb)
            pend = pend[k:]
            k = -(-len(valu) // (len(seq) - n))
            spread(fill, [x if isinstance(x, list) else [x] for x in valu[:k]], 0, nb)
            valu = valu[k:]
            weave(mf(t, rt, cts, Xreg(t, rt)), fill)
        assert not pend and not wreads and not valu

    vq.need("W0", "X0a")
    a("s_barrier")
    stamp(a, opt, 2)
    stamp(a, opt, 25, real=True)
    w0 = rdW(0)
    for x in w0[:4] + rdX(0, 0, lambda ks: fX(0, ks)) + w0[4:13]:
        put(x)
    rest0 = ([] if PRE != "none" else dmaW(1)) + ([] if PRE == "W1X1" else dmaXh(1, 0)) + dmaW(2) + ([] if PRE == "W1X1" else dmaXh(1, 1))
    k0 = min(len(rest0), opt.get("k0", 10))
    blocks([(0, r) for r in range(3)], rest0[:k0], [], front=w0[13:])
    vq.need("W1", "X0b", extra="lgkmcnt(0)")
    lq.drained()
    a("s_barrier")
    x0 = []
    if opt.get("xs0"):
        m = opt["xs0"]
        x0 = [[f"s_mov_b32 exec_lo, 0x{m | (m << 16):x}", "s_mov_b32 exec_hi, 0", ("vm", "buffer_load_dword v39, v38, s[16:19], s60 offen", "T"), "s_mov_b64 exec, -1"]]
    blocks([(0, r) for r in range(3, 7)], rest0[k0:] + dmaXh(2, 0) + dmaW(3) + x0, rdW(1))

    def window1(t, extra=(), last=False, valu=(), first=()):
        ABL[0] = opt.get("abl", "") if 1 <= t <= 12 else ""
        vq.need(f"X{t+1}a", f"X{t+1}b", f"W{t+2}", *( ["S"] if t == HST else []), extra="lgkmcnt(0)")
        lq.drained()
        a("s_barrier")
        if opt.get("wstamps"):
            stamp(a, opt, 32 + t)
        pend = list(first)
        if t + 2 <= 15:
            pend += dmaX(t + 2) if t > 0 else dmaXh(2, 1)
        if t + 4 <= 15:
            pend += dmaW(t + 4)
        pend += list(extra)
        seq = [(t, 7)] + [(t + 1, r) for r in range(8 if last else 7)]
        blocks(seq, pend, rdW(t + 2) if t + 2 <= 15 else [], valu=valu)

    def window(t, extra=(), last=False, valu=(), first=()):
        if not opt.get("mid", 0):
            return window1(t, extra, last, valu, first)
        vq.need(f"X{t+1}a", f"W{t+2}", *( ["S"] if t == HST else []), extra="lgkmcnt(0)")
        lq.drained()
        a("s_barrier")
        if opt.get("wstamps"):
            stamp(a, opt, 32 + t)
        pend = list(first)
        if t + 2 <= 15:
            pend += dmaXh(t + 2, 1)
        wd = dmaW(t + 4) if t + 4 <= 15 else []
        pend += wd[:4]
        wr = rdW(t + 2) if t + 2 <= 15 else []
        valu = list(valu); extra = list(extra)
        nv = len(valu) // 2
        ne = len(extra) // 2 if last else 0
        blocks([(t, 7)] + [(t + 1, r) for r in range(3)], pend + extra[:ne], wr[:10], valu=valu[:nv])
        vq.need(f"X{t+1}b")
        lq.need(regs_of(ar(Xreg(t + 1, 3)(0), 8)))
        a("s_barrier")
        pend = []
        if t + 3 <= 15:
            pend += dmaXh(t + 3, 0)
        if wd:
            wd[4] = [f"s_add_u32 m0, s49, {WB[(t + 4) % 3] + 4096}"] + wd[4][1:]
        pend += wd[4:] + extra[ne:]
        blocks([(t + 1, r) for r in range(3, 8 if last else 7)], pend, wr[10:], valu=valu[nv:])

    hs = ["s_cmp_lg_u32 s38, 0", "s_cbranch_scc1 K_NOATOM", "s_mov_b64 exec, 1",
          "buffer_atomic_add v28, v29, s[28:31], s63 offen sc1", "s_mov_b64 exec, -1", "K_NOATOM:"]
    G = 64
    gate = [("needvm", ["G"]), "v_mov_b32 v38, 0", "v_mov_b32 v39, 0"]
    for i in range(8):
        gr = lambda j: acc(j // 4, 1) + j % 4
        gate.append(f"v_dot2_f32_bf16 v38, v{gr(i)}, v{gr(16+i)}, v38")
        gate.append(f"v_dot2_f32_bf16 v39, v{gr(8+i)}, v{gr(16+i)}, v39")
    for ctrl in ("quad_perm:[1,0,3,2]", "quad_perm:[2,3,0,1]", "row_half_mirror", "row_mirror"):
        for r in (38, 39):
            gate.append(f"v_add_f32_dpp v{r}, v{r}, v{r} {ctrl} row_mask:0xf bank_mask:0xf")
    gate2 = []
    for r in (38, 39):
        for k, ln in enumerate((0, 16, 32, 48)):
            gate2.append(f"v_readlane_b32 s{4 + (r-38)*4 + k}, v{r}, {ln}")
    for r, s0 in ((38, 4), (39, 8)):
        gate2 += [f"v_mov_b32 v{r}, s{s0}", f"v_add_f32 v{r}, s{s0+1}, v{r}", f"v_add_f32 v{r}, s{s0+2}, v{r}", f"v_add_f32 v{r}, s{s0+3}, v{r}"]
    for ops in (["v_cvt_pk_bf16_f32 v{r}, v{r}, v{r}", "v_and_b32 v{r}, 0xffff0000, v{r}", "v_mul_f32 v{r}, 0x%08x, v{r}" % f2u(-LOG2E),
                 "v_exp_f32 v{r}, v{r}", "v_add_f32 v{r}, 1.0, v{r}", "v_rcp_f32 v{r}, v{r}", "v_cvt_pk_bf16_f32 v{r}, v{r}, v{r}",
                 "v_and_b32 v{r}, 0xffff0000, v{r}"]):
        for r in (38, 39):
            gate2.append(ops.format(r=r))

    LM = opt.get("lm", 2)
    p2 = ["s_and_b32 s56, s2, 7", "s_lshr_b32 s57, s2, 3",
          f"s_and_b32 s50, s56, {(16 >> LM) - 1}", f"s_lshl_b32 s50, s50, {LM}", f"s_and_b32 s58, s57, {(1 << LM) - 1}", "s_add_u32 s50, s50, s58",
          f"s_lshr_b32 s51, s56, {4 - LM}", f"s_lshl_b32 s51, s51, {5 - LM}", f"s_lshr_b32 s58, s57, {LM}", "s_add_u32 s51, s51, s58",
          ["s_cmp_lt_u32 s38, 2", "s_cselect_b32 s80, s74, s76", "s_cselect_b32 s81, s75, s77"],
          "s_and_b32 s81, s81, 0xffff", f"s_mov_b32 s82, {1024*1024*2}", "s_mov_b32 s83, 0x00020000",
          "s_lshl_b32 s52, s39, 20", "s_lshl_b32 s56, s51, 7", "s_add_u32 s52, s52, s56",
          "s_lshl_b32 s53, s50, 19", "s_lshl_b32 s56, s38, 17", "s_add_u32 s53, s53, s56",
          f"s_lshl_b32 s56, s50, {6 + FS}", f"s_lshl_b32 s57, s38, {4 + FS}", "s_add_u32 s56, s56, s57", f"s_add_u32 s54, s56, {GB}",
          "v_lshrrev_b32 v48, 3, v1", "v_and_b32 v49, 7, v1", "v_bfe_u32 v50, v1, 4, 1", "v_lshlrev_b32 v50, 2, v50",
          "v_xor_b32 v49, v49, v50", "v_bfe_u32 v50, v1, 5, 1", "v_lshlrev_b32 v50, 1, v50", "v_xor_b32 v49, v49, v50",
          "v_lshlrev_b32 v49, 4, v49", "v_lshl_add_u32 v40, v48, 11, v49"]
    p2 += [f"v_add_u32 v{40+i}, {i*(8*2048 - 1024)}, v40" for i in range(1, 4)]
    HS = opt.get("halfst", 1)
    p2 += ["s_mul_i32 s64, s38, 6144" if HS else "s_lshl_b32 s64, s38, 12", f"s_add_u32 s64, s64, {EX}"]
    p2b = ["v_lshrrev_b32 v48, 4, v1", "v_bfe_u32 v49, v1, 2, 2", "v_lshl_add_u32 v50, v48, 2, v49", "v_lshlrev_b32 v50, 7, v50",
           "v_bfe_u32 v51, v1, 1, 1", "v_and_b32 v52, 2, v49", "v_lshlrev_b32 v52, 1, v52", "v_xor_b32 v51, v51, v52",
           "v_and_b32 v52, 1, v48", "v_lshlrev_b32 v52, 1, v52", "v_xor_b32 v51, v51, v52", "v_lshl_add_u32 v50, v51, 4, v50",
           "v_and_b32 v52, 1, v1", "v_lshl_add_u32 v50, v52, 3, v50", "v_add_u32 v44, s64, v50"]
    p2b += [f"v_xor_b32 v{44+ct}, {ct*32}, v44" for ct in range(1, 4)]
    p2b += ["v_lshlrev_b32 v53, 3, v1"]
    p2c = [f"v_mov_b32 v{12+i}, v{40+i}" for i in range(4)] + ["s_add_u32 s56, s48, 0x10000", "v_add_u32 v32, s56, v50"]
    p2c += [f"v_xor_b32 v{32+ct}, {ct*32}, v32" for ct in range(1, 4)]
    SLOT = {}
    RES = {0: 176, 1: 192, 2: 208, 3: 224, 4: 240, 5: 16, 6: 32, 7: 64}
    AQ = [q for q in range(0, 256, 4) if not any(r <= q < r + 16 for r in RES.values())]
    assert len(AQ) == 32
    def dmaB(b, slot):
        SLOT[b] = slot
        ops = []
        for j in range(4):
            off = f" offset:{j*1024}" if j else ""
            m0 = "s_mov_b32 m0, s64" if slot is None else f"s_add_u32 m0, s48, {slot}"
            ops.append(([m0] if j == 0 else []) +
                       [("vm", f"buffer_load_dwordx4 v{(40 if slot is None else 12)+j}, s[80:83], s52 offen{off} lds", f"B{b}")])
        ops[-1].append("s_add_u32 s52, s52, 65536")
        return ops
    def breads(b, dst, agpr):
        sl = SLOT[b]
        base = 44 if sl is None else (32 if sl >= 65536 else 16)
        o = 0 if sl is None else sl % 65536
        return [("ds", f"ds_read_b64_tr_b16 {(ar if agpr else vr)(dst + ct*4 + 2*sub, 2)}, v{base+ct} offset:{o + sub*2048}")
                for ct in range(4) for sub in range(2)]
    PD = opt.get("wpace", 6)
    def wp():
        return ["s_mov_b64 exec, 0x3f", ("vm", "buffer_load_dword v39, v38, s[84:87], s73 offen", "T"), "s_mov_b64 exec, -1",
                f"s_add_u32 s73, s73, {64*6144}"]
    wt_setup = [["s_bitcmp1_b32 s38, 0", "s_cselect_b32 s92, s76, s74", "s_cselect_b32 s93, s77, s75"], "s_and_b32 s93, s93, 0xffff",
                f"s_mov_b32 s94, {1024*1024*2}", "s_mov_b32 s95, 0x00020000",
                "s_lshl_b32 s78, s2, 1", "s_add_u32 s78, s78, s40", "s_lshl_b32 s78, s78, 12"]
    WTN, WT0 = opt.get("wtn", 4), opt.get("wt0", 9)
    def wt(k):
        n = 32 // WTN
        return [f"s_mov_b64 exec, 0x{(1 << n) - 1:x}",
                ("vm", f"buffer_load_dword v39, v38, s[92:95], s78 offen offset:{k*n*128}", "T"), "s_mov_b64 exec, -1"]
    xs = opt.get("xsplit", {0: 0xc0, 1: 0x300, 2: 0xc00, 3: 0x3000, 4: 0xc000})
    ST0 = opt.get("st0", 2 if HS else 3)
    sw = opt.get("sent_w", [4, 5, 6, 6, 4, 5]) if not opt.get("sent_pro") else [-1] * 6
    for t in range(15):
        kw = {"extra": [], "valu": []}
        if xs and t in xs:
            m = xs[t]
            kw["extra"] += [[f"s_mov_b32 exec_lo, 0x{m | (m << 16):x}", "s_mov_b32 exec_hi, 0", ("vm", "buffer_load_dword v39, v38, s[16:19], s60 offen", "T"), "s_mov_b64 exec, -1"]]
        if PD and t + PD <= 15: kw["extra"] += [wp()]
        if t == ST0 - 2: kw["valu"] += p2
        if t == ST0 - 1: kw["valu"] += p2b
        for k in range(len(sent)):
            if sw[k] == t: kw["extra"] += [sent[k]]
        if t == HST: kw["extra"] += [hs]
        TL = opt.get("tlb", "")
        if TL and t == opt.get("tlb_w", 12):
            grp = ["s_mov_b64 exec, 1"]
            if "o" in TL: grp.append(("vm", "buffer_load_dword v39, v29, s[24:27], s65 offen sc1", "T"))
            if "a" in TL: grp.append(("vm", "buffer_load_dword v39, v29, s[24:27], s53 offen sc1", "T"))
            if "A" in TL:
                grp += ["s_mov_b64 exec, 3", "v_lshlrev_b32 v54, 16, v1", ("vm", "buffer_load_dword v39, v54, s[24:27], s53 offen sc1", "T"), "s_mov_b64 exec, 1"]
            if "u" in TL:
                grp += ["s_lshl_b32 s59, s50, 18", "s_lshl_b32 s58, s38, 16", "s_add_u32 s59, s59, s58", "v_mov_b32 v54, s59",
                        ("vm", "global_load_dword v39, v54, s[70:71]", "T")]
            kw["extra"] += [grp + ["s_mov_b64 exec, -1"]]
        for (tw, lab, nl) in opt.get("ct2", [(4, "K_W7", 1), (12, "K_TAIL", 2)]):
            if t == tw:
                kw["extra"] += [[f"s_add_u32 s59, s79, {lab}-{KNAME}", "v_lshlrev_b32 v54, 14, v1", "v_add_u32 v54, s59, v54",
                                 f"v_min_u32 v54, K_LAST-{KNAME}, v54", f"s_mov_b64 exec, {(1 << nl) - 1}",
                                 ("vm", "global_load_dword v39, v54, s[88:89]", "T"), "s_mov_b64 exec, -1"]]
        a.label(f"K_W{t}")
        if t == WT0 - 1: kw["valu"] += wt_setup
        if WT0 <= t < WT0 + WTN: kw["extra"] += [wt(t - WT0)]
        LT = opt.get("lt")
        if LT:
            if t == min(LT) - 1:
                kw["valu"] += ["v_lshrrev_b32 v55, 3, v1", "v_lshlrev_b32 v55, 16, v55", "v_and_b32 v56, 7, v1", "v_lshl_add_u32 v55, v56, 7, v55",
                               "s_lshl_b32 s3, s39, 20", "s_lshr_b32 s56, s2, 3", "s_lshl_b32 s56, s56, 11", "s_add_u32 s3, s3, s56",
                               "s_and_b32 s56, s2, 4", "s_lshl_b32 s56, s56, 8", "s_add_u32 s3, s3, s56"]
            if t in LT:
                b0, nb_ = LT[t]
                kw["extra"] += [[f"s_add_u32 s56, s3, {b0*65536}", f"s_mov_b32 exec_lo, 0x{(1 << (8*nb_)) - 1:x}", "s_mov_b32 exec_hi, 0",
                                 ("vm", "buffer_load_dword v39, v55, s[80:83], s56 offen", "T"), "s_mov_b64 exec, -1"]]
        if HS:
            h = t - ST0
            if 0 <= h < 10:
                sub = h % 2
                grp = []
                for j in (2*sub, 2*sub + 1):
                    off = f" offset:{j*1024}" if j else ""
                    grp.append(([f"s_add_u32 m0, s64, {(h % 3)*2048 - sub*2048}"] if j % 2 == 0 else []) +
                               [("vm", f"buffer_load_dwordx4 v{40+j}, s[80:83], s52 offen{off} lds", f"H{h}")])
                if sub:
                    grp[-1].append("s_add_u32 s52, s52, 65536")
                kw["extra"] += grp
            h = t - ST0 - 2
            if 0 <= h < 10:
                kw["valu"] += [("needvm", [f"H{h}"])] + [("ds", f"ds_read_b64_tr_b16 {ar(RES[h // 2] + ct*4 + 2*(h % 2), 2)}, v{44+ct} offset:{(h % 3)*2048}") for ct in range(4)]
        elif ST0 <= t < ST0 + 10:
            b = (t - ST0) // 2
            if (t - ST0) % 2 == 0:
                kw["extra"] += dmaB(b, None)
            else:
                kw["valu"] += [[]] * 12 + [("needvm", [f"B{b}"])] + breads(b, RES[b], True)
        if t == 13:
            kw["valu"] += p2c
            kw["extra"] += [[("vm", "buffer_load_dword v28, v53, s[28:31], 0 offen sc1", "C")]]
        if t == 14:
            b58 = dmaB(5, 65536) + dmaB(6, 65536 + 4096) + dmaB(7, 98304) + dmaB(8, 98304 + 4096)
            NW14 = opt.get("nw14", 10) if IL else 16
            kw["extra"] += b58[:NW14]; b58 = b58[NW14:]
            kw["last"] = True
            if IL:
                kw["valu"] += [f"s_mov_b32 s66, 0x{f2u(LOG2E):08x}", f"s_mov_b32 s67, 0x{f2u(LOG2E):08x}",
                               f"v_mov_b32 v20, 0x{f2u(-EPS * LOG2E):08x}", "v_mov_b32 v21, v20"] + [f"v_mov_b32 v{22+i}, 0x3f803f80" for i in range(4)]
                kw["valu"] += [["s_lshl_b32 s56, s38, 12", f"s_add_u32 s56, s56, {EX}", "v_add_u32 v10, s56, v26"], "v_xor_b32 v11, 4096, v10"]
                DSP = 1
        window(t, **kw)
    stamp(a, opt, 3)
    stamp(a, opt, 26, real=True)

    a.label("K_TAIL")
    if not IL:
        a(f"s_mov_b32 s66, 0x{f2u(LOG2E):08x}")
        a(f"s_mov_b32 s67, 0x{f2u(LOG2E):08x}")
        a(f"v_mov_b32 v20, 0x{f2u(-EPS * LOG2E):08x}")
        a("v_mov_b32 v21, v20")
        for i in range(4):
            a(f"v_mov_b32 v{22+i}, 0x3f803f80")
    KV, ZC = 40, 56
    T0 = 2
    MSL = opt.get("mslots", [4, 6, 8, 10, 12, 14, 17, 24])
    def phi8(b0, b1, dst, inter=(), mfs=()):
        src = [b0, b0 + 2, b1, b1 + 2]
        L = []
        for i, s in enumerate(src):
            L.append(f"v_pk_fma_f32 {vr(T0 + 2*i, 2)}, {vr(s, 2)}, s[66:67], v[20:21]")
        for i in range(8):
            L.append(f"v_exp_f32_e64 v{T0+i}, v{T0+i} clamp")
        for s in src:
            L.append(f"v_max_f32 v{s}, v36, v{s}")
            L.append(f"v_max_f32 v{s+1}, v36, v{s+1}")
        for i, s in enumerate(src):
            L.append(f"v_pk_add_f32 {vr(T0 + 2*i, 2)}, {vr(s, 2)}, {vr(T0 + 2*i, 2)}")
        for i in range(4):
            L.append(f"v_cvt_pk_bf16_f32 v{dst+i}, v{T0+2*i}, v{T0+2*i+1}")
        pos = {0: [], 8: [], 18: []}
        for n, it in enumerate(inter):
            pos[(0, 8, 18)[(n * 3) // max(len(inter), 1)]].append(it)
        mfs = list(mfs)
        assert len(mfs) <= len(MSL)
        for n, x in enumerate(L):
            if n in pos:
                emit(pos[n])
            if n in MSL and mfs:
                m_ = mfs.pop(0)
                lq.need(Ins(m_).srcAB)
                a(m_)
            a(x)
    def pack8(b0, b1, dst):
        for i, s in enumerate([b0, b0 + 2, b1, b1 + 2]):
            a(f"v_cvt_pk_bf16_f32 v{dst+i}, v{s}, v{s+1}")
    t1 = {2: [[("needvm", ["B7"])] + breads(5, RES[5], True), breads(6, RES[6], True), breads(7, RES[7], True)]}
    rf = dmaB(9, SLOT[5]) + dmaB(10, SLOT[6]) + dmaB(11, SLOT[7])
    rf[0] = ["s_waitcnt lgkmcnt(0)"] + rf[0]
    for k in range(4):
        t1[3 + k] = rf[3*k:3*k+3]
    BQ = opt.get("bq", 0)
    if BQ:
        t1 = {}
    def kvz(m):
        out = []
        for dt in range(2):
            c = vr(ZC + dt*4)
            out.append(f"{MF} {c}, {vr(acc(2*m, 2+dt))}, v[22:25], {'0' if m == 0 else c}")
            for et in range(2):
                c = vr(KV + dt*8 + et*4)
                out.append(f"{MF} {c}, {vr(acc(2*m, 2+dt))}, {vr(acc(2*m, 4+et))}, {'0' if m == 0 else c}")
        return out
    if IL:
        h = -(-len(b58) // 2)
        t1 = {0: b58[:h], 1: b58[h:], 3: t1[2]}
        rf[0] = rf[0][1:]
        rf[0] = [("needds", regs_of(ar(RES[7], 16)))] + rf[0]
        for k in range(4):
            t1[4 + k] = rf[3*k:3*k+3]
        if opt.get("x_nob"):
            t1 = {}
        if opt.get("x_norf"):
            for k in range(4): t1[4 + k] = []
        if opt.get("x_nowait"):
            t1[3][0] = t1[3][0][1:]
        if ES:
            send = [x for m in range(4) for x in kvz(m)[3:]]
            own = [kvz(m)[:3] for m in range(4)]
            plan = {4: send[:8], 5: send[8:] + own[0], 6: own[1], 7: own[2]}
            wr_ = [[f"ds_write_b128 v10, {vr(ZC+4)} offset:2048", f"ds_write_b128 v10, {vr(KV+8)}", f"ds_write_b128 v10, {vr(KV+12)} offset:1024"]]
            t1[6] = t1[6][:1] + wr_ + t1[6][1:]
            for j in range(8):
                m, dt = j % 4, 1 - j // 4
                if j < 4:
                    mfs = mf(15, 2*j, [4, 5], lambda ks: fXR(2*j, ks)) + mf(15, 2*j + 1, [4, 5], lambda ks: fXR(2*j + 1, ks))
                else:
                    mfs = plan[j]
                if j == 7:
                    a("s_waitcnt lgkmcnt(0)")
                    lq.drained()
                    a("s_barrier")
                    a(f"ds_read_b128 {vr(KV+8)}, v11 offset:1024")
                    a(f"ds_read_b128 {vr(KV+12)}, v11")
                    a(f"ds_read_b128 {vr(ZC+4)}, v11 offset:2048")
                    a("s_lshl_b32 s56, s39, 10")
                    a("s_add_u32 s58, s62, s56")
                    a("s_xor_b32 s59, s58, 1024")
                    a("s_mov_b32 s56, 0x00010001")
                    a("s_mov_b32 s57, 0x00010001")
                phi8(acc(2*m, 2 + dt), acc(2*m + 1, 2 + dt), acc(2*m, 2 + dt), inter=t1.get(j, []), mfs=mfs)
                if 1 <= j <= 3:
                    for et in range(2):
                        pack8(acc(2*(j-1), 4 + et), acc(2*(j-1) + 1, 4 + et), acc(2*(j-1), 4 + et))
                if j == 3:
                    for et in range(2):
                        pack8(acc(6, 4 + et), acc(7, 4 + et), acc(6, 4 + et))
            for x in (own[3][1], own[3][2], own[3][0]):
                a(x)
            a("s_waitcnt lgkmcnt(0)")
        if not ES:
            for j in range(8):
                if opt.get("tstamps"):
                    stamp(a, opt, 48 + j)
                m, dt = j // 2, j % 2
                if j < 4:
                    mfs = mf(15, 2*j, [4, 5], lambda ks: fXR(2*j, ks)) + mf(15, 2*j + 1, [4, 5], lambda ks: fXR(2*j + 1, ks))
                elif j < 7:
                    mfs = kvz(j - 4)
                else:
                    mfs = []
                phi8(acc(2*m, 2 + dt), acc(2*m + 1, 2 + dt), acc(2*m, 2 + dt), inter=t1.get(j, []), mfs=mfs)
                if 1 <= j <= 4:
                    for et in range(2):
                        pack8(acc(2*(j-1), 4 + et), acc(2*(j-1) + 1, 4 + et), acc(2*(j-1), 4 + et))
            if opt.get("tstamps"):
                stamp(a, opt, 56)
            for x in kvz(3):
                a(x)
            a("s_nop 3")
    else:
        for m in range(4):
            for dt in range(2):
                phi8(acc(2*m, 2 + dt), acc(2*m + 1, 2 + dt), acc(2*m, 2 + dt), inter=t1.get(m*2 + dt, []))
        lq.drained()
        kvm = []
        for m in range(4):
            for dt in range(2):
                c = vr(ZC + dt*4)
                kvm.append(f"{MF} {c}, {vr(acc(2*m, 2+dt))}, v[22:25], {'0' if m == 0 else c}")
        for m in range(4):
            for et in range(2):
                pack8(acc(2*m, 4 + et), acc(2*m + 1, 4 + et), acc(2*m, 4 + et))
                a(kvm.pop(0))
        for m in range(4):
            for dt in range(2):
                for et in range(2):
                    c = vr(KV + dt*8 + et*4)
                    a(f"{MF} {c}, {vr(acc(2*m, 2+dt))}, {vr(acc(2*m, 4+et))}, {'0' if m == 0 else c}")
        a("s_lshl_b32 s56, s38, 12")
        a(f"s_add_u32 s56, s56, {EX}")
        a("v_add_u32 v10, s56, v26")
        a("v_xor_b32 v11, 4096, v10")
    if not ES:
        a("s_cmp_eq_u32 s39, 0")
        a("s_cbranch_scc1 K_EXW0")
        a(f"ds_write_b128 v10, {vr(ZC)} offset:2048")
        a(f"ds_write_b128 v10, {vr(KV)}")
        a(f"ds_write_b128 v10, {vr(KV+4)} offset:1024")
        a("s_waitcnt lgkmcnt(0)")
        for i in range(0, 8, 2):
            a(f"v_pk_mov_b32 {vr(KV+i, 2)}, {vr(KV+8+i, 2)}, {vr(KV+8+i, 2)} op_sel:[0,1]")
        for i in range(0, 4, 2):
            a(f"v_pk_mov_b32 {vr(ZC+i, 2)}, {vr(ZC+4+i, 2)}, {vr(ZC+4+i, 2)} op_sel:[0,1]")
        a("s_branch K_EXW1")
        a.label("K_EXW0")
        a(f"ds_write_b128 v10, {vr(ZC+4)} offset:2048")
        a("s_nop 2")
        a(f"ds_write_b128 v10, {vr(KV+8)}")
        a(f"ds_write_b128 v10, {vr(KV+12)} offset:1024")
        a("s_waitcnt lgkmcnt(0)")
        a.label("K_EXW1")
        lq.drained()
        if opt.get("tstamps"):
            stamp(a, opt, 57)
        a("s_barrier")
        if opt.get("tstamps"):
            stamp(a, opt, 58)
        a(f"ds_read_b128 {vr(KV+8)}, v11")
        a(f"ds_read_b128 {vr(KV+12)}, v11 offset:1024")
        a(f"ds_read_b128 {vr(ZC+4)}, v11 offset:2048")
        a("s_mov_b32 s56, 0x00010001")
        a("s_mov_b32 s57, 0x00010001")
        a("s_waitcnt lgkmcnt(0)")
    for i in range(0, 8, 2):
        a(f"v_pk_add_f32 {vr(KV+i, 2)}, {vr(KV+i, 2)}, {vr(KV+8+i, 2)}")
    for i in range(0, 4, 2):
        a(f"v_pk_add_f32 {vr(ZC+i, 2)}, {vr(ZC+i, 2)}, {vr(ZC+4+i, 2)}")
    for r in list(range(KV, KV + 8)) + list(range(ZC, ZC + 4)):
        a(f"v_min_u32 v{r}, -2, v{r}")
    if ES:
        vq.issue(f"buffer_store_dwordx4 {vr(KV)}, v26, s[24:27], s58 offen sc1", "P")
        vq.issue(f"buffer_store_dwordx4 {vr(KV+4)}, v26, s[24:27], s59 offen sc1", "P")
    else:
        vq.issue(f"buffer_store_dwordx4 {vr(KV)}, v26, s[24:27], s62 offen sc1", "P")
        vq.issue(f"buffer_store_dwordx4 {vr(KV+4)}, v26, s[24:27], s62 offen offset:1024 sc1", "P")
    a("s_mov_b64 exec, s[56:57]")
    vq.issue(f"buffer_store_dwordx4 {vr(ZC)}, v27, s[24:27], s62 offen offset:2048 sc1", "P")
    a("s_mov_b64 exec, -1")
    stamp(a, opt, 4)
    vq.need("C")
    a("s_mov_b32 s58, -1")
    a("s_mov_b32 s59, 0")
    a.label("K_HS")
    if opt.get("thr"):
        a("v_cmp_ne_u32 vcc, s99, v28")
        a("s_mov_b32 s97, vcc_lo")
        a("v_and_b32 v28, 0xfff, v28")
    a("v_cmp_eq_u32 vcc, 8, v28")
    a("s_cmp_eq_u64 vcc, s[58:59]")
    a("s_cbranch_scc1 K_HSOK")
    a("s_sleep 2")
    a("v_lshlrev_b32 v10, 3, v1")
    a("buffer_load_dword v28, v10, s[28:31], 0 offen sc1")
    a("s_waitcnt vmcnt(0)")
    a("s_branch K_HS")
    a.label("K_HSOK")
    if ES:
        a("s_lshl_b32 s56, s38, 11")
        a(f"s_add_u32 s56, s56, {EX2}")
        a("v_lshl_add_u32 v10, v1, 3, s56")
        a("v_xor_b32 v11, 2048, v10")
    PB = [acc(p, 2) for p in range(8)]
    ZG = 48
    def gather_ops():
        ops = []
        for p in range(8):
            for k in range(2):
                ops.append(([f"s_add_u32 s56, s61, {p * 16384}"] if k == 0 else []) +
                           [("vm", f"buffer_load_dwordx4 {vr(PB[p] + 4*k)}, v26, s[24:27], s56 offen offset:{k*1024} sc1", "H")])
        ops.append([("vm", f"buffer_load_dwordx4 {vr(ZG)}, v30, s[24:27], s61 offen offset:2048 sc1", "H")])
        return ops
    def gather(track):
        for op in gather_ops():
            for x in op:
                a(x[1] if isinstance(x, tuple) else x)
    gops = gather_ops()
    if BQ:
        rd = breads(5, RES[5], True) + breads(6, RES[6], True) + breads(7, RES[7], True)
        rf[0] = rf[0][1:]
        rf[0] = [("needds", regs_of(ar(RES[5], 16)))] + rf[0]
        rf[4] = [("needds", regs_of(ar(RES[6], 16)))] + rf[4]
        rf[8] = [("needds", regs_of(ar(RES[7], 16)))] + rf[8]
        qfill = [[("needvm", ["B7"])] + rd[:1]] + [[x] for x in rd[1:]]
        qb = None
    else:
        qb = dmaB(12, 32768) + dmaB(13, 32768 + 4096)
    GQ = opt.get("gather_in_q", 0)
    ILQ = opt.get("ilq", 1)
    if ILQ:
        LA = opt.get("qla", 2)
        def qm(rt):
            return mf(15, rt, [0, 1], lambda ks: fXR(rt, ks)) + mf(14, rt, [0, 1], lambda ks: fX(rt % 2, ks))
        def xr(rt):
            return rdX(14, rt, lambda ks: fX(rt % 2, ks)) if rt < 8 else []
        for x in xr(0):
            put(x)
        for rt in range(LA):
            k = -(-len(qb) // (LA - rt)) if opt.get("qb_front", 1) else 0
            fill = {1: xr(rt + 1)}
            spread(fill, qb[:k], 2, 8); qb = qb[k:]
            weave(qm(rt), fill)
        stamp(a, opt, 13)
        G0, G1 = opt.get("g0", 3), opt.get("g1", 7)
        for rt in range(8):
            inter = []
            if rt + LA < 8:
                inter.append(xr(rt + LA + 1))
            if rt < G0 and qb:
                k = -(-len(qb) // (G0 - rt)); inter += qb[:k]; qb = qb[k:]
            if G0 <= rt < G1:
                k = -(-len(gops) // (G1 - rt)); inter += gops[:k]; gops = gops[k:]
            phi8(acc(rt, 0), acc(rt, 1), acc(rt, 0), inter=inter, mfs=qm(rt + LA) if rt + LA < 8 else [])
        assert not gops and not qb
    else:
        if DEFER >= 2:
            for x in rdX(14, 0, lambda ks: fX(0, ks)):
                put(x)
        for rt in range(8):
            fill = {}
            ms = mf(15, rt, [0, 1], lambda ks: fXR(rt, ks)) if DEFER >= 1 else []
            if DEFER >= 2:
                ms += mf(14, rt, [0, 1], lambda ks: fX(rt % 2, ks))
                if rt < 7:
                    fill[1] = rdX(14, rt + 1, lambda ks: fX((rt + 1) % 2, ks))
            if BQ:
                if rt < 3:
                    spread(fill, qfill[8*rt:8*rt+8], 0, len(ms))
                if rt >= 2:
                    spread(fill, rf[2*(rt-2):2*(rt-2)+2], 2, len(ms))
            else:
                fill.setdefault(2, []).extend(qb[rt])
            per = len(ms) // 4
            first_rt = 8 - -(-GQ // max(per, 1))
            if GQ and rt >= first_rt:
                k = min(per, GQ - (17 - len(gops)))
                spread(fill, gops[:k], 0, len(ms)); gops = gops[k:]
            weave(ms, fill)
        stamp(a, opt, 13)
        GSP = opt.get("gather_span", 7)
        for rt in range(8):
            k = -(-len(gops) // (GSP - rt)) if rt < GSP else 0
            phi8(acc(rt, 0), acc(rt, 1), acc(rt, 0), inter=gops[:k]); gops = gops[k:]
    gate_ld = [[("vm", f"buffer_load_dwordx4 {vr(acc(i, 1))}, v26, s[16:19], s60 offen offset:{i*1024}", "G")] for i in range(4)]
    gate_ld += [[("vm", f"buffer_load_dwordx4 {vr(acc(4 + i, 1))}, v26, s[32:35], 0 offen offset:{i*1024}", "G")] for i in range(2)]
    emit(gate_ld)
    stamp(a, opt, 5)
    S = 40
    vq.need("H")
    a.label("K_SUM")
    for i in range(0, 8, 2):
        a(f"v_pk_add_f32 {vr(S+i, 2)}, {vr(PB[0]+i, 2)}, {vr(PB[1]+i, 2)}")
    for i in range(4):
        a(f"v_add_f32_dpp v{52+i}, v{ZG+i}, v{ZG+i} quad_perm:[1,0,3,2] row_mask:0xf bank_mask:0xf")
    for p in range(2, 8):
        for i in range(0, 8, 2):
            a(f"v_pk_add_f32 {vr(S+i, 2)}, {vr(S+i, 2)}, {vr(PB[p]+i, 2)}")
        if p in (2, 3):
            ctrl = "quad_perm:[2,3,0,1]" if p == 2 else "row_half_mirror"
            for i in range(4):
                a(f"v_add_f32_dpp v{52+i}, v{52+i}, v{52+i} {ctrl} row_mask:0xf bank_mask:0xf")
    a(f"v_pk_add_f32 v[2:3], {vr(S, 2)}, {vr(S+2, 2)}")
    a(f"v_pk_add_f32 v[4:5], {vr(S+4, 2)}, {vr(S+6, 2)}")
    a(f"v_pk_add_f32 v[6:7], v[52:53], v[54:55]")
    a("v_pk_add_f32 v[2:3], v[2:3], v[4:5]")
    a("v_pk_add_f32 v[2:3], v[2:3], v[6:7]")
    a("v_cmp_u_f32 vcc, v2, v3")
    a("s_cbranch_vccz K_GOK")
    regs = [PB[p] + i for p in range(8) for i in range(8)] + [ZG + i for i in range(4)]
    a(f"v_max3_u32 v2, v{regs[0]}, v{regs[1]}, v{regs[2]}")
    regs = regs[3:]
    while regs:
        if len(regs) >= 2:
            a(f"v_max3_u32 v2, v2, v{regs[0]}, v{regs[1]}"); regs = regs[2:]
        else:
            a(f"v_max_u32 v2, v2, v{regs[0]}"); regs = regs[1:]
    a("v_cmp_eq_u32 vcc, -1, v2")
    a("s_cbranch_vccz K_GOK")
    if opt.get("stamps"):
        a("v_readlane_b32 s56, v31, 24")
        a("s_add_u32 s56, s56, 1")
        a("v_writelane_b32 v31, s56, 24")
    gather(False)
    a("s_waitcnt vmcnt(0)")
    a("s_branch K_SUM")
    a.label("K_GOK")
    stamp(a, opt, 6)
    if ES:
        OP0, OP1, OPZ = 56, 60, 2
        a(f"v_cvt_pk_bf16_f32 v{OPZ}, v52, v53")
        a(f"v_cvt_pk_bf16_f32 v{OPZ+1}, v54, v55")
        a(f"ds_write_b64 v10, {vr(OPZ, 2)} offset:1024")
        for k, d in enumerate((OP0, OP0 + 1, OP1, OP1 + 1)):
            a(f"v_cvt_pk_bf16_f32 v{d}, v{S+2*k}, v{S+2*k+1}")
        a(f"ds_write_b64 v10, {vr(OP0, 2)}")
        a(f"ds_write_b64 v10, {vr(OP1, 2)} offset:512")
        a("s_waitcnt lgkmcnt(0)")
        lq.drained()
        a("s_barrier")
        a(f"ds_read_b64 {vr(OPZ+2, 2)}, v11 offset:1024")
        a(f"ds_read_b64 {vr(OP0+2, 2)}, v11")
        a(f"ds_read_b64 {vr(OP1+2, 2)}, v11 offset:512")
        a("s_waitcnt lgkmcnt(2)")
    else:
        for i in range(4):
            a(f"v_cvt_pk_bf16_f32 v{2+i}, v{S+2*i}, v{S+2*i+1}")
        a("v_cvt_pk_bf16_f32 v6, v52, v53")
        a("v_cvt_pk_bf16_f32 v7, v54, v55")
        a("s_mul_i32 s56, s40, 3072")
        a(f"s_add_u32 s56, s56, {EX2}")
        a("v_add_u32 v11, s56, v26")
        a("s_lshl_b32 s57, s39, 3")
        a("v_add_u32 v10, s57, v11")
        a("ds_write_b64 v10, v[6:7] offset:2048")
        a("ds_write_b64 v10, v[2:3]")
        a("ds_write_b64 v10, v[4:5] offset:1024")
        a("s_waitcnt lgkmcnt(0)")
        lq.drained()
        a("s_barrier")
        OPR = 40
        a(f"ds_read_b128 {vr(OPR+8)}, v11 offset:2048")
        a(f"ds_read_b128 {vr(OPR)}, v11")
        a(f"ds_read_b128 {vr(OPR+4)}, v11 offset:1024")
        a("s_waitcnt lgkmcnt(2)")
        OP0, OP1, OPZ = OPR, OPR + 4, OPR + 8
    eb = dmaB(14, 0) + dmaB(15, 4096) if opt.get("early14", 1) else []
    if opt.get("opipe", 0):
        a("s_add_u32 s63, s65, 4096")
        def mm(rt):
            return [f"{MF} {vr(acc(rt, 4))}, {vr(OPZ)}, {vr(acc(rt, 0))}, 0", f"{MF} {vr(acc(rt, 2))}, {vr(OP0)}, {vr(acc(rt, 0))}, 0",
                    f"{MF} {vr(acc(rt, 3))}, {vr(OP1)}, {vr(acc(rt, 0))}, 0"] if rt < 8 else []
        a(mm(0)[0]); a(mm(1)[0])
        a("s_waitcnt lgkmcnt(0)")
        for x in mm(0)[1:] + mm(1)[1:]:
            a(x)
        for rt in range(8):
            N, D = acc(rt, 2), acc(rt, 4)
            nx = mm(rt + 2)
            L = [f"v_add_f32 v{D}, v36, v{D}", f"v_rcp_f32 v{D}, v{D}"]
            if nx:
                L += [f"v_mul_f32 v{N+r}, v{N+r}, v{D}" for r in range(8)]
            else:
                L += [f"v_pk_mul_f32 {vr(N+r, 2)}, {vr(N+r, 2)}, {vr(D, 2)} op_sel_hi:[1,0]" for r in range(0, 8, 2)]
            L += [f"v_cvt_pk_bf16_f32 v{D+4+r//2}, v{N+r}, v{N+r+1}" for r in range(0, 8, 2)]
            for k, x in enumerate(L):
                if nx and k in (2, 6, 10):
                    a(nx.pop(0))
                a(x)
            vq.issue(f"buffer_store_dwordx4 {vr(D+4)}, v26, s[24:27], {'s65' if rt < 4 else 's63'} offen offset:{(rt % 4)*1024} sc1", "O")
        emit(eb)
    else:
        for rt in range(8):
            a(f"{MF} {vr(acc(rt, 4))}, {vr(OPZ)}, {vr(acc(rt, 0))}, 0")
            if eb and rt % 2 == 0:
                emit(eb[:1]); eb = eb[1:]
        a("s_waitcnt lgkmcnt(0)")
        for rt in range(8):
            a(f"{MF} {vr(acc(rt, 2))}, {vr(OP0)}, {vr(acc(rt, 0))}, 0")
            a(f"{MF} {vr(acc(rt, 3))}, {vr(OP1)}, {vr(acc(rt, 0))}, 0")
            D = acc(rt, 4)
            a(f"v_add_f32 v{D}, v36, v{D}")
            a(f"v_rcp_f32 v{D}, v{D}")
            if eb and rt % 2 == 0:
                emit(eb[:1]); eb = eb[1:]
        a("s_add_u32 s63, s65, 4096")
        for rt in range(8):
            N, D = acc(rt, 2), acc(rt, 4)
            for r in range(0, 8, 2):
                a(f"v_pk_mul_f32 {vr(N+r, 2)}, {vr(N+r, 2)}, {vr(D, 2)} op_sel_hi:[1,0]")
            for r in range(0, 8, 2):
                a(f"v_cvt_pk_bf16_f32 v{D+4+r//2}, v{N+r}, v{N+r+1}")
            vq.issue(f"buffer_store_dwordx4 {vr(D+4)}, v26, s[24:27], {'s65' if rt < 4 else 's63'} offen offset:{(rt % 4)*1024} sc1", "O")
    stamp(a, opt, 7)
    if BQ:
        emit(dmaB(12, 32768) + dmaB(13, 32768 + 4096))
    if not opt.get("early14", 1):
        emit(dmaB(14, 0) + dmaB(15, 4096))
    for k in range(4):
        a(f"s_add_u32 s56, s38, {k + 1}")
        a("s_and_b32 s56, s56, 3")
        a("s_lshl_b32 s56, s56, 11")
        a(f"v_add_u32 v{2+k}, s56, v26")
    a("v_bfe_u32 v6, v1, 1, 4")
    a(f"v_lshlrev_b32 v6, {FS}, v6")
    a("v_and_b32 v7, 1, v1")
    a("v_lshl_add_u32 v6, v7, 2, v6")
    vq.need("G")
    for x in gate[1:] + gate2:
        a(x)
    srd(a, 16, 70, 2048 * 1024 * 2)
    a("v_add_u32 v7, s48, v26")
    a("v_add_u32 v8, 0x10000, v7")
    for j in range(3):
        a(f"s_xor_b32 s56, s38, {j + 1}")
        a("s_sub_u32 s57, s38, s56")
        a("s_sub_u32 s57, s57, 1")
        a("s_and_b32 s57, s57, 3")
        a("s_lshl_b32 s57, s57, 15")
        a("s_lshl_b32 s56, s56, 13")
        a("s_add_u32 s56, s56, s57")
        a(f"v_add_u32 v{9+j}, s56, v26")
    a("v_and_b32 v24, 15, v1")
    a("v_lshrrev_b32 v25, 4, v1")
    a("v_and_b32 v28, 1, v25")
    a("v_lshlrev_b32 v28, 5, v28")
    a("v_lshrrev_b32 v25, 1, v25")
    a("v_lshl_add_u32 v28, v25, 4, v28")
    FL = opt.get("fullline", 1)
    if FL:
        a("v_and_b32 v24, 7, v1")
        a("v_bfe_u32 v25, v1, 3, 1")
        a("v_lshl_add_u32 v28, v25, 6, v28")
    a("v_lshl_add_u32 v14, v24, 11, v28")
    if FL:
        a("v_add_u32 v15, 0x4000, v14")
    a("s_lshl_b32 s56, s50, 18")
    a("s_lshl_b32 s57, s38, 16")
    a("s_add_u32 s56, s56, s57")
    a("s_lshl_b32 s57, s51, 7")
    a("s_add_u32 s61, s56, s57")
    a(f"s_add_u32 s62, s61, {16*2048}")
    a("s_mov_b32 s60, 0")
    a("s_getpc_b64 s[66:67]")
    a.label("K_PC")
    a("s_add_u32 s66, s66, K_WAIT-K_PC")
    a("s_addc_u32 s67, s67, 0")
    D = opt.get("depth", 4)
    P2 = 128
    def acc2(i, ct): return P2 + (i * 4 + ct) * 4
    def fA(slot, i): return AQ[slot * 8 + i]
    def fB(s_, ct): return 64 + s_ * 16 + ct * 4
    order = list(range(8, 16)) + list(range(8))
    for ct in range(4):
        a(f"v_subrev_u32 v{16+ct}, 0x10000, v{32+ct}")
    vq.need("B8")
    for x in breads(order[0], fB(0, 0), False):
        put(x)
    if opt.get("atouch", 0):
        a("v_lshrrev_b32 v46, 3, v1")
        a("v_lshlrev_b32 v46, 13, v46")
        a("v_and_b32 v47, 7, v1")
        a("v_lshl_add_u32 v46, v47, 7, v46")
        a("s_and_b32 s56, s51, 7")
        a("s_lshl_b32 s56, s56, 10")
        a("v_add_u32 v46, s56, v46")
    EP = opt.get("early_poll", 0) and not NS
    if EP:
        vq.issue("buffer_load_dword v44, v6, s[24:27], s54 offen sc1", "E")
    def flag():
        a("s_mov_b64 exec, 1")
        a("buffer_store_dwordx2 v[38:39], v29, s[24:27], s55 offen sc1")
        a("s_mov_b64 exec, -1")
    FAST = opt.get("fast", 0)
    if not FAST and not NS:
        vq.need("O")
        flag()
        stamp(a, opt, 8)
        if EP:
            a("s_waitcnt vmcnt(1)"); vq.drained()
            a("v_cmp_ne_u32 vcc, -1, v44")
            a("s_lshr_b32 s57, vcc_lo, 1"); a("s_and_b32 s57, s57, vcc_lo"); a("s_or_b32 s60, s60, s57")
        if opt.get("fsleep"):
            a(f"s_sleep {opt['fsleep']}")
        if opt.get("fwait", 1):
            a("s_waitcnt vmcnt(0)"); vq.drained()
        PP = opt.get("pp", 0)
        if PP:
            want = sum(1 << (2*order[k]) for k in range(opt.get("pp_heads", 2)))
            a(f"s_and_b32 s57, s60, 0x{want:x}")
            a(f"s_cmp_eq_u32 s57, 0x{want:x}")
            a("s_cbranch_scc1 K_PPOK")
            for k in range(PP):
                a(f"buffer_load_dword v{48+k}, v6, s[24:27], s54 offen sc1")
                if k < PP - 1:
                    a(f"s_sleep {opt.get('pp_sleep', 3)}")
            a.label("K_PPL")
            for k in range(PP):
                a(f"s_waitcnt vmcnt({PP-1})")
                a(f"v_cmp_ne_u32 vcc, -1, v{48+k}")
                a("s_lshr_b32 s57, vcc_lo, 1"); a("s_and_b32 s57, s57, vcc_lo"); a("s_or_b32 s60, s60, s57")
                a(f"s_and_b32 s57, s60, 0x{want:x}")
                a(f"s_cmp_eq_u32 s57, 0x{want:x}")
                a("s_cbranch_scc1 K_PPOK")
                a(f"buffer_load_dword v{48+k}, v6, s[24:27], s54 offen sc1")
            a("s_branch K_PPL")
            a.label("K_PPOK")
    SC = " sc1" if opt.get("a_sc1", 1) else ""
    NT = opt.get("ntail", 3)
    N0 = 16 - NT
    FR = {}
    for n in range(N0):
        for i in range(8):
            FR[(n, i)] = (n, i)
    seq = [(n, i) for i in range(8) for n in range(N0, 16)]
    for k, f in enumerate(seq):
        FR[f] = (N0 + k // 8, k % 8)
    GRP = {}
    for f, (g, j) in FR.items():
        GRP.setdefault(g, {})[j] = f
    def areg(n, i):
        g, j = FR[(n, i)]
        return AQ[(g % 4) * 8 + j]
    def loadsA(g):
        ops = []
        for j in range(8):
            n, i = GRP[g][j]
            b = order[n]
            if g < N0:
                pre = [f"s_add_u32 s43, s53, {b*8192}"] if j == 0 else []
                so = "s43"
            else:
                pre = [f"s_add_u32 s{4 + m - N0}, s53, {order[m]*8192}" for m in range(N0, 16)] if (g == N0 and j == 0) else []
                so = f"s{4 + n - N0}"
            off = " offset:1024" if i % 2 else ""
            ops.append(pre + [("vm", f"buffer_load_dwordx4 {ar(areg(n, i))}, v{2 + i // 2}, s[24:27], {so} offen{off}{SC}", f"A{n}_{i}")])
        return ops
    def check(n):
        b = order[n]
        out = [f"s_bitcmp1_b32 s60, {2*b}", f"s_cbranch_scc1 K_RDY{n}", f"s_mov_b32 s59, {2*b}", "s_swappc_b64 s[68:69], s[66:67]", f"K_RDY{n}:"]
        return out
    def poll(g):
        return [("vm", f"buffer_load_dword v{40 + g % 4}, v6, s[24:27], s54 offen sc1", f"P{g}")]
    def upd(g):
        return [f"v_cmp_ne_u32 vcc, -1, v{40 + g % 4}"], ["s_lshr_b32 s57, vcc_lo, 1", "s_and_b32 s57, s57, vcc_lo", "s_or_b32 s60, s60, s57"]
    def gate_grp(g):
        out = []
        if NS:
            if g < N0:
                out += check(g)
            elif g == N0:
                for m in list(range(N0, 16)) + list(range(NS)):
                    out += check(m)
                out += [("vm", "buffer_load_dword v20, v6, s[24:27], s54 offen sc1", "GF")]
            return out
        if g < N0:
            out += check(g)
        elif g == N0:
            for m in range(N0, 16):
                out += check(m)
            out += [("vm", "buffer_load_dword v20, v6, s[24:27], s54 offen sc1", "GF")]
        if g + 3 <= N0 and g in PSET:
            out += poll(g)
        return out
    TA = opt.get("atouch", 0)
    PSET = opt.get("pset", [3])
    def touchA(n0, n1):
        b0 = order[n0]
        cnt = (n1 - n0) * 8
        return [f"s_add_u32 s56, s53, {b0*8192}", f"s_mov_b64 exec, 0x{(1 << cnt) - 1:x}" if cnt < 32 else "s_mov_b32 exec_hi, 0",
                ("vm", "buffer_load_dword v45, v46, s[24:27], s56 offen sc1", "T"), "s_mov_b64 exec, -1"]
    if FAST:
        vq.need("E")
        stamp(a, opt, 8)
        a("v_cmp_ne_u32 vcc, -1, v44")
        a("s_lshr_b32 s57, vcc_lo, 1"); a("s_and_b32 s60, s57, vcc_lo")
        want = (1 << (2*order[0])) | (1 << (2*order[1]))
        a(f"s_and_b32 s57, s60, 0x{want:x}")
        a(f"s_cmp_eq_u32 s57, 0x{want:x}")
        a("s_cbranch_scc0 K_SLOW")
        q0 = list(vq.q)
        for g in range(2):
            emit([poll(g)])
            emit(loadsA(g))
        flag()
        stamp(a, opt, 9)
        a("s_branch K_GO")
        a.label("K_SLOW")
        vq.q = q0
        flag()
    if NS:
        vq.need("O")
        stamp(a, opt, 8)
        if opt.get("spec_sleep"):
            a(f"s_sleep {opt['spec_sleep']}")
        FPOS = opt.get("fpos", 2)
        for g in range(NS):
            if g == FPOS:
                flag(); vq.q.append("F")
            emit(loadsA(g))
        if FPOS >= NS:
            flag(); vq.q.append("F")
        stamp(a, opt, 9)
    for g in range(0 if NS else 2):
        emit([gate_grp(g)])
        if g == 0:
            stamp(a, opt, 9)
        emit(loadsA(g))
    if FAST:
        a.label("K_GO")
    def redw(i):
        k = i // 2
        return [f"ds_write_b128 {'v7' if k < 2 else 'v8'}, {vr(acc2(i, ct))} offset:{(k % 2)*32768 + (i % 2)*4096 + ct*1024}" for ct in range(4)]
    def Bop(n, ct):
        b = order[n]
        return vr(fB(n % 2, ct)) if b >= 8 else ar(RES[b] + ct * 4)
    issued = set()
    NPOLL = opt.get("npoll", 5)
    for n in range(N0 if NS else 0):
        if n < NS:
            lq.need(regs_of(Bop(n, 0)))
            for i in range(8):
                vq.need(f"A{n}_{i}")
                a(f"{MF} v[48:51], {Bop(n, 0)}, {ar(areg(n, i))}, {'0' if i == 0 else 'v[48:51]'}")
            a("v_cmp_u_f32 vcc, v48, v48")
            a(f"s_cbranch_vccz K_VOK{n}")
            if opt.get("stamps"):
                a("v_readlane_b32 s56, v31, 22")
                a("s_add_u32 s56, s56, 1")
                a("v_writelane_b32 v31, s56, 22")
            a(f"s_mov_b32 s59, {2*order[n]}")
            a("s_swappc_b64 s[68:69], s[66:67]")
            for op in loadsA(n):
                for x in op:
                    a(x[1] if isinstance(x, tuple) else x)
            a("s_waitcnt vmcnt(0)")
            a.label(f"K_VOK{n}")
        else:
            vq.need(f"A{n}_7")
        if n == 0:
            stamp(a, opt, 12)
        if opt.get("pstamps"):
            stamp(a, opt, 32 + n)
        ms = []
        for i in range(8):
            for ct in range(4):
                c = vr(acc2(i, ct))
                ms.append(f"{MF} {c}, {Bop(n, ct)}, {ar(areg(n, i))}, {'0' if n == 0 else c}")
        fill = {}
        if 1 <= n <= NPOLL:
            u1, u2 = upd(n - 1)
            fill[0] = [("needvm", [f"P{n-1}"])] + u1; fill[1] = u2
        if n < NPOLL:
            fill.setdefault(2, []).extend(poll(n))
        if n + 1 < 8:
            spread(fill, [[x] for x in breads(order[n + 1], fB((n + 1) % 2, 0), False)], 4, 20)
        gs = [g for g in range(NS, n + 4) if g not in issued] if n >= 1 else []
        items = []
        for g in gs:
            items += [gate_grp(g)] + loadsA(g); issued.add(g)
        if items:
            spread(fill, items, 3, 30)
        weave(ms, fill)
    for n in range(0 if NS else N0):
        FINE = n < opt.get("fine", 2)
        if not FINE:
            vq.need(f"A{n}_7")
        else:
            vq.need(f"A{n}_0")
        if n == 0:
            stamp(a, opt, 12)
        if opt.get("pstamps"):
            stamp(a, opt, 32 + n)
        ms = []
        for i in range(8):
            for ct in range(4):
                c = vr(acc2(i, ct))
                ms.append(f"{MF} {c}, {Bop(n, ct)}, {ar(areg(n, i))}, {'0' if n == 0 else c}")
        fill = {}
        if n + 3 <= N0 and n in PSET:
            u1, u2 = upd(n)
            fill[0] = u1; fill[1] = u2
        if n + 1 < 8:
            spread(fill, [[x] for x in breads(order[n + 1], fB((n + 1) % 2, 0), False)], 4, 20)
        if n == 0:
            spread(fill, [gate_grp(2)] + loadsA(2), 2, 16)
            spread(fill, [gate_grp(3)] + loadsA(3), 16, 31)
            if TA:
                fill.setdefault(31, []).extend(touchA(4, TA))
        else:
            spread(fill, [gate_grp(n + 3)] + loadsA(n + 3), 2, opt.get("lspan", 22))
        if TA and n + TA < 16:
            fill.setdefault(31, []).extend(touchA(n + TA, n + TA + 1))
        if FINE:
            for i in range(1, 8):
                fill.setdefault(4 * i - 1, []).append(("needvm", [f"A{n}_{i}"]))
        weave(ms, fill)
    if opt.get("pstamps"):
        stamp(a, opt, 32 + N0)
    gf = [("needvm", ["GF"]), "v_mov_b32 v22, v20", "v_permlane16_swap_b32 v20, v22"]
    for r in (20, 22):
        gf += [f"v_sub_f32 v{r+1}, 1.0, v{r}", f"v_cvt_pk_bf16_f32 v{r+1}, v{r+1}, v{r+1}", f"v_and_b32 v{r+1}, 0xffff0000, v{r+1}"]
    gf += [["s_cmp_lt_u32 s38, 2", "s_cbranch_scc1 K_NOSWAP", "v_swap_b32 v20, v21", "v_swap_b32 v22, v23", "K_NOSWAP:"]]
    R = 128
    rds = [f"ds_read_b128 {vr(R + k*32 + j*4)}, v{9+k} offset:{j*1024}" for k in range(3) for j in range(8)]
    for i in range(8):
        vq.need(*[f"A{n}_{i}" for n in range(N0, 16)])
        ms = [f"{MF} {vr(acc2(i, ct))}, {Bop(n, ct)}, {ar(areg(n, i))}, {vr(acc2(i, ct))}" for ct in range(4) for n in range(N0, 16)]
        fill = {}
        if i == 0:
            spread(fill, [x if isinstance(x, list) else [x] for x in gf], 0, len(ms))
        if 1 <= i <= 6:
            spread(fill, [[w] for w in redw(i - 1)], min(2, len(ms) - 4), len(ms))
        if i == 7:
            stamp(a, opt, 14)
            a("s_waitcnt lgkmcnt(0)")
            if opt.get("pstamps"): stamp(a, opt, 17)
            a("s_barrier")
            if opt.get("pstamps"): stamp(a, opt, 18)
            spread(fill, [[r] for r in rds], 0, len(ms))
        weave(ms, fill)
    OWN = acc2(6, 0)
    if opt.get("thr"):
        a("s_memrealtime s[98:99]")
        a("s_waitcnt lgkmcnt(0)")
        a("s_sub_u32 s98, s98, s96")
        a("s_cmp_eq_u32 s97, 0")
        a("s_cselect_b32 s98, s98, 0")
        a(f"s_cmp_gt_u32 s98, {int(opt['thr']*100)}")
        a("s_cbranch_scc1 K_END")
    if opt.get("pstamps"): stamp(a, opt, 19)
    a("s_waitcnt lgkmcnt(15)")
    for j in range(0, 32, 2):
        a(f"v_pk_add_f32 {vr(OWN+j, 2)}, {vr(OWN+j, 2)}, {vr(R+j, 2)}")
    for j in range(0, 32, 2):
        gsel = 20 if j < 16 else 22
        a(f"v_pk_mul_f32 {vr(OWN+j, 2)}, {vr(OWN+j, 2)}, {vr(gsel, 2)} op_sel_hi:[1,0]")
    a("s_waitcnt lgkmcnt(0)")
    for pr in range(4):
        for j in range(8 * pr, 8 * pr + 8, 2):
            a(f"v_pk_add_f32 {vr(R+32+j, 2)}, {vr(R+32+j, 2)}, {vr(R+64+j, 2)}")
        for j in range(8 * pr, 8 * pr + 8, 2):
            gsel = 20 if j < 16 else 22
            a(f"v_pk_fma_f32 {vr(OWN+j, 2)}, {vr(R+32+j, 2)}, {vr(gsel, 2)}, {vr(OWN+j, 2)} op_sel:[0,1,0] op_sel_hi:[1,1,1]")
        b = 64 + 4 * pr
        for j in range(4):
            a(f"v_cvt_pk_bf16_f32 v{b+j}, v{OWN+8*pr+2*j}, v{OWN+8*pr+2*j+1}")
        a(f"v_permlane16_swap_b32 v{b}, v{b+2}")
        a(f"v_permlane16_swap_b32 v{b+1}, v{b+3}")
        if not FL:
            a(f"buffer_store_dwordx4 {vr(b)}, v14, s[16:19], {'s61' if pr < 2 else 's62'} offen offset:{(pr % 2)*64}{opt.get('ost', ' sc1')}")
        elif pr % 2 == 1:
            for j in range(4):
                a(f"v_mov_b32 v{80+j}, v{b-4+j}")
            for j in range(4):
                a(f"v_mov_b32_dpp v{b-4+j}, v{b+j} row_ror:8 row_mask:0xf bank_mask:0xc")
            for j in range(4):
                a(f"v_mov_b32_dpp v{b+j}, v{80+j} row_ror:8 row_mask:0xf bank_mask:0x3")
            so = 's61' if pr < 2 else 's62'
            a(f"buffer_store_dwordx4 {vr(b-4)}, v14, s[16:19], {so} offen{opt.get('ost', ' sc1')}")
            a(f"buffer_store_dwordx4 {vr(b)}, v15, s[16:19], {so} offen{opt.get('ost', ' sc1')}")
    stamp(a, opt, 15)
    if opt.get("probe"):
        a(f"s_cmp_gt_u32 s97, {int(opt['probe'][1]*100)}")
        a("s_cbranch_scc0 K_END")
        a.label("K_SPIN")
        a("s_memrealtime s[98:99]")
        a("s_waitcnt lgkmcnt(0)")
        a("s_sub_u32 s98, s98, s96")
        a("s_cmp_lt_u32 s98, 7000")
        a("s_cbranch_scc1 K_SPIN")
    stamp_out(a, opt, 0)
    if opt.get("dbgout"):
        a(f"s_cmp_eq_u32 s2, {opt.get('dbgwg', 0)}")
        a("s_cbranch_scc0 K_END")
        a("s_cmp_eq_u32 s38, 0")
        a("s_cbranch_scc0 K_END")
        a("v_readlane_b32 s56, v31, 30")
        for k, sl in enumerate([2, 32, 36, 3, 7, 12, 14, 29]):
            a(f"v_readlane_b32 s57, v31, {sl}")
            a("s_sub_u32 s57, s57, s56")
            a(f"v_writelane_b32 v30, s57, {k}")
        a("v_lshlrev_b32 v27, 3, v1")
        a("s_mov_b64 exec, 0xff")
        a("buffer_store_dword v30, v27, s[28:31], 0 offen offset:4")
    a.label("K_END")
    a("s_endpgm")
    a.label("K_WAIT")
    a("buffer_load_dword v44, v6, s[24:27], s54 offen sc1")
    if opt.get("stamps"):
        a("v_readlane_b32 s56, v31, 23")
        a("s_add_u32 s56, s56, 1")
        a("v_writelane_b32 v31, s56, 23")
    a("s_waitcnt vmcnt(0)")
    a("v_cmp_ne_u32 vcc, -1, v44")
    a("s_lshr_b32 s57, vcc_lo, 1"); a("s_and_b32 s57, s57, vcc_lo"); a("s_or_b32 s60, s60, s57")
    a("s_bitcmp1_b32 s60, s59")
    if opt.get("wsleep"):
        a("s_cbranch_scc1 K_LAST")
        a(f"s_sleep {opt['wsleep']}")
        a("s_branch K_WAIT")
    else:
        a("s_cbranch_scc0 K_WAIT")
    a.label("K_LAST")
    a("s_setpc_b64 s[68:69]")

def build(opt):
    a = Asm()
    gen(a, opt)
    out = HEADER + "; @launch grid=(256,1,1) block=(256,1,1) lds=163840\n"
    out += '.amdgcn_target "amdgcn-amd-amdhsa--gfx950"\n.text\n' + a.text() + '.section .rodata,"a"\n' + kd(KNAME, 512, 100 if opt.get('thr') or opt.get('probe') else 96, 256)
    return out

if __name__ == "__main__":
    opt = {}
    for kv in sys.argv[2:]:
        k, v = kv.split("=")
        try:
            v = eval(v)
        except Exception:
            pass
        opt[k] = v
    open(sys.argv[1], "w").write(build(opt))
```

```python
import sys, struct
from asmlib import Asm, Ins, regs_of
from gen import f2u, LdsQ, kd, srd, stamp, stamp_out, HEADER, WS_DIAG, WS_SIZE, WS_SLOT, WS_G, LOG2E, EPS

MF = "v_mfma_f32_16x16x32_bf16"
WS_WOF = 16 << 20
WS_TOT = 20 << 20
KNAME = "gated_mix__linear_attn_block__linear_attn_block__prompt_kernel"
def vr(b, n=4): return f"v[{b}:{b+n-1}]"
def ar(b, n=4): return f"a[{b}:{b+n-1}]"

class VmQ:
    def __init__(self, a):
        self.a = a; self.q = []
    def issue(self, text, tag):
        self.a(text); self.q.append(tag)
    def count(self, tags):
        idx = -1
        for i, t in enumerate(self.q):
            if t in tags:
                idx = i
        if idx < 0:
            return None
        return min(len(self.q) - idx - 1, 63)
    def need(self, *tags, extra=""):
        n = self.count(tags)
        if n is None:
            if extra:
                self.a(f"s_waitcnt {extra}")
            return
        self.a(f"s_waitcnt vmcnt({n}) {extra}".rstrip())
        self.q = self.q[len(self.q) - n:] if n else []
    def drained(self):
        self.q = []

def gen(a, opt):
    global stamp
    _stamp = stamp
    def stamp(a_, opt_, slot, **kw):
        if opt.get("probe") and opt["probe"][0] == slot and not kw.get("real"):
            a("s_memrealtime s[98:99]")
            a("s_waitcnt lgkmcnt(0)")
            a("s_sub_u32 s97, s98, s96")
        return _stamp(a_, opt_, slot, **kw)
    lq = LdsQ(a); vq = VmQ(a)
    ABL = [""]
    def put(x):
        if ABL[0] and isinstance(x, tuple):
            if "x" in ABL[0] and x[0] == "ds" and "b128" in x[1]: return
            if "w" in ABL[0] and x[0] == "ds" and "tr_b16" in x[1]: return
            if "d" in ABL[0] and x[0] == "vm" and x[2][0] in "XW": return
            if "X" in ABL[0] and x[0] == "vm" and x[2][0] == "X": return
        if isinstance(x, tuple):
            if x[0] == "ds":
                lq.issue(x[1])
            elif x[0] == "vm":
                vq.issue(x[1], x[2])
            elif x[0] == "needvm":
                vq.need(*x[1])
            elif x[0] == "needds":
                lq.need(x[1])
        else:
            a(x)
    def weave(mf, fill):
        for g, m in enumerate(mf):
            lq.need(Ins(m).srcAB)
            a(m)
            for x in fill.get(g, []):
                put(x)
    def spread(fill, items, start, end):
        n = len(items)
        for i, it in enumerate(items):
            fill.setdefault(start + (i * (end - start)) // n, []).extend(it)

    XB = [0, 32768]
    WB = [65536 + 24576 * s for s in range(3)]
    EX = 139264
    EX2 = EX + 16384
    ACC = 64
    def acc(rt, ct): return ACC + (rt * 6 + ct) * 4
    def fW(st, ct, ks): return 48 * (st % 2) + (ct * 2 + ks) * 4
    def fX(e, ks): return 96 + e * 8 + ks * 4
    def fXR(rt, ks): return 112 + rt * 8 + ks * 4
    a.raw(f".globl {KNAME}\n.p2align 8\n.type {KNAME},@function")
    a.label(KNAME)
    if opt.get("probe_first"):
        a("s_memrealtime s[96:97]")
        a("s_waitcnt lgkmcnt(0)")
    a("s_cmp_ge_u32 s2, 256")
    a("s_cbranch_scc1 K_END")
    if opt.get("badmap"):
        a("s_lshr_b32 s3, s2, 5")
        a("s_and_b32 s2, s2, 31")
        a("s_lshl_b32 s2, s2, 3")
        a("s_or_b32 s2, s2, s3")
    a("s_load_dwordx4 s[4:7], s[0:1], 0")
    a("s_load_dwordx2 s[8:9], s[0:1], 32")
    a("s_load_dwordx4 s[68:71], s[0:1], 48")
    a("s_load_dwordx4 s[12:15], s[0:1], 64")
    a("s_load_dwordx2 s[74:75], s[0:1], 16")
    a("s_load_dwordx2 s[76:77], s[0:1], 40")
    if (opt.get("thr") or opt.get("probe")) and not opt.get("probe_first"):
        a("s_memrealtime s[96:97]")
    if opt.get("stamps"):
        a("v_mov_b32 v31, 0")
    stamp(a, opt, 30, real=True)
    stamp(a, opt, 0)
    a("v_lshrrev_b32 v21, 6, v0")
    a("v_and_b32 v1, 63, v0")
    a("v_readfirstlane_b32 s38, v21")
    a("s_and_b32 s56, s2, 7")
    a("s_lshr_b32 s57, s2, 3")
    if opt.get("k1map", "A") == "A":
        a("s_and_b32 s36, s57, 7")
        a("s_lshr_b32 s58, s57, 3")
        a("s_lshl_b32 s37, s56, 2")
        a("s_add_u32 s37, s37, s58")
    else:
        a("s_and_b32 s36, s56, 1")
        a("s_lshl_b32 s36, s36, 2")
        a("s_and_b32 s58, s57, 3")
        a("s_add_u32 s36, s36, s58")
        a("s_lshr_b32 s37, s56, 1")
        a("s_lshl_b32 s37, s37, 3")
        a("s_lshr_b32 s58, s57, 2")
        a("s_add_u32 s37, s37, s58")
    a("s_and_b32 s39, s38, 1")
    a("s_lshr_b32 s40, s38, 1")
    a("s_and_b32 s41, s37, 15")
    a("s_lshr_b32 s42, s37, 4")
    a("v_lshrrev_b32 v21, 3, v1")
    a("v_and_b32 v22, 7, v1")
    a("v_lshrrev_b32 v23, 4, v1")
    a("v_and_b32 v24, 1, v23")
    a("v_lshlrev_b32 v24, 2, v24")
    a("v_xor_b32 v24, v22, v24")
    a("v_lshlrev_b32 v24, 4, v24")
    a("v_mul_u32_u24 v25, 6144, v21")
    a("v_add_u32 v24, v24, v25")
    a("v_xor_b32 v25, 32, v24")
    a("s_mul_i32 s56, s38, 6")
    a("s_lshl_b32 s59, s41, 7")
    for i in range(6):
        a(f"s_add_u32 s57, s56, {i}")
        a("s_lshr_b32 s58, s57, 3")
        a("s_and_b32 s57, s57, 7")
        a(f"s_mul_i32 s57, s57, {8*6144}")
        a("s_lshl_b32 s58, s58, 11")
        a("s_add_u32 s57, s57, s58")
        a("s_add_u32 s57, s57, s59")
        if i % 4:
            a(f"s_sub_u32 s57, s57, {(i % 4) * 1024}")
        a(f"v_add_u32 v{10+i}, s57, {'v24' if i % 2 == 0 else 'v25'}")
    a("v_xor_b32 v24, v22, v23")
    a("v_lshlrev_b32 v24, 4, v24")
    a("v_lshl_add_u32 v24, v21, 11, v24")
    a("s_lshl_b32 s56, s36, 19")
    a("s_lshl_b32 s57, s40, 18")
    a("s_add_u32 s56, s56, s57")
    a("s_lshl_b32 s57, s39, 16")
    a("s_add_u32 s56, s56, s57")
    a("v_add_u32 v2, s56, v24")
    a("v_xor_b32 v25, 64, v2")
    for i in range(1, 8):
        src = "v2" if i % 2 == 0 else "v25"
        a(f"v_add_u32 v{2+i}, {(i % 4)*16384 + (i // 4)*131072 - (i % 4) * 1024}, {src}")
    a("s_lshl_b32 s48, s38, 13")
    a("s_lshl_b32 s45, s40, 14")
    a("s_lshl_b32 s57, s39, 12")
    a("s_add_u32 s45, s45, s57")
    a("s_mov_b32 s72, 0")
    a("s_mul_i32 s49, s38, 6144")
    a("s_mov_b32 s43, 0")
    a("s_mov_b32 s44, 0")
    a("s_waitcnt lgkmcnt(0)")
    srd(a, 16, 4, 2048 * 1024 * 2)
    a("s_cmp_eq_u32 s42, 0")
    a("s_cselect_b32 s56, s6, s8")
    a("s_cselect_b32 s57, s7, s9")
    srd(a, 20, 56, 1024 * 3072 * 2)
    stamp(a, opt, 10)

    def dmaXh(t, h):
        ops = []
        so = "s43" if h == 0 else "s72"
        for i in range(4 * h, 4 * h + 4):
            pre = [f"s_add_u32 m0, s45, {XB[t % 2] + h * 8192}"] if i % 4 == 0 else []
            off = f" offset:{(i % 4) * 1024}" if i % 4 else ""
            ops.append(pre + [("vm", f"buffer_load_dwordx4 v{2+i}, s[16:19], {so} offen{off}{opt.get('dpol', '')} lds", f"X{t}{'ab'[h]}")])
        ops[3].append(f"s_add_u32 {so}, {so}, 128")
        return ops
    def dmaX(t):
        return dmaXh(t, 0) + dmaXh(t, 1)
    def dmaW(t):
        ops = []
        for i in range(6):
            pre = [f"s_add_u32 m0, s49, {WB[t % 3] + (i // 4) * 4096}"] if i % 4 == 0 else []
            off = f" offset:{(i % 4) * 1024}" if i % 4 else ""
            ops.append(pre + [("vm", f"buffer_load_dwordx4 v{10+i}, s[20:23], s44 offen{off}{opt.get('dpol', '')} lds", f"W{t}")])
        ops[5].append(f"s_add_u32 s44, s44, {64*6144}")
        return ops
    def emit(groups):
        for op in groups:
            for x in op:
                put(x)
    def xfirst():
        m = opt.get("xf", 0x0f)
        a("v_lshlrev_b32 v38, 7, v1")
        a("s_lshl_b32 s58, s2, 2")
        a("s_add_u32 s58, s58, s38")
        a("s_lshl_b32 s58, s58, 12")
        a(f"s_mov_b32 exec_lo, 0x{m | (m << 16):x}")
        a("s_mov_b32 exec_hi, 0")
        vq.issue("buffer_load_dword v39, v38, s[16:19], s58 offen", "T")
        a("s_mov_b64 exec, -1")
    if opt.get("xf", 0x0f) and opt.get("xf_pos", 0) == 0: xfirst()
    emit(dmaW(0))
    if opt.get("xf", 0x0f) and opt.get("xf_pos", 0) == 1: xfirst()
    emit(dmaX(0))
    if opt.get("xf", 0x0f) and opt.get("xf_pos", 0) == 2: xfirst()
    LX, LW = opt.get("lx", 0), opt.get("lw", 0)
    if LX or LW:
        a("s_lshr_b32 s58, s2, 3")
        a("s_lshl_b32 s58, s58, 2")
        a("s_add_u32 s58, s58, s38")
    def ltw():
        a("v_bfe_u32 v40, v1, 2, 2")
        a("v_lshlrev_b32 v40, 11, v40")
        a("v_and_b32 v41, 3, v1")
        a("v_lshl_add_u32 v40, v41, 7, v40")
        a(f"v_mul_u32_u24 v41, {128*6144}, v23")
        a("v_add_u32 v40, v40, v41")
        a(f"s_add_u32 s56, s58, {opt.get('lw0', 64)}")
        a("s_mul_i32 s56, s56, 6144")
        a("s_and_b32 s57, s41, 12")
        a("s_lshl_b32 s57, s57, 7")
        a("s_add_u32 s56, s56, s57")
        m = sum(0xfff << (16 * k) for k in range(LW))
        a(f"s_mov_b32 exec_lo, 0x{m & 0xffffffff:x}")
        a(f"s_mov_b32 exec_hi, 0x{m >> 32:x}")
        vq.issue("buffer_load_dword v39, v40, s[20:23], s56 offen", "T")
        a("s_mov_b64 exec, -1")
    def ltx():
        a("v_and_b32 v42, 15, v1")
        a("v_lshlrev_b32 v42, 11, v42")
        a("v_lshl_add_u32 v42, v23, 7, v42")
        a("s_lshl_b32 s56, s58, 15")
        m = (1 << (16 * LX)) - 1
        a(f"s_mov_b32 exec_lo, 0x{m & 0xffffffff:x}")
        a(f"s_mov_b32 exec_hi, 0x{m >> 32:x}")
        vq.issue("buffer_load_dword v39, v42, s[16:19], s56 offen offset:128", "T")
        a("s_mov_b64 exec, -1")
    if LW: ltw()
    if LX: ltx()
    if opt.get("pre0"):
        emit(dmaW(1))
    stamp(a, opt, 11)
    srd(a, 24, 14, WS_TOT)
    srd(a, 28, 12, 256)
    srd(a, 32, 68, 2048)
    a("v_lshlrev_b32 v26, 4, v1")
    a("s_lshl_b32 s46, s37, 1")
    a("s_add_u32 s46, s46, s40")
    a("s_lshl_b32 s47, s36, 1")
    a("s_add_u32 s47, s47, s39")
    a("s_lshl_b32 s56, s47, 7")
    a("s_lshl_b32 s57, s46, 1")
    a("s_add_u32 s56, s56, s57")
    a("s_lshl_b32 s60, s56, 11")
    FS = opt.get("fs", 3)
    GB = WS_G if FS == 3 else WS_WOF
    a(f"s_lshl_b32 s55, s56, {FS - 1}")
    a(f"s_add_u32 s55, s55, {GB}")
    a("s_lshl_b32 s56, s47, 19")
    a("s_lshl_b32 s57, s46, 13")
    a("s_add_u32 s65, s56, s57")
    a("s_lshl_b32 s56, s37, 17")
    a("s_lshl_b32 s57, s38, 12")
    a("s_add_u32 s61, s56, s57")
    a(f"s_add_u32 s61, s61, {WS_SLOT}")
    a("s_lshl_b32 s57, s36, 14")
    a("s_add_u32 s62, s61, s57")
    a("v_lshrrev_b32 v27, 4, v1")
    a("v_lshlrev_b32 v27, 4, v27")
    a("v_and_b32 v30, 7, v1")
    a("v_lshl_add_u32 v30, v30, 14, v27")
    a("s_lshl_b32 s63, s37, 3")
    for i in range(4):
        a(f"v_mov_b32 v{32+i}, -1")
    a("v_lshlrev_b32 v38, 7, v1")
    a("v_mov_b32 v28, 1")
    if opt.get("thr"):
        a("s_getreg_b32 s56, hwreg(HW_REG_XCC_ID)")
        a("s_sub_u32 s56, s56, s2")
        a("s_and_b32 s56, s56, 7")
        a("s_mul_i32 s57, s56, s56")
        a("s_lshl_b32 s57, s57, 20")
        a("s_lshl_b32 s56, s56, 12")
        a("s_add_u32 s56, s56, s57")
        a("s_lshl_b32 s99, s56, 3")
        a("s_add_u32 s99, s99, 8")
        a("s_add_u32 s56, s56, 1")
        a("v_mov_b32 v28, s56")
    a("v_mov_b32 v29, 0")
    sent = [[("vm", "buffer_store_dwordx4 v[32:35], v26, s[24:27], s62 offen sc1", "S")],
            [("vm", "buffer_store_dwordx4 v[32:35], v26, s[24:27], s62 offen offset:1024 sc1", "S")],
            [("vm", "buffer_store_dwordx4 v[32:35], v27, s[24:27], s62 offen offset:2048 sc1", "S")],
            [("vm", "buffer_store_dwordx2 v[32:33], v29, s[24:27], s55 offen sc1", "S")]]
    NS = opt.get("spec", 0)
    if NS:
        a("s_lshl_b32 s56, s2, 2")
        a("s_add_u32 s56, s56, s38")
        a("s_lshr_b32 s57, s56, 4")
        a("s_lshl_b32 s57, s57, 17")
        a("s_and_b32 s56, s56, 15")
        a(f"s_mul_i32 s56, s56, {NS*512}")
        a("s_add_u32 s3, s56, s57")
        a("s_add_u32 s3, s3, 65536")
        for k in range(NS // 2):
            sent.append([("vm", f"buffer_store_dwordx4 v[32:35], v26, s[24:27], s3 offen offset:{k*1024} sc1", "S")])
    if opt.get("sent_pro"):
        emit(sent)
    a("v_and_b32 v21, 15, v1")
    a("v_lshrrev_b32 v22, 4, v1")
    a("v_bfe_u32 v23, v1, 1, 3")
    a("v_xor_b32 v23, v23, v22")
    a("v_lshlrev_b32 v23, 4, v23")
    a("v_lshl_add_u32 v23, v21, 7, v23")
    a("s_lshl_b32 s56, s39, 14")
    a("v_add_u32 v16, s56, v23")
    a("v_xor_b32 v17, 64, v16")
    a("v_bfe_u32 v23, v1, 2, 2")
    a("v_lshl_add_u32 v24, v22, 3, v23")
    a("v_lshlrev_b32 v24, 7, v24")
    a("v_bfe_u32 v25, v1, 1, 1")
    a("s_lshl_b32 s56, s40, 2")
    a("v_or_b32 v25, s56, v25")
    a("v_and_b32 v36, 2, v23")
    a("v_lshlrev_b32 v36, 1, v36")
    a("v_xor_b32 v25, v25, v36")
    a("v_and_b32 v36, 1, v22")
    a("v_lshlrev_b32 v36, 1, v36")
    a("v_xor_b32 v25, v25, v36")
    a("v_lshl_add_u32 v24, v25, 4, v24")
    a("v_and_b32 v36, 1, v1")
    a("v_lshl_add_u32 v24, v36, 3, v24")
    ES = opt.get("es", 1)
    if ES:
        a("s_lshl_b32 s56, s39, 5")
        a("v_xor_b32 v24, s56, v24")
    a("v_xor_b32 v25, 32, v24")
    for s in range(3):
        a(f"v_add_u32 v{18+2*s}, {WB[s]}, v24")
        a(f"v_add_u32 v{19+2*s}, {WB[s]}, v25")
    a(f"v_mov_b32 v36, 0x{f2u(EPS):08x}")
    a(f"v_mov_b32 v37, v36")
    for rt in range(8):
        for r in range(0, 16, 2):
            a(f"v_pk_mov_b32 {vr(acc(rt, 0) + r, 2)}, v[36:37], v[36:37]")
    if opt.get("wpace", 6):
        a("s_lshl_b32 s56, s2, 2")
        a("s_add_u32 s56, s56, s38")
        a("s_bitcmp1_b32 s56, 3")
        a("s_cselect_b32 s84, s8, s6")
        a("s_cselect_b32 s85, s9, s7")
        a("s_and_b32 s85, s85, 0xffff")
        a(f"s_mov_b32 s86, {1024*3072*2}")
        a("s_mov_b32 s87, 0x00020000")
        a("s_lshr_b32 s57, s56, 4")
        a(f"s_add_u32 s57, s57, {64*opt.get('wpace', 6)}")
        a("s_mul_i32 s73, s57, 6144")
        a("s_and_b32 s57, s56, 7")
        a("s_mul_i32 s57, s57, 768")
        a("s_add_u32 s73, s73, s57")
        pass
    PRE = opt.get("pre", "W1")
    pre_list = {"none": [], "W1": dmaW(1), "W1X1": dmaW(1) + dmaX(1)}[PRE]
    if opt.get("pre0"):
        pre_list = pre_list[6:]
    if opt.get("pre_first"):
        emit(pre_list); pre_list = []
    ET = opt.get("etouch", 1)
    if ET == 1:
        a("s_lshl_b32 s56, s2, 2")
        a("s_add_u32 s56, s56, s38")
        a("s_lshr_b32 s57, s56, 4")
        a("s_lshl_b32 s57, s57, 3")
        a("s_and_b32 s58, s56, 7")
        a("s_add_u32 s57, s57, s58")
        a(f"s_add_u32 s57, s57, {opt.get('et_row0', 0)}")
        a(f"s_cmp_lt_u32 s57, {64*opt.get('wpace', 6)}")
        a("s_cselect_b32 s57, s57, 1024")
        a("s_mul_i32 s57, s57, 6144")
        a("v_lshlrev_b32 v40, 10, v1")
        a("s_mov_b64 exec, 0x3f")
        vq.issue("buffer_load_dword v39, v40, s[84:87], s57 offen offset:384", "T")
        a("s_mov_b64 exec, -1")
    if ET == 2:
        for st in range(opt.get("et0", 2), opt.get("wpace", 6)):
            a(f"s_sub_u32 s57, s73, {(opt.get('wpace', 6) - st)*64*6144}")
            a("s_mov_b64 exec, 0x3f")
            vq.issue("buffer_load_dword v39, v38, s[84:87], s57 offen", "T")
            a("s_mov_b64 exec, -1")
    if opt.get("ctouch", 1):
        a("s_getpc_b64 s[56:57]")
        a.label("K_CT")
        a(f"s_sub_u32 s56, s56, K_CT-{KNAME}")
        a("s_subb_u32 s57, s57, 0")
        a("s_mov_b64 s[88:89], s[56:57]")
        a("s_lshr_b32 s58, s2, 3")
        a("s_lshl_b32 s58, s58, 2")
        a("s_add_u32 s58, s58, s38")
        a("s_lshl_b32 s79, s58, 7")
        a("s_mul_i32 s58, s58, 384")
        a("v_add_u32 v40, s58, v38")
        a(f"v_min_u32 v40, K_LAST-{KNAME}, v40")
        a("s_mov_b64 exec, 7")
        vq.issue("global_load_dword v39, v40, s[56:57]", "T")
        a("s_mov_b64 exec, -1")
    emit(pre_list)
    if opt.get("xsp", 0x30):
        m = opt.get("xsp", 0x30)
        emit([[f"s_mov_b32 exec_lo, 0x{m | (m << 16):x}", "s_mov_b32 exec_hi, 0", ("vm", "buffer_load_dword v39, v38, s[16:19], s60 offen", "T"), "s_mov_b64 exec, -1"]])
    stamp(a, opt, 1)

    def rdW(t):
        ops = []
        for ct in range(6):
            for ks in range(2):
                for sub in range(2):
                    r = fW(t, ct, ks) + 2 * sub
                    ops.append(("ds", f"ds_read_b64_tr_b16 {ar(r, 2)}, v{18 + 2*(t % 3) + (ct & 1)} offset:{(ct >> 1)*8192 + ks*4096 + sub*512}"))
        return ops
    def rdX(t, rt, dst):
        return [("ds", f"ds_read_b128 {ar(dst(ks))}, v{16+ks} offset:{XB[t % 2] + rt*2048}") for ks in range(2)]
    def mf(t, rt, cts, X):
        out = []
        for ct in cts:
            for ks in range(2):
                W = ar(fW(t, ct, ks))
                A, B = (W, ar(X(ks))) if ct < 2 else (ar(X(ks)), W)
                c = vr(acc(rt, ct))
                cin = "0" if (t == 0 and ks == 0 and ct >= 4) else c
                out.append(f"{MF} {c}, {A}, {B}, {cin}")
        return out
    DEFER = opt.get("defer", 2)
    HST = opt.get("hst", 8)
    DSP = opt.get("dma_per_block", 2)
    IL = opt.get("il", 1)
    def cts_of(t):
        if IL and t == 15:
            return [2, 3]
        return [2, 3, 4, 5] if t >= 16 - DEFER else [0, 1, 2, 3, 4, 5]
    def Xreg(t, rt): return (lambda ks: fXR(rt, ks)) if t == 15 else (lambda ks: fX(rt % 2, ks))
    def blocks2(seq, pend, wreads, front=None, valu=()):
        CAP = opt.get("cap", 2)
        VC = opt.get("vcost", 2)
        nbs = [len(cts_of(t)) * 2 for t, _ in seq]
        starts = [sum(nbs[:i]) for i in range(len(seq))]
        G = sum(nbs)
        load = [0] * (G + 64)
        fill = {}
        def cost(x):
            if isinstance(x, tuple):
                return VC if x[0] == "vm" else (1 if x[0] == "ds" else 0)
            return 0 if x.endswith(":") else 1
        def place(g, grp, lim=None):
            c = sum(cost(x) for x in grp)
            lim = G - 1 if lim is None else lim
            g0 = g
            while g < lim and load[g] + min(c, CAP) > CAP:
                g += 1
            g = min(g, lim)
            load[g] += c
            fill.setdefault(g, []).extend(grp)
            return g
        if front:
            fill[0] = list(front); load[0] = 99
        for n, (t, rt) in enumerate(seq):
            if rt < 7: nx = rdX(t, rt + 1, Xreg(t, rt + 1))
            elif t < 15: nx = rdX(t + 1, 0, Xreg(t + 1, 0))
            else: nx = []
            for k, x in enumerate(nx):
                fill.setdefault(starts[n] + k, []).append(x); load[starts[n] + k] += 1
            if n: load[starts[n] - 1] += 1
        stream = []
        for grp in pend:
            atomic = any(isinstance(x, str) and ("exec" in x or x.endswith(":") or "cbranch" in x) for x in grp)
            if atomic: stream.append((grp, True))
            else:
                for x in grp: stream.append(([x], isinstance(x, tuple) and x[0] == "vm"))
        nv = sum(1 for _, v in stream if v)
        if nv:
            step = min(max(nbs) / DSP, (G - 3) / nv)
            pos = 2.0; last = 0
            for idx, (grp, isv) in enumerate(stream):
                if isv:
                    last = place(max(last, int(pos)), grp) ; pos = max(pos + step, last + 1.0)
                    last_v = last
                else:
                    nxt_v = idx + 1 < len(stream) and (stream[idx + 1][1] or not stream[idx+1][1]) and "m0" in grp[0]
                    tgt = max(last, int(pos) - 1) if nxt_v else last
                    last = place(tgt, grp)
                    if nxt_v: pos = max(pos, last + 1.0)
        ok = [starts[n] + g for n, (t, rt) in enumerate(seq) if rt < 7 for g in range(nbs[n])]
        if wreads:
            WEND = opt.get("wend", 8)
            ok2 = ok[:max(len(wreads) // 2, len(ok) - WEND)]
            last = ok2[0]
            for k, x in enumerate(wreads):
                last = place(max(last, ok2[(k * len(ok2)) // len(wreads)]), [x], lim=ok[-1])
        valu = [x if isinstance(x, list) else [x] for x in valu]
        last = 0
        for k, grp in enumerate(valu):
            last = place(max(last, (k * (G - 4)) // len(valu)), grp)
        for n, (t, rt) in enumerate(seq):
            lq.need(regs_of(ar(Xreg(t, rt)(0), 8)))
            weave(mf(t, rt, cts_of(t), Xreg(t, rt)), {g - starts[n]: v for g, v in fill.items() if starts[n] <= g < starts[n] + nbs[n]})

    def blocks(seq, pend, wreads, front=None, valu=()):
        if opt.get("sched2", 1):
            return blocks2(seq, pend, wreads, front, valu)
        pend = list(pend); wreads = list(wreads); valu = list(valu)
        for n, (t, rt) in enumerate(seq):
            cts = cts_of(t)
            nb = len(cts) * 2
            fill = {}
            if rt < 7:
                nx = rdX(t, rt + 1, Xreg(t, rt + 1))
            elif t < 15:
                nx = rdX(t + 1, 0, Xreg(t + 1, 0))
            else:
                nx = []
            items = [[x] for x in nx]
            left_w = len([1 for (_, r) in seq[n:] if r < 7])
            if rt < 7 and wreads:
                k = -(-len(wreads) // left_w)
                items += [[x] for x in wreads[:k]]
                wreads = wreads[k:]
            if n == 0 and front:
                fill[0] = list(front)
            spread(fill, items, 0, nb - 1)
            k = min(len(pend), max(DSP, -(-len(pend) // (len(seq) - n))))
            spread(fill, pend[:k], 1, nb)
            pend = pend[k:]
            k = -(-len(valu) // (len(seq) - n))
            spread(fill, [x if isinstance(x, list) else [x] for x in valu[:k]], 0, nb)
            valu = valu[k:]
            weave(mf(t, rt, cts, Xreg(t, rt)), fill)
        assert not pend and not wreads and not valu

    vq.need("W0", "X0a")
    a("s_barrier")
    stamp(a, opt, 2)
    stamp(a, opt, 25, real=True)
    w0 = rdW(0)
    for x in w0[:4] + rdX(0, 0, lambda ks: fX(0, ks)) + w0[4:13]:
        put(x)
    rest0 = ([] if PRE != "none" else dmaW(1)) + ([] if PRE == "W1X1" else dmaXh(1, 0)) + dmaW(2) + ([] if PRE == "W1X1" else dmaXh(1, 1))
    k0 = min(len(rest0), opt.get("k0", 10))
    blocks([(0, r) for r in range(3)], rest0[:k0], [], front=w0[13:])
    vq.need("W1", "X0b", extra="lgkmcnt(0)")
    lq.drained()
    a("s_barrier")
    x0 = []
    if opt.get("xs0"):
        m = opt["xs0"]
        x0 = [[f"s_mov_b32 exec_lo, 0x{m | (m << 16):x}", "s_mov_b32 exec_hi, 0", ("vm", "buffer_load_dword v39, v38, s[16:19], s60 offen", "T"), "s_mov_b64 exec, -1"]]
    blocks([(0, r) for r in range(3, 7)], rest0[k0:] + dmaXh(2, 0) + dmaW(3) + x0, rdW(1))

    def window1(t, extra=(), last=False, valu=(), first=()):
        ABL[0] = opt.get("abl", "") if 1 <= t <= 12 else ""
        vq.need(f"X{t+1}a", f"X{t+1}b", f"W{t+2}", *( ["S"] if t == HST else []), extra="lgkmcnt(0)")
        lq.drained()
        a("s_barrier")
        if opt.get("wstamps"):
            stamp(a, opt, 32 + t)
        pend = list(first)
        if t + 2 <= 15:
            pend += dmaX(t + 2) if t > 0 else dmaXh(2, 1)
        if t + 4 <= 15:
            pend += dmaW(t + 4)
        pend += list(extra)
        seq = [(t, 7)] + [(t + 1, r) for r in range(8 if last else 7)]
        blocks(seq, pend, rdW(t + 2) if t + 2 <= 15 else [], valu=valu)

    def window(t, extra=(), last=False, valu=(), first=()):
        if not opt.get("mid", 0):
            return window1(t, extra, last, valu, first)
        vq.need(f"X{t+1}a", f"W{t+2}", *( ["S"] if t == HST else []), extra="lgkmcnt(0)")
        lq.drained()
        a("s_barrier")
        if opt.get("wstamps"):
            stamp(a, opt, 32 + t)
        pend = list(first)
        if t + 2 <= 15:
            pend += dmaXh(t + 2, 1)
        wd = dmaW(t + 4) if t + 4 <= 15 else []
        pend += wd[:4]
        wr = rdW(t + 2) if t + 2 <= 15 else []
        valu = list(valu); extra = list(extra)
        nv = len(valu) // 2
        ne = len(extra) // 2 if last else 0
        blocks([(t, 7)] + [(t + 1, r) for r in range(3)], pend + extra[:ne], wr[:10], valu=valu[:nv])
        vq.need(f"X{t+1}b")
        lq.need(regs_of(ar(Xreg(t + 1, 3)(0), 8)))
        a("s_barrier")
        pend = []
        if t + 3 <= 15:
            pend += dmaXh(t + 3, 0)
        if wd:
            wd[4] = [f"s_add_u32 m0, s49, {WB[(t + 4) % 3] + 4096}"] + wd[4][1:]
        pend += wd[4:] + extra[ne:]
        blocks([(t + 1, r) for r in range(3, 8 if last else 7)], pend, wr[10:], valu=valu[nv:])

    hs = ["s_cmp_lg_u32 s38, 0", "s_cbranch_scc1 K_NOATOM", "s_mov_b64 exec, 1",
          "buffer_atomic_add v28, v29, s[28:31], s63 offen sc1", "s_mov_b64 exec, -1", "K_NOATOM:"]
    G = 64
    gate = [("needvm", ["G"]), "v_mov_b32 v38, 0", "v_mov_b32 v39, 0"]
    for i in range(8):
        gr = lambda j: acc(j // 4, 1) + j % 4
        gate.append(f"v_dot2_f32_bf16 v38, v{gr(i)}, v{gr(16+i)}, v38")
        gate.append(f"v_dot2_f32_bf16 v39, v{gr(8+i)}, v{gr(16+i)}, v39")
    for ctrl in ("quad_perm:[1,0,3,2]", "quad_perm:[2,3,0,1]", "row_half_mirror", "row_mirror"):
        for r in (38, 39):
            gate.append(f"v_add_f32_dpp v{r}, v{r}, v{r} {ctrl} row_mask:0xf bank_mask:0xf")
    gate2 = []
    for r in (38, 39):
        for k, ln in enumerate((0, 16, 32, 48)):
            gate2.append(f"v_readlane_b32 s{4 + (r-38)*4 + k}, v{r}, {ln}")
    for r, s0 in ((38, 4), (39, 8)):
        gate2 += [f"v_mov_b32 v{r}, s{s0}", f"v_add_f32 v{r}, s{s0+1}, v{r}", f"v_add_f32 v{r}, s{s0+2}, v{r}", f"v_add_f32 v{r}, s{s0+3}, v{r}"]
    for ops in (["v_cvt_pk_bf16_f32 v{r}, v{r}, v{r}", "v_and_b32 v{r}, 0xffff0000, v{r}", "v_mul_f32 v{r}, 0x%08x, v{r}" % f2u(-LOG2E),
                 "v_exp_f32 v{r}, v{r}", "v_add_f32 v{r}, 1.0, v{r}", "v_rcp_f32 v{r}, v{r}", "v_cvt_pk_bf16_f32 v{r}, v{r}, v{r}",
                 "v_and_b32 v{r}, 0xffff0000, v{r}"]):
        for r in (38, 39):
            gate2.append(ops.format(r=r))

    LM = opt.get("lm", 2)
    p2 = ["s_and_b32 s56, s2, 7", "s_lshr_b32 s57, s2, 3",
          f"s_and_b32 s50, s56, {(16 >> LM) - 1}", f"s_lshl_b32 s50, s50, {LM}", f"s_and_b32 s58, s57, {(1 << LM) - 1}", "s_add_u32 s50, s50, s58",
          f"s_lshr_b32 s51, s56, {4 - LM}", f"s_lshl_b32 s51, s51, {5 - LM}", f"s_lshr_b32 s58, s57, {LM}", "s_add_u32 s51, s51, s58",
          ["s_cmp_lt_u32 s38, 2", "s_cselect_b32 s80, s74, s76", "s_cselect_b32 s81, s75, s77"],
          "s_and_b32 s81, s81, 0xffff", f"s_mov_b32 s82, {1024*1024*2}", "s_mov_b32 s83, 0x00020000",
          "s_lshl_b32 s52, s39, 20", "s_lshl_b32 s56, s51, 7", "s_add_u32 s52, s52, s56",
          "s_lshl_b32 s53, s50, 19", "s_lshl_b32 s56, s38, 17", "s_add_u32 s53, s53, s56",
          f"s_lshl_b32 s56, s50, {6 + FS}", f"s_lshl_b32 s57, s38, {4 + FS}", "s_add_u32 s56, s56, s57", f"s_add_u32 s54, s56, {GB}",
          "v_lshrrev_b32 v48, 3, v1", "v_and_b32 v49, 7, v1", "v_bfe_u32 v50, v1, 4, 1", "v_lshlrev_b32 v50, 2, v50",
          "v_xor_b32 v49, v49, v50", "v_bfe_u32 v50, v1, 5, 1", "v_lshlrev_b32 v50, 1, v50", "v_xor_b32 v49, v49, v50",
          "v_lshlrev_b32 v49, 4, v49", "v_lshl_add_u32 v40, v48, 11, v49"]
    p2 += [f"v_add_u32 v{40+i}, {i*(8*2048 - 1024)}, v40" for i in range(1, 4)]
    HS = opt.get("halfst", 1)
    p2 += ["s_mul_i32 s64, s38, 6144" if HS else "s_lshl_b32 s64, s38, 12", f"s_add_u32 s64, s64, {EX}"]
    p2b = ["v_lshrrev_b32 v48, 4, v1", "v_bfe_u32 v49, v1, 2, 2", "v_lshl_add_u32 v50, v48, 2, v49", "v_lshlrev_b32 v50, 7, v50",
           "v_bfe_u32 v51, v1, 1, 1", "v_and_b32 v52, 2, v49", "v_lshlrev_b32 v52, 1, v52", "v_xor_b32 v51, v51, v52",
           "v_and_b32 v52, 1, v48", "v_lshlrev_b32 v52, 1, v52", "v_xor_b32 v51, v51, v52", "v_lshl_add_u32 v50, v51, 4, v50",
           "v_and_b32 v52, 1, v1", "v_lshl_add_u32 v50, v52, 3, v50", "v_add_u32 v44, s64, v50"]
    p2b += [f"v_xor_b32 v{44+ct}, {ct*32}, v44" for ct in range(1, 4)]
    p2b += ["v_lshlrev_b32 v53, 3, v1"]
    p2c = [f"v_mov_b32 v{12+i}, v{40+i}" for i in range(4)] + ["s_add_u32 s56, s48, 0x10000", "v_add_u32 v32, s56, v50"]
    p2c += [f"v_xor_b32 v{32+ct}, {ct*32}, v32" for ct in range(1, 4)]
    SLOT = {}
    RES = {0: 176, 1: 192, 2: 208, 3: 224, 4: 240, 5: 16, 6: 32, 7: 64}
    AQ = [q for q in range(0, 256, 4) if not any(r <= q < r + 16 for r in RES.values())]
    assert len(AQ) == 32
    def dmaB(b, slot):
        SLOT[b] = slot
        ops = []
        for j in range(4):
            off = f" offset:{j*1024}" if j else ""
            m0 = "s_mov_b32 m0, s64" if slot is None else f"s_add_u32 m0, s48, {slot}"
            ops.append(([m0] if j == 0 else []) +
                       [("vm", f"buffer_load_dwordx4 v{(40 if slot is None else 12)+j}, s[80:83], s52 offen{off} lds", f"B{b}")])
        ops[-1].append("s_add_u32 s52, s52, 65536")
        return ops
    def breads(b, dst, agpr):
        sl = SLOT[b]
        base = 44 if sl is None else (32 if sl >= 65536 else 16)
        o = 0 if sl is None else sl % 65536
        return [("ds", f"ds_read_b64_tr_b16 {(ar if agpr else vr)(dst + ct*4 + 2*sub, 2)}, v{base+ct} offset:{o + sub*2048}")
                for ct in range(4) for sub in range(2)]
    PD = opt.get("wpace", 6)
    def wp():
        return ["s_mov_b64 exec, 0x3f", ("vm", "buffer_load_dword v39, v38, s[84:87], s73 offen", "T"), "s_mov_b64 exec, -1",
                f"s_add_u32 s73, s73, {64*6144}"]
    wt_setup = [["s_bitcmp1_b32 s38, 0", "s_cselect_b32 s92, s76, s74", "s_cselect_b32 s93, s77, s75"], "s_and_b32 s93, s93, 0xffff",
                f"s_mov_b32 s94, {1024*1024*2}", "s_mov_b32 s95, 0x00020000",
                "s_lshl_b32 s78, s2, 1", "s_add_u32 s78, s78, s40", "s_lshl_b32 s78, s78, 12"]
    WTN, WT0 = opt.get("wtn", 4), opt.get("wt0", 9)
    def wt(k):
        n = 32 // WTN
        return [f"s_mov_b64 exec, 0x{(1 << n) - 1:x}",
                ("vm", f"buffer_load_dword v39, v38, s[92:95], s78 offen offset:{k*n*128}", "T"), "s_mov_b64 exec, -1"]
    xs = opt.get("xsplit", {0: 0xc0, 1: 0x300, 2: 0xc00, 3: 0x3000, 4: 0xc000})
    ST0 = opt.get("st0", 2 if HS else 3)
    sw = opt.get("sent_w", [4, 5, 6, 6, 4, 5]) if not opt.get("sent_pro") else [-1] * 6
    for t in range(15):
        kw = {"extra": [], "valu": []}
        if xs and t in xs:
            m = xs[t]
            kw["extra"] += [[f"s_mov_b32 exec_lo, 0x{m | (m << 16):x}", "s_mov_b32 exec_hi, 0", ("vm", "buffer_load_dword v39, v38, s[16:19], s60 offen", "T"), "s_mov_b64 exec, -1"]]
        if PD and t + PD <= 15: kw["extra"] += [wp()]
        if t == ST0 - 2: kw["valu"] += p2
        if t == ST0 - 1: kw["valu"] += p2b
        for k in range(len(sent)):
            if sw[k] == t: kw["extra"] += [sent[k]]
        if t == HST: kw["extra"] += [hs]
        TL = opt.get("tlb", "")
        if TL and t == opt.get("tlb_w", 12):
            grp = ["s_mov_b64 exec, 1"]
            if "o" in TL: grp.append(("vm", "buffer_load_dword v39, v29, s[24:27], s65 offen sc1", "T"))
            if "a" in TL: grp.append(("vm", "buffer_load_dword v39, v29, s[24:27], s53 offen sc1", "T"))
            if "A" in TL:
                grp += ["s_mov_b64 exec, 3", "v_lshlrev_b32 v54, 16, v1", ("vm", "buffer_load_dword v39, v54, s[24:27], s53 offen sc1", "T"), "s_mov_b64 exec, 1"]
            if "u" in TL:
                grp += ["s_lshl_b32 s59, s50, 18", "s_lshl_b32 s58, s38, 16", "s_add_u32 s59, s59, s58", "v_mov_b32 v54, s59",
                        ("vm", "global_load_dword v39, v54, s[70:71]", "T")]
            kw["extra"] += [grp + ["s_mov_b64 exec, -1"]]
        for (tw, lab, nl) in opt.get("ct2", [(4, "K_W7", 1), (12, "K_TAIL", 2)]):
            if t == tw:
                kw["extra"] += [[f"s_add_u32 s59, s79, {lab}-{KNAME}", "v_lshlrev_b32 v54, 14, v1", "v_add_u32 v54, s59, v54",
                                 f"v_min_u32 v54, K_LAST-{KNAME}, v54", f"s_mov_b64 exec, {(1 << nl) - 1}",
                                 ("vm", "global_load_dword v39, v54, s[88:89]", "T"), "s_mov_b64 exec, -1"]]
        a.label(f"K_W{t}")
        if t == WT0 - 1: kw["valu"] += wt_setup
        if WT0 <= t < WT0 + WTN: kw["extra"] += [wt(t - WT0)]
        LT = opt.get("lt")
        if LT:
            if t == min(LT) - 1:
                kw["valu"] += ["v_lshrrev_b32 v55, 3, v1", "v_lshlrev_b32 v55, 16, v55", "v_and_b32 v56, 7, v1", "v_lshl_add_u32 v55, v56, 7, v55",
                               "s_lshl_b32 s3, s39, 20", "s_lshr_b32 s56, s2, 3", "s_lshl_b32 s56, s56, 11", "s_add_u32 s3, s3, s56",
                               "s_and_b32 s56, s2, 4", "s_lshl_b32 s56, s56, 8", "s_add_u32 s3, s3, s56"]
            if t in LT:
                b0, nb_ = LT[t]
                kw["extra"] += [[f"s_add_u32 s56, s3, {b0*65536}", f"s_mov_b32 exec_lo, 0x{(1 << (8*nb_)) - 1:x}", "s_mov_b32 exec_hi, 0",
                                 ("vm", "buffer_load_dword v39, v55, s[80:83], s56 offen", "T"), "s_mov_b64 exec, -1"]]
        if HS:
            h = t - ST0
            if 0 <= h < 10:
                sub = h % 2
                grp = []
                for j in (2*sub, 2*sub + 1):
                    off = f" offset:{j*1024}" if j else ""
                    grp.append(([f"s_add_u32 m0, s64, {(h % 3)*2048 - sub*2048}"] if j % 2 == 0 else []) +
                               [("vm", f"buffer_load_dwordx4 v{40+j}, s[80:83], s52 offen{off} lds", f"H{h}")])
                if sub:
                    grp[-1].append("s_add_u32 s52, s52, 65536")
                kw["extra"] += grp
            h = t - ST0 - 2
            if 0 <= h < 10:
                kw["valu"] += [("needvm", [f"H{h}"])] + [("ds", f"ds_read_b64_tr_b16 {ar(RES[h // 2] + ct*4 + 2*(h % 2), 2)}, v{44+ct} offset:{(h % 3)*2048}") for ct in range(4)]
        elif ST0 <= t < ST0 + 10:
            b = (t - ST0) // 2
            if (t - ST0) % 2 == 0:
                kw["extra"] += dmaB(b, None)
            else:
                kw["valu"] += [[]] * 12 + [("needvm", [f"B{b}"])] + breads(b, RES[b], True)
        if t == 13:
            kw["valu"] += p2c
            kw["extra"] += [[("vm", "buffer_load_dword v28, v53, s[28:31], 0 offen sc1", "C")]]
        if t == 14:
            b58 = dmaB(5, 65536) + dmaB(6, 65536 + 4096) + dmaB(7, 98304) + dmaB(8, 98304 + 4096)
            NW14 = opt.get("nw14", 10) if IL else 16
            kw["extra"] += b58[:NW14]; b58 = b58[NW14:]
            kw["last"] = True
            if IL:
                kw["valu"] += [f"s_mov_b32 s66, 0x{f2u(LOG2E):08x}", f"s_mov_b32 s67, 0x{f2u(LOG2E):08x}",
                               f"v_mov_b32 v20, 0x{f2u(-EPS * LOG2E):08x}", "v_mov_b32 v21, v20"] + [f"v_mov_b32 v{22+i}, 0x3f803f80" for i in range(4)]
                kw["valu"] += [["s_lshl_b32 s56, s38, 12", f"s_add_u32 s56, s56, {EX}", "v_add_u32 v10, s56, v26"], "v_xor_b32 v11, 4096, v10"]
                DSP = 1
        window(t, **kw)
    stamp(a, opt, 3)
    stamp(a, opt, 26, real=True)

    a.label("K_TAIL")
    if not IL:
        a(f"s_mov_b32 s66, 0x{f2u(LOG2E):08x}")
        a(f"s_mov_b32 s67, 0x{f2u(LOG2E):08x}")
        a(f"v_mov_b32 v20, 0x{f2u(-EPS * LOG2E):08x}")
        a("v_mov_b32 v21, v20")
        for i in range(4):
            a(f"v_mov_b32 v{22+i}, 0x3f803f80")
    KV, ZC = 40, 56
    T0 = 2
    MSL = opt.get("mslots", [4, 6, 8, 10, 12, 14, 17, 24])
    def phi8(b0, b1, dst, inter=(), mfs=()):
        src = [b0, b0 + 2, b1, b1 + 2]
        L = []
        for i, s in enumerate(src):
            L.append(f"v_pk_fma_f32 {vr(T0 + 2*i, 2)}, {vr(s, 2)}, s[66:67], v[20:21]")
        for i in range(8):
            L.append(f"v_exp_f32_e64 v{T0+i}, v{T0+i} clamp")
        for s in src:
            L.append(f"v_max_f32 v{s}, v36, v{s}")
            L.append(f"v_max_f32 v{s+1}, v36, v{s+1}")
        for i, s in enumerate(src):
            L.append(f"v_pk_add_f32 {vr(T0 + 2*i, 2)}, {vr(s, 2)}, {vr(T0 + 2*i, 2)}")
        for i in range(4):
            L.append(f"v_cvt_pk_bf16_f32 v{dst+i}, v{T0+2*i}, v{T0+2*i+1}")
        pos = {0: [], 8: [], 18: []}
        for n, it in enumerate(inter):
            pos[(0, 8, 18)[(n * 3) // max(len(inter), 1)]].append(it)
        mfs = list(mfs)
        assert len(mfs) <= len(MSL)
        for n, x in enumerate(L):
            if n in pos:
                emit(pos[n])
            if n in MSL and mfs:
                m_ = mfs.pop(0)
                lq.need(Ins(m_).srcAB)
                a(m_)
            a(x)
    def pack8(b0, b1, dst):
        for i, s in enumerate([b0, b0 + 2, b1, b1 + 2]):
            a(f"v_cvt_pk_bf16_f32 v{dst+i}, v{s}, v{s+1}")
    t1 = {2: [[("needvm", ["B7"])] + breads(5, RES[5], True), breads(6, RES[6], True), breads(7, RES[7], True)]}
    rf = dmaB(9, SLOT[5]) + dmaB(10, SLOT[6]) + dmaB(11, SLOT[7])
    rf[0] = ["s_waitcnt lgkmcnt(0)"] + rf[0]
    for k in range(4):
        t1[3 + k] = rf[3*k:3*k+3]
    BQ = opt.get("bq", 0)
    if BQ:
        t1 = {}
    def kvz(m):
        out = []
        for dt in range(2):
            c = vr(ZC + dt*4)
            out.append(f"{MF} {c}, {vr(acc(2*m, 2+dt))}, v[22:25], {'0' if m == 0 else c}")
            for et in range(2):
                c = vr(KV + dt*8 + et*4)
                out.append(f"{MF} {c}, {vr(acc(2*m, 2+dt))}, {vr(acc(2*m, 4+et))}, {'0' if m == 0 else c}")
        return out
    if IL:
        h = -(-len(b58) // 2)
        t1 = {0: b58[:h], 1: b58[h:], 3: t1[2]}
        rf[0] = rf[0][1:]
        rf[0] = [("needds", regs_of(ar(RES[7], 16)))] + rf[0]
        for k in range(4):
            t1[4 + k] = rf[3*k:3*k+3]
        if opt.get("x_nob"):
            t1 = {}
        if opt.get("x_norf"):
            for k in range(4): t1[4 + k] = []
        if opt.get("x_nowait"):
            t1[3][0] = t1[3][0][1:]
        if ES:
            send = [x for m in range(4) for x in kvz(m)[3:]]
            own = [kvz(m)[:3] for m in range(4)]
            plan = {4: send[:8], 5: send[8:] + own[0], 6: own[1], 7: own[2]}
            wr_ = [[f"ds_write_b128 v10, {vr(ZC+4)} offset:2048", f"ds_write_b128 v10, {vr(KV+8)}", f"ds_write_b128 v10, {vr(KV+12)} offset:1024"]]
            t1[6] = t1[6][:1] + wr_ + t1[6][1:]
            for j in range(8):
                m, dt = j % 4, 1 - j // 4
                if j < 4:
                    mfs = mf(15, 2*j, [4, 5], lambda ks: fXR(2*j, ks)) + mf(15, 2*j + 1, [4, 5], lambda ks: fXR(2*j + 1, ks))
                else:
                    mfs = plan[j]
                if j == 7:
                    a("s_waitcnt lgkmcnt(0)")
                    lq.drained()
                    a("s_barrier")
                    a(f"ds_read_b128 {vr(KV+8)}, v11 offset:1024")
                    a(f"ds_read_b128 {vr(KV+12)}, v11")
                    a(f"ds_read_b128 {vr(ZC+4)}, v11 offset:2048")
                    a("s_lshl_b32 s56, s39, 10")
                    a("s_add_u32 s58, s62, s56")
                    a("s_xor_b32 s59, s58, 1024")
                    a("s_mov_b32 s56, 0x00010001")
                    a("s_mov_b32 s57, 0x00010001")
                phi8(acc(2*m, 2 + dt), acc(2*m + 1, 2 + dt), acc(2*m, 2 + dt), inter=t1.get(j, []), mfs=mfs)
                if 1 <= j <= 3:
                    for et in range(2):
                        pack8(acc(2*(j-1), 4 + et), acc(2*(j-1) + 1, 4 + et), acc(2*(j-1), 4 + et))
                if j == 3:
                    for et in range(2):
                        pack8(acc(6, 4 + et), acc(7, 4 + et), acc(6, 4 + et))
            for x in (own[3][1], own[3][2], own[3][0]):
                a(x)
            a("s_waitcnt lgkmcnt(0)")
        if not ES:
            for j in range(8):
                if opt.get("tstamps"):
                    stamp(a, opt, 48 + j)
                m, dt = j // 2, j % 2
                if j < 4:
                    mfs = mf(15, 2*j, [4, 5], lambda ks: fXR(2*j, ks)) + mf(15, 2*j + 1, [4, 5], lambda ks: fXR(2*j + 1, ks))
                elif j < 7:
                    mfs = kvz(j - 4)
                else:
                    mfs = []
                phi8(acc(2*m, 2 + dt), acc(2*m + 1, 2 + dt), acc(2*m, 2 + dt), inter=t1.get(j, []), mfs=mfs)
                if 1 <= j <= 4:
                    for et in range(2):
                        pack8(acc(2*(j-1), 4 + et), acc(2*(j-1) + 1, 4 + et), acc(2*(j-1), 4 + et))
            if opt.get("tstamps"):
                stamp(a, opt, 56)
            for x in kvz(3):
                a(x)
            a("s_nop 3")
    else:
        for m in range(4):
            for dt in range(2):
                phi8(acc(2*m, 2 + dt), acc(2*m + 1, 2 + dt), acc(2*m, 2 + dt), inter=t1.get(m*2 + dt, []))
        lq.drained()
        kvm = []
        for m in range(4):
            for dt in range(2):
                c = vr(ZC + dt*4)
                kvm.append(f"{MF} {c}, {vr(acc(2*m, 2+dt))}, v[22:25], {'0' if m == 0 else c}")
        for m in range(4):
            for et in range(2):
                pack8(acc(2*m, 4 + et), acc(2*m + 1, 4 + et), acc(2*m, 4 + et))
                a(kvm.pop(0))
        for m in range(4):
            for dt in range(2):
                for et in range(2):
                    c = vr(KV + dt*8 + et*4)
                    a(f"{MF} {c}, {vr(acc(2*m, 2+dt))}, {vr(acc(2*m, 4+et))}, {'0' if m == 0 else c}")
        a("s_lshl_b32 s56, s38, 12")
        a(f"s_add_u32 s56, s56, {EX}")
        a("v_add_u32 v10, s56, v26")
        a("v_xor_b32 v11, 4096, v10")
    if not ES:
        a("s_cmp_eq_u32 s39, 0")
        a("s_cbranch_scc1 K_EXW0")
        a(f"ds_write_b128 v10, {vr(ZC)} offset:2048")
        a(f"ds_write_b128 v10, {vr(KV)}")
        a(f"ds_write_b128 v10, {vr(KV+4)} offset:1024")
        a("s_waitcnt lgkmcnt(0)")
        for i in range(0, 8, 2):
            a(f"v_pk_mov_b32 {vr(KV+i, 2)}, {vr(KV+8+i, 2)}, {vr(KV+8+i, 2)} op_sel:[0,1]")
        for i in range(0, 4, 2):
            a(f"v_pk_mov_b32 {vr(ZC+i, 2)}, {vr(ZC+4+i, 2)}, {vr(ZC+4+i, 2)} op_sel:[0,1]")
        a("s_branch K_EXW1")
        a.label("K_EXW0")
        a(f"ds_write_b128 v10, {vr(ZC+4)} offset:2048")
        a("s_nop 2")
        a(f"ds_write_b128 v10, {vr(KV+8)}")
        a(f"ds_write_b128 v10, {vr(KV+12)} offset:1024")
        a("s_waitcnt lgkmcnt(0)")
        a.label("K_EXW1")
        lq.drained()
        if opt.get("tstamps"):
            stamp(a, opt, 57)
        a("s_barrier")
        if opt.get("tstamps"):
            stamp(a, opt, 58)
        a(f"ds_read_b128 {vr(KV+8)}, v11")
        a(f"ds_read_b128 {vr(KV+12)}, v11 offset:1024")
        a(f"ds_read_b128 {vr(ZC+4)}, v11 offset:2048")
        a("s_mov_b32 s56, 0x00010001")
        a("s_mov_b32 s57, 0x00010001")
        a("s_waitcnt lgkmcnt(0)")
    for i in range(0, 8, 2):
        a(f"v_pk_add_f32 {vr(KV+i, 2)}, {vr(KV+i, 2)}, {vr(KV+8+i, 2)}")
    for i in range(0, 4, 2):
        a(f"v_pk_add_f32 {vr(ZC+i, 2)}, {vr(ZC+i, 2)}, {vr(ZC+4+i, 2)}")
    for r in list(range(KV, KV + 8)) + list(range(ZC, ZC + 4)):
        a(f"v_min_u32 v{r}, -2, v{r}")
    if ES:
        vq.issue(f"buffer_store_dwordx4 {vr(KV)}, v26, s[24:27], s58 offen sc1", "P")
        vq.issue(f"buffer_store_dwordx4 {vr(KV+4)}, v26, s[24:27], s59 offen sc1", "P")
    else:
        vq.issue(f"buffer_store_dwordx4 {vr(KV)}, v26, s[24:27], s62 offen sc1", "P")
        vq.issue(f"buffer_store_dwordx4 {vr(KV+4)}, v26, s[24:27], s62 offen offset:1024 sc1", "P")
    a("s_mov_b64 exec, s[56:57]")
    vq.issue(f"buffer_store_dwordx4 {vr(ZC)}, v27, s[24:27], s62 offen offset:2048 sc1", "P")
    a("s_mov_b64 exec, -1")
    stamp(a, opt, 4)
    vq.need("C")
    a("s_mov_b32 s58, -1")
    a("s_mov_b32 s59, 0")
    a.label("K_HS")
    if opt.get("thr"):
        a("v_cmp_ne_u32 vcc, s99, v28")
        a("s_mov_b32 s97, vcc_lo")
        a("v_and_b32 v28, 0xfff, v28")
    a("v_cmp_eq_u32 vcc, 8, v28")
    a("s_cmp_eq_u64 vcc, s[58:59]")
    a("s_cbranch_scc1 K_HSOK")
    a("s_sleep 2")
    a("v_lshlrev_b32 v10, 3, v1")
    a("buffer_load_dword v28, v10, s[28:31], 0 offen sc1")
    a("s_waitcnt vmcnt(0)")
    a("s_branch K_HS")
    a.label("K_HSOK")
    if ES:
        a("s_lshl_b32 s56, s38, 11")
        a(f"s_add_u32 s56, s56, {EX2}")
        a("v_lshl_add_u32 v10, v1, 3, s56")
        a("v_xor_b32 v11, 2048, v10")
    PB = [acc(p, 2) for p in range(8)]
    ZG = 48
    def gather_ops():
        ops = []
        for p in range(8):
            for k in range(2):
                ops.append(([f"s_add_u32 s56, s61, {p * 16384}"] if k == 0 else []) +
                           [("vm", f"buffer_load_dwordx4 {vr(PB[p] + 4*k)}, v26, s[24:27], s56 offen offset:{k*1024} sc1", "H")])
        ops.append([("vm", f"buffer_load_dwordx4 {vr(ZG)}, v30, s[24:27], s61 offen offset:2048 sc1", "H")])
        return ops
    def gather(track):
        for op in gather_ops():
            for x in op:
                a(x[1] if isinstance(x, tuple) else x)
    gops = gather_ops()
    if BQ:
        rd = breads(5, RES[5], True) + breads(6, RES[6], True) + breads(7, RES[7], True)
        rf[0] = rf[0][1:]
        rf[0] = [("needds", regs_of(ar(RES[5], 16)))] + rf[0]
        rf[4] = [("needds", regs_of(ar(RES[6], 16)))] + rf[4]
        rf[8] = [("needds", regs_of(ar(RES[7], 16)))] + rf[8]
        qfill = [[("needvm", ["B7"])] + rd[:1]] + [[x] for x in rd[1:]]
        qb = None
    else:
        qb = dmaB(12, 32768) + dmaB(13, 32768 + 4096)
    GQ = opt.get("gather_in_q", 0)
    ILQ = opt.get("ilq", 1)
    if ILQ:
        LA = opt.get("qla", 2)
        def qm(rt):
            return mf(15, rt, [0, 1], lambda ks: fXR(rt, ks)) + mf(14, rt, [0, 1], lambda ks: fX(rt % 2, ks))
        def xr(rt):
            return rdX(14, rt, lambda ks: fX(rt % 2, ks)) if rt < 8 else []
        for x in xr(0):
            put(x)
        for rt in range(LA):
            k = -(-len(qb) // (LA - rt)) if opt.get("qb_front", 1) else 0
            fill = {1: xr(rt + 1)}
            spread(fill, qb[:k], 2, 8); qb = qb[k:]
            weave(qm(rt), fill)
        stamp(a, opt, 13)
        G0, G1 = opt.get("g0", 3), opt.get("g1", 7)
        for rt in range(8):
            inter = []
            if rt + LA < 8:
                inter.append(xr(rt + LA + 1))
            if rt < G0 and qb:
                k = -(-len(qb) // (G0 - rt)); inter += qb[:k]; qb = qb[k:]
            if G0 <= rt < G1:
                k = -(-len(gops) // (G1 - rt)); inter += gops[:k]; gops = gops[k:]
            phi8(acc(rt, 0), acc(rt, 1), acc(rt, 0), inter=inter, mfs=qm(rt + LA) if rt + LA < 8 else [])
        assert not gops and not qb
    else:
        if DEFER >= 2:
            for x in rdX(14, 0, lambda ks: fX(0, ks)):
                put(x)
        for rt in range(8):
            fill = {}
            ms = mf(15, rt, [0, 1], lambda ks: fXR(rt, ks)) if DEFER >= 1 else []
            if DEFER >= 2:
                ms += mf(14, rt, [0, 1], lambda ks: fX(rt % 2, ks))
                if rt < 7:
                    fill[1] = rdX(14, rt + 1, lambda ks: fX((rt + 1) % 2, ks))
            if BQ:
                if rt < 3:
                    spread(fill, qfill[8*rt:8*rt+8], 0, len(ms))
                if rt >= 2:
                    spread(fill, rf[2*(rt-2):2*(rt-2)+2], 2, len(ms))
            else:
                fill.setdefault(2, []).extend(qb[rt])
            per = len(ms) // 4
            first_rt = 8 - -(-GQ // max(per, 1))
            if GQ and rt >= first_rt:
                k = min(per, GQ - (17 - len(gops)))
                spread(fill, gops[:k], 0, len(ms)); gops = gops[k:]
            weave(ms, fill)
        stamp(a, opt, 13)
        GSP = opt.get("gather_span", 7)
        for rt in range(8):
            k = -(-len(gops) // (GSP - rt)) if rt < GSP else 0
            phi8(acc(rt, 0), acc(rt, 1), acc(rt, 0), inter=gops[:k]); gops = gops[k:]
    gate_ld = [[("vm", f"buffer_load_dwordx4 {vr(acc(i, 1))}, v26, s[16:19], s60 offen offset:{i*1024}", "G")] for i in range(4)]
    gate_ld += [[("vm", f"buffer_load_dwordx4 {vr(acc(4 + i, 1))}, v26, s[32:35], 0 offen offset:{i*1024}", "G")] for i in range(2)]
    emit(gate_ld)
    stamp(a, opt, 5)
    S = 40
    vq.need("H")
    a.label("K_SUM")
    for i in range(0, 8, 2):
        a(f"v_pk_add_f32 {vr(S+i, 2)}, {vr(PB[0]+i, 2)}, {vr(PB[1]+i, 2)}")
    for i in range(4):
        a(f"v_add_f32_dpp v{52+i}, v{ZG+i}, v{ZG+i} quad_perm:[1,0,3,2] row_mask:0xf bank_mask:0xf")
    for p in range(2, 8):
        for i in range(0, 8, 2):
            a(f"v_pk_add_f32 {vr(S+i, 2)}, {vr(S+i, 2)}, {vr(PB[p]+i, 2)}")
        if p in (2, 3):
            ctrl = "quad_perm:[2,3,0,1]" if p == 2 else "row_half_mirror"
            for i in range(4):
                a(f"v_add_f32_dpp v{52+i}, v{52+i}, v{52+i} {ctrl} row_mask:0xf bank_mask:0xf")
    a(f"v_pk_add_f32 v[2:3], {vr(S, 2)}, {vr(S+2, 2)}")
    a(f"v_pk_add_f32 v[4:5], {vr(S+4, 2)}, {vr(S+6, 2)}")
    a(f"v_pk_add_f32 v[6:7], v[52:53], v[54:55]")
    a("v_pk_add_f32 v[2:3], v[2:3], v[4:5]")
    a("v_pk_add_f32 v[2:3], v[2:3], v[6:7]")
    a("v_cmp_u_f32 vcc, v2, v3")
    a("s_cbranch_vccz K_GOK")
    regs = [PB[p] + i for p in range(8) for i in range(8)] + [ZG + i for i in range(4)]
    a(f"v_max3_u32 v2, v{regs[0]}, v{regs[1]}, v{regs[2]}")
    regs = regs[3:]
    while regs:
        if len(regs) >= 2:
            a(f"v_max3_u32 v2, v2, v{regs[0]}, v{regs[1]}"); regs = regs[2:]
        else:
            a(f"v_max_u32 v2, v2, v{regs[0]}"); regs = regs[1:]
    a("v_cmp_eq_u32 vcc, -1, v2")
    a("s_cbranch_vccz K_GOK")
    if opt.get("stamps"):
        a("v_readlane_b32 s56, v31, 24")
        a("s_add_u32 s56, s56, 1")
        a("v_writelane_b32 v31, s56, 24")
    gather(False)
    a("s_waitcnt vmcnt(0)")
    a("s_branch K_SUM")
    a.label("K_GOK")
    stamp(a, opt, 6)
    if ES:
        OP0, OP1, OPZ = 56, 60, 2
        a(f"v_cvt_pk_bf16_f32 v{OPZ}, v52, v53")
        a(f"v_cvt_pk_bf16_f32 v{OPZ+1}, v54, v55")
        a(f"ds_write_b64 v10, {vr(OPZ, 2)} offset:1024")
        for k, d in enumerate((OP0, OP0 + 1, OP1, OP1 + 1)):
            a(f"v_cvt_pk_bf16_f32 v{d}, v{S+2*k}, v{S+2*k+1}")
        a(f"ds_write_b64 v10, {vr(OP0, 2)}")
        a(f"ds_write_b64 v10, {vr(OP1, 2)} offset:512")
        a("s_waitcnt lgkmcnt(0)")
        lq.drained()
        a("s_barrier")
        a(f"ds_read_b64 {vr(OPZ+2, 2)}, v11 offset:1024")
        a(f"ds_read_b64 {vr(OP0+2, 2)}, v11")
        a(f"ds_read_b64 {vr(OP1+2, 2)}, v11 offset:512")
        a("s_waitcnt lgkmcnt(2)")
    else:
        for i in range(4):
            a(f"v_cvt_pk_bf16_f32 v{2+i}, v{S+2*i}, v{S+2*i+1}")
        a("v_cvt_pk_bf16_f32 v6, v52, v53")
        a("v_cvt_pk_bf16_f32 v7, v54, v55")
        a("s_mul_i32 s56, s40, 3072")
        a(f"s_add_u32 s56, s56, {EX2}")
        a("v_add_u32 v11, s56, v26")
        a("s_lshl_b32 s57, s39, 3")
        a("v_add_u32 v10, s57, v11")
        a("ds_write_b64 v10, v[6:7] offset:2048")
        a("ds_write_b64 v10, v[2:3]")
        a("ds_write_b64 v10, v[4:5] offset:1024")
        a("s_waitcnt lgkmcnt(0)")
        lq.drained()
        a("s_barrier")
        OPR = 40
        a(f"ds_read_b128 {vr(OPR+8)}, v11 offset:2048")
        a(f"ds_read_b128 {vr(OPR)}, v11")
        a(f"ds_read_b128 {vr(OPR+4)}, v11 offset:1024")
        a("s_waitcnt lgkmcnt(2)")
        OP0, OP1, OPZ = OPR, OPR + 4, OPR + 8
    eb = dmaB(14, 0) + dmaB(15, 4096) if opt.get("early14", 1) else []
    if opt.get("opipe", 0):
        a("s_add_u32 s63, s65, 4096")
        def mm(rt):
            return [f"{MF} {vr(acc(rt, 4))}, {vr(OPZ)}, {vr(acc(rt, 0))}, 0", f"{MF} {vr(acc(rt, 2))}, {vr(OP0)}, {vr(acc(rt, 0))}, 0",
                    f"{MF} {vr(acc(rt, 3))}, {vr(OP1)}, {vr(acc(rt, 0))}, 0"] if rt < 8 else []
        a(mm(0)[0]); a(mm(1)[0])
        a("s_waitcnt lgkmcnt(0)")
        for x in mm(0)[1:] + mm(1)[1:]:
            a(x)
        for rt in range(8):
            N, D = acc(rt, 2), acc(rt, 4)
            nx = mm(rt + 2)
            L = [f"v_add_f32 v{D}, v36, v{D}", f"v_rcp_f32 v{D}, v{D}"]
            if nx:
                L += [f"v_mul_f32 v{N+r}, v{N+r}, v{D}" for r in range(8)]
            else:
                L += [f"v_pk_mul_f32 {vr(N+r, 2)}, {vr(N+r, 2)}, {vr(D, 2)} op_sel_hi:[1,0]" for r in range(0, 8, 2)]
            L += [f"v_cvt_pk_bf16_f32 v{D+4+r//2}, v{N+r}, v{N+r+1}" for r in range(0, 8, 2)]
            for k, x in enumerate(L):
                if nx and k in (2, 6, 10):
                    a(nx.pop(0))
                a(x)
            vq.issue(f"buffer_store_dwordx4 {vr(D+4)}, v26, s[24:27], {'s65' if rt < 4 else 's63'} offen offset:{(rt % 4)*1024} sc1", "O")
        emit(eb)
    else:
        for rt in range(8):
            a(f"{MF} {vr(acc(rt, 4))}, {vr(OPZ)}, {vr(acc(rt, 0))}, 0")
            if eb and rt % 2 == 0:
                emit(eb[:1]); eb = eb[1:]
        a("s_waitcnt lgkmcnt(0)")
        for rt in range(8):
            a(f"{MF} {vr(acc(rt, 2))}, {vr(OP0)}, {vr(acc(rt, 0))}, 0")
            a(f"{MF} {vr(acc(rt, 3))}, {vr(OP1)}, {vr(acc(rt, 0))}, 0")
            D = acc(rt, 4)
            a(f"v_add_f32 v{D}, v36, v{D}")
            a(f"v_rcp_f32 v{D}, v{D}")
            if eb and rt % 2 == 0:
                emit(eb[:1]); eb = eb[1:]
        a("s_add_u32 s63, s65, 4096")
        for rt in range(8):
            N, D = acc(rt, 2), acc(rt, 4)
            for r in range(0, 8, 2):
                a(f"v_pk_mul_f32 {vr(N+r, 2)}, {vr(N+r, 2)}, {vr(D, 2)} op_sel_hi:[1,0]")
            for r in range(0, 8, 2):
                a(f"v_cvt_pk_bf16_f32 v{D+4+r//2}, v{N+r}, v{N+r+1}")
            vq.issue(f"buffer_store_dwordx4 {vr(D+4)}, v26, s[24:27], {'s65' if rt < 4 else 's63'} offen offset:{(rt % 4)*1024} sc1", "O")
    stamp(a, opt, 7)
    if BQ:
        emit(dmaB(12, 32768) + dmaB(13, 32768 + 4096))
    if not opt.get("early14", 1):
        emit(dmaB(14, 0) + dmaB(15, 4096))
    for k in range(4):
        a(f"s_add_u32 s56, s38, {k + 1}")
        a("s_and_b32 s56, s56, 3")
        a("s_lshl_b32 s56, s56, 11")
        a(f"v_add_u32 v{2+k}, s56, v26")
    a("v_bfe_u32 v6, v1, 1, 4")
    a(f"v_lshlrev_b32 v6, {FS}, v6")
    a("v_and_b32 v7, 1, v1")
    a("v_lshl_add_u32 v6, v7, 2, v6")
    vq.need("G")
    for x in gate[1:] + gate2:
        a(x)
    srd(a, 16, 70, 2048 * 1024 * 2)
    a("v_add_u32 v7, s48, v26")
    a("v_add_u32 v8, 0x10000, v7")
    for j in range(3):
        a(f"s_xor_b32 s56, s38, {j + 1}")
        a("s_sub_u32 s57, s38, s56")
        a("s_sub_u32 s57, s57, 1")
        a("s_and_b32 s57, s57, 3")
        a("s_lshl_b32 s57, s57, 15")
        a("s_lshl_b32 s56, s56, 13")
        a("s_add_u32 s56, s56, s57")
        a(f"v_add_u32 v{9+j}, s56, v26")
    a("v_and_b32 v24, 15, v1")
    a("v_lshrrev_b32 v25, 4, v1")
    a("v_and_b32 v28, 1, v25")
    a("v_lshlrev_b32 v28, 5, v28")
    a("v_lshrrev_b32 v25, 1, v25")
    a("v_lshl_add_u32 v28, v25, 4, v28")
    FL = opt.get("fullline", 1)
    if FL:
        a("v_and_b32 v24, 7, v1")
        a("v_bfe_u32 v25, v1, 3, 1")
        a("v_lshl_add_u32 v28, v25, 6, v28")
    a("v_lshl_add_u32 v14, v24, 11, v28")
    if FL:
        a("v_add_u32 v15, 0x4000, v14")
    a("s_lshl_b32 s56, s50, 18")
    a("s_lshl_b32 s57, s38, 16")
    a("s_add_u32 s56, s56, s57")
    a("s_lshl_b32 s57, s51, 7")
    a("s_add_u32 s61, s56, s57")
    a(f"s_add_u32 s62, s61, {16*2048}")
    a("s_mov_b32 s60, 0")
    a("s_getpc_b64 s[66:67]")
    a.label("K_PC")
    a("s_add_u32 s66, s66, K_WAIT-K_PC")
    a("s_addc_u32 s67, s67, 0")
    D = opt.get("depth", 4)
    P2 = 128
    def acc2(i, ct): return P2 + (i * 4 + ct) * 4
    def fA(slot, i): return AQ[slot * 8 + i]
    def fB(s_, ct): return 64 + s_ * 16 + ct * 4
    order = list(range(8, 16)) + list(range(8))
    for ct in range(4):
        a(f"v_subrev_u32 v{16+ct}, 0x10000, v{32+ct}")
    vq.need("B8")
    for x in breads(order[0], fB(0, 0), False):
        put(x)
    if opt.get("atouch", 0):
        a("v_lshrrev_b32 v46, 3, v1")
        a("v_lshlrev_b32 v46, 13, v46")
        a("v_and_b32 v47, 7, v1")
        a("v_lshl_add_u32 v46, v47, 7, v46")
        a("s_and_b32 s56, s51, 7")
        a("s_lshl_b32 s56, s56, 10")
        a("v_add_u32 v46, s56, v46")
    EP = opt.get("early_poll", 0) and not NS
    if EP:
        vq.issue("buffer_load_dword v44, v6, s[24:27], s54 offen sc1", "E")
    def flag():
        a("s_mov_b64 exec, 1")
        a("buffer_store_dwordx2 v[38:39], v29, s[24:27], s55 offen sc1")
        a("s_mov_b64 exec, -1")
    FAST = opt.get("fast", 0)
    if not FAST and not NS:
        vq.need("O")
        flag()
        stamp(a, opt, 8)
        if EP:
            a("s_waitcnt vmcnt(1)"); vq.drained()
            a("v_cmp_ne_u32 vcc, -1, v44")
            a("s_lshr_b32 s57, vcc_lo, 1"); a("s_and_b32 s57, s57, vcc_lo"); a("s_or_b32 s60, s60, s57")
        if opt.get("fsleep"):
            a(f"s_sleep {opt['fsleep']}")
        if opt.get("fwait", 1):
            a("s_waitcnt vmcnt(0)"); vq.drained()
        PP = opt.get("pp", 0)
        if PP:
            want = sum(1 << (2*order[k]) for k in range(opt.get("pp_heads", 2)))
            a(f"s_and_b32 s57, s60, 0x{want:x}")
            a(f"s_cmp_eq_u32 s57, 0x{want:x}")
            a("s_cbranch_scc1 K_PPOK")
            for k in range(PP):
                a(f"buffer_load_dword v{48+k}, v6, s[24:27], s54 offen sc1")
                if k < PP - 1:
                    a(f"s_sleep {opt.get('pp_sleep', 3)}")
            a.label("K_PPL")
            for k in range(PP):
                a(f"s_waitcnt vmcnt({PP-1})")
                a(f"v_cmp_ne_u32 vcc, -1, v{48+k}")
                a("s_lshr_b32 s57, vcc_lo, 1"); a("s_and_b32 s57, s57, vcc_lo"); a("s_or_b32 s60, s60, s57")
                a(f"s_and_b32 s57, s60, 0x{want:x}")
                a(f"s_cmp_eq_u32 s57, 0x{want:x}")
                a("s_cbranch_scc1 K_PPOK")
                a(f"buffer_load_dword v{48+k}, v6, s[24:27], s54 offen sc1")
            a("s_branch K_PPL")
            a.label("K_PPOK")
    SC = " sc1" if opt.get("a_sc1", 1) else ""
    NT = opt.get("ntail", 3)
    N0 = 16 - NT
    FR = {}
    for n in range(N0):
        for i in range(8):
            FR[(n, i)] = (n, i)
    seq = [(n, i) for i in range(8) for n in range(N0, 16)]
    for k, f in enumerate(seq):
        FR[f] = (N0 + k // 8, k % 8)
    GRP = {}
    for f, (g, j) in FR.items():
        GRP.setdefault(g, {})[j] = f
    def areg(n, i):
        g, j = FR[(n, i)]
        return AQ[(g % 4) * 8 + j]
    def loadsA(g):
        ops = []
        for j in range(8):
            n, i = GRP[g][j]
            b = order[n]
            if g < N0:
                pre = [f"s_add_u32 s43, s53, {b*8192}"] if j == 0 else []
                so = "s43"
            else:
                pre = [f"s_add_u32 s{4 + m - N0}, s53, {order[m]*8192}" for m in range(N0, 16)] if (g == N0 and j == 0) else []
                so = f"s{4 + n - N0}"
            off = " offset:1024" if i % 2 else ""
            ops.append(pre + [("vm", f"buffer_load_dwordx4 {ar(areg(n, i))}, v{2 + i // 2}, s[24:27], {so} offen{off}{SC}", f"A{n}_{i}")])
        return ops
    def check(n):
        b = order[n]
        out = [f"s_bitcmp1_b32 s60, {2*b}", f"s_cbranch_scc1 K_RDY{n}", f"s_mov_b32 s59, {2*b}", "s_swappc_b64 s[68:69], s[66:67]", f"K_RDY{n}:"]
        return out
    def poll(g):
        return [("vm", f"buffer_load_dword v{40 + g % 4}, v6, s[24:27], s54 offen sc1", f"P{g}")]
    def upd(g):
        return [f"v_cmp_ne_u32 vcc, -1, v{40 + g % 4}"], ["s_lshr_b32 s57, vcc_lo, 1", "s_and_b32 s57, s57, vcc_lo", "s_or_b32 s60, s60, s57"]
    def gate_grp(g):
        out = []
        if NS:
            if g < N0:
                out += check(g)
            elif g == N0:
                for m in list(range(N0, 16)) + list(range(NS)):
                    out += check(m)
                out += [("vm", "buffer_load_dword v20, v6, s[24:27], s54 offen sc1", "GF")]
            return out
        if g < N0:
            out += check(g)
        elif g == N0:
            for m in range(N0, 16):
                out += check(m)
            out += [("vm", "buffer_load_dword v20, v6, s[24:27], s54 offen sc1", "GF")]
        if g + 3 <= N0 and g in PSET:
            out += poll(g)
        return out
    TA = opt.get("atouch", 0)
    PSET = opt.get("pset", [3])
    def touchA(n0, n1):
        b0 = order[n0]
        cnt = (n1 - n0) * 8
        return [f"s_add_u32 s56, s53, {b0*8192}", f"s_mov_b64 exec, 0x{(1 << cnt) - 1:x}" if cnt < 32 else "s_mov_b32 exec_hi, 0",
                ("vm", "buffer_load_dword v45, v46, s[24:27], s56 offen sc1", "T"), "s_mov_b64 exec, -1"]
    if FAST:
        vq.need("E")
        stamp(a, opt, 8)
        a("v_cmp_ne_u32 vcc, -1, v44")
        a("s_lshr_b32 s57, vcc_lo, 1"); a("s_and_b32 s60, s57, vcc_lo")
        want = (1 << (2*order[0])) | (1 << (2*order[1]))
        a(f"s_and_b32 s57, s60, 0x{want:x}")
        a(f"s_cmp_eq_u32 s57, 0x{want:x}")
        a("s_cbranch_scc0 K_SLOW")
        q0 = list(vq.q)
        for g in range(2):
            emit([poll(g)])
            emit(loadsA(g))
        flag()
        stamp(a, opt, 9)
        a("s_branch K_GO")
        a.label("K_SLOW")
        vq.q = q0
        flag()
    if NS:
        vq.need("O")
        stamp(a, opt, 8)
        if opt.get("spec_sleep"):
            a(f"s_sleep {opt['spec_sleep']}")
        FPOS = opt.get("fpos", 2)
        for g in range(NS):
            if g == FPOS:
                flag(); vq.q.append("F")
            emit(loadsA(g))
        if FPOS >= NS:
            flag(); vq.q.append("F")
        stamp(a, opt, 9)
    for g in range(0 if NS else 2):
        emit([gate_grp(g)])
        if g == 0:
            stamp(a, opt, 9)
        emit(loadsA(g))
    if FAST:
        a.label("K_GO")
    def redw(i):
        k = i // 2
        return [f"ds_write_b128 {'v7' if k < 2 else 'v8'}, {vr(acc2(i, ct))} offset:{(k % 2)*32768 + (i % 2)*4096 + ct*1024}" for ct in range(4)]
    def Bop(n, ct):
        b = order[n]
        return vr(fB(n % 2, ct)) if b >= 8 else ar(RES[b] + ct * 4)
    issued = set()
    NPOLL = opt.get("npoll", 5)
    for n in range(N0 if NS else 0):
        if n < NS:
            lq.need(regs_of(Bop(n, 0)))
            for i in range(8):
                vq.need(f"A{n}_{i}")
                a(f"{MF} v[48:51], {Bop(n, 0)}, {ar(areg(n, i))}, {'0' if i == 0 else 'v[48:51]'}")
            a("v_cmp_u_f32 vcc, v48, v48")
            a(f"s_cbranch_vccz K_VOK{n}")
            if opt.get("stamps"):
                a("v_readlane_b32 s56, v31, 22")
                a("s_add_u32 s56, s56, 1")
                a("v_writelane_b32 v31, s56, 22")
            a(f"s_mov_b32 s59, {2*order[n]}")
            a("s_swappc_b64 s[68:69], s[66:67]")
            for op in loadsA(n):
                for x in op:
                    a(x[1] if isinstance(x, tuple) else x)
            a("s_waitcnt vmcnt(0)")
            a.label(f"K_VOK{n}")
        else:
            vq.need(f"A{n}_7")
        if n == 0:
            stamp(a, opt, 12)
        if opt.get("pstamps"):
            stamp(a, opt, 32 + n)
        ms = []
        for i in range(8):
            for ct in range(4):
                c = vr(acc2(i, ct))
                ms.append(f"{MF} {c}, {Bop(n, ct)}, {ar(areg(n, i))}, {'0' if n == 0 else c}")
        fill = {}
        if 1 <= n <= NPOLL:
            u1, u2 = upd(n - 1)
            fill[0] = [("needvm", [f"P{n-1}"])] + u1; fill[1] = u2
        if n < NPOLL:
            fill.setdefault(2, []).extend(poll(n))
        if n + 1 < 8:
            spread(fill, [[x] for x in breads(order[n + 1], fB((n + 1) % 2, 0), False)], 4, 20)
        gs = [g for g in range(NS, n + 4) if g not in issued] if n >= 1 else []
        items = []
        for g in gs:
            items += [gate_grp(g)] + loadsA(g); issued.add(g)
        if items:
            spread(fill, items, 3, 30)
        weave(ms, fill)
    for n in range(0 if NS else N0):
        FINE = n < opt.get("fine", 2)
        if not FINE:
            vq.need(f"A{n}_7")
        else:
            vq.need(f"A{n}_0")
        if n == 0:
            stamp(a, opt, 12)
        if opt.get("pstamps"):
            stamp(a, opt, 32 + n)
        ms = []
        for i in range(8):
            for ct in range(4):
                c = vr(acc2(i, ct))
                ms.append(f"{MF} {c}, {Bop(n, ct)}, {ar(areg(n, i))}, {'0' if n == 0 else c}")
        fill = {}
        if n + 3 <= N0 and n in PSET:
            u1, u2 = upd(n)
            fill[0] = u1; fill[1] = u2
        if n + 1 < 8:
            spread(fill, [[x] for x in breads(order[n + 1], fB((n + 1) % 2, 0), False)], 4, 20)
        if n == 0:
            spread(fill, [gate_grp(2)] + loadsA(2), 2, 16)
            spread(fill, [gate_grp(3)] + loadsA(3), 16, 31)
            if TA:
                fill.setdefault(31, []).extend(touchA(4, TA))
        else:
            spread(fill, [gate_grp(n + 3)] + loadsA(n + 3), 2, opt.get("lspan", 22))
        if TA and n + TA < 16:
            fill.setdefault(31, []).extend(touchA(n + TA, n + TA + 1))
        if FINE:
            for i in range(1, 8):
                fill.setdefault(4 * i - 1, []).append(("needvm", [f"A{n}_{i}"]))
        weave(ms, fill)
    if opt.get("pstamps"):
        stamp(a, opt, 32 + N0)
    gf = [("needvm", ["GF"]), "v_mov_b32 v22, v20", "v_permlane16_swap_b32 v20, v22"]
    for r in (20, 22):
        gf += [f"v_sub_f32 v{r+1}, 1.0, v{r}", f"v_cvt_pk_bf16_f32 v{r+1}, v{r+1}, v{r+1}", f"v_and_b32 v{r+1}, 0xffff0000, v{r+1}"]
    gf += [["s_cmp_lt_u32 s38, 2", "s_cbranch_scc1 K_NOSWAP", "v_swap_b32 v20, v21", "v_swap_b32 v22, v23", "K_NOSWAP:"]]
    R = 128
    rds = [f"ds_read_b128 {vr(R + k*32 + j*4)}, v{9+k} offset:{j*1024}" for k in range(3) for j in range(8)]
    for i in range(8):
        vq.need(*[f"A{n}_{i}" for n in range(N0, 16)])
        ms = [f"{MF} {vr(acc2(i, ct))}, {Bop(n, ct)}, {ar(areg(n, i))}, {vr(acc2(i, ct))}" for ct in range(4) for n in range(N0, 16)]
        fill = {}
        if i == 0:
            spread(fill, [x if isinstance(x, list) else [x] for x in gf], 0, len(ms))
        if 1 <= i <= 6:
            spread(fill, [[w] for w in redw(i - 1)], min(2, len(ms) - 4), len(ms))
        if i == 7:
            stamp(a, opt, 14)
            a("s_waitcnt lgkmcnt(0)")
            if opt.get("pstamps"): stamp(a, opt, 17)
            a("s_barrier")
            if opt.get("pstamps"): stamp(a, opt, 18)
            spread(fill, [[r] for r in rds], 0, len(ms))
        weave(ms, fill)
    OWN = acc2(6, 0)
    if opt.get("thr"):
        a("s_memrealtime s[98:99]")
        a("s_waitcnt lgkmcnt(0)")
        a("s_sub_u32 s98, s98, s96")
        a("s_cmp_eq_u32 s97, 0")
        a("s_cselect_b32 s98, s98, 0")
        a(f"s_cmp_gt_u32 s98, {int(opt['thr']*100)}")
        a("s_cbranch_scc1 K_END")
    if opt.get("pstamps"): stamp(a, opt, 19)
    a("s_waitcnt lgkmcnt(15)")
    for j in range(0, 32, 2):
        a(f"v_pk_add_f32 {vr(OWN+j, 2)}, {vr(OWN+j, 2)}, {vr(R+j, 2)}")
    for j in range(0, 32, 2):
        gsel = 20 if j < 16 else 22
        a(f"v_pk_mul_f32 {vr(OWN+j, 2)}, {vr(OWN+j, 2)}, {vr(gsel, 2)} op_sel_hi:[1,0]")
    a("s_waitcnt lgkmcnt(0)")
    for pr in range(4):
        for j in range(8 * pr, 8 * pr + 8, 2):
            a(f"v_pk_add_f32 {vr(R+32+j, 2)}, {vr(R+32+j, 2)}, {vr(R+64+j, 2)}")
        for j in range(8 * pr, 8 * pr + 8, 2):
            gsel = 20 if j < 16 else 22
            a(f"v_pk_fma_f32 {vr(OWN+j, 2)}, {vr(R+32+j, 2)}, {vr(gsel, 2)}, {vr(OWN+j, 2)} op_sel:[0,1,0] op_sel_hi:[1,1,1]")
        b = 64 + 4 * pr
        for j in range(4):
            a(f"v_cvt_pk_bf16_f32 v{b+j}, v{OWN+8*pr+2*j}, v{OWN+8*pr+2*j+1}")
        a(f"v_permlane16_swap_b32 v{b}, v{b+2}")
        a(f"v_permlane16_swap_b32 v{b+1}, v{b+3}")
        if not FL:
            a(f"buffer_store_dwordx4 {vr(b)}, v14, s[16:19], {'s61' if pr < 2 else 's62'} offen offset:{(pr % 2)*64}{opt.get('ost', ' sc1')}")
        elif pr % 2 == 1:
            for j in range(4):
                a(f"v_mov_b32 v{80+j}, v{b-4+j}")
            for j in range(4):
                a(f"v_mov_b32_dpp v{b-4+j}, v{b+j} row_ror:8 row_mask:0xf bank_mask:0xc")
            for j in range(4):
                a(f"v_mov_b32_dpp v{b+j}, v{80+j} row_ror:8 row_mask:0xf bank_mask:0x3")
            so = 's61' if pr < 2 else 's62'
            a(f"buffer_store_dwordx4 {vr(b-4)}, v14, s[16:19], {so} offen{opt.get('ost', ' sc1')}")
            a(f"buffer_store_dwordx4 {vr(b)}, v15, s[16:19], {so} offen{opt.get('ost', ' sc1')}")
    stamp(a, opt, 15)
    if opt.get("probe"):
        a(f"s_cmp_gt_u32 s97, {int(opt['probe'][1]*100)}")
        a("s_cbranch_scc0 K_END")
        a.label("K_SPIN")
        a("s_memrealtime s[98:99]")
        a("s_waitcnt lgkmcnt(0)")
        a("s_sub_u32 s98, s98, s96")
        a("s_cmp_lt_u32 s98, 7000")
        a("s_cbranch_scc1 K_SPIN")
    stamp_out(a, opt, 0)
    if opt.get("dbgout"):
        a(f"s_cmp_eq_u32 s2, {opt.get('dbgwg', 0)}")
        a("s_cbranch_scc0 K_END")
        a("s_cmp_eq_u32 s38, 0")
        a("s_cbranch_scc0 K_END")
        a("v_readlane_b32 s56, v31, 30")
        for k, sl in enumerate([2, 32, 36, 3, 7, 12, 14, 29]):
            a(f"v_readlane_b32 s57, v31, {sl}")
            a("s_sub_u32 s57, s57, s56")
            a(f"v_writelane_b32 v30, s57, {k}")
        a("v_lshlrev_b32 v27, 3, v1")
        a("s_mov_b64 exec, 0xff")
        a("buffer_store_dword v30, v27, s[28:31], 0 offen offset:4")
    a.label("K_END")
    a("s_endpgm")
    a.label("K_WAIT")
    a("buffer_load_dword v44, v6, s[24:27], s54 offen sc1")
    if opt.get("stamps"):
        a("v_readlane_b32 s56, v31, 23")
        a("s_add_u32 s56, s56, 1")
        a("v_writelane_b32 v31, s56, 23")
    a("s_waitcnt vmcnt(0)")
    a("v_cmp_ne_u32 vcc, -1, v44")
    a("s_lshr_b32 s57, vcc_lo, 1"); a("s_and_b32 s57, s57, vcc_lo"); a("s_or_b32 s60, s60, s57")
    a("s_bitcmp1_b32 s60, s59")
    if opt.get("wsleep"):
        a("s_cbranch_scc1 K_LAST")
        a(f"s_sleep {opt['wsleep']}")
        a("s_branch K_WAIT")
    else:
        a("s_cbranch_scc0 K_WAIT")
    a.label("K_LAST")
    a("s_setpc_b64 s[68:69]")

def build(opt):
    a = Asm()
    gen(a, opt)
    out = HEADER + "; @launch grid=(256,1,1) block=(256,1,1) lds=163840\n"
    out += '.amdgcn_target "amdgcn-amd-amdhsa--gfx950"\n.text\n' + a.text() + '.section .rodata,"a"\n' + kd(KNAME, 512, 100 if opt.get('thr') or opt.get('probe') else 96, 256)
    return out

if __name__ == "__main__":
    opt = {}
    for kv in sys.argv[2:]:
        k, v = kv.split("=")
        try:
            v = eval(v)
        except Exception:
            pass
        opt[k] = v
    open(sys.argv[1], "w").write(build(opt))
```

```python
import sys, struct
from asmlib import Asm, Ins, regs_of
from gen import f2u, LdsQ, kd, srd, stamp, stamp_out, HEADER, WS_DIAG, WS_SIZE, WS_SLOT, WS_G, LOG2E, EPS

MF = "v_mfma_f32_16x16x32_bf16"
WS_WOF = 16 << 20
WS_TOT = 20 << 20
KNAME = "gated_mix__linear_attn_block__linear_attn_block__prompt_kernel"
def vr(b, n=4): return f"v[{b}:{b+n-1}]"
def ar(b, n=4): return f"a[{b}:{b+n-1}]"

class VmQ:
    def __init__(self, a):
        self.a = a; self.q = []
    def issue(self, text, tag):
        self.a(text); self.q.append(tag)
    def count(self, tags):
        idx = -1
        for i, t in enumerate(self.q):
            if t in tags:
                idx = i
        if idx < 0:
            return None
        return min(len(self.q) - idx - 1, 63)
    def need(self, *tags, extra=""):
        n = self.count(tags)
        if n is None:
            if extra:
                self.a(f"s_waitcnt {extra}")
            return
        self.a(f"s_waitcnt vmcnt({n}) {extra}".rstrip())
        self.q = self.q[len(self.q) - n:] if n else []
    def drained(self):
        self.q = []

def gen(a, opt):
    global stamp
    _stamp = stamp
    def stamp(a_, opt_, slot, **kw):
        if opt.get("probe") and opt["probe"][0] == slot and not kw.get("real"):
            a("s_memrealtime s[98:99]")
            a("s_waitcnt lgkmcnt(0)")
            a("s_sub_u32 s97, s98, s96")
        return _stamp(a_, opt_, slot, **kw)
    lq = LdsQ(a); vq = VmQ(a)
    ABL = [""]
    def put(x):
        if ABL[0] and isinstance(x, tuple):
            if "x" in ABL[0] and x[0] == "ds" and "b128" in x[1]: return
            if "w" in ABL[0] and x[0] == "ds" and "tr_b16" in x[1]: return
            if "d" in ABL[0] and x[0] == "vm" and x[2][0] in "XW": return
            if "X" in ABL[0] and x[0] == "vm" and x[2][0] == "X": return
        if isinstance(x, tuple):
            if x[0] == "ds":
                lq.issue(x[1])
            elif x[0] == "vm":
                vq.issue(x[1], x[2])
            elif x[0] == "needvm":
                vq.need(*x[1])
            elif x[0] == "needds":
                lq.need(x[1])
        else:
            a(x)
    def weave(mf, fill):
        for g, m in enumerate(mf):
            lq.need(Ins(m).srcAB)
            a(m)
            for x in fill.get(g, []):
                put(x)
    def spread(fill, items, start, end):
        n = len(items)
        for i, it in enumerate(items):
            fill.setdefault(start + (i * (end - start)) // n, []).extend(it)

    XB = [0, 32768]
    WB = [65536 + 24576 * s for s in range(3)]
    EX = 139264
    EX2 = EX + 16384
    ACC = 64
    def acc(rt, ct): return ACC + (rt * 6 + ct) * 4
    def fW(st, ct, ks): return 48 * (st % 2) + (ct * 2 + ks) * 4
    def fX(e, ks): return 96 + e * 8 + ks * 4
    def fXR(rt, ks): return 112 + rt * 8 + ks * 4
    a.raw(f".globl {KNAME}\n.p2align 8\n.type {KNAME},@function")
    a.label(KNAME)
    if opt.get("probe_first"):
        a("s_memrealtime s[96:97]")
        a("s_waitcnt lgkmcnt(0)")
    a("s_cmp_ge_u32 s2, 256")
    a("s_cbranch_scc1 K_END")
    if opt.get("badmap"):
        a("s_lshr_b32 s3, s2, 5")
        a("s_and_b32 s2, s2, 31")
        a("s_lshl_b32 s2, s2, 3")
        a("s_or_b32 s2, s2, s3")
    a("s_load_dwordx4 s[4:7], s[0:1], 0")
    a("s_load_dwordx2 s[8:9], s[0:1], 32")
    a("s_load_dwordx4 s[68:71], s[0:1], 48")
    a("s_load_dwordx4 s[12:15], s[0:1], 64")
    a("s_load_dwordx2 s[74:75], s[0:1], 16")
    a("s_load_dwordx2 s[76:77], s[0:1], 40")
    if (opt.get("thr") or opt.get("probe")) and not opt.get("probe_first"):
        a("s_memrealtime s[96:97]")
    if opt.get("stamps"):
        a("v_mov_b32 v31, 0")
    stamp(a, opt, 30, real=True)
    stamp(a, opt, 0)
    a("v_lshrrev_b32 v21, 6, v0")
    a("v_and_b32 v1, 63, v0")
    a("v_readfirstlane_b32 s38, v21")
    a("s_and_b32 s56, s2, 7")
    a("s_lshr_b32 s57, s2, 3")
    if opt.get("k1map", "A") == "A":
        a("s_and_b32 s36, s57, 7")
        a("s_lshr_b32 s58, s57, 3")
        a("s_lshl_b32 s37, s56, 2")
        a("s_add_u32 s37, s37, s58")
    else:
        a("s_and_b32 s36, s56, 1")
        a("s_lshl_b32 s36, s36, 2")
        a("s_and_b32 s58, s57, 3")
        a("s_add_u32 s36, s36, s58")
        a("s_lshr_b32 s37, s56, 1")
        a("s_lshl_b32 s37, s37, 3")
        a("s_lshr_b32 s58, s57, 2")
        a("s_add_u32 s37, s37, s58")
    a("s_and_b32 s39, s38, 1")
    a("s_lshr_b32 s40, s38, 1")
    a("s_and_b32 s41, s37, 15")
    a("s_lshr_b32 s42, s37, 4")
    a("v_lshrrev_b32 v21, 3, v1")
    a("v_and_b32 v22, 7, v1")
    a("v_lshrrev_b32 v23, 4, v1")
    a("v_and_b32 v24, 1, v23")
    a("v_lshlrev_b32 v24, 2, v24")
    a("v_xor_b32 v24, v22, v24")
    a("v_lshlrev_b32 v24, 4, v24")
    a("v_mul_u32_u24 v25, 6144, v21")
    a("v_add_u32 v24, v24, v25")
    a("v_xor_b32 v25, 32, v24")
    a("s_mul_i32 s56, s38, 6")
    a("s_lshl_b32 s59, s41, 7")
    for i in range(6):
        a(f"s_add_u32 s57, s56, {i}")
        a("s_lshr_b32 s58, s57, 3")
        a("s_and_b32 s57, s57, 7")
        a(f"s_mul_i32 s57, s57, {8*6144}")
        a("s_lshl_b32 s58, s58, 11")
        a("s_add_u32 s57, s57, s58")
        a("s_add_u32 s57, s57, s59")
        if i % 4:
            a(f"s_sub_u32 s57, s57, {(i % 4) * 1024}")
        a(f"v_add_u32 v{10+i}, s57, {'v24' if i % 2 == 0 else 'v25'}")
    a("v_xor_b32 v24, v22, v23")
    a("v_lshlrev_b32 v24, 4, v24")
    a("v_lshl_add_u32 v24, v21, 11, v24")
    a("s_lshl_b32 s56, s36, 19")
    a("s_lshl_b32 s57, s40, 18")
    a("s_add_u32 s56, s56, s57")
    a("s_lshl_b32 s57, s39, 16")
    a("s_add_u32 s56, s56, s57")
    a("v_add_u32 v2, s56, v24")
    a("v_xor_b32 v25, 64, v2")
    for i in range(1, 8):
        src = "v2" if i % 2 == 0 else "v25"
        a(f"v_add_u32 v{2+i}, {(i % 4)*16384 + (i // 4)*131072 - (i % 4) * 1024}, {src}")
    a("s_lshl_b32 s48, s38, 13")
    a("s_lshl_b32 s45, s40, 14")
    a("s_lshl_b32 s57, s39, 12")
    a("s_add_u32 s45, s45, s57")
    a("s_mov_b32 s72, 0")
    a("s_mul_i32 s49, s38, 6144")
    a("s_mov_b32 s43, 0")
    a("s_mov_b32 s44, 0")
    a("s_waitcnt lgkmcnt(0)")
    srd(a, 16, 4, 2048 * 1024 * 2)
    a("s_cmp_eq_u32 s42, 0")
    a("s_cselect_b32 s56, s6, s8")
    a("s_cselect_b32 s57, s7, s9")
    srd(a, 20, 56, 1024 * 3072 * 2)
    stamp(a, opt, 10)

    def dmaXh(t, h):
        ops = []
        so = "s43" if h == 0 else "s72"
        for i in range(4 * h, 4 * h + 4):
            pre = [f"s_add_u32 m0, s45, {XB[t % 2] + h * 8192}"] if i % 4 == 0 else []
            off = f" offset:{(i % 4) * 1024}" if i % 4 else ""
            ops.append(pre + [("vm", f"buffer_load_dwordx4 v{2+i}, s[16:19], {so} offen{off}{opt.get('dpol', '')} lds", f"X{t}{'ab'[h]}")])
        ops[3].append(f"s_add_u32 {so}, {so}, 128")
        return ops
    def dmaX(t):
        return dmaXh(t, 0) + dmaXh(t, 1)
    def dmaW(t):
        ops = []
        for i in range(6):
            pre = [f"s_add_u32 m0, s49, {WB[t % 3] + (i // 4) * 4096}"] if i % 4 == 0 else []
            off = f" offset:{(i % 4) * 1024}" if i % 4 else ""
            ops.append(pre + [("vm", f"buffer_load_dwordx4 v{10+i}, s[20:23], s44 offen{off}{opt.get('dpol', '')} lds", f"W{t}")])
        ops[5].append(f"s_add_u32 s44, s44, {64*6144}")
        return ops
    def emit(groups):
        for op in groups:
            for x in op:
                put(x)
    def xfirst():
        m = opt.get("xf", 0x0f)
        a("v_lshlrev_b32 v38, 7, v1")
        a("s_lshl_b32 s58, s2, 2")
        a("s_add_u32 s58, s58, s38")
        a("s_lshl_b32 s58, s58, 12")
        a(f"s_mov_b32 exec_lo, 0x{m | (m << 16):x}")
        a("s_mov_b32 exec_hi, 0")
        vq.issue("buffer_load_dword v39, v38, s[16:19], s58 offen", "T")
        a("s_mov_b64 exec, -1")
    if opt.get("xf", 0x0f) and opt.get("xf_pos", 0) == 0: xfirst()
    emit(dmaW(0))
    if opt.get("xf", 0x0f) and opt.get("xf_pos", 0) == 1: xfirst()
    emit(dmaX(0))
    if opt.get("xf", 0x0f) and opt.get("xf_pos", 0) == 2: xfirst()
    LX, LW = opt.get("lx", 0), opt.get("lw", 0)
    if LX or LW:
        a("s_lshr_b32 s58, s2, 3")
        a("s_lshl_b32 s58, s58, 2")
        a("s_add_u32 s58, s58, s38")
    def ltw():
        a("v_bfe_u32 v40, v1, 2, 2")
        a("v_lshlrev_b32 v40, 11, v40")
        a("v_and_b32 v41, 3, v1")
        a("v_lshl_add_u32 v40, v41, 7, v40")
        a(f"v_mul_u32_u24 v41, {128*6144}, v23")
        a("v_add_u32 v40, v40, v41")
        a(f"s_add_u32 s56, s58, {opt.get('lw0', 64)}")
        a("s_mul_i32 s56, s56, 6144")
        a("s_and_b32 s57, s41, 12")
        a("s_lshl_b32 s57, s57, 7")
        a("s_add_u32 s56, s56, s57")
        m = sum(0xfff << (16 * k) for k in range(LW))
        a(f"s_mov_b32 exec_lo, 0x{m & 0xffffffff:x}")
        a(f"s_mov_b32 exec_hi, 0x{m >> 32:x}")
        vq.issue("buffer_load_dword v39, v40, s[20:23], s56 offen", "T")
        a("s_mov_b64 exec, -1")
    def ltx():
        a("v_and_b32 v42, 15, v1")
        a("v_lshlrev_b32 v42, 11, v42")
        a("v_lshl_add_u32 v42, v23, 7, v42")
        a("s_lshl_b32 s56, s58, 15")
        m = (1 << (16 * LX)) - 1
        a(f"s_mov_b32 exec_lo, 0x{m & 0xffffffff:x}")
        a(f"s_mov_b32 exec_hi, 0x{m >> 32:x}")
        vq.issue("buffer_load_dword v39, v42, s[16:19], s56 offen offset:128", "T")
        a("s_mov_b64 exec, -1")
    if LW: ltw()
    if LX: ltx()
    if opt.get("pre0"):
        emit(dmaW(1))
    stamp(a, opt, 11)
    srd(a, 24, 14, WS_TOT)
    srd(a, 28, 12, 256)
    srd(a, 32, 68, 2048)
    a("v_lshlrev_b32 v26, 4, v1")
    a("s_lshl_b32 s46, s37, 1")
    a("s_add_u32 s46, s46, s40")
    a("s_lshl_b32 s47, s36, 1")
    a("s_add_u32 s47, s47, s39")
    a("s_lshl_b32 s56, s47, 7")
    a("s_lshl_b32 s57, s46, 1")
    a("s_add_u32 s56, s56, s57")
    a("s_lshl_b32 s60, s56, 11")
    FS = opt.get("fs", 3)
    GB = WS_G if FS == 3 else WS_WOF
    a(f"s_lshl_b32 s55, s56, {FS - 1}")
    a(f"s_add_u32 s55, s55, {GB}")
    a("s_lshl_b32 s56, s47, 19")
    a("s_lshl_b32 s57, s46, 13")
    a("s_add_u32 s65, s56, s57")
    a("s_lshl_b32 s56, s37, 17")
    a("s_lshl_b32 s57, s38, 12")
    a("s_add_u32 s61, s56, s57")
    a(f"s_add_u32 s61, s61, {WS_SLOT}")
    a("s_lshl_b32 s57, s36, 14")
    a("s_add_u32 s62, s61, s57")
    a("v_lshrrev_b32 v27, 4, v1")
    a("v_lshlrev_b32 v27, 4, v27")
    a("v_and_b32 v30, 7, v1")
    a("v_lshl_add_u32 v30, v30, 14, v27")
    a("s_lshl_b32 s63, s37, 3")
    for i in range(4):
        a(f"v_mov_b32 v{32+i}, -1")
    a("v_lshlrev_b32 v38, 7, v1")
    a("v_mov_b32 v28, 1")
    if opt.get("thr"):
        a("s_getreg_b32 s56, hwreg(HW_REG_XCC_ID)")
        a("s_sub_u32 s56, s56, s2")
        a("s_and_b32 s56, s56, 7")
        a("s_mul_i32 s57, s56, s56")
        a("s_lshl_b32 s57, s57, 20")
        a("s_lshl_b32 s56, s56, 12")
        a("s_add_u32 s56, s56, s57")
        a("s_lshl_b32 s99, s56, 3")
        a("s_add_u32 s99, s99, 8")
        a("s_add_u32 s56, s56, 1")
        a("v_mov_b32 v28, s56")
    a("v_mov_b32 v29, 0")
    sent = [[("vm", "buffer_store_dwordx4 v[32:35], v26, s[24:27], s62 offen sc1", "S")],
            [("vm", "buffer_store_dwordx4 v[32:35], v26, s[24:27], s62 offen offset:1024 sc1", "S")],
            [("vm", "buffer_store_dwordx4 v[32:35], v27, s[24:27], s62 offen offset:2048 sc1", "S")],
            [("vm", "buffer_store_dwordx2 v[32:33], v29, s[24:27], s55 offen sc1", "S")]]
    NS = opt.get("spec", 0)
    if NS:
        a("s_lshl_b32 s56, s2, 2")
        a("s_add_u32 s56, s56, s38")
        a("s_lshr_b32 s57, s56, 4")
        a("s_lshl_b32 s57, s57, 17")
        a("s_and_b32 s56, s56, 15")
        a(f"s_mul_i32 s56, s56, {NS*512}")
        a("s_add_u32 s3, s56, s57")
        a("s_add_u32 s3, s3, 65536")
        for k in range(NS // 2):
            sent.append([("vm", f"buffer_store_dwordx4 v[32:35], v26, s[24:27], s3 offen offset:{k*1024} sc1", "S")])
    if opt.get("sent_pro"):
        emit(sent)
    a("v_and_b32 v21, 15, v1")
    a("v_lshrrev_b32 v22, 4, v1")
    a("v_bfe_u32 v23, v1, 1, 3")
    a("v_xor_b32 v23, v23, v22")
    a("v_lshlrev_b32 v23, 4, v23")
    a("v_lshl_add_u32 v23, v21, 7, v23")
    a("s_lshl_b32 s56, s39, 14")
    a("v_add_u32 v16, s56, v23")
    a("v_xor_b32 v17, 64, v16")
    a("v_bfe_u32 v23, v1, 2, 2")
    a("v_lshl_add_u32 v24, v22, 3, v23")
    a("v_lshlrev_b32 v24, 7, v24")
    a("v_bfe_u32 v25, v1, 1, 1")
    a("s_lshl_b32 s56, s40, 2")
    a("v_or_b32 v25, s56, v25")
    a("v_and_b32 v36, 2, v23")
    a("v_lshlrev_b32 v36, 1, v36")
    a("v_xor_b32 v25, v25, v36")
    a("v_and_b32 v36, 1, v22")
    a("v_lshlrev_b32 v36, 1, v36")
    a("v_xor_b32 v25, v25, v36")
    a("v_lshl_add_u32 v24, v25, 4, v24")
    a("v_and_b32 v36, 1, v1")
    a("v_lshl_add_u32 v24, v36, 3, v24")
    ES = opt.get("es", 1)
    if ES:
        a("s_lshl_b32 s56, s39, 5")
        a("v_xor_b32 v24, s56, v24")
    a("v_xor_b32 v25, 32, v24")
    for s in range(3):
        a(f"v_add_u32 v{18+2*s}, {WB[s]}, v24")
        a(f"v_add_u32 v{19+2*s}, {WB[s]}, v25")
    a(f"v_mov_b32 v36, 0x{f2u(EPS):08x}")
    a(f"v_mov_b32 v37, v36")
    for rt in range(8):
        for r in range(0, 16, 2):
            a(f"v_pk_mov_b32 {vr(acc(rt, 0) + r, 2)}, v[36:37], v[36:37]")
    if opt.get("wpace", 6):
        a("s_lshl_b32 s56, s2, 2")
        a("s_add_u32 s56, s56, s38")
        a("s_bitcmp1_b32 s56, 3")
        a("s_cselect_b32 s84, s8, s6")
        a("s_cselect_b32 s85, s9, s7")
        a("s_and_b32 s85, s85, 0xffff")
        a(f"s_mov_b32 s86, {1024*3072*2}")
        a("s_mov_b32 s87, 0x00020000")
        a("s_lshr_b32 s57, s56, 4")
        a(f"s_add_u32 s57, s57, {64*opt.get('wpace', 6)}")
        a("s_mul_i32 s73, s57, 6144")
        a("s_and_b32 s57, s56, 7")
        a("s_mul_i32 s57, s57, 768")
        a("s_add_u32 s73, s73, s57")
        pass
    PRE = opt.get("pre", "W1")
    pre_list = {"none": [], "W1": dmaW(1), "W1X1": dmaW(1) + dmaX(1)}[PRE]
    if opt.get("pre0"):
        pre_list = pre_list[6:]
    if opt.get("pre_first"):
        emit(pre_list); pre_list = []
    ET = opt.get("etouch", 1)
    if ET == 1:
        a("s_lshl_b32 s56, s2, 2")
        a("s_add_u32 s56, s56, s38")
        a("s_lshr_b32 s57, s56, 4")
        a("s_lshl_b32 s57, s57, 3")
        a("s_and_b32 s58, s56, 7")
        a("s_add_u32 s57, s57, s58")
        a(f"s_add_u32 s57, s57, {opt.get('et_row0', 0)}")
        a(f"s_cmp_lt_u32 s57, {64*opt.get('wpace', 6)}")
        a("s_cselect_b32 s57, s57, 1024")
        a("s_mul_i32 s57, s57, 6144")
        a("v_lshlrev_b32 v40, 10, v1")
        a("s_mov_b64 exec, 0x3f")
        vq.issue("buffer_load_dword v39, v40, s[84:87], s57 offen offset:384", "T")
        a("s_mov_b64 exec, -1")
    if ET == 2:
        for st in range(opt.get("et0", 2), opt.get("wpace", 6)):
            a(f"s_sub_u32 s57, s73, {(opt.get('wpace', 6) - st)*64*6144}")
            a("s_mov_b64 exec, 0x3f")
            vq.issue("buffer_load_dword v39, v38, s[84:87], s57 offen", "T")
            a("s_mov_b64 exec, -1")
    if opt.get("ctouch", 1):
        a("s_getpc_b64 s[56:57]")
        a.label("K_CT")
        a(f"s_sub_u32 s56, s56, K_CT-{KNAME}")
        a("s_subb_u32 s57, s57, 0")
        a("s_mov_b64 s[88:89], s[56:57]")
        a("s_lshr_b32 s58, s2, 3")
        a("s_lshl_b32 s58, s58, 2")
        a("s_add_u32 s58, s58, s38")
        a("s_lshl_b32 s79, s58, 7")
        a("s_mul_i32 s58, s58, 384")
        a("v_add_u32 v40, s58, v38")
        a(f"v_min_u32 v40, K_LAST-{KNAME}, v40")
        a("v_mov_b32 v41, s57")
        a("v_add_co_u32 v40, vcc, s56, v40")
        a("v_addc_co_u32 v41, vcc, 0, v41, vcc")
        a("s_mov_b64 exec, 7")
        vq.issue("global_load_dword v39, v[40:41], off", "T")
        a("s_mov_b64 exec, -1")
    emit(pre_list)
    if opt.get("xsp", 0x30):
        m = opt.get("xsp", 0x30)
        emit([[f"s_mov_b32 exec_lo, 0x{m | (m << 16):x}", "s_mov_b32 exec_hi, 0", ("vm", "buffer_load_dword v39, v38, s[16:19], s60 offen", "T"), "s_mov_b64 exec, -1"]])
    stamp(a, opt, 1)

    def rdW(t):
        ops = []
        for ct in range(6):
            for ks in range(2):
                for sub in range(2):
                    r = fW(t, ct, ks) + 2 * sub
                    ops.append(("ds", f"ds_read_b64_tr_b16 {ar(r, 2)}, v{18 + 2*(t % 3) + (ct & 1)} offset:{(ct >> 1)*8192 + ks*4096 + sub*512}"))
        return ops
    def rdX(t, rt, dst):
        return [("ds", f"ds_read_b128 {ar(dst(ks))}, v{16+ks} offset:{XB[t % 2] + rt*2048}") for ks in range(2)]
    def mf(t, rt, cts, X):
        out = []
        for ct in cts:
            for ks in range(2):
                W = ar(fW(t, ct, ks))
                A, B = (W, ar(X(ks))) if ct < 2 else (ar(X(ks)), W)
                c = vr(acc(rt, ct))
                cin = "0" if (t == 0 and ks == 0 and ct >= 4) else c
                out.append(f"{MF} {c}, {A}, {B}, {cin}")
        return out
    DEFER = opt.get("defer", 2)
    HST = opt.get("hst", 8)
    DSP = opt.get("dma_per_block", 2)
    IL = opt.get("il", 1)
    def cts_of(t):
        if IL and t == 15:
            return [2, 3]
        return [2, 3, 4, 5] if t >= 16 - DEFER else [0, 1, 2, 3, 4, 5]
    def Xreg(t, rt): return (lambda ks: fXR(rt, ks)) if t == 15 else (lambda ks: fX(rt % 2, ks))
    def blocks2(seq, pend, wreads, front=None, valu=()):
        CAP = opt.get("cap", 2)
        VC = opt.get("vcost", 2)
        nbs = [len(cts_of(t)) * 2 for t, _ in seq]
        starts = [sum(nbs[:i]) for i in range(len(seq))]
        G = sum(nbs)
        load = [0] * (G + 64)
        fill = {}
        def cost(x):
            if isinstance(x, tuple):
                return VC if x[0] == "vm" else (1 if x[0] == "ds" else 0)
            return 0 if x.endswith(":") else 1
        def place(g, grp, lim=None):
            c = sum(cost(x) for x in grp)
            lim = G - 1 if lim is None else lim
            g0 = g
            while g < lim and load[g] + min(c, CAP) > CAP:
                g += 1
            g = min(g, lim)
            load[g] += c
            fill.setdefault(g, []).extend(grp)
            return g
        if front:
            fill[0] = list(front); load[0] = 99
        for n, (t, rt) in enumerate(seq):
            if rt < 7: nx = rdX(t, rt + 1, Xreg(t, rt + 1))
            elif t < 15: nx = rdX(t + 1, 0, Xreg(t + 1, 0))
            else: nx = []
            for k, x in enumerate(nx):
                fill.setdefault(starts[n] + k, []).append(x); load[starts[n] + k] += 1
            if n: load[starts[n] - 1] += 1
        stream = []
        for grp in pend:
            atomic = any(isinstance(x, str) and ("exec" in x or x.endswith(":") or "cbranch" in x) for x in grp)
            if atomic: stream.append((grp, True))
            else:
                for x in grp: stream.append(([x], isinstance(x, tuple) and x[0] == "vm"))
        nv = sum(1 for _, v in stream if v)
        if nv:
            step = min(max(nbs) / DSP, (G - 3) / nv)
            pos = 2.0; last = 0
            for idx, (grp, isv) in enumerate(stream):
                if isv:
                    last = place(max(last, int(pos)), grp) ; pos = max(pos + step, last + 1.0)
                    last_v = last
                else:
                    nxt_v = idx + 1 < len(stream) and (stream[idx + 1][1] or not stream[idx+1][1]) and "m0" in grp[0]
                    tgt = max(last, int(pos) - 1) if nxt_v else last
                    last = place(tgt, grp)
                    if nxt_v: pos = max(pos, last + 1.0)
        ok = [starts[n] + g for n, (t, rt) in enumerate(seq) if rt < 7 for g in range(nbs[n])]
        if wreads:
            WEND = opt.get("wend", 8)
            ok2 = ok[:max(len(wreads) // 2, len(ok) - WEND)]
            last = ok2[0]
            for k, x in enumerate(wreads):
                last = place(max(last, ok2[(k * len(ok2)) // len(wreads)]), [x], lim=ok[-1])
        valu = [x if isinstance(x, list) else [x] for x in valu]
        last = 0
        for k, grp in enumerate(valu):
            last = place(max(last, (k * (G - 4)) // len(valu)), grp)
        for n, (t, rt) in enumerate(seq):
            lq.need(regs_of(ar(Xreg(t, rt)(0), 8)))
            weave(mf(t, rt, cts_of(t), Xreg(t, rt)), {g - starts[n]: v for g, v in fill.items() if starts[n] <= g < starts[n] + nbs[n]})

    def blocks(seq, pend, wreads, front=None, valu=()):
        if opt.get("sched2", 1):
            return blocks2(seq, pend, wreads, front, valu)
        pend = list(pend); wreads = list(wreads); valu = list(valu)
        for n, (t, rt) in enumerate(seq):
            cts = cts_of(t)
            nb = len(cts) * 2
            fill = {}
            if rt < 7:
                nx = rdX(t, rt + 1, Xreg(t, rt + 1))
            elif t < 15:
                nx = rdX(t + 1, 0, Xreg(t + 1, 0))
            else:
                nx = []
            items = [[x] for x in nx]
            left_w = len([1 for (_, r) in seq[n:] if r < 7])
            if rt < 7 and wreads:
                k = -(-len(wreads) // left_w)
                items += [[x] for x in wreads[:k]]
                wreads = wreads[k:]
            if n == 0 and front:
                fill[0] = list(front)
            spread(fill, items, 0, nb - 1)
            k = min(len(pend), max(DSP, -(-len(pend) // (len(seq) - n))))
            spread(fill, pend[:k], 1, nb)
            pend = pend[k:]
            k = -(-len(valu) // (len(seq) - n))
            spread(fill, [x if isinstance(x, list) else [x] for x in valu[:k]], 0, nb)
            valu = valu[k:]
            weave(mf(t, rt, cts, Xreg(t, rt)), fill)
        assert not pend and not wreads and not valu

    vq.need("W0", "X0a")
    a("s_barrier")
    stamp(a, opt, 2)
    stamp(a, opt, 25, real=True)
    w0 = rdW(0)
    for x in w0[:4] + rdX(0, 0, lambda ks: fX(0, ks)) + w0[4:13]:
        put(x)
    rest0 = ([] if PRE != "none" else dmaW(1)) + ([] if PRE == "W1X1" else dmaXh(1, 0)) + dmaW(2) + ([] if PRE == "W1X1" else dmaXh(1, 1))
    k0 = min(len(rest0), opt.get("k0", 10))
    blocks([(0, r) for r in range(3)], rest0[:k0], [], front=w0[13:])
    vq.need("W1", "X0b", extra="lgkmcnt(0)")
    lq.drained()
    a("s_barrier")
    x0 = []
    if opt.get("xs0"):
        m = opt["xs0"]
        x0 = [[f"s_mov_b32 exec_lo, 0x{m | (m << 16):x}", "s_mov_b32 exec_hi, 0", ("vm", "buffer_load_dword v39, v38, s[16:19], s60 offen", "T"), "s_mov_b64 exec, -1"]]
    blocks([(0, r) for r in range(3, 7)], rest0[k0:] + dmaXh(2, 0) + dmaW(3) + x0, rdW(1))

    def window1(t, extra=(), last=False, valu=(), first=()):
        ABL[0] = opt.get("abl", "") if 1 <= t <= 12 else ""
        vq.need(f"X{t+1}a", f"X{t+1}b", f"W{t+2}", *( ["S"] if t == HST else []), extra="lgkmcnt(0)")
        lq.drained()
        a("s_barrier")
        if opt.get("wstamps"):
            stamp(a, opt, 32 + t)
        pend = list(first)
        if t + 2 <= 15:
            pend += dmaX(t + 2) if t > 0 else dmaXh(2, 1)
        if t + 4 <= 15:
            pend += dmaW(t + 4)
        pend += list(extra)
        seq = [(t, 7)] + [(t + 1, r) for r in range(8 if last else 7)]
        blocks(seq, pend, rdW(t + 2) if t + 2 <= 15 else [], valu=valu)

    def window(t, extra=(), last=False, valu=(), first=()):
        if not opt.get("mid", 0):
            return window1(t, extra, last, valu, first)
        vq.need(f"X{t+1}a", f"W{t+2}", *( ["S"] if t == HST else []), extra="lgkmcnt(0)")
        lq.drained()
        a("s_barrier")
        if opt.get("wstamps"):
            stamp(a, opt, 32 + t)
        pend = list(first)
        if t + 2 <= 15:
            pend += dmaXh(t + 2, 1)
        wd = dmaW(t + 4) if t + 4 <= 15 else []
        pend += wd[:4]
        wr = rdW(t + 2) if t + 2 <= 15 else []
        valu = list(valu); extra = list(extra)
        nv = len(valu) // 2
        ne = len(extra) // 2 if last else 0
        blocks([(t, 7)] + [(t + 1, r) for r in range(3)], pend + extra[:ne], wr[:10], valu=valu[:nv])
        vq.need(f"X{t+1}b")
        lq.need(regs_of(ar(Xreg(t + 1, 3)(0), 8)))
        a("s_barrier")
        pend = []
        if t + 3 <= 15:
            pend += dmaXh(t + 3, 0)
        if wd:
            wd[4] = [f"s_add_u32 m0, s49, {WB[(t + 4) % 3] + 4096}"] + wd[4][1:]
        pend += wd[4:] + extra[ne:]
        blocks([(t + 1, r) for r in range(3, 8 if last else 7)], pend, wr[10:], valu=valu[nv:])

    hs = ["s_cmp_lg_u32 s38, 0", "s_cbranch_scc1 K_NOATOM", "s_mov_b64 exec, 1",
          "buffer_atomic_add v28, v29, s[28:31], s63 offen sc1", "s_mov_b64 exec, -1", "K_NOATOM:"]
    G = 64
    gate = [("needvm", ["G"]), "v_mov_b32 v38, 0", "v_mov_b32 v39, 0"]
    for i in range(8):
        gr = lambda j: acc(j // 4, 1) + j % 4
        gate.append(f"v_dot2_f32_bf16 v38, v{gr(i)}, v{gr(16+i)}, v38")
        gate.append(f"v_dot2_f32_bf16 v39, v{gr(8+i)}, v{gr(16+i)}, v39")
    for ctrl in ("quad_perm:[1,0,3,2]", "quad_perm:[2,3,0,1]", "row_half_mirror", "row_mirror"):
        for r in (38, 39):
            gate.append(f"v_add_f32_dpp v{r}, v{r}, v{r} {ctrl} row_mask:0xf bank_mask:0xf")
    gate2 = []
    for r in (38, 39):
        for k, ln in enumerate((0, 16, 32, 48)):
            gate2.append(f"v_readlane_b32 s{4 + (r-38)*4 + k}, v{r}, {ln}")
    for r, s0 in ((38, 4), (39, 8)):
        gate2 += [f"v_mov_b32 v{r}, s{s0}", f"v_add_f32 v{r}, s{s0+1}, v{r}", f"v_add_f32 v{r}, s{s0+2}, v{r}", f"v_add_f32 v{r}, s{s0+3}, v{r}"]
    for ops in (["v_cvt_pk_bf16_f32 v{r}, v{r}, v{r}", "v_and_b32 v{r}, 0xffff0000, v{r}", "v_mul_f32 v{r}, 0x%08x, v{r}" % f2u(-LOG2E),
                 "v_exp_f32 v{r}, v{r}", "v_add_f32 v{r}, 1.0, v{r}", "v_rcp_f32 v{r}, v{r}", "v_cvt_pk_bf16_f32 v{r}, v{r}, v{r}",
                 "v_and_b32 v{r}, 0xffff0000, v{r}"]):
        for r in (38, 39):
            gate2.append(ops.format(r=r))

    LM = opt.get("lm", 2)
    p2 = ["s_and_b32 s56, s2, 7", "s_lshr_b32 s57, s2, 3",
          f"s_and_b32 s50, s56, {(16 >> LM) - 1}", f"s_lshl_b32 s50, s50, {LM}", f"s_and_b32 s58, s57, {(1 << LM) - 1}", "s_add_u32 s50, s50, s58",
          f"s_lshr_b32 s51, s56, {4 - LM}", f"s_lshl_b32 s51, s51, {5 - LM}", f"s_lshr_b32 s58, s57, {LM}", "s_add_u32 s51, s51, s58",
          ["s_cmp_lt_u32 s38, 2", "s_cselect_b32 s80, s74, s76", "s_cselect_b32 s81, s75, s77"],
          "s_and_b32 s81, s81, 0xffff", f"s_mov_b32 s82, {1024*1024*2}", "s_mov_b32 s83, 0x00020000",
          "s_lshl_b32 s52, s39, 20", "s_lshl_b32 s56, s51, 7", "s_add_u32 s52, s52, s56",
          "s_lshl_b32 s53, s50, 19", "s_lshl_b32 s56, s38, 17", "s_add_u32 s53, s53, s56",
          f"s_lshl_b32 s56, s50, {6 + FS}", f"s_lshl_b32 s57, s38, {4 + FS}", "s_add_u32 s56, s56, s57", f"s_add_u32 s54, s56, {GB}",
          "v_lshrrev_b32 v48, 3, v1", "v_and_b32 v49, 7, v1", "v_bfe_u32 v50, v1, 4, 1", "v_lshlrev_b32 v50, 2, v50",
          "v_xor_b32 v49, v49, v50", "v_bfe_u32 v50, v1, 5, 1", "v_lshlrev_b32 v50, 1, v50", "v_xor_b32 v49, v49, v50",
          "v_lshlrev_b32 v49, 4, v49", "v_lshl_add_u32 v40, v48, 11, v49"]
    p2 += [f"v_add_u32 v{40+i}, {i*(8*2048 - 1024)}, v40" for i in range(1, 4)]
    HS = opt.get("halfst", 1)
    p2 += ["s_mul_i32 s64, s38, 6144" if HS else "s_lshl_b32 s64, s38, 12", f"s_add_u32 s64, s64, {EX}"]
    p2b = ["v_lshrrev_b32 v48, 4, v1", "v_bfe_u32 v49, v1, 2, 2", "v_lshl_add_u32 v50, v48, 2, v49", "v_lshlrev_b32 v50, 7, v50",
           "v_bfe_u32 v51, v1, 1, 1", "v_and_b32 v52, 2, v49", "v_lshlrev_b32 v52, 1, v52", "v_xor_b32 v51, v51, v52",
           "v_and_b32 v52, 1, v48", "v_lshlrev_b32 v52, 1, v52", "v_xor_b32 v51, v51, v52", "v_lshl_add_u32 v50, v51, 4, v50",
           "v_and_b32 v52, 1, v1", "v_lshl_add_u32 v50, v52, 3, v50", "v_add_u32 v44, s64, v50"]
    p2b += [f"v_xor_b32 v{44+ct}, {ct*32}, v44" for ct in range(1, 4)]
    p2b += ["v_lshlrev_b32 v53, 3, v1"]
    p2c = [f"v_mov_b32 v{12+i}, v{40+i}" for i in range(4)] + ["s_add_u32 s56, s48, 0x10000", "v_add_u32 v32, s56, v50"]
    p2c += [f"v_xor_b32 v{32+ct}, {ct*32}, v32" for ct in range(1, 4)]
    SLOT = {}
    RES = {0: 176, 1: 192, 2: 208, 3: 224, 4: 240, 5: 16, 6: 32, 7: 64}
    AQ = [q for q in range(0, 256, 4) if not any(r <= q < r + 16 for r in RES.values())]
    assert len(AQ) == 32
    def dmaB(b, slot):
        SLOT[b] = slot
        ops = []
        for j in range(4):
            off = f" offset:{j*1024}" if j else ""
            m0 = "s_mov_b32 m0, s64" if slot is None else f"s_add_u32 m0, s48, {slot}"
            ops.append(([m0] if j == 0 else []) +
                       [("vm", f"buffer_load_dwordx4 v{(40 if slot is None else 12)+j}, s[80:83], s52 offen{off} lds", f"B{b}")])
        ops[-1].append("s_add_u32 s52, s52, 65536")
        return ops
    def breads(b, dst, agpr):
        sl = SLOT[b]
        base = 44 if sl is None else (32 if sl >= 65536 else 16)
        o = 0 if sl is None else sl % 65536
        return [("ds", f"ds_read_b64_tr_b16 {(ar if agpr else vr)(dst + ct*4 + 2*sub, 2)}, v{base+ct} offset:{o + sub*2048}")
                for ct in range(4) for sub in range(2)]
    PD = opt.get("wpace", 6)
    def wp():
        return ["s_mov_b64 exec, 0x3f", ("vm", "buffer_load_dword v39, v38, s[84:87], s73 offen", "T"), "s_mov_b64 exec, -1",
                f"s_add_u32 s73, s73, {64*6144}"]
    wt_setup = [["s_bitcmp1_b32 s38, 0", "s_cselect_b32 s92, s76, s74", "s_cselect_b32 s93, s77, s75"], "s_and_b32 s93, s93, 0xffff",
                f"s_mov_b32 s94, {1024*1024*2}", "s_mov_b32 s95, 0x00020000",
                "s_lshl_b32 s78, s2, 1", "s_add_u32 s78, s78, s40", "s_lshl_b32 s78, s78, 12"]
    WTN, WT0 = opt.get("wtn", 4), opt.get("wt0", 9)
    def wt(k):
        n = 32 // WTN
        return [f"s_mov_b64 exec, 0x{(1 << n) - 1:x}",
                ("vm", f"buffer_load_dword v39, v38, s[92:95], s78 offen offset:{k*n*128}", "T"), "s_mov_b64 exec, -1"]
    xs = opt.get("xsplit", {0: 0xc0, 1: 0x300, 2: 0xc00, 3: 0x3000, 4: 0xc000})
    ST0 = opt.get("st0", 2 if HS else 3)
    sw = opt.get("sent_w", [4, 5, 6, 6, 4, 5]) if not opt.get("sent_pro") else [-1] * 6
    for t in range(15):
        kw = {"extra": [], "valu": []}
        if xs and t in xs:
            m = xs[t]
            kw["extra"] += [[f"s_mov_b32 exec_lo, 0x{m | (m << 16):x}", "s_mov_b32 exec_hi, 0", ("vm", "buffer_load_dword v39, v38, s[16:19], s60 offen", "T"), "s_mov_b64 exec, -1"]]
        if PD and t + PD <= 15: kw["extra"] += [wp()]
        if t == ST0 - 2: kw["valu"] += p2
        if t == ST0 - 1: kw["valu"] += p2b
        for k in range(len(sent)):
            if sw[k] == t: kw["extra"] += [sent[k]]
        if t == HST: kw["extra"] += [hs]
        TL = opt.get("tlb", "")
        if TL and t == opt.get("tlb_w", 12):
            grp = ["s_mov_b64 exec, 1"]
            if "o" in TL: grp.append(("vm", "buffer_load_dword v39, v29, s[24:27], s65 offen sc1", "T"))
            if "a" in TL: grp.append(("vm", "buffer_load_dword v39, v29, s[24:27], s53 offen sc1", "T"))
            if "A" in TL:
                grp += ["s_mov_b64 exec, 3", "v_lshlrev_b32 v54, 16, v1", ("vm", "buffer_load_dword v39, v54, s[24:27], s53 offen sc1", "T"), "s_mov_b64 exec, 1"]
            if "u" in TL:
                grp += ["s_lshl_b32 s59, s50, 18", "s_lshl_b32 s58, s38, 16", "s_add_u32 s59, s59, s58", "v_mov_b32 v54, s59",
                        ("vm", "global_load_dword v39, v54, s[70:71]", "T")]
            kw["extra"] += [grp + ["s_mov_b64 exec, -1"]]
        for (tw, lab, nl) in opt.get("ct2", [(4, "K_W7", 1), (12, "K_TAIL", 2)]):
            if t == tw:
                kw["extra"] += [[f"s_add_u32 s59, s79, {lab}-{KNAME}", "v_lshlrev_b32 v54, 14, v1", "v_add_u32 v54, s59, v54",
                                 f"v_min_u32 v54, K_LAST-{KNAME}, v54", "v_mov_b32 v55, s89"],
                                ["v_add_co_u32 v54, vcc, s88, v54", "v_addc_co_u32 v55, vcc, 0, v55, vcc", f"s_mov_b64 exec, {(1 << nl) - 1}",
                                 ("vm", "global_load_dword v39, v[54:55], off", "T"), "s_mov_b64 exec, -1"]]
        a.label(f"K_W{t}")
        if t == WT0 - 1: kw["valu"] += wt_setup
        if WT0 <= t < WT0 + WTN: kw["extra"] += [wt(t - WT0)]
        LT = opt.get("lt")
        if LT:
            if t == min(LT) - 1:
                kw["valu"] += ["v_lshrrev_b32 v55, 3, v1", "v_lshlrev_b32 v55, 16, v55", "v_and_b32 v56, 7, v1", "v_lshl_add_u32 v55, v56, 7, v55",
                               "s_lshl_b32 s3, s39, 20", "s_lshr_b32 s56, s2, 3", "s_lshl_b32 s56, s56, 11", "s_add_u32 s3, s3, s56",
                               "s_and_b32 s56, s2, 4", "s_lshl_b32 s56, s56, 8", "s_add_u32 s3, s3, s56"]
            if t in LT:
                b0, nb_ = LT[t]
                kw["extra"] += [[f"s_add_u32 s56, s3, {b0*65536}", f"s_mov_b32 exec_lo, 0x{(1 << (8*nb_)) - 1:x}", "s_mov_b32 exec_hi, 0",
                                 ("vm", "buffer_load_dword v39, v55, s[80:83], s56 offen", "T"), "s_mov_b64 exec, -1"]]
        if HS:
            h = t - ST0
            if 0 <= h < 10:
                sub = h % 2
                grp = []
                for j in (2*sub, 2*sub + 1):
                    off = f" offset:{j*1024}" if j else ""
                    grp.append(([f"s_add_u32 m0, s64, {(h % 3)*2048 - sub*2048}"] if j % 2 == 0 else []) +
                               [("vm", f"buffer_load_dwordx4 v{40+j}, s[80:83], s52 offen{off} lds", f"H{h}")])
                if sub:
                    grp[-1].append("s_add_u32 s52, s52, 65536")
                kw["extra"] += grp
            h = t - ST0 - 2
            if 0 <= h < 10:
                kw["valu"] += [("needvm", [f"H{h}"])] + [("ds", f"ds_read_b64_tr_b16 {ar(RES[h // 2] + ct*4 + 2*(h % 2), 2)}, v{44+ct} offset:{(h % 3)*2048}") for ct in range(4)]
        elif ST0 <= t < ST0 + 10:
            b = (t - ST0) // 2
            if (t - ST0) % 2 == 0:
                kw["extra"] += dmaB(b, None)
            else:
                kw["valu"] += [[]] * 12 + [("needvm", [f"B{b}"])] + breads(b, RES[b], True)
        E13 = opt.get("e13", 0)
        if t == (12 if E13 else 13):
            kw["valu"] += p2c
        if t == 13 and E13:
            kw["extra"] += dmaB(5, 98304) + dmaB(6, 98304 + 4096)
        if t == 13:
            pass
            kw["extra"] += [[("vm", "buffer_load_dword v28, v53, s[28:31], 0 offen sc1", "C")]]
        if t == 14:
            b58 = dmaB(7, 65536) + dmaB(8, 65536 + 4096) if E13 else dmaB(5, 65536) + dmaB(6, 65536 + 4096) + dmaB(7, 98304) + dmaB(8, 98304 + 4096)
            NW14 = opt.get("nw14", 10) if IL else 16
            kw["extra"] += b58[:NW14]; b58 = b58[NW14:]
            kw["last"] = True
            if IL:
                kw["valu"] += [f"s_mov_b32 s66, 0x{f2u(LOG2E):08x}", f"s_mov_b32 s67, 0x{f2u(LOG2E):08x}",
                               f"v_mov_b32 v20, 0x{f2u(-EPS * LOG2E):08x}", "v_mov_b32 v21, v20"] + [f"v_mov_b32 v{22+i}, 0x3f803f80" for i in range(4)]
                kw["valu"] += [["s_lshl_b32 s56, s38, 12", f"s_add_u32 s56, s56, {EX}", "v_add_u32 v10, s56, v26"], "v_xor_b32 v11, 4096, v10"]
                DSP = 1
        window(t, **kw)
    stamp(a, opt, 3)
    stamp(a, opt, 26, real=True)

    a.label("K_TAIL")
    if not IL:
        a(f"s_mov_b32 s66, 0x{f2u(LOG2E):08x}")
        a(f"s_mov_b32 s67, 0x{f2u(LOG2E):08x}")
        a(f"v_mov_b32 v20, 0x{f2u(-EPS * LOG2E):08x}")
        a("v_mov_b32 v21, v20")
        for i in range(4):
            a(f"v_mov_b32 v{22+i}, 0x3f803f80")
    KV, ZC = 40, 56
    T0 = 2
    MSL = opt.get("mslots", [4, 6, 8, 10, 12, 14, 17, 24])
    def phi8(b0, b1, dst, inter=(), mfs=()):
        src = [b0, b0 + 2, b1, b1 + 2]
        L = []
        for i, s in enumerate(src):
            L.append(f"v_pk_fma_f32 {vr(T0 + 2*i, 2)}, {vr(s, 2)}, s[66:67], v[20:21]")
        for i in range(8):
            L.append(f"v_exp_f32_e64 v{T0+i}, v{T0+i} clamp")
        for s in src:
            L.append(f"v_max_f32 v{s}, v36, v{s}")
            L.append(f"v_max_f32 v{s+1}, v36, v{s+1}")
        for i, s in enumerate(src):
            L.append(f"v_pk_add_f32 {vr(T0 + 2*i, 2)}, {vr(s, 2)}, {vr(T0 + 2*i, 2)}")
        for i in range(4):
            L.append(f"v_cvt_pk_bf16_f32 v{dst+i}, v{T0+2*i}, v{T0+2*i+1}")
        pos = {0: [], 8: [], 18: []}
        for n, it in enumerate(inter):
            pos[(0, 8, 18)[(n * 3) // max(len(inter), 1)]].append(it)
        mfs = list(mfs)
        assert len(mfs) <= len(MSL)
        for n, x in enumerate(L):
            if n in pos:
                emit(pos[n])
            if n in MSL and mfs:
                m_ = mfs.pop(0)
                lq.need(Ins(m_).srcAB)
                a(m_)
            a(x)
    def pack8(b0, b1, dst):
        for i, s in enumerate([b0, b0 + 2, b1, b1 + 2]):
            a(f"v_cvt_pk_bf16_f32 v{dst+i}, v{s}, v{s+1}")
    t1 = {2: [[("needvm", ["B7"])] + breads(5, RES[5], True), breads(6, RES[6], True), breads(7, RES[7], True)]}
    LRF = opt.get("late_rf", 0)
    LB = dict(rf=(13, 14, 15), q=(9, 10), e=(11, 12)) if LRF else dict(rf=(9, 10, 11), q=(12, 13), e=(14, 15))
    rf = dmaB(LB["rf"][0], SLOT[5]) + dmaB(LB["rf"][1], SLOT[6]) + dmaB(LB["rf"][2], SLOT[7])
    rf[0] = ["s_waitcnt lgkmcnt(0)"] + rf[0]
    for k in range(4):
        t1[3 + k] = rf[3*k:3*k+3]
    BQ = opt.get("bq", 0)
    if BQ:
        t1 = {}
    def kvz(m):
        out = []
        for dt in range(2):
            c = vr(ZC + dt*4)
            out.append(f"{MF} {c}, {vr(acc(2*m, 2+dt))}, v[22:25], {'0' if m == 0 else c}")
            for et in range(2):
                c = vr(KV + dt*8 + et*4)
                out.append(f"{MF} {c}, {vr(acc(2*m, 2+dt))}, {vr(acc(2*m, 4+et))}, {'0' if m == 0 else c}")
        return out
    if IL:
        h = -(-len(b58) // 2)
        RP = opt.get("rdpos", 3)
        t1 = {0: b58[:h], 1: b58[h:], RP: t1[2]}
        rf[0] = rf[0][1:]
        rf[0] = [("needds", regs_of(ar(RES[7], 16)))] + rf[0]
        nrf = 7 - RP
        for k in range(nrf):
            t1[RP + 1 + k] = rf[(12*k)//nrf:(12*(k+1))//nrf]
        if LRF:
            late_rd = t1.pop(3) if LRF == 1 else []
            for k in range(4): t1[4 + k] = []
        if opt.get("x_nob"):
            t1 = {}
        if opt.get("x_norf"):
            for k in range(4): t1[4 + k] = []
        if opt.get("x_nowait"):
            t1[3][0] = t1[3][0][1:]
        if ES:
            send = [x for m in range(4) for x in kvz(m)[3:]]
            own = [kvz(m)[:3] for m in range(4)]
            plan = {4: send[:8], 5: send[8:] + own[0], 6: own[1], 7: own[2]}
            wr_ = [[f"ds_write_b128 v10, {vr(ZC+4)} offset:2048", f"ds_write_b128 v10, {vr(KV+8)}", f"ds_write_b128 v10, {vr(KV+12)} offset:1024"]]
            t1[6] = t1[6][:1] + wr_ + t1[6][1:]
            for j in range(8):
                m, dt = j % 4, 1 - j // 4
                if j < 4:
                    mfs = mf(15, 2*j, [4, 5], lambda ks: fXR(2*j, ks)) + mf(15, 2*j + 1, [4, 5], lambda ks: fXR(2*j + 1, ks))
                else:
                    mfs = plan[j]
                if j == 7:
                    a("s_waitcnt lgkmcnt(0)")
                    lq.drained()
                    a("s_barrier")
                    a(f"ds_read_b128 {vr(KV+8)}, v11 offset:1024")
                    a(f"ds_read_b128 {vr(KV+12)}, v11")
                    a(f"ds_read_b128 {vr(ZC+4)}, v11 offset:2048")
                    a("s_lshl_b32 s56, s39, 10")
                    a("s_add_u32 s58, s62, s56")
                    a("s_xor_b32 s59, s58, 1024")
                    a("s_mov_b32 s56, 0x00010001")
                    a("s_mov_b32 s57, 0x00010001")
                phi8(acc(2*m, 2 + dt), acc(2*m + 1, 2 + dt), acc(2*m, 2 + dt), inter=t1.get(j, []), mfs=mfs)
                if 1 <= j <= 3:
                    for et in range(2):
                        pack8(acc(2*(j-1), 4 + et), acc(2*(j-1) + 1, 4 + et), acc(2*(j-1), 4 + et))
                if j == 3:
                    for et in range(2):
                        pack8(acc(6, 4 + et), acc(7, 4 + et), acc(6, 4 + et))
            for x in (own[3][1], own[3][2], own[3][0]):
                a(x)
            a("s_waitcnt lgkmcnt(0)")
        if not ES:
            for j in range(8):
                if opt.get("tstamps"):
                    stamp(a, opt, 48 + j)
                m, dt = j // 2, j % 2
                if j < 4:
                    mfs = mf(15, 2*j, [4, 5], lambda ks: fXR(2*j, ks)) + mf(15, 2*j + 1, [4, 5], lambda ks: fXR(2*j + 1, ks))
                elif j < 7:
                    mfs = kvz(j - 4)
                else:
                    mfs = []
                phi8(acc(2*m, 2 + dt), acc(2*m + 1, 2 + dt), acc(2*m, 2 + dt), inter=t1.get(j, []), mfs=mfs)
                if 1 <= j <= 4:
                    for et in range(2):
                        pack8(acc(2*(j-1), 4 + et), acc(2*(j-1) + 1, 4 + et), acc(2*(j-1), 4 + et))
            if opt.get("tstamps"):
                stamp(a, opt, 56)
            for x in kvz(3):
                a(x)
            a("s_nop 3")
    else:
        for m in range(4):
            for dt in range(2):
                phi8(acc(2*m, 2 + dt), acc(2*m + 1, 2 + dt), acc(2*m, 2 + dt), inter=t1.get(m*2 + dt, []))
        lq.drained()
        kvm = []
        for m in range(4):
            for dt in range(2):
                c = vr(ZC + dt*4)
                kvm.append(f"{MF} {c}, {vr(acc(2*m, 2+dt))}, v[22:25], {'0' if m == 0 else c}")
        for m in range(4):
            for et in range(2):
                pack8(acc(2*m, 4 + et), acc(2*m + 1, 4 + et), acc(2*m, 4 + et))
                a(kvm.pop(0))
        for m in range(4):
            for dt in range(2):
                for et in range(2):
                    c = vr(KV + dt*8 + et*4)
                    a(f"{MF} {c}, {vr(acc(2*m, 2+dt))}, {vr(acc(2*m, 4+et))}, {'0' if m == 0 else c}")
        a("s_lshl_b32 s56, s38, 12")
        a(f"s_add_u32 s56, s56, {EX}")
        a("v_add_u32 v10, s56, v26")
        a("v_xor_b32 v11, 4096, v10")
    if not ES:
        a("s_cmp_eq_u32 s39, 0")
        a("s_cbranch_scc1 K_EXW0")
        a(f"ds_write_b128 v10, {vr(ZC)} offset:2048")
        a(f"ds_write_b128 v10, {vr(KV)}")
        a(f"ds_write_b128 v10, {vr(KV+4)} offset:1024")
        a("s_waitcnt lgkmcnt(0)")
        for i in range(0, 8, 2):
            a(f"v_pk_mov_b32 {vr(KV+i, 2)}, {vr(KV+8+i, 2)}, {vr(KV+8+i, 2)} op_sel:[0,1]")
        for i in range(0, 4, 2):
            a(f"v_pk_mov_b32 {vr(ZC+i, 2)}, {vr(ZC+4+i, 2)}, {vr(ZC+4+i, 2)} op_sel:[0,1]")
        a("s_branch K_EXW1")
        a.label("K_EXW0")
        a(f"ds_write_b128 v10, {vr(ZC+4)} offset:2048")
        a("s_nop 2")
        a(f"ds_write_b128 v10, {vr(KV+8)}")
        a(f"ds_write_b128 v10, {vr(KV+12)} offset:1024")
        a("s_waitcnt lgkmcnt(0)")
        a.label("K_EXW1")
        lq.drained()
        if opt.get("tstamps"):
            stamp(a, opt, 57)
        a("s_barrier")
        if opt.get("tstamps"):
            stamp(a, opt, 58)
        a(f"ds_read_b128 {vr(KV+8)}, v11")
        a(f"ds_read_b128 {vr(KV+12)}, v11 offset:1024")
        a(f"ds_read_b128 {vr(ZC+4)}, v11 offset:2048")
        a("s_mov_b32 s56, 0x00010001")
        a("s_mov_b32 s57, 0x00010001")
        a("s_waitcnt lgkmcnt(0)")
    for i in range(0, 8, 2):
        a(f"v_pk_add_f32 {vr(KV+i, 2)}, {vr(KV+i, 2)}, {vr(KV+8+i, 2)}")
    for i in range(0, 4, 2):
        a(f"v_pk_add_f32 {vr(ZC+i, 2)}, {vr(ZC+i, 2)}, {vr(ZC+4+i, 2)}")
    for r in list(range(KV, KV + 8)) + list(range(ZC, ZC + 4)):
        a(f"v_min_u32 v{r}, -2, v{r}")
    FP = opt.get("fastpub", 0)
    def publish(pol):
        vq.issue(f"buffer_store_dwordx4 {vr(KV)}, v26, s[24:27], s4 offen{pol}", "P")
        vq.issue(f"buffer_store_dwordx4 {vr(KV+4)}, v26, s[24:27], s5 offen{pol}", "P")
        a("s_mov_b64 exec, s[6:7]")
        vq.issue(f"buffer_store_dwordx4 {vr(ZC)}, v27, s[24:27], s62 offen offset:2048{pol}", "P")
        a("s_mov_b64 exec, -1")
    if FP:
        a("s_mov_b64 s[4:5], s[58:59]")
        a("s_mov_b64 s[6:7], s[56:57]")
        publish(opt.get("fp_pol", ""))
    else:
        if ES:
            vq.issue(f"buffer_store_dwordx4 {vr(KV)}, v26, s[24:27], s58 offen sc1", "P")
            vq.issue(f"buffer_store_dwordx4 {vr(KV+4)}, v26, s[24:27], s59 offen sc1", "P")
        else:
            vq.issue(f"buffer_store_dwordx4 {vr(KV)}, v26, s[24:27], s62 offen sc1", "P")
            vq.issue(f"buffer_store_dwordx4 {vr(KV+4)}, v26, s[24:27], s62 offen offset:1024 sc1", "P")
        a("s_mov_b64 exec, s[56:57]")
        vq.issue(f"buffer_store_dwordx4 {vr(ZC)}, v27, s[24:27], s62 offen offset:2048 sc1", "P")
        a("s_mov_b64 exec, -1")
    stamp(a, opt, 4)
    vq.need("C")
    a("s_mov_b32 s58, -1")
    a("s_mov_b32 s59, 0")
    a.label("K_HS")
    if opt.get("thr"):
        a("v_cmp_ne_u32 vcc, s99, v28")
        a("s_mov_b32 s97, vcc_lo")
        a("v_and_b32 v28, 0xfff, v28")
    a("v_cmp_eq_u32 vcc, 8, v28")
    a("s_cmp_eq_u64 vcc, s[58:59]")
    a("s_cbranch_scc1 K_HSOK")
    a("s_sleep 2")
    a("v_lshlrev_b32 v10, 3, v1")
    a("buffer_load_dword v28, v10, s[28:31], 0 offen sc1")
    a("s_waitcnt vmcnt(0)")
    a("s_branch K_HS")
    a.label("K_HSOK")
    if ES:
        a("s_lshl_b32 s56, s38, 11")
        a(f"s_add_u32 s56, s56, {EX2}")
        a("v_lshl_add_u32 v10, v1, 3, s56")
        a("v_xor_b32 v11, 2048, v10")
    PB = [acc(p, 2) for p in range(8)]
    ZG = 48
    def gather_ops():
        ops = []
        for p in range(8):
            for k in range(2):
                ops.append(([f"s_add_u32 s56, s61, {p * 16384}"] if k == 0 else []) +
                           [("vm", f"buffer_load_dwordx4 {vr(PB[p] + 4*k)}, v26, s[24:27], s56 offen offset:{k*1024} sc1", "H")])
        ops.append([("vm", f"buffer_load_dwordx4 {vr(ZG)}, v30, s[24:27], s61 offen offset:2048 sc1", "H")])
        return ops
    def gather(track):
        for op in gather_ops():
            for x in op:
                a(x[1] if isinstance(x, tuple) else x)
    gops = gather_ops()
    if BQ:
        rd = breads(5, RES[5], True) + breads(6, RES[6], True) + breads(7, RES[7], True)
        rf[0] = rf[0][1:]
        rf[0] = [("needds", regs_of(ar(RES[5], 16)))] + rf[0]
        rf[4] = [("needds", regs_of(ar(RES[6], 16)))] + rf[4]
        rf[8] = [("needds", regs_of(ar(RES[7], 16)))] + rf[8]
        qfill = [[("needvm", ["B7"])] + rd[:1]] + [[x] for x in rd[1:]]
        qb = None
    else:
        qb = dmaB(LB["q"][0], 32768) + dmaB(LB["q"][1], 32768 + 4096)
    GQ = opt.get("gather_in_q", 0)
    ILQ = opt.get("ilq", 1)
    if ILQ:
        LA = opt.get("qla", 2)
        def qm(rt):
            return mf(15, rt, [0, 1], lambda ks: fXR(rt, ks)) + mf(14, rt, [0, 1], lambda ks: fX(rt % 2, ks))
        def xr(rt):
            return rdX(14, rt, lambda ks: fX(rt % 2, ks)) if rt < 8 else []
        for x in xr(0):
            put(x)
        for rt in range(LA):
            k = -(-len(qb) // (LA - rt)) if opt.get("qb_front", 1) else 0
            fill = {1: xr(rt + 1)}
            spread(fill, qb[:k], 2, 8); qb = qb[k:]
            weave(qm(rt), fill)
        stamp(a, opt, 13)
        G0, G1 = opt.get("g0", 3), opt.get("g1", 7)
        for rt in range(8):
            inter = []
            if rt + LA < 8:
                inter.append(xr(rt + LA + 1))
            if rt < G0 and qb:
                k = -(-len(qb) // (G0 - rt)); inter += qb[:k]; qb = qb[k:]
            if G0 <= rt < G1:
                k = -(-len(gops) // (G1 - rt)); inter += gops[:k]; gops = gops[k:]
            phi8(acc(rt, 0), acc(rt, 1), acc(rt, 0), inter=inter, mfs=qm(rt + LA) if rt + LA < 8 else [])
        assert not gops and not qb
    else:
        if DEFER >= 2:
            for x in rdX(14, 0, lambda ks: fX(0, ks)):
                put(x)
        for rt in range(8):
            fill = {}
            ms = mf(15, rt, [0, 1], lambda ks: fXR(rt, ks)) if DEFER >= 1 else []
            if DEFER >= 2:
                ms += mf(14, rt, [0, 1], lambda ks: fX(rt % 2, ks))
                if rt < 7:
                    fill[1] = rdX(14, rt + 1, lambda ks: fX((rt + 1) % 2, ks))
            if BQ:
                if rt < 3:
                    spread(fill, qfill[8*rt:8*rt+8], 0, len(ms))
                if rt >= 2:
                    spread(fill, rf[2*(rt-2):2*(rt-2)+2], 2, len(ms))
            else:
                fill.setdefault(2, []).extend(qb[rt])
            per = len(ms) // 4
            first_rt = 8 - -(-GQ // max(per, 1))
            if GQ and rt >= first_rt:
                k = min(per, GQ - (17 - len(gops)))
                spread(fill, gops[:k], 0, len(ms)); gops = gops[k:]
            weave(ms, fill)
        stamp(a, opt, 13)
        GSP = opt.get("gather_span", 7)
        for rt in range(8):
            k = -(-len(gops) // (GSP - rt)) if rt < GSP else 0
            phi8(acc(rt, 0), acc(rt, 1), acc(rt, 0), inter=gops[:k]); gops = gops[k:]
    gate_ld = [[("vm", f"buffer_load_dwordx4 {vr(acc(i, 1))}, v26, s[16:19], s60 offen offset:{i*1024}", "G")] for i in range(4)]
    gate_ld += [[("vm", f"buffer_load_dwordx4 {vr(acc(4 + i, 1))}, v26, s[32:35], 0 offen offset:{i*1024}", "G")] for i in range(2)]
    if FP:
        publish(" sc1")
    emit(gate_ld)
    stamp(a, opt, 5)
    S = 40
    vq.need("H")
    a.label("K_SUM")
    for i in range(0, 8, 2):
        a(f"v_pk_add_f32 {vr(S+i, 2)}, {vr(PB[0]+i, 2)}, {vr(PB[1]+i, 2)}")
    for i in range(4):
        a(f"v_add_f32_dpp v{52+i}, v{ZG+i}, v{ZG+i} quad_perm:[1,0,3,2] row_mask:0xf bank_mask:0xf")
    for p in range(2, 8):
        for i in range(0, 8, 2):
            a(f"v_pk_add_f32 {vr(S+i, 2)}, {vr(S+i, 2)}, {vr(PB[p]+i, 2)}")
        if p in (2, 3):
            ctrl = "quad_perm:[2,3,0,1]" if p == 2 else "row_half_mirror"
            for i in range(4):
                a(f"v_add_f32_dpp v{52+i}, v{52+i}, v{52+i} {ctrl} row_mask:0xf bank_mask:0xf")
    a(f"v_pk_add_f32 v[2:3], {vr(S, 2)}, {vr(S+2, 2)}")
    a(f"v_pk_add_f32 v[4:5], {vr(S+4, 2)}, {vr(S+6, 2)}")
    a(f"v_pk_add_f32 v[6:7], v[52:53], v[54:55]")
    a("v_pk_add_f32 v[2:3], v[2:3], v[4:5]")
    a("v_pk_add_f32 v[2:3], v[2:3], v[6:7]")
    a("v_cmp_u_f32 vcc, v2, v3")
    a("s_cbranch_vccz K_GOK")
    regs = [PB[p] + i for p in range(8) for i in range(8)] + [ZG + i for i in range(4)]
    a(f"v_max3_u32 v2, v{regs[0]}, v{regs[1]}, v{regs[2]}")
    regs = regs[3:]
    while regs:
        if len(regs) >= 2:
            a(f"v_max3_u32 v2, v2, v{regs[0]}, v{regs[1]}"); regs = regs[2:]
        else:
            a(f"v_max_u32 v2, v2, v{regs[0]}"); regs = regs[1:]
    a("v_cmp_eq_u32 vcc, -1, v2")
    a("s_cbranch_vccz K_GOK")
    if opt.get("stamps"):
        a("v_readlane_b32 s56, v31, 24")
        a("s_add_u32 s56, s56, 1")
        a("v_writelane_b32 v31, s56, 24")
    gather(False)
    a("s_waitcnt vmcnt(0)")
    a("s_branch K_SUM")
    a.label("K_GOK")
    stamp(a, opt, 6)
    if ES:
        OP0, OP1, OPZ = 56, 60, 2
        a(f"v_cvt_pk_bf16_f32 v{OPZ}, v52, v53")
        a(f"v_cvt_pk_bf16_f32 v{OPZ+1}, v54, v55")
        a(f"ds_write_b64 v10, {vr(OPZ, 2)} offset:1024")
        for k, d in enumerate((OP0, OP0 + 1, OP1, OP1 + 1)):
            a(f"v_cvt_pk_bf16_f32 v{d}, v{S+2*k}, v{S+2*k+1}")
        a(f"ds_write_b64 v10, {vr(OP0, 2)}")
        a(f"ds_write_b64 v10, {vr(OP1, 2)} offset:512")
        a("s_waitcnt lgkmcnt(0)")
        lq.drained()
        a("s_barrier")
        a(f"ds_read_b64 {vr(OPZ+2, 2)}, v11 offset:1024")
        a(f"ds_read_b64 {vr(OP0+2, 2)}, v11")
        a(f"ds_read_b64 {vr(OP1+2, 2)}, v11 offset:512")
        a("s_waitcnt lgkmcnt(2)")
    else:
        for i in range(4):
            a(f"v_cvt_pk_bf16_f32 v{2+i}, v{S+2*i}, v{S+2*i+1}")
        a("v_cvt_pk_bf16_f32 v6, v52, v53")
        a("v_cvt_pk_bf16_f32 v7, v54, v55")
        a("s_mul_i32 s56, s40, 3072")
        a(f"s_add_u32 s56, s56, {EX2}")
        a("v_add_u32 v11, s56, v26")
        a("s_lshl_b32 s57, s39, 3")
        a("v_add_u32 v10, s57, v11")
        a("ds_write_b64 v10, v[6:7] offset:2048")
        a("ds_write_b64 v10, v[2:3]")
        a("ds_write_b64 v10, v[4:5] offset:1024")
        a("s_waitcnt lgkmcnt(0)")
        lq.drained()
        a("s_barrier")
        OPR = 40
        a(f"ds_read_b128 {vr(OPR+8)}, v11 offset:2048")
        a(f"ds_read_b128 {vr(OPR)}, v11")
        a(f"ds_read_b128 {vr(OPR+4)}, v11 offset:1024")
        a("s_waitcnt lgkmcnt(2)")
        OP0, OP1, OPZ = OPR, OPR + 4, OPR + 8
    eb = dmaB(LB["e"][0], 0) + dmaB(LB["e"][1], 4096) if opt.get("early14", 1) else []
    if opt.get("opipe", 0):
        a("s_add_u32 s63, s65, 4096")
        def mm(rt):
            return [f"{MF} {vr(acc(rt, 4))}, {vr(OPZ)}, {vr(acc(rt, 0))}, 0", f"{MF} {vr(acc(rt, 2))}, {vr(OP0)}, {vr(acc(rt, 0))}, 0",
                    f"{MF} {vr(acc(rt, 3))}, {vr(OP1)}, {vr(acc(rt, 0))}, 0"] if rt < 8 else []
        a(mm(0)[0]); a(mm(1)[0])
        a("s_waitcnt lgkmcnt(0)")
        for x in mm(0)[1:] + mm(1)[1:]:
            a(x)
        for rt in range(8):
            N, D = acc(rt, 2), acc(rt, 4)
            nx = mm(rt + 2)
            L = [f"v_add_f32 v{D}, v36, v{D}", f"v_rcp_f32 v{D}, v{D}"]
            if nx:
                L += [f"v_mul_f32 v{N+r}, v{N+r}, v{D}" for r in range(8)]
            else:
                L += [f"v_pk_mul_f32 {vr(N+r, 2)}, {vr(N+r, 2)}, {vr(D, 2)} op_sel_hi:[1,0]" for r in range(0, 8, 2)]
            L += [f"v_cvt_pk_bf16_f32 v{D+4+r//2}, v{N+r}, v{N+r+1}" for r in range(0, 8, 2)]
            for k, x in enumerate(L):
                if nx and k in (2, 6, 10):
                    a(nx.pop(0))
                a(x)
            vq.issue(f"buffer_store_dwordx4 {vr(D+4)}, v26, s[24:27], {'s65' if rt < 4 else 's63'} offen offset:{(rt % 4)*1024} sc1", "O")
        emit(eb)
    else:
        for rt in range(8):
            a(f"{MF} {vr(acc(rt, 4))}, {vr(OPZ)}, {vr(acc(rt, 0))}, 0")
            if eb and rt % 2 == 0:
                emit(eb[:1]); eb = eb[1:]
        a("s_waitcnt lgkmcnt(0)")
        for rt in range(8):
            a(f"{MF} {vr(acc(rt, 2))}, {vr(OP0)}, {vr(acc(rt, 0))}, 0")
            a(f"{MF} {vr(acc(rt, 3))}, {vr(OP1)}, {vr(acc(rt, 0))}, 0")
            D = acc(rt, 4)
            a(f"v_add_f32 v{D}, v36, v{D}")
            a(f"v_rcp_f32 v{D}, v{D}")
            if eb and rt % 2 == 0:
                emit(eb[:1]); eb = eb[1:]
        a("s_add_u32 s63, s65, 4096")
        for rt in range(8):
            N, D = acc(rt, 2), acc(rt, 4)
            for r in range(0, 8, 2):
                a(f"v_pk_mul_f32 {vr(N+r, 2)}, {vr(N+r, 2)}, {vr(D, 2)} op_sel_hi:[1,0]")
            for r in range(0, 8, 2):
                a(f"v_cvt_pk_bf16_f32 v{D+4+r//2}, v{N+r}, v{N+r+1}")
            vq.issue(f"buffer_store_dwordx4 {vr(D+4)}, v26, s[24:27], {'s65' if rt < 4 else 's63'} offen offset:{(rt % 4)*1024} sc1", "O")
    stamp(a, opt, 7)
    if LRF:
        emit(late_rd)
        emit(rf)
    if BQ:
        emit(dmaB(12, 32768) + dmaB(13, 32768 + 4096))
    if not opt.get("early14", 1):
        emit(dmaB(14, 0) + dmaB(15, 4096))
    for k in range(4):
        a(f"s_add_u32 s56, s38, {k + 1}")
        a("s_and_b32 s56, s56, 3")
        a("s_lshl_b32 s56, s56, 11")
        a(f"v_add_u32 v{2+k}, s56, v26")
    a("v_bfe_u32 v6, v1, 1, 4")
    a(f"v_lshlrev_b32 v6, {FS}, v6")
    a("v_and_b32 v7, 1, v1")
    a("v_lshl_add_u32 v6, v7, 2, v6")
    vq.need("G")
    for x in gate[1:] + gate2:
        a(x)
    srd(a, 16, 70, 2048 * 1024 * 2)
    a("v_add_u32 v7, s48, v26")
    a("v_add_u32 v8, 0x10000, v7")
    for j in range(3):
        a(f"s_xor_b32 s56, s38, {j + 1}")
        a("s_sub_u32 s57, s38, s56")
        a("s_sub_u32 s57, s57, 1")
        a("s_and_b32 s57, s57, 3")
        a("s_lshl_b32 s57, s57, 15")
        a("s_lshl_b32 s56, s56, 13")
        a("s_add_u32 s56, s56, s57")
        a(f"v_add_u32 v{9+j}, s56, v26")
    a("v_and_b32 v24, 15, v1")
    a("v_lshrrev_b32 v25, 4, v1")
    a("v_and_b32 v28, 1, v25")
    a("v_lshlrev_b32 v28, 5, v28")
    a("v_lshrrev_b32 v25, 1, v25")
    a("v_lshl_add_u32 v28, v25, 4, v28")
    FL = opt.get("fullline", 1)
    if FL:
        a("v_and_b32 v24, 7, v1")
        a("v_bfe_u32 v25, v1, 3, 1")
        a("v_lshl_add_u32 v28, v25, 6, v28")
    a("v_lshl_add_u32 v14, v24, 11, v28")
    if FL:
        a("v_add_u32 v15, 0x4000, v14")
    a("s_lshl_b32 s56, s50, 18")
    a("s_lshl_b32 s57, s38, 16")
    a("s_add_u32 s56, s56, s57")
    a("s_lshl_b32 s57, s51, 7")
    a("s_add_u32 s61, s56, s57")
    a(f"s_add_u32 s62, s61, {16*2048}")
    a("s_mov_b32 s60, 0")
    a("s_getpc_b64 s[66:67]")
    a.label("K_PC")
    a("s_add_u32 s66, s66, K_WAIT-K_PC")
    a("s_addc_u32 s67, s67, 0")
    D = opt.get("depth", 4)
    P2 = 128
    def acc2(i, ct): return P2 + (i * 4 + ct) * 4
    def fA(slot, i): return AQ[slot * 8 + i]
    def fB(s_, ct): return 64 + s_ * 16 + ct * 4
    order = list(range(8, 16)) + list(range(8))
    for ct in range(4):
        a(f"v_subrev_u32 v{16+ct}, 0x10000, v{32+ct}")
    vq.need("B8")
    for x in breads(order[0], fB(0, 0), False):
        put(x)
    if opt.get("atouch", 0):
        a("v_lshrrev_b32 v46, 3, v1")
        a("v_lshlrev_b32 v46, 13, v46")
        a("v_and_b32 v47, 7, v1")
        a("v_lshl_add_u32 v46, v47, 7, v46")
        a("s_and_b32 s56, s51, 7")
        a("s_lshl_b32 s56, s56, 10")
        a("v_add_u32 v46, s56, v46")
    EP = opt.get("early_poll", 0) and not NS
    if EP:
        vq.issue("buffer_load_dword v44, v6, s[24:27], s54 offen sc1", "E")
    def flag():
        a("s_mov_b64 exec, 1")
        a("buffer_store_dwordx2 v[38:39], v29, s[24:27], s55 offen sc1")
        a("s_mov_b64 exec, -1")
    FAST = opt.get("fast", 0)
    if not FAST and not NS:
        vq.need("O")
        flag()
        stamp(a, opt, 8)
        if EP:
            a("s_waitcnt vmcnt(1)"); vq.drained()
            a("v_cmp_ne_u32 vcc, -1, v44")
            a("s_lshr_b32 s57, vcc_lo, 1"); a("s_and_b32 s57, s57, vcc_lo"); a("s_or_b32 s60, s60, s57")
        if opt.get("fsleep"):
            a(f"s_sleep {opt['fsleep']}")
        if opt.get("fwait", 1):
            a("s_waitcnt vmcnt(0)"); vq.drained()
        PP = opt.get("pp", 0)
        if PP:
            want = sum(1 << (2*order[k]) for k in range(opt.get("pp_heads", 2)))
            a(f"s_and_b32 s57, s60, 0x{want:x}")
            a(f"s_cmp_eq_u32 s57, 0x{want:x}")
            a("s_cbranch_scc1 K_PPOK")
            for k in range(PP):
                a(f"buffer_load_dword v{48+k}, v6, s[24:27], s54 offen sc1")
                if k < PP - 1:
                    a(f"s_sleep {opt.get('pp_sleep', 3)}")
            a.label("K_PPL")
            for k in range(PP):
                a(f"s_waitcnt vmcnt({PP-1})")
                a(f"v_cmp_ne_u32 vcc, -1, v{48+k}")
                a("s_lshr_b32 s57, vcc_lo, 1"); a("s_and_b32 s57, s57, vcc_lo"); a("s_or_b32 s60, s60, s57")
                a(f"s_and_b32 s57, s60, 0x{want:x}")
                a(f"s_cmp_eq_u32 s57, 0x{want:x}")
                a("s_cbranch_scc1 K_PPOK")
                a(f"buffer_load_dword v{48+k}, v6, s[24:27], s54 offen sc1")
            a("s_branch K_PPL")
            a.label("K_PPOK")
    SC = " sc1" if opt.get("a_sc1", 1) else ""
    NT = opt.get("ntail", 3)
    N0 = 16 - NT
    FR = {}
    for n in range(N0):
        for i in range(8):
            FR[(n, i)] = (n, i)
    seq = [(n, i) for i in range(8) for n in range(N0, 16)]
    for k, f in enumerate(seq):
        FR[f] = (N0 + k // 8, k % 8)
    GRP = {}
    for f, (g, j) in FR.items():
        GRP.setdefault(g, {})[j] = f
    def areg(n, i):
        g, j = FR[(n, i)]
        return AQ[(g % 4) * 8 + j]
    def loadsA(g):
        ops = []
        for j in range(8):
            n, i = GRP[g][j]
            b = order[n]
            if g < N0:
                pre = [f"s_add_u32 s43, s53, {b*8192}"] if j == 0 else []
                so = "s43"
            else:
                pre = [f"s_add_u32 s{4 + m - N0}, s53, {order[m]*8192}" for m in range(N0, 16)] if (g == N0 and j == 0) else []
                so = f"s{4 + n - N0}"
            off = " offset:1024" if i % 2 else ""
            ops.append(pre + [("vm", f"buffer_load_dwordx4 {ar(areg(n, i))}, v{2 + i // 2}, s[24:27], {so} offen{off}{SC}", f"A{n}_{i}")])
        return ops
    def check(n):
        b = order[n]
        out = [f"s_bitcmp1_b32 s60, {2*b}", f"s_cbranch_scc1 K_RDY{n}", f"s_mov_b32 s59, {2*b}", "s_swappc_b64 s[68:69], s[66:67]", f"K_RDY{n}:"]
        return out
    def poll(g):
        return [("vm", f"buffer_load_dword v{40 + g % 4}, v6, s[24:27], s54 offen sc1", f"P{g}")]
    def upd(g):
        return [f"v_cmp_ne_u32 vcc, -1, v{40 + g % 4}"], ["s_lshr_b32 s57, vcc_lo, 1", "s_and_b32 s57, s57, vcc_lo", "s_or_b32 s60, s60, s57"]
    def gate_grp(g):
        out = []
        if NS:
            if g < N0:
                out += check(g)
            elif g == N0:
                for m in list(range(N0, 16)) + list(range(NS)):
                    out += check(m)
                out += [("vm", "buffer_load_dword v20, v6, s[24:27], s54 offen sc1", "GF")]
            return out
        if g < N0:
            out += check(g)
        elif g == N0:
            for m in range(N0, 16):
                out += check(m)
            out += [("vm", "buffer_load_dword v20, v6, s[24:27], s54 offen sc1", "GF")]
        if g + 3 <= N0 and g in PSET:
            out += poll(g)
        return out
    TA = opt.get("atouch", 0)
    PSET = opt.get("pset", [3])
    def touchA(n0, n1):
        b0 = order[n0]
        cnt = (n1 - n0) * 8
        return [f"s_add_u32 s56, s53, {b0*8192}", f"s_mov_b64 exec, 0x{(1 << cnt) - 1:x}" if cnt < 32 else "s_mov_b32 exec_hi, 0",
                ("vm", "buffer_load_dword v45, v46, s[24:27], s56 offen sc1", "T"), "s_mov_b64 exec, -1"]
    if FAST:
        vq.need("E")
        stamp(a, opt, 8)
        a("v_cmp_ne_u32 vcc, -1, v44")
        a("s_lshr_b32 s57, vcc_lo, 1"); a("s_and_b32 s60, s57, vcc_lo")
        want = (1 << (2*order[0])) | (1 << (2*order[1]))
        a(f"s_and_b32 s57, s60, 0x{want:x}")
        a(f"s_cmp_eq_u32 s57, 0x{want:x}")
        a("s_cbranch_scc0 K_SLOW")
        q0 = list(vq.q)
        for g in range(2):
            emit([poll(g)])
            emit(loadsA(g))
        flag()
        stamp(a, opt, 9)
        a("s_branch K_GO")
        a.label("K_SLOW")
        vq.q = q0
        flag()
    if NS:
        vq.need("O")
        stamp(a, opt, 8)
        if opt.get("spec_sleep"):
            a(f"s_sleep {opt['spec_sleep']}")
        FPOS = opt.get("fpos", 2)
        for g in range(NS):
            if g == FPOS:
                flag(); vq.q.append("F")
            emit(loadsA(g))
        if FPOS >= NS:
            flag(); vq.q.append("F")
        stamp(a, opt, 9)
    for g in range(0 if NS else 2):
        emit([gate_grp(g)])
        if g == 0:
            stamp(a, opt, 9)
        emit(loadsA(g))
    if FAST:
        a.label("K_GO")
    def redw(i):
        k = i // 2
        return [f"ds_write_b128 {'v7' if k < 2 else 'v8'}, {vr(acc2(i, ct))} offset:{(k % 2)*32768 + (i % 2)*4096 + ct*1024}" for ct in range(4)]
    def Bop(n, ct):
        b = order[n]
        return vr(fB(n % 2, ct)) if b >= 8 else ar(RES[b] + ct * 4)
    issued = set()
    NPOLL = opt.get("npoll", 5)
    for n in range(N0 if NS else 0):
        if n < NS:
            lq.need(regs_of(Bop(n, 0)))
            for i in range(8):
                vq.need(f"A{n}_{i}")
                a(f"{MF} v[48:51], {Bop(n, 0)}, {ar(areg(n, i))}, {'0' if i == 0 else 'v[48:51]'}")
            a("v_cmp_u_f32 vcc, v48, v48")
            a(f"s_cbranch_vccz K_VOK{n}")
            if opt.get("stamps"):
                a("v_readlane_b32 s56, v31, 22")
                a("s_add_u32 s56, s56, 1")
                a("v_writelane_b32 v31, s56, 22")
            a(f"s_mov_b32 s59, {2*order[n]}")
            a("s_swappc_b64 s[68:69], s[66:67]")
            for op in loadsA(n):
                for x in op:
                    a(x[1] if isinstance(x, tuple) else x)
            a("s_waitcnt vmcnt(0)")
            a.label(f"K_VOK{n}")
        else:
            vq.need(f"A{n}_7")
        if n == 0:
            stamp(a, opt, 12)
        if opt.get("pstamps"):
            stamp(a, opt, 32 + n)
        ms = []
        for i in range(8):
            for ct in range(4):
                c = vr(acc2(i, ct))
                ms.append(f"{MF} {c}, {Bop(n, ct)}, {ar(areg(n, i))}, {'0' if n == 0 else c}")
        fill = {}
        if 1 <= n <= NPOLL:
            u1, u2 = upd(n - 1)
            fill[0] = [("needvm", [f"P{n-1}"])] + u1; fill[1] = u2
        if n < NPOLL:
            fill.setdefault(2, []).extend(poll(n))
        if n + 1 < 8:
            spread(fill, [[x] for x in breads(order[n + 1], fB((n + 1) % 2, 0), False)], 4, 20)
        gs = [g for g in range(NS, n + 4) if g not in issued] if n >= 1 else []
        items = []
        for g in gs:
            items += [gate_grp(g)] + loadsA(g); issued.add(g)
        if items:
            spread(fill, items, 3, 30)
        weave(ms, fill)
    for n in range(0 if NS else N0):
        FINE = n < opt.get("fine", 2)
        if not FINE:
            vq.need(f"A{n}_7")
        else:
            vq.need(f"A{n}_0")
        if n == 0:
            stamp(a, opt, 12)
        if opt.get("pstamps"):
            stamp(a, opt, 32 + n)
        ms = []
        for i in range(8):
            for ct in range(4):
                c = vr(acc2(i, ct))
                ms.append(f"{MF} {c}, {Bop(n, ct)}, {ar(areg(n, i))}, {'0' if n == 0 else c}")
        fill = {}
        if n + 3 <= N0 and n in PSET:
            u1, u2 = upd(n)
            fill[0] = u1; fill[1] = u2
        if n + 1 < 8:
            spread(fill, [[x] for x in breads(order[n + 1], fB((n + 1) % 2, 0), False)], 4, 20)
        if n == 0:
            spread(fill, [gate_grp(2)] + loadsA(2), 2, 16)
            spread(fill, [gate_grp(3)] + loadsA(3), 16, 31)
            if TA:
                fill.setdefault(31, []).extend(touchA(4, TA))
        else:
            spread(fill, [gate_grp(n + 3)] + loadsA(n + 3), 2, opt.get("lspan", 22))
        if TA and n + TA < 16:
            fill.setdefault(31, []).extend(touchA(n + TA, n + TA + 1))
        if FINE:
            for i in range(1, 8):
                fill.setdefault(4 * i - 1, []).append(("needvm", [f"A{n}_{i}"]))
        weave(ms, fill)
    if opt.get("pstamps"):
        stamp(a, opt, 32 + N0)
    gf = [("needvm", ["GF"]), "v_mov_b32 v22, v20", "v_permlane16_swap_b32 v20, v22"]
    for r in (20, 22):
        gf += [f"v_sub_f32 v{r+1}, 1.0, v{r}", f"v_cvt_pk_bf16_f32 v{r+1}, v{r+1}, v{r+1}", f"v_and_b32 v{r+1}, 0xffff0000, v{r+1}"]
    gf += [["s_cmp_lt_u32 s38, 2", "s_cbranch_scc1 K_NOSWAP", "v_swap_b32 v20, v21", "v_swap_b32 v22, v23", "K_NOSWAP:"]]
    R = 128
    rds = [f"ds_read_b128 {vr(R + k*32 + j*4)}, v{9+k} offset:{j*1024}" for k in range(3) for j in range(8)]
    for i in range(8):
        vq.need(*[f"A{n}_{i}" for n in range(N0, 16)])
        ms = [f"{MF} {vr(acc2(i, ct))}, {Bop(n, ct)}, {ar(areg(n, i))}, {vr(acc2(i, ct))}" for ct in range(4) for n in range(N0, 16)]
        fill = {}
        if i == 0:
            spread(fill, [x if isinstance(x, list) else [x] for x in gf], 0, len(ms))
        if 1 <= i <= 6:
            spread(fill, [[w] for w in redw(i - 1)], min(2, len(ms) - 4), len(ms))
        if i == 7:
            stamp(a, opt, 14)
            a("s_waitcnt lgkmcnt(0)")
            if opt.get("pstamps"): stamp(a, opt, 17)
            a("s_barrier")
            if opt.get("pstamps"): stamp(a, opt, 18)
            spread(fill, [[r] for r in rds], 0, len(ms))
        weave(ms, fill)
    OWN = acc2(6, 0)
    if opt.get("thr"):
        a("s_memrealtime s[98:99]")
        a("s_waitcnt lgkmcnt(0)")
        a("s_sub_u32 s98, s98, s96")
        a("s_cmp_eq_u32 s97, 0")
        a("s_cselect_b32 s98, s98, 0")
        a(f"s_cmp_gt_u32 s98, {int(opt['thr']*100)}")
        a("s_cbranch_scc1 K_END")
    if opt.get("pstamps"): stamp(a, opt, 19)
    a("s_waitcnt lgkmcnt(15)")
    for j in range(0, 32, 2):
        a(f"v_pk_add_f32 {vr(OWN+j, 2)}, {vr(OWN+j, 2)}, {vr(R+j, 2)}")
    for j in range(0, 32, 2):
        gsel = 20 if j < 16 else 22
        a(f"v_pk_mul_f32 {vr(OWN+j, 2)}, {vr(OWN+j, 2)}, {vr(gsel, 2)} op_sel_hi:[1,0]")
    a("s_waitcnt lgkmcnt(0)")
    for pr in range(4):
        for j in range(8 * pr, 8 * pr + 8, 2):
            a(f"v_pk_add_f32 {vr(R+32+j, 2)}, {vr(R+32+j, 2)}, {vr(R+64+j, 2)}")
        for j in range(8 * pr, 8 * pr + 8, 2):
            gsel = 20 if j < 16 else 22
            a(f"v_pk_fma_f32 {vr(OWN+j, 2)}, {vr(R+32+j, 2)}, {vr(gsel, 2)}, {vr(OWN+j, 2)} op_sel:[0,1,0] op_sel_hi:[1,1,1]")
        b = 64 + 4 * pr
        for j in range(4):
            a(f"v_cvt_pk_bf16_f32 v{b+j}, v{OWN+8*pr+2*j}, v{OWN+8*pr+2*j+1}")
        a(f"v_permlane16_swap_b32 v{b}, v{b+2}")
        a(f"v_permlane16_swap_b32 v{b+1}, v{b+3}")
        if not FL:
            a(f"buffer_store_dwordx4 {vr(b)}, v14, s[16:19], {'s61' if pr < 2 else 's62'} offen offset:{(pr % 2)*64}{opt.get('ost', ' sc1')}")
        elif pr % 2 == 1:
            for j in range(4):
                a(f"v_mov_b32 v{80+j}, v{b-4+j}")
            for j in range(4):
                a(f"v_mov_b32_dpp v{b-4+j}, v{b+j} row_ror:8 row_mask:0xf bank_mask:0xc")
            for j in range(4):
                a(f"v_mov_b32_dpp v{b+j}, v{80+j} row_ror:8 row_mask:0xf bank_mask:0x3")
            so = 's61' if pr < 2 else 's62'
            a(f"buffer_store_dwordx4 {vr(b-4)}, v14, s[16:19], {so} offen{opt.get('ost', ' sc1')}")
            a(f"buffer_store_dwordx4 {vr(b)}, v15, s[16:19], {so} offen{opt.get('ost', ' sc1')}")
    stamp(a, opt, 15)
    if opt.get("probe"):
        a(f"s_cmp_gt_u32 s97, {int(opt['probe'][1]*100)}")
        a("s_cbranch_scc0 K_END")
        a.label("K_SPIN")
        a("s_memrealtime s[98:99]")
        a("s_waitcnt lgkmcnt(0)")
        a("s_sub_u32 s98, s98, s96")
        a("s_cmp_lt_u32 s98, 7000")
        a("s_cbranch_scc1 K_SPIN")
    stamp_out(a, opt, 0)
    if opt.get("dbgout"):
        a(f"s_cmp_eq_u32 s2, {opt.get('dbgwg', 0)}")
        a("s_cbranch_scc0 K_END")
        a("s_cmp_eq_u32 s38, 0")
        a("s_cbranch_scc0 K_END")
        a("v_readlane_b32 s56, v31, 30")
        for k, sl in enumerate([2, 32, 36, 3, 7, 12, 14, 29]):
            a(f"v_readlane_b32 s57, v31, {sl}")
            a("s_sub_u32 s57, s57, s56")
            a(f"v_writelane_b32 v30, s57, {k}")
        a("v_lshlrev_b32 v27, 3, v1")
        a("s_mov_b64 exec, 0xff")
        a("buffer_store_dword v30, v27, s[28:31], 0 offen offset:4")
    a.label("K_END")
    a("s_endpgm")
    a.label("K_WAIT")
    a("buffer_load_dword v44, v6, s[24:27], s54 offen sc1")
    if opt.get("stamps"):
        a("v_readlane_b32 s56, v31, 23")
        a("s_add_u32 s56, s56, 1")
        a("v_writelane_b32 v31, s56, 23")
    a("s_waitcnt vmcnt(0)")
    a("v_cmp_ne_u32 vcc, -1, v44")
    a("s_lshr_b32 s57, vcc_lo, 1"); a("s_and_b32 s57, s57, vcc_lo"); a("s_or_b32 s60, s60, s57")
    a("s_bitcmp1_b32 s60, s59")
    if opt.get("wsleep"):
        a("s_cbranch_scc1 K_LAST")
        a(f"s_sleep {opt['wsleep']}")
        a("s_branch K_WAIT")
    else:
        a("s_cbranch_scc0 K_WAIT")
    a.label("K_LAST")
    a("s_setpc_b64 s[68:69]")
    a("s_endpgm")

DOC = '''; ---------------------------------------------------------------------------------------------
; Phase 1: workgroup (rb, cb) computes q,k,v of 256 rows x 2 heads (x @ wqkv, 16x16x32 bf16 MFMA,
;   LDS-DMA staged operands, transposed LDS reads for the weights), phi(k), partial kv / z.
; ---------------------------------------------------------------------------------------------
'''

def build(opt):
    a = Asm()
    gen(a, opt)
    out = HEADER + "; @launch grid=(256,1,1) block=(256,1,1) lds=163840\n"
    out += DOC
    out += '.amdgcn_target "amdgcn-amd-amdhsa--gfx950"\n.text\n' + a.text() + '.section .rodata,"a"\n' + kd(KNAME, 512, 100 if opt.get('thr') or opt.get('probe') else 96, 256)
    return out

if __name__ == "__main__":
    opt = {}
    for kv in sys.argv[2:]:
        k, v = kv.split("=")
        try:
            v = eval(v)
        except Exception:
            pass
        opt[k] = v
    open(sys.argv[1], "w").write(build(opt))
```

```python
import sys, struct
from asmlib import Asm, Ins, regs_of
from gen import f2u, LdsQ, kd, srd, stamp, stamp_out, HEADER, WS_DIAG, WS_SIZE, WS_SLOT, WS_G, LOG2E, EPS

MF = "v_mfma_f32_16x16x32_bf16"
WS_WOF = 16 << 20
WS_TOT = 20 << 20
KNAME = "gated_mix__linear_attn_block__linear_attn_block__prompt_kernel"
def vr(b, n=4): return f"v[{b}:{b+n-1}]"
def ar(b, n=4): return f"a[{b}:{b+n-1}]"

class VmQ:
    def __init__(self, a):
        self.a = a; self.q = []
    def issue(self, text, tag):
        self.a(text); self.q.append(tag)
    def count(self, tags):
        idx = -1
        for i, t in enumerate(self.q):
            if t in tags:
                idx = i
        if idx < 0:
            return None
        return min(len(self.q) - idx - 1, 63)
    def need(self, *tags, extra=""):
        n = self.count(tags)
        if n is None:
            if extra:
                self.a(f"s_waitcnt {extra}")
            return
        self.a(f"s_waitcnt vmcnt({n}) {extra}".rstrip())
        self.q = self.q[len(self.q) - n:] if n else []
    def drained(self):
        self.q = []

def gen(a, opt):
    global stamp
    _stamp = stamp
    def stamp(a_, opt_, slot, **kw):
        if opt.get("probe") and opt["probe"][0] == slot and not kw.get("real"):
            a("s_memrealtime s[98:99]")
            a("s_waitcnt lgkmcnt(0)")
            a("s_sub_u32 s97, s98, s96")
        return _stamp(a_, opt_, slot, **kw)
    lq = LdsQ(a); vq = VmQ(a)
    DEFQ = []; DEFS = [0, 0]
    a_real = a
    class AW:
        def __call__(self, t):
            a_real(t)
            if DEFQ and DEFS[0] and t.startswith("v_"):
                DEFS[1] += 1
                if DEFS[1] >= DEFS[0]:
                    DEFS[1] = 0
                    g = DEFQ.pop(0)
                    for x in g:
                        (vq.issue(x[1], x[2]) if isinstance(x, tuple) else a_real(x))
        def __getattr__(self, n): return getattr(a_real, n)
    a = AW()
    ABL = [""]
    def put(x):
        if ABL[0] and isinstance(x, tuple):
            if "x" in ABL[0] and x[0] == "ds" and "b128" in x[1]: return
            if "w" in ABL[0] and x[0] == "ds" and "tr_b16" in x[1]: return
            if "d" in ABL[0] and x[0] == "vm" and x[2][0] in "XW": return
            if "X" in ABL[0] and x[0] == "vm" and x[2][0] == "X": return
            if "H" in ABL[0] and x[0] == "vm" and x[2][0] == "H": return
            if "S" in ABL[0] and x[0] == "vm" and x[2][0] == "S": return
            if "T" in ABL[0] and x[0] == "vm" and x[2][0] == "T": return
        if isinstance(x, tuple):
            if x[0] == "ds":
                lq.issue(x[1])
            elif x[0] == "vm":
                vq.issue(x[1], x[2])
            elif x[0] == "needvm":
                vq.need(*x[1])
            elif x[0] == "needds":
                lq.need(x[1])
        else:
            a(x)
    def weave(mf, fill):
        for g, m in enumerate(mf):
            lq.need(Ins(m).srcAB)
            a(m)
            for x in fill.get(g, []):
                put(x)
    def spread(fill, items, start, end):
        n = len(items)
        for i, it in enumerate(items):
            fill.setdefault(start + (i * (end - start)) // n, []).extend(it)

    XB = [0, 32768]
    WB = [65536 + 24576 * s for s in range(3)]
    EX = 139264
    EX2 = EX + 16384
    ACC = 64
    def acc(rt, ct): return ACC + (rt * 6 + ct) * 4
    def fW(st, ct, ks): return 48 * (st % 2) + (ct * 2 + ks) * 4
    def fX(e, ks): return 96 + e * 8 + ks * 4
    def fXR(rt, ks): return 112 + rt * 8 + ks * 4
    a.raw(f".globl {KNAME}\n.p2align 8\n.type {KNAME},@function")
    a.label(KNAME)
    if opt.get("probe_first"):
        a("s_memrealtime s[96:97]")
        a("s_waitcnt lgkmcnt(0)")
    a("s_cmp_ge_u32 s2, 256")
    a("s_cbranch_scc1 K_END")
    if opt.get("badmap"):
        a("s_lshr_b32 s3, s2, 5")
        a("s_and_b32 s2, s2, 31")
        a("s_lshl_b32 s2, s2, 3")
        a("s_or_b32 s2, s2, s3")
    a("s_load_dwordx4 s[4:7], s[0:1], 0")
    a("s_load_dwordx2 s[8:9], s[0:1], 32")
    a("s_load_dwordx4 s[68:71], s[0:1], 48")
    a("s_load_dwordx4 s[12:15], s[0:1], 64")
    a("s_load_dwordx2 s[74:75], s[0:1], 16")
    a("s_load_dwordx2 s[76:77], s[0:1], 40")
    if (opt.get("thr") or opt.get("probe")) and not opt.get("probe_first"):
        a("s_memrealtime s[96:97]")
    if opt.get("stamps"):
        a("v_mov_b32 v31, 0")
    stamp(a, opt, 30, real=True)
    stamp(a, opt, 0)
    a("v_lshrrev_b32 v21, 6, v0")
    a("v_and_b32 v1, 63, v0")
    a("v_readfirstlane_b32 s38, v21")
    a("s_and_b32 s56, s2, 7")
    a("s_lshr_b32 s57, s2, 3")
    if opt.get("k1map", "A") == "A":
        a("s_and_b32 s36, s57, 7")
        a("s_lshr_b32 s58, s57, 3")
        a("s_lshl_b32 s37, s56, 2")
        a("s_add_u32 s37, s37, s58")
    else:
        a("s_and_b32 s36, s56, 1")
        a("s_lshl_b32 s36, s36, 2")
        a("s_and_b32 s58, s57, 3")
        a("s_add_u32 s36, s36, s58")
        a("s_lshr_b32 s37, s56, 1")
        a("s_lshl_b32 s37, s37, 3")
        a("s_lshr_b32 s58, s57, 2")
        a("s_add_u32 s37, s37, s58")
    a("s_and_b32 s39, s38, 1")
    a("s_lshr_b32 s40, s38, 1")
    a("s_and_b32 s41, s37, 15")
    a("s_lshr_b32 s42, s37, 4")
    a("v_lshrrev_b32 v21, 3, v1")
    a("v_and_b32 v22, 7, v1")
    a("v_lshrrev_b32 v23, 4, v1")
    a("v_and_b32 v24, 1, v23")
    a("v_lshlrev_b32 v24, 2, v24")
    a("v_xor_b32 v24, v22, v24")
    a("v_lshlrev_b32 v24, 4, v24")
    a("v_mul_u32_u24 v25, 6144, v21")
    a("v_add_u32 v24, v24, v25")
    a("v_xor_b32 v25, 32, v24")
    a("s_mul_i32 s56, s38, 6")
    a("s_lshl_b32 s59, s41, 7")
    for i in range(6):
        a(f"s_add_u32 s57, s56, {i}")
        a("s_lshr_b32 s58, s57, 3")
        a("s_and_b32 s57, s57, 7")
        a(f"s_mul_i32 s57, s57, {8*6144}")
        a("s_lshl_b32 s58, s58, 11")
        a("s_add_u32 s57, s57, s58")
        a("s_add_u32 s57, s57, s59")
        if i % 4:
            a(f"s_sub_u32 s57, s57, {(i % 4) * 1024}")
        a(f"v_add_u32 v{10+i}, s57, {'v24' if i % 2 == 0 else 'v25'}")
    a("v_xor_b32 v24, v22, v23")
    a("v_lshlrev_b32 v24, 4, v24")
    a("v_lshl_add_u32 v24, v21, 11, v24")
    a("s_lshl_b32 s56, s36, 19")
    a("s_lshl_b32 s57, s40, 18")
    a("s_add_u32 s56, s56, s57")
    a("s_lshl_b32 s57, s39, 16")
    a("s_add_u32 s56, s56, s57")
    a("v_add_u32 v2, s56, v24")
    a("v_xor_b32 v25, 64, v2")
    for i in range(1, 8):
        src = "v2" if i % 2 == 0 else "v25"
        a(f"v_add_u32 v{2+i}, {(i % 4)*16384 + (i // 4)*131072 - (i % 4) * 1024}, {src}")
    a("s_lshl_b32 s48, s38, 13")
    a("s_lshl_b32 s45, s40, 14")
    a("s_lshl_b32 s57, s39, 12")
    a("s_add_u32 s45, s45, s57")
    a("s_mov_b32 s72, 0")
    a("s_mul_i32 s49, s38, 6144")
    a("s_mov_b32 s43, 0")
    a("s_mov_b32 s44, 0")
    a("s_waitcnt lgkmcnt(0)")
    srd(a, 16, 4, 2048 * 1024 * 2)
    a("s_cmp_eq_u32 s42, 0")
    a("s_cselect_b32 s56, s6, s8")
    a("s_cselect_b32 s57, s7, s9")
    srd(a, 20, 56, 1024 * 3072 * 2)
    stamp(a, opt, 10)

    def dmaXh(t, h):
        ops = []
        so = "s43" if h == 0 else "s72"
        for i in range(4 * h, 4 * h + 4):
            pre = [f"s_add_u32 m0, s45, {XB[t % 2] + h * 8192}"] if i % 4 == 0 else []
            off = f" offset:{(i % 4) * 1024}" if i % 4 else ""
            ops.append(pre + [("vm", f"buffer_load_dwordx4 v{2+i}, s[16:19], {so} offen{off}{opt.get('dpol', '')} lds", f"X{t}{'ab'[h]}")])
        ops[3].append(f"s_add_u32 {so}, {so}, 128")
        return ops
    def dmaX(t):
        return dmaXh(t, 0) + dmaXh(t, 1)
    def dmaW(t):
        ops = []
        for i in range(6):
            pre = [f"s_add_u32 m0, s49, {WB[t % 3] + (i // 4) * 4096}"] if i % 4 == 0 else []
            off = f" offset:{(i % 4) * 1024}" if i % 4 else ""
            ops.append(pre + [("vm", f"buffer_load_dwordx4 v{10+i}, s[20:23], s44 offen{off}{opt.get('dpol', '')} lds", f"W{t}")])
        ops[5].append(f"s_add_u32 s44, s44, {64*6144}")
        return ops
    def emit(groups):
        for op in groups:
            for x in op:
                put(x)
    def xfirst():
        m = opt.get("xf", 0x0f)
        a("v_lshlrev_b32 v38, 7, v1")
        a("s_lshl_b32 s58, s2, 2")
        a("s_add_u32 s58, s58, s38")
        a("s_lshl_b32 s58, s58, 12")
        a(f"s_mov_b32 exec_lo, 0x{m | (m << 16):x}")
        a("s_mov_b32 exec_hi, 0")
        vq.issue("buffer_load_dword v39, v38, s[16:19], s58 offen", "T")
        a("s_mov_b64 exec, -1")
    PW = opt.get("pw", 0)
    if PW:
        a(f"v_lshlrev_b32 v40, {PW}, v1")
        a(f"s_lshl_b32 s58, s38, {PW + 4}")
        a("s_lshl_b32 s59, s41, 7")
        a("s_add_u32 s58, s58, s59")
        a("s_mov_b64 exec, 0xffff")
        vq.issue("buffer_load_dword v39, v40, s[20:23], s58 offen", "T")
        a("s_mov_b64 exec, -1")
    if opt.get("xf", 0x0f) and opt.get("xf_pos", 0) == 0: xfirst()
    emit(dmaW(0))
    if opt.get("xf", 0x0f) and opt.get("xf_pos", 0) == 1: xfirst()
    PI = opt.get("pi", 0)
    x0ops = dmaX(0)
    if PI:
        emit(x0ops[:PI - 1]); DEFQ.extend(x0ops[PI - 1:] + (dmaW(1) if opt.get("pi_w1", 1) else []))
        DEFS[0] = opt.get("pi_step", 14)
    else:
        emit(x0ops)
    if opt.get("xf", 0x0f) and opt.get("xf_pos", 0) == 2: xfirst()
    LX, LW = opt.get("lx", 0), opt.get("lw", 0)
    if LX or LW:
        a("s_lshr_b32 s58, s2, 3")
        a("s_lshl_b32 s58, s58, 2")
        a("s_add_u32 s58, s58, s38")
    def ltw():
        a("v_bfe_u32 v40, v1, 2, 2")
        a("v_lshlrev_b32 v40, 11, v40")
        a("v_and_b32 v41, 3, v1")
        a("v_lshl_add_u32 v40, v41, 7, v40")
        a(f"v_mul_u32_u24 v41, {128*6144}, v23")
        a("v_add_u32 v40, v40, v41")
        a(f"s_add_u32 s56, s58, {opt.get('lw0', 64)}")
        a("s_mul_i32 s56, s56, 6144")
        a("s_and_b32 s57, s41, 12")
        a("s_lshl_b32 s57, s57, 7")
        a("s_add_u32 s56, s56, s57")
        m = sum(0xfff << (16 * k) for k in range(LW))
        a(f"s_mov_b32 exec_lo, 0x{m & 0xffffffff:x}")
        a(f"s_mov_b32 exec_hi, 0x{m >> 32:x}")
        vq.issue("buffer_load_dword v39, v40, s[20:23], s56 offen", "T")
        a("s_mov_b64 exec, -1")
    def ltx():
        a("v_and_b32 v42, 15, v1")
        a("v_lshlrev_b32 v42, 11, v42")
        a("v_lshl_add_u32 v42, v23, 7, v42")
        a("s_lshl_b32 s56, s58, 15")
        m = (1 << (16 * LX)) - 1
        a(f"s_mov_b32 exec_lo, 0x{m & 0xffffffff:x}")
        a(f"s_mov_b32 exec_hi, 0x{m >> 32:x}")
        vq.issue("buffer_load_dword v39, v42, s[16:19], s56 offen offset:128", "T")
        a("s_mov_b64 exec, -1")
    if LW: ltw()
    if LX: ltx()
    if opt.get("pre0"):
        emit(dmaW(1))
    stamp(a, opt, 11)
    srd(a, 24, 14, WS_TOT)
    srd(a, 28, 12, 256)
    srd(a, 32, 68, 2048)
    a("v_lshlrev_b32 v26, 4, v1")
    a("s_lshl_b32 s46, s37, 1")
    a("s_add_u32 s46, s46, s40")
    a("s_lshl_b32 s47, s36, 1")
    a("s_add_u32 s47, s47, s39")
    a("s_lshl_b32 s56, s47, 7")
    a("s_lshl_b32 s57, s46, 1")
    a("s_add_u32 s56, s56, s57")
    a("s_lshl_b32 s60, s56, 11")
    FS = opt.get("fs", 3)
    GB = WS_G if FS == 3 else WS_WOF
    a(f"s_lshl_b32 s55, s56, {FS - 1}")
    a(f"s_add_u32 s55, s55, {GB}")
    a("s_lshl_b32 s56, s47, 19")
    a("s_lshl_b32 s57, s46, 13")
    a("s_add_u32 s65, s56, s57")
    a("s_lshl_b32 s56, s37, 17")
    a("s_lshl_b32 s57, s38, 12")
    a("s_add_u32 s61, s56, s57")
    a(f"s_add_u32 s61, s61, {WS_SLOT}")
    a("s_lshl_b32 s57, s36, 14")
    a("s_add_u32 s62, s61, s57")
    a("v_lshrrev_b32 v27, 4, v1")
    a("v_lshlrev_b32 v27, 4, v27")
    a("v_and_b32 v30, 7, v1")
    a("v_lshl_add_u32 v30, v30, 14, v27")
    a("s_lshl_b32 s63, s37, 3")
    for i in range(4):
        a(f"v_mov_b32 v{32+i}, -1")
    a("v_lshlrev_b32 v38, 7, v1")
    a("v_mov_b32 v28, 1")
    if opt.get("thr"):
        a("s_getreg_b32 s56, hwreg(HW_REG_XCC_ID)")
        a("s_sub_u32 s56, s56, s2")
        a("s_and_b32 s56, s56, 7")
        a("s_mul_i32 s57, s56, s56")
        a("s_lshl_b32 s57, s57, 20")
        a("s_lshl_b32 s56, s56, 12")
        a("s_add_u32 s56, s56, s57")
        a("s_lshl_b32 s99, s56, 3")
        a("s_add_u32 s99, s99, 8")
        a("s_add_u32 s56, s56, 1")
        a("v_mov_b32 v28, s56")
    a("v_mov_b32 v29, 0")
    sent = [[("vm", "buffer_store_dwordx4 v[32:35], v26, s[24:27], s62 offen sc1", "S")],
            [("vm", "buffer_store_dwordx4 v[32:35], v26, s[24:27], s62 offen offset:1024 sc1", "S")],
            [("vm", "buffer_store_dwordx4 v[32:35], v27, s[24:27], s62 offen offset:2048 sc1", "S")],
            [("vm", "buffer_store_dwordx2 v[32:33], v29, s[24:27], s55 offen sc1", "S")]]
    NS = opt.get("spec", 0)
    if NS:
        a("s_lshl_b32 s56, s2, 2")
        a("s_add_u32 s56, s56, s38")
        a("s_lshr_b32 s57, s56, 4")
        a("s_lshl_b32 s57, s57, 17")
        a("s_and_b32 s56, s56, 15")
        a(f"s_mul_i32 s56, s56, {NS*512}")
        a("s_add_u32 s3, s56, s57")
        a("s_add_u32 s3, s3, 65536")
        for k in range(NS // 2):
            sent.append([("vm", f"buffer_store_dwordx4 v[32:35], v26, s[24:27], s3 offen offset:{k*1024} sc1", "S")])
    if opt.get("sent_pro"):
        emit(sent)
    a("v_and_b32 v21, 15, v1")
    a("v_lshrrev_b32 v22, 4, v1")
    a("v_bfe_u32 v23, v1, 1, 3")
    a("v_xor_b32 v23, v23, v22")
    a("v_lshlrev_b32 v23, 4, v23")
    a("v_lshl_add_u32 v23, v21, 7, v23")
    a("s_lshl_b32 s56, s39, 14")
    a("v_add_u32 v16, s56, v23")
    a("v_xor_b32 v17, 64, v16")
    a("v_bfe_u32 v23, v1, 2, 2")
    a("v_lshl_add_u32 v24, v22, 3, v23")
    a("v_lshlrev_b32 v24, 7, v24")
    a("v_bfe_u32 v25, v1, 1, 1")
    a("s_lshl_b32 s56, s40, 2")
    a("v_or_b32 v25, s56, v25")
    a("v_and_b32 v36, 2, v23")
    a("v_lshlrev_b32 v36, 1, v36")
    a("v_xor_b32 v25, v25, v36")
    a("v_and_b32 v36, 1, v22")
    a("v_lshlrev_b32 v36, 1, v36")
    a("v_xor_b32 v25, v25, v36")
    a("v_lshl_add_u32 v24, v25, 4, v24")
    a("v_and_b32 v36, 1, v1")
    a("v_lshl_add_u32 v24, v36, 3, v24")
    ES = opt.get("es", 1)
    if ES:
        a("s_lshl_b32 s56, s39, 5")
        a("v_xor_b32 v24, s56, v24")
    a("v_xor_b32 v25, 32, v24")
    for s in range(3):
        a(f"v_add_u32 v{18+2*s}, {WB[s]}, v24")
        a(f"v_add_u32 v{19+2*s}, {WB[s]}, v25")
    a(f"v_mov_b32 v36, 0x{f2u(EPS):08x}")
    a(f"v_mov_b32 v37, v36")
    for rt in range(8):
        for r in range(0, 16, 2):
            a(f"v_pk_mov_b32 {vr(acc(rt, 0) + r, 2)}, v[36:37], v[36:37]")
    rest_ = list(DEFQ); DEFQ.clear()
    emit(rest_)
    if opt.get("wpace", 6):
        a("s_lshl_b32 s56, s2, 2")
        a("s_add_u32 s56, s56, s38")
        a("s_bitcmp1_b32 s56, 3")
        a("s_cselect_b32 s84, s8, s6")
        a("s_cselect_b32 s85, s9, s7")
        a("s_and_b32 s85, s85, 0xffff")
        a(f"s_mov_b32 s86, {1024*3072*2}")
        a("s_mov_b32 s87, 0x00020000")
        a("s_lshr_b32 s57, s56, 4")
        a(f"s_add_u32 s57, s57, {64*opt.get('wpace', 6)}")
        a("s_mul_i32 s73, s57, 6144")
        a("s_and_b32 s57, s56, 7")
        a("s_mul_i32 s57, s57, 768")
        a("s_add_u32 s73, s73, s57")
        pass
    PRE = opt.get("pre", "W1")
    pre_list = {"none": [], "W1": dmaW(1), "W1X1": dmaW(1) + dmaX(1)}[PRE]
    if opt.get("pre0") or (PI and opt.get("pi_w1", 1)):
        pre_list = pre_list[6:]
    if opt.get("pre_first"):
        emit(pre_list); pre_list = []
    ET = opt.get("etouch", 1)
    if ET == 1:
        a("s_lshl_b32 s56, s2, 2")
        a("s_add_u32 s56, s56, s38")
        a("s_lshr_b32 s57, s56, 4")
        a("s_lshl_b32 s57, s57, 3")
        a("s_and_b32 s58, s56, 7")
        a("s_add_u32 s57, s57, s58")
        a(f"s_add_u32 s57, s57, {opt.get('et_row0', 0)}")
        a(f"s_cmp_lt_u32 s57, {64*opt.get('wpace', 6)}")
        a("s_cselect_b32 s57, s57, 1024")
        a("s_mul_i32 s57, s57, 6144")
        a("v_lshlrev_b32 v40, 10, v1")
        a("s_mov_b64 exec, 0x3f")
        vq.issue("buffer_load_dword v39, v40, s[84:87], s57 offen offset:384", "T")
        a("s_mov_b64 exec, -1")
    if ET == 2:
        for st in range(opt.get("et0", 2), opt.get("wpace", 6)):
            a(f"s_sub_u32 s57, s73, {(opt.get('wpace', 6) - st)*64*6144}")
            a("s_mov_b64 exec, 0x3f")
            vq.issue("buffer_load_dword v39, v38, s[84:87], s57 offen", "T")
            a("s_mov_b64 exec, -1")
    if opt.get("ctouch", 1):
        a("s_getpc_b64 s[56:57]")
        a.label("K_CT")
        a(f"s_sub_u32 s56, s56, K_CT-{KNAME}")
        a("s_subb_u32 s57, s57, 0")
        a("s_mov_b64 s[88:89], s[56:57]")
        a("s_lshr_b32 s58, s2, 3")
        a("s_lshl_b32 s58, s58, 2")
        a("s_add_u32 s58, s58, s38")
        a("s_lshl_b32 s79, s58, 7")
        a("s_mul_i32 s58, s58, 384")
        a("v_add_u32 v40, s58, v38")
        a(f"v_min_u32 v40, K_LAST-{KNAME}, v40")
        a("v_mov_b32 v41, s57")
        a("v_add_co_u32 v40, vcc, s56, v40")
        a("v_addc_co_u32 v41, vcc, 0, v41, vcc")
        a("s_mov_b64 exec, 7")
        vq.issue("global_load_dword v39, v[40:41], off", "T")
        a("s_mov_b64 exec, -1")
    emit(pre_list)
    if opt.get("xsp", 0x30):
        m = opt.get("xsp", 0x30)
        emit([[f"s_mov_b32 exec_lo, 0x{m | (m << 16):x}", "s_mov_b32 exec_hi, 0", ("vm", "buffer_load_dword v39, v38, s[16:19], s60 offen", "T"), "s_mov_b64 exec, -1"]])
    stamp(a, opt, 1)

    def rdW(t):
        ops = []
        for ct in range(6):
            for ks in range(2):
                for sub in range(2):
                    r = fW(t, ct, ks) + 2 * sub
                    ops.append(("ds", f"ds_read_b64_tr_b16 {ar(r, 2)}, v{18 + 2*(t % 3) + (ct & 1)} offset:{(ct >> 1)*8192 + ks*4096 + sub*512}"))
        return ops
    def rdX(t, rt, dst):
        return [("ds", f"ds_read_b128 {ar(dst(ks))}, v{16+ks} offset:{XB[t % 2] + rt*2048}") for ks in range(2)]
    def mf(t, rt, cts, X):
        out = []
        for ct in cts:
            for ks in range(2):
                W = ar(fW(t, ct, ks))
                A, B = (W, ar(X(ks))) if ct < 2 else (ar(X(ks)), W)
                c = vr(acc(rt, ct))
                cin = "0" if (t == 0 and ks == 0 and ct >= 4) else c
                out.append(f"{MF} {c}, {A}, {B}, {cin}")
        return out
    DEFER = opt.get("defer", 2)
    HST = opt.get("hst", 8)
    DSP = opt.get("dma_per_block", 2)
    IL = opt.get("il", 1)
    def cts_of(t):
        if IL and t == 15:
            return [2, 3]
        return [2, 3, 4, 5] if t >= 16 - DEFER else [0, 1, 2, 3, 4, 5]
    def Xreg(t, rt): return (lambda ks: fXR(rt, ks)) if t == 15 else (lambda ks: fX(rt % 2, ks))
    def blocks2(seq, pend, wreads, front=None, valu=()):
        CAP = opt.get("cap", 2)
        VC = opt.get("vcost", 2)
        nbs = [len(cts_of(t)) * 2 for t, _ in seq]
        starts = [sum(nbs[:i]) for i in range(len(seq))]
        G = sum(nbs)
        load = [0] * (G + 64)
        fill = {}
        def cost(x):
            if isinstance(x, tuple):
                return VC if x[0] == "vm" else (1 if x[0] == "ds" else 0)
            return 0 if x.endswith(":") else 1
        def place(g, grp, lim=None):
            c = sum(cost(x) for x in grp)
            lim = G - 1 if lim is None else lim
            g0 = g
            while g < lim and load[g] + min(c, CAP) > CAP:
                g += 1
            g = min(g, lim)
            load[g] += c
            fill.setdefault(g, []).extend(grp)
            return g
        if front:
            fill[0] = list(front); load[0] = 99
        for n, (t, rt) in enumerate(seq):
            if rt < 7: nx = rdX(t, rt + 1, Xreg(t, rt + 1))
            elif t < 15: nx = rdX(t + 1, 0, Xreg(t + 1, 0))
            else: nx = []
            for k, x in enumerate(nx):
                fill.setdefault(starts[n] + k, []).append(x); load[starts[n] + k] += 1
            if n: load[starts[n] - 1] += 1
        stream = []
        for grp in pend:
            atomic = any(isinstance(x, str) and ("exec" in x or x.endswith(":") or "cbranch" in x) for x in grp)
            if atomic: stream.append((grp, True))
            else:
                for x in grp: stream.append(([x], isinstance(x, tuple) and x[0] == "vm"))
        nv = sum(1 for _, v in stream if v)
        if nv:
            step = min(max(nbs) / DSP, (G - 3) / nv)
            pos = 2.0; last = 0
            for idx, (grp, isv) in enumerate(stream):
                if isv:
                    last = place(max(last, int(pos)), grp) ; pos = max(pos + step, last + 1.0)
                    last_v = last
                else:
                    nxt_v = idx + 1 < len(stream) and (stream[idx + 1][1] or not stream[idx+1][1]) and "m0" in grp[0]
                    tgt = max(last, int(pos) - 1) if nxt_v else last
                    last = place(tgt, grp)
                    if nxt_v: pos = max(pos, last + 1.0)
        ok = [starts[n] + g for n, (t, rt) in enumerate(seq) if rt < 7 for g in range(nbs[n])]
        if wreads:
            WEND = opt.get("wend", 8)
            ok2 = ok[:max(len(wreads) // 2, len(ok) - WEND)]
            last = ok2[0]
            for k, x in enumerate(wreads):
                last = place(max(last, ok2[(k * len(ok2)) // len(wreads)]), [x], lim=ok[-1])
        valu = [x if isinstance(x, list) else [x] for x in valu]
        last = 0
        for k, grp in enumerate(valu):
            last = place(max(last, (k * (G - 4)) // len(valu)), grp)
        for n, (t, rt) in enumerate(seq):
            lq.need(regs_of(ar(Xreg(t, rt)(0), 8)))
            weave(mf(t, rt, cts_of(t), Xreg(t, rt)), {g - starts[n]: v for g, v in fill.items() if starts[n] <= g < starts[n] + nbs[n]})

    def blocks(seq, pend, wreads, front=None, valu=()):
        if opt.get("sched2", 1):
            return blocks2(seq, pend, wreads, front, valu)
        pend = list(pend); wreads = list(wreads); valu = list(valu)
        for n, (t, rt) in enumerate(seq):
            cts = cts_of(t)
            nb = len(cts) * 2
            fill = {}
            if rt < 7:
                nx = rdX(t, rt + 1, Xreg(t, rt + 1))
            elif t < 15:
                nx = rdX(t + 1, 0, Xreg(t + 1, 0))
            else:
                nx = []
            items = [[x] for x in nx]
            left_w = len([1 for (_, r) in seq[n:] if r < 7])
            if rt < 7 and wreads:
                k = -(-len(wreads) // left_w)
                items += [[x] for x in wreads[:k]]
                wreads = wreads[k:]
            if n == 0 and front:
                fill[0] = list(front)
            spread(fill, items, 0, nb - 1)
            k = min(len(pend), max(DSP, -(-len(pend) // (len(seq) - n))))
            spread(fill, pend[:k], 1, nb)
            pend = pend[k:]
            k = -(-len(valu) // (len(seq) - n))
            spread(fill, [x if isinstance(x, list) else [x] for x in valu[:k]], 0, nb)
            valu = valu[k:]
            weave(mf(t, rt, cts, Xreg(t, rt)), fill)
        assert not pend and not wreads and not valu

    vq.need("W0", "X0a")
    a("s_barrier")
    stamp(a, opt, 2)
    stamp(a, opt, 25, real=True)
    w0 = rdW(0)
    for x in w0[:4] + rdX(0, 0, lambda ks: fX(0, ks)) + w0[4:13]:
        put(x)
    rest0 = ([] if PRE != "none" else dmaW(1)) + ([] if PRE == "W1X1" else dmaXh(1, 0)) + dmaW(2) + ([] if PRE == "W1X1" else dmaXh(1, 1))
    SR = opt.get("slowramp", 0)
    k0 = min(len(rest0), opt.get("k0", 6 if SR else 10))
    blocks([(0, r) for r in range(3)], rest0[:k0], [], front=w0[13:])
    if opt.get("s0st"): stamp(a, opt, 17)
    vq.need("W1", "X0b", extra="lgkmcnt(0)")
    lq.drained()
    if opt.get("s0st"): stamp(a, opt, 18)
    a("s_barrier")
    if opt.get("s0st"): stamp(a, opt, 19)
    x0 = []
    if opt.get("xs0"):
        m = opt["xs0"]
        x0 = [[f"s_mov_b32 exec_lo, 0x{m | (m << 16):x}", "s_mov_b32 exec_hi, 0", ("vm", "buffer_load_dword v39, v38, s[16:19], s60 offen", "T"), "s_mov_b64 exec, -1"]]
    blocks([(0, r) for r in range(3, 7)], rest0[k0:] + ([] if SR else dmaXh(2, 0) + dmaW(3)) + x0, rdW(1))

    def window1(t, extra=(), last=False, valu=(), first=()):
        if opt.get("s0st") and t == 0: stamp(a, opt, 20)
        ABL[0] = opt.get("abl", "") if opt.get("abl0", 1) <= t <= 12 else ""
        vq.need(f"X{t+1}a", f"X{t+1}b", f"W{t+2}", *( ["S"] if t == HST else []), extra="lgkmcnt(0)")
        lq.drained()
        a("s_barrier")
        if opt.get("wstamps"):
            stamp(a, opt, 32 + t)
        pend = list(first)
        if SR and t <= SR:
            pend += dmaW(t + 3)
        if t + 2 <= 15:
            pend += dmaX(t + 2) if (t > 0 or SR) else dmaXh(2, 1)
        if t + 4 <= 15 and t >= SR:
            pend += dmaW(t + 4)
        pend += list(extra)
        seq = [(t, 7)] + [(t + 1, r) for r in range(8 if last else 7)]
        blocks(seq, pend, rdW(t + 2) if t + 2 <= 15 else [], valu=valu)

    def window_ramp(t, extra=(), last=False, valu=(), first=()):
        vq.need(f"X{t+1}a", extra="lgkmcnt(0)")
        lq.drained()
        a("s_barrier")
        if opt.get("wstamps"):
            stamp(a, opt, 32 + t)
        pend = dmaX(t + 2) if t > 0 else dmaXh(2, 1)
        valu = list(valu)
        blocks([(t, 7)] + [(t + 1, r) for r in range(3)], pend, [], valu=valu)
        vq.need(f"X{t+1}b", f"W{t+2}")
        a("s_barrier")
        blocks([(t + 1, r) for r in range(3, 7)], dmaW(t + 4) + list(extra), rdW(t + 2))

    def window(t, extra=(), last=False, valu=(), first=()):
        if t < opt.get("ramp", 0):
            return window_ramp(t, extra, last, valu, first)
        if not opt.get("mid", 0):
            return window1(t, extra, last, valu, first)
        vq.need(f"X{t+1}a", f"W{t+2}", *( ["S"] if t == HST else []), extra="lgkmcnt(0)")
        lq.drained()
        a("s_barrier")
        if opt.get("wstamps"):
            stamp(a, opt, 32 + t)
        pend = list(first)
        if t + 2 <= 15:
            pend += dmaXh(t + 2, 1)
        wd = dmaW(t + 4) if t + 4 <= 15 else []
        pend += wd[:4]
        wr = rdW(t + 2) if t + 2 <= 15 else []
        valu = list(valu); extra = list(extra)
        nv = len(valu) // 2
        ne = len(extra) // 2 if last else 0
        blocks([(t, 7)] + [(t + 1, r) for r in range(3)], pend + extra[:ne], wr[:10], valu=valu[:nv])
        vq.need(f"X{t+1}b")
        lq.need(regs_of(ar(Xreg(t + 1, 3)(0), 8)))
        a("s_barrier")
        pend = []
        if t + 3 <= 15:
            pend += dmaXh(t + 3, 0)
        if wd:
            wd[4] = [f"s_add_u32 m0, s49, {WB[(t + 4) % 3] + 4096}"] + wd[4][1:]
        pend += wd[4:] + extra[ne:]
        blocks([(t + 1, r) for r in range(3, 8 if last else 7)], pend, wr[10:], valu=valu[nv:])

    hs = ["s_cmp_lg_u32 s38, 0", "s_cbranch_scc1 K_NOATOM", "s_mov_b64 exec, 1",
          "buffer_atomic_add v28, v29, s[28:31], s63 offen sc1", "s_mov_b64 exec, -1", "K_NOATOM:"]
    G = 64
    gate = [("needvm", ["G"]), "v_mov_b32 v38, 0", "v_mov_b32 v39, 0"]
    for i in range(8):
        gr = lambda j: acc(j // 4, 1) + j % 4
        gate.append(f"v_dot2_f32_bf16 v38, v{gr(i)}, v{gr(16+i)}, v38")
        gate.append(f"v_dot2_f32_bf16 v39, v{gr(8+i)}, v{gr(16+i)}, v39")
    for ctrl in ("quad_perm:[1,0,3,2]", "quad_perm:[2,3,0,1]", "row_half_mirror", "row_mirror"):
        for r in (38, 39):
            gate.append(f"v_add_f32_dpp v{r}, v{r}, v{r} {ctrl} row_mask:0xf bank_mask:0xf")
    gate2 = []
    for r in (38, 39):
        for k, ln in enumerate((0, 16, 32, 48)):
            gate2.append(f"v_readlane_b32 s{4 + (r-38)*4 + k}, v{r}, {ln}")
    for r, s0 in ((38, 4), (39, 8)):
        gate2 += [f"v_mov_b32 v{r}, s{s0}", f"v_add_f32 v{r}, s{s0+1}, v{r}", f"v_add_f32 v{r}, s{s0+2}, v{r}", f"v_add_f32 v{r}, s{s0+3}, v{r}"]
    for ops in (["v_cvt_pk_bf16_f32 v{r}, v{r}, v{r}", "v_and_b32 v{r}, 0xffff0000, v{r}", "v_mul_f32 v{r}, 0x%08x, v{r}" % f2u(-LOG2E),
                 "v_exp_f32 v{r}, v{r}", "v_add_f32 v{r}, 1.0, v{r}", "v_rcp_f32 v{r}, v{r}", "v_cvt_pk_bf16_f32 v{r}, v{r}, v{r}",
                 "v_and_b32 v{r}, 0xffff0000, v{r}"]):
        for r in (38, 39):
            gate2.append(ops.format(r=r))

    LM = opt.get("lm", 2)
    p2 = ["s_and_b32 s56, s2, 7", "s_lshr_b32 s57, s2, 3",
          f"s_and_b32 s50, s56, {(16 >> LM) - 1}", f"s_lshl_b32 s50, s50, {LM}", f"s_and_b32 s58, s57, {(1 << LM) - 1}", "s_add_u32 s50, s50, s58",
          f"s_lshr_b32 s51, s56, {4 - LM}", f"s_lshl_b32 s51, s51, {5 - LM}", f"s_lshr_b32 s58, s57, {LM}", "s_add_u32 s51, s51, s58",
          ["s_cmp_lt_u32 s38, 2", "s_cselect_b32 s80, s74, s76", "s_cselect_b32 s81, s75, s77"],
          "s_and_b32 s81, s81, 0xffff", f"s_mov_b32 s82, {1024*1024*2}", "s_mov_b32 s83, 0x00020000",
          "s_lshl_b32 s52, s39, 20", "s_lshl_b32 s56, s51, 7", "s_add_u32 s52, s52, s56",
          "s_lshl_b32 s53, s50, 19", "s_lshl_b32 s56, s38, 17", "s_add_u32 s53, s53, s56",
          f"s_lshl_b32 s56, s50, {6 + FS}", f"s_lshl_b32 s57, s38, {4 + FS}", "s_add_u32 s56, s56, s57", f"s_add_u32 s54, s56, {GB}",
          "v_lshrrev_b32 v48, 3, v1", "v_and_b32 v49, 7, v1", "v_bfe_u32 v50, v1, 4, 1", "v_lshlrev_b32 v50, 2, v50",
          "v_xor_b32 v49, v49, v50", "v_bfe_u32 v50, v1, 5, 1", "v_lshlrev_b32 v50, 1, v50", "v_xor_b32 v49, v49, v50",
          "v_lshlrev_b32 v49, 4, v49", "v_lshl_add_u32 v40, v48, 11, v49"]
    p2 += [f"v_add_u32 v{40+i}, {i*(8*2048 - 1024)}, v40" for i in range(1, 4)]
    HS = opt.get("halfst", 1)
    p2 += ["s_mul_i32 s64, s38, 6144" if HS else "s_lshl_b32 s64, s38, 12", f"s_add_u32 s64, s64, {EX}"]
    p2b = ["v_lshrrev_b32 v48, 4, v1", "v_bfe_u32 v49, v1, 2, 2", "v_lshl_add_u32 v50, v48, 2, v49", "v_lshlrev_b32 v50, 7, v50",
           "v_bfe_u32 v51, v1, 1, 1", "v_and_b32 v52, 2, v49", "v_lshlrev_b32 v52, 1, v52", "v_xor_b32 v51, v51, v52",
           "v_and_b32 v52, 1, v48", "v_lshlrev_b32 v52, 1, v52", "v_xor_b32 v51, v51, v52", "v_lshl_add_u32 v50, v51, 4, v50",
           "v_and_b32 v52, 1, v1", "v_lshl_add_u32 v50, v52, 3, v50", "v_add_u32 v44, s64, v50"]
    p2b += [f"v_xor_b32 v{44+ct}, {ct*32}, v44" for ct in range(1, 4)]
    p2b += ["v_lshlrev_b32 v53, 3, v1"]
    p2c = [f"v_mov_b32 v{12+i}, v{40+i}" for i in range(4)] + ["s_add_u32 s56, s48, 0x10000", "v_add_u32 v32, s56, v50"]
    p2c += [f"v_xor_b32 v{32+ct}, {ct*32}, v32" for ct in range(1, 4)]
    SLOT = {}
    RES = {0: 176, 1: 192, 2: 208, 3: 224, 4: 240, 5: 16, 6: 32, 7: 64}
    AQ = [q for q in range(0, 256, 4) if not any(r <= q < r + 16 for r in RES.values())]
    assert len(AQ) == 32
    def dmaB(b, slot):
        SLOT[b] = slot
        ops = []
        for j in range(4):
            off = f" offset:{j*1024}" if j else ""
            m0 = "s_mov_b32 m0, s64" if slot is None else f"s_add_u32 m0, s48, {slot}"
            ops.append(([m0] if j == 0 else []) +
                       [("vm", f"buffer_load_dwordx4 v{(40 if slot is None else 12)+j}, s[80:83], s52 offen{off} lds", f"B{b}")])
        ops[-1].append("s_add_u32 s52, s52, 65536")
        return ops
    def breads(b, dst, agpr):
        sl = SLOT[b]
        base = 44 if sl is None else (32 if sl >= 65536 else 16)
        o = 0 if sl is None else sl % 65536
        return [("ds", f"ds_read_b64_tr_b16 {(ar if agpr else vr)(dst + ct*4 + 2*sub, 2)}, v{base+ct} offset:{o + sub*2048}")
                for ct in range(4) for sub in range(2)]
    PD = opt.get("wpace", 6)
    def wp():
        return ["s_mov_b64 exec, 0x3f", ("vm", "buffer_load_dword v39, v38, s[84:87], s73 offen", "T"), "s_mov_b64 exec, -1",
                f"s_add_u32 s73, s73, {64*6144}"]
    wt_setup = [["s_bitcmp1_b32 s38, 0", "s_cselect_b32 s92, s76, s74", "s_cselect_b32 s93, s77, s75"], "s_and_b32 s93, s93, 0xffff",
                f"s_mov_b32 s94, {1024*1024*2}", "s_mov_b32 s95, 0x00020000",
                "s_lshl_b32 s78, s2, 1", "s_add_u32 s78, s78, s40", "s_lshl_b32 s78, s78, 12"]
    WTN, WT0 = opt.get("wtn", 4), opt.get("wt0", 9)
    def wt(k):
        n = 32 // WTN
        return [f"s_mov_b64 exec, 0x{(1 << n) - 1:x}",
                ("vm", f"buffer_load_dword v39, v38, s[92:95], s78 offen offset:{k*n*128}", "T"), "s_mov_b64 exec, -1"]
    xs = opt.get("xsplit", {0: 0xc0, 1: 0x300, 2: 0xc00, 3: 0x3000, 4: 0xc000})
    ST0 = opt.get("st0", 2 if HS else 3)
    sw = opt.get("sent_w", [4, 5, 6, 6, 4, 5]) if not opt.get("sent_pro") else [-1] * 6
    for t in range(15):
        kw = {"extra": [], "valu": []}
        if xs and t in xs:
            m = xs[t]
            kw["extra"] += [[f"s_mov_b32 exec_lo, 0x{m | (m << 16):x}", "s_mov_b32 exec_hi, 0", ("vm", "buffer_load_dword v39, v38, s[16:19], s60 offen", "T"), "s_mov_b64 exec, -1"]]
        if PD and t + PD <= 15: kw["extra"] += [wp()]
        if t == ST0 - 2: kw["valu"] += p2
        if t == ST0 - 1: kw["valu"] += p2b
        for k in range(len(sent)):
            if sw[k] == t: kw["extra"] += [sent[k]]
        if t == HST: kw["extra"] += [hs]
        TL = opt.get("tlb", "")
        if TL and t == opt.get("tlb_w", 12):
            grp = ["s_mov_b64 exec, 1"]
            if "o" in TL: grp.append(("vm", "buffer_load_dword v39, v29, s[24:27], s65 offen sc1", "T"))
            if "a" in TL: grp.append(("vm", "buffer_load_dword v39, v29, s[24:27], s53 offen sc1", "T"))
            if "A" in TL:
                grp += ["s_mov_b64 exec, 3", "v_lshlrev_b32 v54, 16, v1", ("vm", "buffer_load_dword v39, v54, s[24:27], s53 offen sc1", "T"), "s_mov_b64 exec, 1"]
            if "u" in TL:
                grp += ["s_lshl_b32 s59, s50, 18", "s_lshl_b32 s58, s38, 16", "s_add_u32 s59, s59, s58", "v_mov_b32 v54, s59",
                        ("vm", "global_load_dword v39, v54, s[70:71]", "T")]
            kw["extra"] += [grp + ["s_mov_b64 exec, -1"]]
        for (tw, lab, nl) in opt.get("ct2", [(4, "K_W7", 1), (12, "K_TAIL", 2)]):
            if t == tw:
                kw["extra"] += [[f"s_add_u32 s59, s79, {lab}-{KNAME}", "v_lshlrev_b32 v54, 14, v1", "v_add_u32 v54, s59, v54",
                                 f"v_min_u32 v54, K_LAST-{KNAME}, v54", "v_mov_b32 v55, s89"],
                                ["v_add_co_u32 v54, vcc, s88, v54", "v_addc_co_u32 v55, vcc, 0, v55, vcc", f"s_mov_b64 exec, {(1 << nl) - 1}",
                                 ("vm", "global_load_dword v39, v[54:55], off", "T"), "s_mov_b64 exec, -1"]]
        a.label(f"K_W{t}")
        if t == WT0 - 1: kw["valu"] += wt_setup
        if WT0 <= t < WT0 + WTN: kw["extra"] += [wt(t - WT0)]
        LT = opt.get("lt")
        if LT:
            if t == min(LT) - 1:
                kw["valu"] += ["v_lshrrev_b32 v55, 3, v1", "v_lshlrev_b32 v55, 16, v55", "v_and_b32 v56, 7, v1", "v_lshl_add_u32 v55, v56, 7, v55",
                               "s_lshl_b32 s3, s39, 20", "s_lshr_b32 s56, s2, 3", "s_lshl_b32 s56, s56, 11", "s_add_u32 s3, s3, s56",
                               "s_and_b32 s56, s2, 4", "s_lshl_b32 s56, s56, 8", "s_add_u32 s3, s3, s56"]
            if t in LT:
                b0, nb_ = LT[t]
                kw["extra"] += [[f"s_add_u32 s56, s3, {b0*65536}", f"s_mov_b32 exec_lo, 0x{(1 << (8*nb_)) - 1:x}", "s_mov_b32 exec_hi, 0",
                                 ("vm", "buffer_load_dword v39, v55, s[80:83], s56 offen", "T"), "s_mov_b64 exec, -1"]]
        if HS:
            h = t - ST0
            if 0 <= h < 10:
                sub = h % 2
                grp = []
                for j in (2*sub, 2*sub + 1):
                    off = f" offset:{j*1024}" if j else ""
                    grp.append(([f"s_add_u32 m0, s64, {(h % 3)*2048 - sub*2048}"] if j % 2 == 0 else []) +
                               [("vm", f"buffer_load_dwordx4 v{40+j}, s[80:83], s52 offen{off} lds", f"H{h}")])
                if sub:
                    grp[-1].append("s_add_u32 s52, s52, 65536")
                kw["extra"] += grp
            h = t - ST0 - 2
            if 0 <= h < 10:
                kw["valu"] += [("needvm", [f"H{h}"])] + [("ds", f"ds_read_b64_tr_b16 {ar(RES[h // 2] + ct*4 + 2*(h % 2), 2)}, v{44+ct} offset:{(h % 3)*2048}") for ct in range(4)]
        elif ST0 <= t < ST0 + 10:
            b = (t - ST0) // 2
            if (t - ST0) % 2 == 0:
                kw["extra"] += dmaB(b, None)
            else:
                kw["valu"] += [[]] * 12 + [("needvm", [f"B{b}"])] + breads(b, RES[b], True)
        if t == 13 and opt.get("dsp13"):
            DSP = opt["dsp13"]
        E13 = opt.get("e13", 0)
        if t == (12 if E13 else 13):
            kw["valu"] += p2c
        if t == 13 and E13:
            kw["extra"] += dmaB(5, 98304) + dmaB(6, 98304 + 4096)
        if t == 13:
            pass
            kw["extra"] += [[("vm", "buffer_load_dword v28, v53, s[28:31], 0 offen sc1", "C")]]
        if t == 14:
            b58 = dmaB(7, 65536) + dmaB(8, 65536 + 4096) if E13 else dmaB(5, 65536) + dmaB(6, 65536 + 4096) + dmaB(7, 98304) + dmaB(8, 98304 + 4096)
            NW14 = opt.get("nw14", 10) if IL else 16
            kw["extra"] += b58[:NW14]; b58 = b58[NW14:]
            kw["last"] = True
            if IL:
                kw["valu"] += [f"s_mov_b32 s66, 0x{f2u(LOG2E):08x}", f"s_mov_b32 s67, 0x{f2u(LOG2E):08x}",
                               f"v_mov_b32 v20, 0x{f2u(-EPS * LOG2E):08x}", "v_mov_b32 v21, v20"] + [f"v_mov_b32 v{22+i}, 0x3f803f80" for i in range(4)]
                kw["valu"] += [["s_lshl_b32 s56, s38, 12", f"s_add_u32 s56, s56, {EX}", "v_add_u32 v10, s56, v26"], "v_xor_b32 v11, 4096, v10"]
                DSP = 1
        window(t, **kw)
    stamp(a, opt, 3)
    stamp(a, opt, 26, real=True)

    a.label("K_TAIL")
    if not IL:
        a(f"s_mov_b32 s66, 0x{f2u(LOG2E):08x}")
        a(f"s_mov_b32 s67, 0x{f2u(LOG2E):08x}")
        a(f"v_mov_b32 v20, 0x{f2u(-EPS * LOG2E):08x}")
        a("v_mov_b32 v21, v20")
        for i in range(4):
            a(f"v_mov_b32 v{22+i}, 0x3f803f80")
    KV, ZC = 40, 56
    T0 = 2
    MSL = opt.get("mslots", [4, 6, 8, 10, 12, 14, 17, 24])
    def phi8(b0, b1, dst, inter=(), mfs=()):
        src = [b0, b0 + 2, b1, b1 + 2]
        L = []
        for i, s in enumerate(src):
            L.append(f"v_pk_fma_f32 {vr(T0 + 2*i, 2)}, {vr(s, 2)}, s[66:67], v[20:21]")
        for i in range(8):
            L.append(f"v_exp_f32_e64 v{T0+i}, v{T0+i} clamp")
        for s in src:
            L.append(f"v_max_f32 v{s}, v36, v{s}")
            L.append(f"v_max_f32 v{s+1}, v36, v{s+1}")
        for i, s in enumerate(src):
            L.append(f"v_pk_add_f32 {vr(T0 + 2*i, 2)}, {vr(s, 2)}, {vr(T0 + 2*i, 2)}")
        for i in range(4):
            L.append(f"v_cvt_pk_bf16_f32 v{dst+i}, v{T0+2*i}, v{T0+2*i+1}")
        pos = {0: [], 8: [], 18: []}
        for n, it in enumerate(inter):
            pos[(0, 8, 18)[(n * 3) // max(len(inter), 1)]].append(it)
        mfs = list(mfs)
        assert len(mfs) <= len(MSL)
        for n, x in enumerate(L):
            if n in pos:
                emit(pos[n])
            if n in MSL and mfs:
                m_ = mfs.pop(0)
                lq.need(Ins(m_).srcAB)
                a(m_)
            a(x)
    def pack8(b0, b1, dst):
        for i, s in enumerate([b0, b0 + 2, b1, b1 + 2]):
            a(f"v_cvt_pk_bf16_f32 v{dst+i}, v{s}, v{s+1}")
    t1 = {2: [[("needvm", ["B7"])] + breads(5, RES[5], True), breads(6, RES[6], True), breads(7, RES[7], True)]}
    LRF = opt.get("late_rf", 0)
    LB = dict(rf=(13, 14, 15), q=(9, 10), e=(11, 12)) if LRF else dict(rf=(9, 10, 11), q=(12, 13), e=(14, 15))
    rf = dmaB(LB["rf"][0], SLOT[5]) + dmaB(LB["rf"][1], SLOT[6]) + dmaB(LB["rf"][2], SLOT[7])
    rf[0] = ["s_waitcnt lgkmcnt(0)"] + rf[0]
    for k in range(4):
        t1[3 + k] = rf[3*k:3*k+3]
    BQ = opt.get("bq", 0)
    if BQ:
        t1 = {}
    def kvz(m):
        out = []
        for dt in range(2):
            c = vr(ZC + dt*4)
            out.append(f"{MF} {c}, {vr(acc(2*m, 2+dt))}, v[22:25], {'0' if m == 0 else c}")
            for et in range(2):
                c = vr(KV + dt*8 + et*4)
                out.append(f"{MF} {c}, {vr(acc(2*m, 2+dt))}, {vr(acc(2*m, 4+et))}, {'0' if m == 0 else c}")
        return out
    if IL:
        h = -(-len(b58) // 2)
        RP = opt.get("rdpos", 3)
        t1 = {0: b58[:h], 1: b58[h:], RP: t1[2]}
        rf[0] = rf[0][1:]
        rf[0] = [("needds", regs_of(ar(RES[7], 16)))] + rf[0]
        nrf = 7 - RP
        for k in range(nrf):
            t1[RP + 1 + k] = rf[(12*k)//nrf:(12*(k+1))//nrf]
        if LRF:
            late_rd = t1.pop(3) if LRF == 1 else []
            for k in range(4): t1[4 + k] = []
        if opt.get("x_nob"):
            t1 = {}
        if opt.get("x_norf"):
            for k in range(4): t1[4 + k] = []
        if opt.get("x_nowait"):
            t1[3][0] = t1[3][0][1:]
        if ES:
            send = [x for m in range(4) for x in kvz(m)[3:]]
            own = [kvz(m)[:3] for m in range(4)]
            plan = {4: send[:8], 5: send[8:] + own[0], 6: own[1], 7: own[2]}
            wr_ = [[f"ds_write_b128 v10, {vr(ZC+4)} offset:2048", f"ds_write_b128 v10, {vr(KV+8)}", f"ds_write_b128 v10, {vr(KV+12)} offset:1024"]]
            t1[6] = t1[6][:1] + wr_ + t1[6][1:]
            for j in range(8):
                m, dt = j % 4, 1 - j // 4
                if j < 4:
                    mfs = mf(15, 2*j, [4, 5], lambda ks: fXR(2*j, ks)) + mf(15, 2*j + 1, [4, 5], lambda ks: fXR(2*j + 1, ks))
                else:
                    mfs = plan[j]
                if j == 7:
                    a("s_waitcnt lgkmcnt(0)")
                    lq.drained()
                    a("s_barrier")
                    a(f"ds_read_b128 {vr(KV+8)}, v11 offset:1024")
                    a(f"ds_read_b128 {vr(KV+12)}, v11")
                    a(f"ds_read_b128 {vr(ZC+4)}, v11 offset:2048")
                    a("s_lshl_b32 s56, s39, 10")
                    a("s_add_u32 s58, s62, s56")
                    a("s_xor_b32 s59, s58, 1024")
                    a("s_mov_b32 s56, 0x00010001")
                    a("s_mov_b32 s57, 0x00010001")
                phi8(acc(2*m, 2 + dt), acc(2*m + 1, 2 + dt), acc(2*m, 2 + dt), inter=t1.get(j, []), mfs=mfs)
                if 1 <= j <= 3:
                    for et in range(2):
                        pack8(acc(2*(j-1), 4 + et), acc(2*(j-1) + 1, 4 + et), acc(2*(j-1), 4 + et))
                if j == 3:
                    for et in range(2):
                        pack8(acc(6, 4 + et), acc(7, 4 + et), acc(6, 4 + et))
            for x in (own[3][1], own[3][2], own[3][0]):
                a(x)
            a("s_waitcnt lgkmcnt(0)")
        if not ES:
            for j in range(8):
                if opt.get("tstamps"):
                    stamp(a, opt, 48 + j)
                m, dt = j // 2, j % 2
                if j < 4:
                    mfs = mf(15, 2*j, [4, 5], lambda ks: fXR(2*j, ks)) + mf(15, 2*j + 1, [4, 5], lambda ks: fXR(2*j + 1, ks))
                elif j < 7:
                    mfs = kvz(j - 4)
                else:
                    mfs = []
                phi8(acc(2*m, 2 + dt), acc(2*m + 1, 2 + dt), acc(2*m, 2 + dt), inter=t1.get(j, []), mfs=mfs)
                if 1 <= j <= 4:
                    for et in range(2):
                        pack8(acc(2*(j-1), 4 + et), acc(2*(j-1) + 1, 4 + et), acc(2*(j-1), 4 + et))
            if opt.get("tstamps"):
                stamp(a, opt, 56)
            for x in kvz(3):
                a(x)
            a("s_nop 3")
    else:
        for m in range(4):
            for dt in range(2):
                phi8(acc(2*m, 2 + dt), acc(2*m + 1, 2 + dt), acc(2*m, 2 + dt), inter=t1.get(m*2 + dt, []))
        lq.drained()
        kvm = []
        for m in range(4):
            for dt in range(2):
                c = vr(ZC + dt*4)
                kvm.append(f"{MF} {c}, {vr(acc(2*m, 2+dt))}, v[22:25], {'0' if m == 0 else c}")
        for m in range(4):
            for et in range(2):
                pack8(acc(2*m, 4 + et), acc(2*m + 1, 4 + et), acc(2*m, 4 + et))
                a(kvm.pop(0))
        for m in range(4):
            for dt in range(2):
                for et in range(2):
                    c = vr(KV + dt*8 + et*4)
                    a(f"{MF} {c}, {vr(acc(2*m, 2+dt))}, {vr(acc(2*m, 4+et))}, {'0' if m == 0 else c}")
        a("s_lshl_b32 s56, s38, 12")
        a(f"s_add_u32 s56, s56, {EX}")
        a("v_add_u32 v10, s56, v26")
        a("v_xor_b32 v11, 4096, v10")
    if not ES:
        a("s_cmp_eq_u32 s39, 0")
        a("s_cbranch_scc1 K_EXW0")
        a(f"ds_write_b128 v10, {vr(ZC)} offset:2048")
        a(f"ds_write_b128 v10, {vr(KV)}")
        a(f"ds_write_b128 v10, {vr(KV+4)} offset:1024")
        a("s_waitcnt lgkmcnt(0)")
        for i in range(0, 8, 2):
            a(f"v_pk_mov_b32 {vr(KV+i, 2)}, {vr(KV+8+i, 2)}, {vr(KV+8+i, 2)} op_sel:[0,1]")
        for i in range(0, 4, 2):
            a(f"v_pk_mov_b32 {vr(ZC+i, 2)}, {vr(ZC+4+i, 2)}, {vr(ZC+4+i, 2)} op_sel:[0,1]")
        a("s_branch K_EXW1")
        a.label("K_EXW0")
        a(f"ds_write_b128 v10, {vr(ZC+4)} offset:2048")
        a("s_nop 2")
        a(f"ds_write_b128 v10, {vr(KV+8)}")
        a(f"ds_write_b128 v10, {vr(KV+12)} offset:1024")
        a("s_waitcnt lgkmcnt(0)")
        a.label("K_EXW1")
        lq.drained()
        if opt.get("tstamps"):
            stamp(a, opt, 57)
        a("s_barrier")
        if opt.get("tstamps"):
            stamp(a, opt, 58)
        a(f"ds_read_b128 {vr(KV+8)}, v11")
        a(f"ds_read_b128 {vr(KV+12)}, v11 offset:1024")
        a(f"ds_read_b128 {vr(ZC+4)}, v11 offset:2048")
        a("s_mov_b32 s56, 0x00010001")
        a("s_mov_b32 s57, 0x00010001")
        a("s_waitcnt lgkmcnt(0)")
    for i in range(0, 8, 2):
        a(f"v_pk_add_f32 {vr(KV+i, 2)}, {vr(KV+i, 2)}, {vr(KV+8+i, 2)}")
    for i in range(0, 4, 2):
        a(f"v_pk_add_f32 {vr(ZC+i, 2)}, {vr(ZC+i, 2)}, {vr(ZC+4+i, 2)}")
    for r in list(range(KV, KV + 8)) + list(range(ZC, ZC + 4)):
        a(f"v_min_u32 v{r}, -2, v{r}")
    FP = opt.get("fastpub", 0)
    def publish(pol):
        vq.issue(f"buffer_store_dwordx4 {vr(KV)}, v26, s[24:27], s4 offen{pol}", "P")
        vq.issue(f"buffer_store_dwordx4 {vr(KV+4)}, v26, s[24:27], s5 offen{pol}", "P")
        a("s_mov_b64 exec, s[6:7]")
        vq.issue(f"buffer_store_dwordx4 {vr(ZC)}, v27, s[24:27], s62 offen offset:2048{pol}", "P")
        a("s_mov_b64 exec, -1")
    if FP:
        a("s_mov_b64 s[4:5], s[58:59]")
        a("s_mov_b64 s[6:7], s[56:57]")
        publish(opt.get("fp_pol", ""))
    else:
        if ES:
            vq.issue(f"buffer_store_dwordx4 {vr(KV)}, v26, s[24:27], s58 offen sc1", "P")
            vq.issue(f"buffer_store_dwordx4 {vr(KV+4)}, v26, s[24:27], s59 offen sc1", "P")
        else:
            vq.issue(f"buffer_store_dwordx4 {vr(KV)}, v26, s[24:27], s62 offen sc1", "P")
            vq.issue(f"buffer_store_dwordx4 {vr(KV+4)}, v26, s[24:27], s62 offen offset:1024 sc1", "P")
        a("s_mov_b64 exec, s[56:57]")
        vq.issue(f"buffer_store_dwordx4 {vr(ZC)}, v27, s[24:27], s62 offen offset:2048 sc1", "P")
        a("s_mov_b64 exec, -1")
    stamp(a, opt, 4)
    vq.need("C")
    a("s_mov_b32 s58, -1")
    a("s_mov_b32 s59, 0")
    a.label("K_HS")
    if opt.get("thr"):
        a("v_cmp_ne_u32 vcc, s99, v28")
        a("s_mov_b32 s97, vcc_lo")
        a("v_and_b32 v28, 0xfff, v28")
    a("v_cmp_eq_u32 vcc, 8, v28")
    a("s_cmp_eq_u64 vcc, s[58:59]")
    a("s_cbranch_scc1 K_HSOK")
    a("s_sleep 2")
    a("v_lshlrev_b32 v10, 3, v1")
    a("buffer_load_dword v28, v10, s[28:31], 0 offen sc1")
    a("s_waitcnt vmcnt(0)")
    a("s_branch K_HS")
    a.label("K_HSOK")
    if ES:
        a("s_lshl_b32 s56, s38, 11")
        a(f"s_add_u32 s56, s56, {EX2}")
        a("v_lshl_add_u32 v10, v1, 3, s56")
        a("v_xor_b32 v11, 2048, v10")
    PB = [acc(p, 2) for p in range(8)]
    ZG = 48
    def gather_ops():
        ops = []
        for p in range(8):
            for k in range(2):
                ops.append(([f"s_add_u32 s56, s61, {p * 16384}"] if k == 0 else []) +
                           [("vm", f"buffer_load_dwordx4 {vr(PB[p] + 4*k)}, v26, s[24:27], s56 offen offset:{k*1024} sc1", "H")])
        ops.append([("vm", f"buffer_load_dwordx4 {vr(ZG)}, v30, s[24:27], s61 offen offset:2048 sc1", "H")])
        return ops
    def gather(track):
        for op in gather_ops():
            for x in op:
                a(x[1] if isinstance(x, tuple) else x)
    gops = gather_ops()
    if BQ:
        rd = breads(5, RES[5], True) + breads(6, RES[6], True) + breads(7, RES[7], True)
        rf[0] = rf[0][1:]
        rf[0] = [("needds", regs_of(ar(RES[5], 16)))] + rf[0]
        rf[4] = [("needds", regs_of(ar(RES[6], 16)))] + rf[4]
        rf[8] = [("needds", regs_of(ar(RES[7], 16)))] + rf[8]
        qfill = [[("needvm", ["B7"])] + rd[:1]] + [[x] for x in rd[1:]]
        qb = None
    else:
        qb = dmaB(LB["q"][0], 32768) + dmaB(LB["q"][1], 32768 + 4096)
    GQ = opt.get("gather_in_q", 0)
    ILQ = opt.get("ilq", 1)
    if ILQ:
        LA = opt.get("qla", 2)
        def qm(rt):
            return mf(15, rt, [0, 1], lambda ks: fXR(rt, ks)) + mf(14, rt, [0, 1], lambda ks: fX(rt % 2, ks))
        def xr(rt):
            return rdX(14, rt, lambda ks: fX(rt % 2, ks)) if rt < 8 else []
        for x in xr(0):
            put(x)
        for rt in range(LA):
            k = -(-len(qb) // (LA - rt)) if opt.get("qb_front", 1) else 0
            fill = {1: xr(rt + 1)}
            spread(fill, qb[:k], 2, 8); qb = qb[k:]
            weave(qm(rt), fill)
        stamp(a, opt, 13)
        G0, G1 = opt.get("g0", 3), opt.get("g1", 7)
        for rt in range(8):
            inter = []
            if rt + LA < 8:
                inter.append(xr(rt + LA + 1))
            if rt < G0 and qb:
                k = -(-len(qb) // (G0 - rt)); inter += qb[:k]; qb = qb[k:]
            if G0 <= rt < G1:
                k = -(-len(gops) // (G1 - rt)); inter += gops[:k]; gops = gops[k:]
            phi8(acc(rt, 0), acc(rt, 1), acc(rt, 0), inter=inter, mfs=qm(rt + LA) if rt + LA < 8 else [])
        assert not gops and not qb
    else:
        if DEFER >= 2:
            for x in rdX(14, 0, lambda ks: fX(0, ks)):
                put(x)
        for rt in range(8):
            fill = {}
            ms = mf(15, rt, [0, 1], lambda ks: fXR(rt, ks)) if DEFER >= 1 else []
            if DEFER >= 2:
                ms += mf(14, rt, [0, 1], lambda ks: fX(rt % 2, ks))
                if rt < 7:
                    fill[1] = rdX(14, rt + 1, lambda ks: fX((rt + 1) % 2, ks))
            if BQ:
                if rt < 3:
                    spread(fill, qfill[8*rt:8*rt+8], 0, len(ms))
                if rt >= 2:
                    spread(fill, rf[2*(rt-2):2*(rt-2)+2], 2, len(ms))
            else:
                fill.setdefault(2, []).extend(qb[rt])
            per = len(ms) // 4
            first_rt = 8 - -(-GQ // max(per, 1))
            if GQ and rt >= first_rt:
                k = min(per, GQ - (17 - len(gops)))
                spread(fill, gops[:k], 0, len(ms)); gops = gops[k:]
            weave(ms, fill)
        stamp(a, opt, 13)
        GSP = opt.get("gather_span", 7)
        for rt in range(8):
            k = -(-len(gops) // (GSP - rt)) if rt < GSP else 0
            phi8(acc(rt, 0), acc(rt, 1), acc(rt, 0), inter=gops[:k]); gops = gops[k:]
    gate_ld = [[("vm", f"buffer_load_dwordx4 {vr(acc(i, 1))}, v26, s[16:19], s60 offen offset:{i*1024}", "G")] for i in range(4)]
    gate_ld += [[("vm", f"buffer_load_dwordx4 {vr(acc(4 + i, 1))}, v26, s[32:35], 0 offen offset:{i*1024}", "G")] for i in range(2)]
    if FP:
        publish(" sc1")
    emit(gate_ld)
    stamp(a, opt, 5)
    S = 40
    vq.need("H")
    a.label("K_SUM")
    for i in range(0, 8, 2):
        a(f"v_pk_add_f32 {vr(S+i, 2)}, {vr(PB[0]+i, 2)}, {vr(PB[1]+i, 2)}")
    for i in range(4):
        a(f"v_add_f32_dpp v{52+i}, v{ZG+i}, v{ZG+i} quad_perm:[1,0,3,2] row_mask:0xf bank_mask:0xf")
    for p in range(2, 8):
        for i in range(0, 8, 2):
            a(f"v_pk_add_f32 {vr(S+i, 2)}, {vr(S+i, 2)}, {vr(PB[p]+i, 2)}")
        if p in (2, 3):
            ctrl = "quad_perm:[2,3,0,1]" if p == 2 else "row_half_mirror"
            for i in range(4):
                a(f"v_add_f32_dpp v{52+i}, v{52+i}, v{52+i} {ctrl} row_mask:0xf bank_mask:0xf")
    a(f"v_pk_add_f32 v[2:3], {vr(S, 2)}, {vr(S+2, 2)}")
    a(f"v_pk_add_f32 v[4:5], {vr(S+4, 2)}, {vr(S+6, 2)}")
    a(f"v_pk_add_f32 v[6:7], v[52:53], v[54:55]")
    a("v_pk_add_f32 v[2:3], v[2:3], v[4:5]")
    a("v_pk_add_f32 v[2:3], v[2:3], v[6:7]")
    a("v_cmp_u_f32 vcc, v2, v3")
    a("s_cbranch_vccz K_GOK")
    regs = [PB[p] + i for p in range(8) for i in range(8)] + [ZG + i for i in range(4)]
    a(f"v_max3_u32 v2, v{regs[0]}, v{regs[1]}, v{regs[2]}")
    regs = regs[3:]
    while regs:
        if len(regs) >= 2:
            a(f"v_max3_u32 v2, v2, v{regs[0]}, v{regs[1]}"); regs = regs[2:]
        else:
            a(f"v_max_u32 v2, v2, v{regs[0]}"); regs = regs[1:]
    a("v_cmp_eq_u32 vcc, -1, v2")
    a("s_cbranch_vccz K_GOK")
    if opt.get("stamps"):
        a("v_readlane_b32 s56, v31, 24")
        a("s_add_u32 s56, s56, 1")
        a("v_writelane_b32 v31, s56, 24")
    gather(False)
    a("s_waitcnt vmcnt(0)")
    a("s_branch K_SUM")
    a.label("K_GOK")
    stamp(a, opt, 6)
    if ES:
        OP0, OP1, OPZ = 56, 60, 2
        a(f"v_cvt_pk_bf16_f32 v{OPZ}, v52, v53")
        a(f"v_cvt_pk_bf16_f32 v{OPZ+1}, v54, v55")
        a(f"ds_write_b64 v10, {vr(OPZ, 2)} offset:1024")
        for k, d in enumerate((OP0, OP0 + 1, OP1, OP1 + 1)):
            a(f"v_cvt_pk_bf16_f32 v{d}, v{S+2*k}, v{S+2*k+1}")
        a(f"ds_write_b64 v10, {vr(OP0, 2)}")
        a(f"ds_write_b64 v10, {vr(OP1, 2)} offset:512")
        a("s_waitcnt lgkmcnt(0)")
        lq.drained()
        a("s_barrier")
        a(f"ds_read_b64 {vr(OPZ+2, 2)}, v11 offset:1024")
        a(f"ds_read_b64 {vr(OP0+2, 2)}, v11")
        a(f"ds_read_b64 {vr(OP1+2, 2)}, v11 offset:512")
        a("s_waitcnt lgkmcnt(2)")
    else:
        for i in range(4):
            a(f"v_cvt_pk_bf16_f32 v{2+i}, v{S+2*i}, v{S+2*i+1}")
        a("v_cvt_pk_bf16_f32 v6, v52, v53")
        a("v_cvt_pk_bf16_f32 v7, v54, v55")
        a("s_mul_i32 s56, s40, 3072")
        a(f"s_add_u32 s56, s56, {EX2}")
        a("v_add_u32 v11, s56, v26")
        a("s_lshl_b32 s57, s39, 3")
        a("v_add_u32 v10, s57, v11")
        a("ds_write_b64 v10, v[6:7] offset:2048")
        a("ds_write_b64 v10, v[2:3]")
        a("ds_write_b64 v10, v[4:5] offset:1024")
        a("s_waitcnt lgkmcnt(0)")
        lq.drained()
        a("s_barrier")
        OPR = 40
        a(f"ds_read_b128 {vr(OPR+8)}, v11 offset:2048")
        a(f"ds_read_b128 {vr(OPR)}, v11")
        a(f"ds_read_b128 {vr(OPR+4)}, v11 offset:1024")
        a("s_waitcnt lgkmcnt(2)")
        OP0, OP1, OPZ = OPR, OPR + 4, OPR + 8
    eb = dmaB(LB["e"][0], 0) + dmaB(LB["e"][1], 4096) if opt.get("early14", 1) else []
    if opt.get("opipe", 0):
        a("s_add_u32 s63, s65, 4096")
        def mm(rt):
            return [f"{MF} {vr(acc(rt, 4))}, {vr(OPZ)}, {vr(acc(rt, 0))}, 0", f"{MF} {vr(acc(rt, 2))}, {vr(OP0)}, {vr(acc(rt, 0))}, 0",
                    f"{MF} {vr(acc(rt, 3))}, {vr(OP1)}, {vr(acc(rt, 0))}, 0"] if rt < 8 else []
        a(mm(0)[0]); a(mm(1)[0])
        a("s_waitcnt lgkmcnt(0)")
        for x in mm(0)[1:] + mm(1)[1:]:
            a(x)
        for rt in range(8):
            N, D = acc(rt, 2), acc(rt, 4)
            nx = mm(rt + 2)
            L = [f"v_add_f32 v{D}, v36, v{D}", f"v_rcp_f32 v{D}, v{D}"]
            if nx:
                L += [f"v_mul_f32 v{N+r}, v{N+r}, v{D}" for r in range(8)]
            else:
                L += [f"v_pk_mul_f32 {vr(N+r, 2)}, {vr(N+r, 2)}, {vr(D, 2)} op_sel_hi:[1,0]" for r in range(0, 8, 2)]
            L += [f"v_cvt_pk_bf16_f32 v{D+4+r//2}, v{N+r}, v{N+r+1}" for r in range(0, 8, 2)]
            for k, x in enumerate(L):
                if nx and k in (2, 6, 10):
                    a(nx.pop(0))
                a(x)
            vq.issue(f"buffer_store_dwordx4 {vr(D+4)}, v26, s[24:27], {'s65' if rt < 4 else 's63'} offen offset:{(rt % 4)*1024} sc1", "O")
        emit(eb)
    else:
        for rt in range(8):
            a(f"{MF} {vr(acc(rt, 4))}, {vr(OPZ)}, {vr(acc(rt, 0))}, 0")
            if eb and rt % 2 == 0:
                emit(eb[:1]); eb = eb[1:]
        a("s_waitcnt lgkmcnt(0)")
        for rt in range(8):
            a(f"{MF} {vr(acc(rt, 2))}, {vr(OP0)}, {vr(acc(rt, 0))}, 0")
            a(f"{MF} {vr(acc(rt, 3))}, {vr(OP1)}, {vr(acc(rt, 0))}, 0")
            D = acc(rt, 4)
            a(f"v_add_f32 v{D}, v36, v{D}")
            a(f"v_rcp_f32 v{D}, v{D}")
            if eb and rt % 2 == 0:
                emit(eb[:1]); eb = eb[1:]
        a("s_add_u32 s63, s65, 4096")
        for rt in range(8):
            N, D = acc(rt, 2), acc(rt, 4)
            for r in range(0, 8, 2):
                a(f"v_pk_mul_f32 {vr(N+r, 2)}, {vr(N+r, 2)}, {vr(D, 2)} op_sel_hi:[1,0]")
            for r in range(0, 8, 2):
                a(f"v_cvt_pk_bf16_f32 v{D+4+r//2}, v{N+r}, v{N+r+1}")
            vq.issue(f"buffer_store_dwordx4 {vr(D+4)}, v26, s[24:27], {'s65' if rt < 4 else 's63'} offen offset:{(rt % 4)*1024} sc1", "O")
    stamp(a, opt, 7)
    if LRF:
        emit(late_rd)
        emit(rf)
    if BQ:
        emit(dmaB(12, 32768) + dmaB(13, 32768 + 4096))
    if not opt.get("early14", 1):
        emit(dmaB(14, 0) + dmaB(15, 4096))
    for k in range(4):
        a(f"s_add_u32 s56, s38, {k + 1}")
        a("s_and_b32 s56, s56, 3")
        a("s_lshl_b32 s56, s56, 11")
        a(f"v_add_u32 v{2+k}, s56, v26")
    a("v_bfe_u32 v6, v1, 1, 4")
    a(f"v_lshlrev_b32 v6, {FS}, v6")
    a("v_and_b32 v7, 1, v1")
    a("v_lshl_add_u32 v6, v7, 2, v6")
    vq.need("G")
    for x in gate[1:] + gate2:
        a(x)
    srd(a, 16, 70, 2048 * 1024 * 2)
    a("v_add_u32 v7, s48, v26")
    a("v_add_u32 v8, 0x10000, v7")
    for j in range(3):
        a(f"s_xor_b32 s56, s38, {j + 1}")
        a("s_sub_u32 s57, s38, s56")
        a("s_sub_u32 s57, s57, 1")
        a("s_and_b32 s57, s57, 3")
        a("s_lshl_b32 s57, s57, 15")
        a("s_lshl_b32 s56, s56, 13")
        a("s_add_u32 s56, s56, s57")
        a(f"v_add_u32 v{9+j}, s56, v26")
    a("v_and_b32 v24, 15, v1")
    a("v_lshrrev_b32 v25, 4, v1")
    a("v_and_b32 v28, 1, v25")
    a("v_lshlrev_b32 v28, 5, v28")
    a("v_lshrrev_b32 v25, 1, v25")
    a("v_lshl_add_u32 v28, v25, 4, v28")
    FL = opt.get("fullline", 1)
    if FL:
        a("v_and_b32 v24, 7, v1")
        a("v_bfe_u32 v25, v1, 3, 1")
        a("v_lshl_add_u32 v28, v25, 6, v28")
    a("v_lshl_add_u32 v14, v24, 11, v28")
    if FL:
        a("v_add_u32 v15, 0x4000, v14")
    a("s_lshl_b32 s56, s50, 18")
    a("s_lshl_b32 s57, s38, 16")
    a("s_add_u32 s56, s56, s57")
    a("s_lshl_b32 s57, s51, 7")
    a("s_add_u32 s61, s56, s57")
    a(f"s_add_u32 s62, s61, {16*2048}")
    a("s_mov_b32 s60, 0")
    a("s_getpc_b64 s[66:67]")
    a.label("K_PC")
    a("s_add_u32 s66, s66, K_WAIT-K_PC")
    a("s_addc_u32 s67, s67, 0")
    D = opt.get("depth", 4)
    P2 = 128
    def acc2(i, ct): return P2 + (i * 4 + ct) * 4
    def fA(slot, i): return AQ[slot * 8 + i]
    def fB(s_, ct): return 64 + s_ * 16 + ct * 4
    order = list(range(8, 16)) + list(range(8))
    for ct in range(4):
        a(f"v_subrev_u32 v{16+ct}, 0x10000, v{32+ct}")
    vq.need("B8")
    for x in breads(order[0], fB(0, 0), False):
        put(x)
    if opt.get("atouch", 0):
        a("v_lshrrev_b32 v46, 3, v1")
        a("v_lshlrev_b32 v46, 13, v46")
        a("v_and_b32 v47, 7, v1")
        a("v_lshl_add_u32 v46, v47, 7, v46")
        a("s_and_b32 s56, s51, 7")
        a("s_lshl_b32 s56, s56, 10")
        a("v_add_u32 v46, s56, v46")
    EP = opt.get("early_poll", 0) and not NS
    if EP:
        vq.issue("buffer_load_dword v44, v6, s[24:27], s54 offen sc1", "E")
    def flag():
        a("s_mov_b64 exec, 1")
        a("buffer_store_dwordx2 v[38:39], v29, s[24:27], s55 offen sc1")
        a("s_mov_b64 exec, -1")
    FAST = opt.get("fast", 0)
    if not FAST and not NS:
        vq.need("O")
        flag()
        stamp(a, opt, 8)
        if EP:
            a("s_waitcnt vmcnt(1)"); vq.drained()
            a("v_cmp_ne_u32 vcc, -1, v44")
            a("s_lshr_b32 s57, vcc_lo, 1"); a("s_and_b32 s57, s57, vcc_lo"); a("s_or_b32 s60, s60, s57")
        if opt.get("fsleep"):
            a(f"s_sleep {opt['fsleep']}")
        if opt.get("fwait", 1):
            a("s_waitcnt vmcnt(0)"); vq.drained()
        PP = opt.get("pp", 0)
        if PP:
            want = sum(1 << (2*order[k]) for k in range(opt.get("pp_heads", 2)))
            a(f"s_and_b32 s57, s60, 0x{want:x}")
            a(f"s_cmp_eq_u32 s57, 0x{want:x}")
            a("s_cbranch_scc1 K_PPOK")
            for k in range(PP):
                a(f"buffer_load_dword v{48+k}, v6, s[24:27], s54 offen sc1")
                if k < PP - 1:
                    a(f"s_sleep {opt.get('pp_sleep', 3)}")
            a.label("K_PPL")
            for k in range(PP):
                a(f"s_waitcnt vmcnt({PP-1})")
                a(f"v_cmp_ne_u32 vcc, -1, v{48+k}")
                a("s_lshr_b32 s57, vcc_lo, 1"); a("s_and_b32 s57, s57, vcc_lo"); a("s_or_b32 s60, s60, s57")
                a(f"s_and_b32 s57, s60, 0x{want:x}")
                a(f"s_cmp_eq_u32 s57, 0x{want:x}")
                a("s_cbranch_scc1 K_PPOK")
                a(f"buffer_load_dword v{48+k}, v6, s[24:27], s54 offen sc1")
            a("s_branch K_PPL")
            a.label("K_PPOK")
    SC = " sc1" if opt.get("a_sc1", 1) else ""
    NT = opt.get("ntail", 3)
    N0 = 16 - NT
    FR = {}
    for n in range(N0):
        for i in range(8):
            FR[(n, i)] = (n, i)
    seq = [(n, i) for i in range(8) for n in range(N0, 16)]
    for k, f in enumerate(seq):
        FR[f] = (N0 + k // 8, k % 8)
    GRP = {}
    for f, (g, j) in FR.items():
        GRP.setdefault(g, {})[j] = f
    def areg(n, i):
        g, j = FR[(n, i)]
        return AQ[(g % 4) * 8 + j]
    def loadsA(g):
        ops = []
        for j in range(8):
            n, i = GRP[g][j]
            b = order[n]
            if g < N0:
                pre = [f"s_add_u32 s43, s53, {b*8192}"] if j == 0 else []
                so = "s43"
            else:
                pre = [f"s_add_u32 s{4 + m - N0}, s53, {order[m]*8192}" for m in range(N0, 16)] if (g == N0 and j == 0) else []
                so = f"s{4 + n - N0}"
            off = " offset:1024" if i % 2 else ""
            ops.append(pre + [("vm", f"buffer_load_dwordx4 {ar(areg(n, i))}, v{2 + i // 2}, s[24:27], {so} offen{off}{SC}", f"A{n}_{i}")])
        return ops
    def check(n):
        b = order[n]
        out = [f"s_bitcmp1_b32 s60, {2*b}", f"s_cbranch_scc1 K_RDY{n}", f"s_mov_b32 s59, {2*b}", "s_swappc_b64 s[68:69], s[66:67]", f"K_RDY{n}:"]
        return out
    def poll(g):
        return [("vm", f"buffer_load_dword v{40 + g % 4}, v6, s[24:27], s54 offen sc1", f"P{g}")]
    def upd(g):
        return [f"v_cmp_ne_u32 vcc, -1, v{40 + g % 4}"], ["s_lshr_b32 s57, vcc_lo, 1", "s_and_b32 s57, s57, vcc_lo", "s_or_b32 s60, s60, s57"]
    def gate_grp(g):
        out = []
        if NS:
            if g < N0:
                out += check(g)
            elif g == N0:
                for m in list(range(N0, 16)) + list(range(NS)):
                    out += check(m)
                out += [("vm", "buffer_load_dword v20, v6, s[24:27], s54 offen sc1", "GF")]
            return out
        if g < N0:
            out += check(g)
        elif g == N0:
            for m in range(N0, 16):
                out += check(m)
            out += [("vm", "buffer_load_dword v20, v6, s[24:27], s54 offen sc1", "GF")]
        if g + 3 <= N0 and g in PSET:
            out += poll(g)
        return out
    TA = opt.get("atouch", 0)
    PSET = opt.get("pset", [3])
    def touchA(n0, n1):
        b0 = order[n0]
        cnt = (n1 - n0) * 8
        return [f"s_add_u32 s56, s53, {b0*8192}", f"s_mov_b64 exec, 0x{(1 << cnt) - 1:x}" if cnt < 32 else "s_mov_b32 exec_hi, 0",
                ("vm", "buffer_load_dword v45, v46, s[24:27], s56 offen sc1", "T"), "s_mov_b64 exec, -1"]
    if FAST:
        vq.need("E")
        stamp(a, opt, 8)
        a("v_cmp_ne_u32 vcc, -1, v44")
        a("s_lshr_b32 s57, vcc_lo, 1"); a("s_and_b32 s60, s57, vcc_lo")
        want = (1 << (2*order[0])) | (1 << (2*order[1]))
        a(f"s_and_b32 s57, s60, 0x{want:x}")
        a(f"s_cmp_eq_u32 s57, 0x{want:x}")
        a("s_cbranch_scc0 K_SLOW")
        q0 = list(vq.q)
        for g in range(2):
            emit([poll(g)])
            emit(loadsA(g))
        flag()
        stamp(a, opt, 9)
        a("s_branch K_GO")
        a.label("K_SLOW")
        vq.q = q0
        flag()
    if NS:
        vq.need("O")
        stamp(a, opt, 8)
        if opt.get("spec_sleep"):
            a(f"s_sleep {opt['spec_sleep']}")
        FPOS = opt.get("fpos", 2)
        for g in range(NS):
            if g == FPOS:
                flag(); vq.q.append("F")
            emit(loadsA(g))
        if FPOS >= NS:
            flag(); vq.q.append("F")
        stamp(a, opt, 9)
    for g in range(0 if NS else 2):
        emit([gate_grp(g)])
        if g == 0:
            stamp(a, opt, 9)
        emit(loadsA(g))
    if FAST:
        a.label("K_GO")
    def redw(i):
        k = i // 2
        return [f"ds_write_b128 {'v7' if k < 2 else 'v8'}, {vr(acc2(i, ct))} offset:{(k % 2)*32768 + (i % 2)*4096 + ct*1024}" for ct in range(4)]
    def Bop(n, ct):
        b = order[n]
        return vr(fB(n % 2, ct)) if b >= 8 else ar(RES[b] + ct * 4)
    issued = set()
    NPOLL = opt.get("npoll", 5)
    for n in range(N0 if NS else 0):
        if n < NS:
            lq.need(regs_of(Bop(n, 0)))
            for i in range(8):
                vq.need(f"A{n}_{i}")
                a(f"{MF} v[48:51], {Bop(n, 0)}, {ar(areg(n, i))}, {'0' if i == 0 else 'v[48:51]'}")
            a("v_cmp_u_f32 vcc, v48, v48")
            a(f"s_cbranch_vccz K_VOK{n}")
            if opt.get("stamps"):
                a("v_readlane_b32 s56, v31, 22")
                a("s_add_u32 s56, s56, 1")
                a("v_writelane_b32 v31, s56, 22")
            a(f"s_mov_b32 s59, {2*order[n]}")
            a("s_swappc_b64 s[68:69], s[66:67]")
            for op in loadsA(n):
                for x in op:
                    a(x[1] if isinstance(x, tuple) else x)
            a("s_waitcnt vmcnt(0)")
            a.label(f"K_VOK{n}")
        else:
            vq.need(f"A{n}_7")
        if n == 0:
            stamp(a, opt, 12)
        if opt.get("pstamps"):
            stamp(a, opt, 32 + n)
        ms = []
        for i in range(8):
            for ct in range(4):
                c = vr(acc2(i, ct))
                ms.append(f"{MF} {c}, {Bop(n, ct)}, {ar(areg(n, i))}, {'0' if n == 0 else c}")
        fill = {}
        if 1 <= n <= NPOLL:
            u1, u2 = upd(n - 1)
            fill[0] = [("needvm", [f"P{n-1}"])] + u1; fill[1] = u2
        if n < NPOLL:
            fill.setdefault(2, []).extend(poll(n))
        if n + 1 < 8:
            spread(fill, [[x] for x in breads(order[n + 1], fB((n + 1) % 2, 0), False)], 4, 20)
        gs = [g for g in range(NS, n + 4) if g not in issued] if n >= 1 else []
        items = []
        for g in gs:
            items += [gate_grp(g)] + loadsA(g); issued.add(g)
        if items:
            spread(fill, items, 3, 30)
        weave(ms, fill)
    for n in range(0 if NS else N0):
        FINE = n < opt.get("fine", 2)
        if not FINE:
            vq.need(f"A{n}_7")
        else:
            vq.need(f"A{n}_0")
        if n == 0:
            stamp(a, opt, 12)
        if opt.get("pstamps"):
            stamp(a, opt, 32 + n)
        ms = []
        for i in range(8):
            for ct in range(4):
                c = vr(acc2(i, ct))
                ms.append(f"{MF} {c}, {Bop(n, ct)}, {ar(areg(n, i))}, {'0' if n == 0 else c}")
        fill = {}
        if n + 3 <= N0 and n in PSET:
            u1, u2 = upd(n)
            fill[0] = u1; fill[1] = u2
        if n + 1 < 8:
            spread(fill, [[x] for x in breads(order[n + 1], fB((n + 1) % 2, 0), False)], 4, 20)
        if n == 0:
            spread(fill, [gate_grp(2)] + loadsA(2), 2, 16)
            spread(fill, [gate_grp(3)] + loadsA(3), 16, 31)
            if TA:
                fill.setdefault(31, []).extend(touchA(4, TA))
        else:
            spread(fill, [gate_grp(n + 3)] + loadsA(n + 3), 2, opt.get("lspan", 22))
        if TA and n + TA < 16:
            fill.setdefault(31, []).extend(touchA(n + TA, n + TA + 1))
        if FINE:
            for i in range(1, 8):
                fill.setdefault(4 * i - 1, []).append(("needvm", [f"A{n}_{i}"]))
        weave(ms, fill)
    if opt.get("pstamps"):
        stamp(a, opt, 32 + N0)
    gf = [("needvm", ["GF"]), "v_mov_b32 v22, v20", "v_permlane16_swap_b32 v20, v22"]
    for r in (20, 22):
        gf += [f"v_sub_f32 v{r+1}, 1.0, v{r}", f"v_cvt_pk_bf16_f32 v{r+1}, v{r+1}, v{r+1}", f"v_and_b32 v{r+1}, 0xffff0000, v{r+1}"]
    gf += [["s_cmp_lt_u32 s38, 2", "s_cbranch_scc1 K_NOSWAP", "v_swap_b32 v20, v21", "v_swap_b32 v22, v23", "K_NOSWAP:"]]
    R = 128
    rds = [f"ds_read_b128 {vr(R + k*32 + j*4)}, v{9+k} offset:{j*1024}" for k in range(3) for j in range(8)]
    for i in range(8):
        vq.need(*[f"A{n}_{i}" for n in range(N0, 16)])
        ms = [f"{MF} {vr(acc2(i, ct))}, {Bop(n, ct)}, {ar(areg(n, i))}, {vr(acc2(i, ct))}" for ct in range(4) for n in range(N0, 16)]
        fill = {}
        if i == 0:
            spread(fill, [x if isinstance(x, list) else [x] for x in gf], 0, len(ms))
        if 1 <= i <= 6:
            spread(fill, [[w] for w in redw(i - 1)], min(2, len(ms) - 4), len(ms))
        if i == 7:
            stamp(a, opt, 14)
            a("s_waitcnt lgkmcnt(0)")
            if opt.get("pstamps"): stamp(a, opt, 17)
            a("s_barrier")
            if opt.get("pstamps"): stamp(a, opt, 18)
            spread(fill, [[r] for r in rds], 0, len(ms))
        weave(ms, fill)
    OWN = acc2(6, 0)
    if opt.get("thr"):
        a("s_memrealtime s[98:99]")
        a("s_waitcnt lgkmcnt(0)")
        a("s_sub_u32 s98, s98, s96")
        a("s_cmp_eq_u32 s97, 0")
        a("s_cselect_b32 s98, s98, 0")
        a(f"s_cmp_gt_u32 s98, {int(opt['thr']*100)}")
        a("s_cbranch_scc1 K_END")
    if opt.get("pstamps"): stamp(a, opt, 19)
    a("s_waitcnt lgkmcnt(15)")
    for j in range(0, 32, 2):
        a(f"v_pk_add_f32 {vr(OWN+j, 2)}, {vr(OWN+j, 2)}, {vr(R+j, 2)}")
    for j in range(0, 32, 2):
        gsel = 20 if j < 16 else 22
        a(f"v_pk_mul_f32 {vr(OWN+j, 2)}, {vr(OWN+j, 2)}, {vr(gsel, 2)} op_sel_hi:[1,0]")
    a("s_waitcnt lgkmcnt(0)")
    for pr in range(4):
        for j in range(8 * pr, 8 * pr + 8, 2):
            a(f"v_pk_add_f32 {vr(R+32+j, 2)}, {vr(R+32+j, 2)}, {vr(R+64+j, 2)}")
        for j in range(8 * pr, 8 * pr + 8, 2):
            gsel = 20 if j < 16 else 22
            a(f"v_pk_fma_f32 {vr(OWN+j, 2)}, {vr(R+32+j, 2)}, {vr(gsel, 2)}, {vr(OWN+j, 2)} op_sel:[0,1,0] op_sel_hi:[1,1,1]")
        b = 64 + 4 * pr
        for j in range(4):
            a(f"v_cvt_pk_bf16_f32 v{b+j}, v{OWN+8*pr+2*j}, v{OWN+8*pr+2*j+1}")
        a(f"v_permlane16_swap_b32 v{b}, v{b+2}")
        a(f"v_permlane16_swap_b32 v{b+1}, v{b+3}")
        if not FL:
            a(f"buffer_store_dwordx4 {vr(b)}, v14, s[16:19], {'s61' if pr < 2 else 's62'} offen offset:{(pr % 2)*64}{opt.get('ost', ' sc1')}")
        elif pr % 2 == 1:
            for j in range(4):
                a(f"v_mov_b32 v{80+j}, v{b-4+j}")
            for j in range(4):
                a(f"v_mov_b32_dpp v{b-4+j}, v{b+j} row_ror:8 row_mask:0xf bank_mask:0xc")
            for j in range(4):
                a(f"v_mov_b32_dpp v{b+j}, v{80+j} row_ror:8 row_mask:0xf bank_mask:0x3")
            so = 's61' if pr < 2 else 's62'
            a(f"buffer_store_dwordx4 {vr(b-4)}, v14, s[16:19], {so} offen{opt.get('ost', ' sc1')}")
            a(f"buffer_store_dwordx4 {vr(b)}, v15, s[16:19], {so} offen{opt.get('ost', ' sc1')}")
    stamp(a, opt, 15)
    if opt.get("probe"):
        a(f"s_cmp_gt_u32 s97, {int(opt['probe'][1]*100)}")
        a("s_cbranch_scc0 K_END")
        a.label("K_SPIN")
        a("s_memrealtime s[98:99]")
        a("s_waitcnt lgkmcnt(0)")
        a("s_sub_u32 s98, s98, s96")
        a("s_cmp_lt_u32 s98, 7000")
        a("s_cbranch_scc1 K_SPIN")
    stamp_out(a, opt, 0)
    if opt.get("dbgout"):
        a(f"s_cmp_eq_u32 s2, {opt.get('dbgwg', 0)}")
        a("s_cbranch_scc0 K_END")
        a("s_cmp_eq_u32 s38, 0")
        a("s_cbranch_scc0 K_END")
        a("v_readlane_b32 s56, v31, 30")
        for k, sl in enumerate([2, 32, 36, 3, 7, 12, 14, 29]):
            a(f"v_readlane_b32 s57, v31, {sl}")
            a("s_sub_u32 s57, s57, s56")
            a(f"v_writelane_b32 v30, s57, {k}")
        a("v_lshlrev_b32 v27, 3, v1")
        a("s_mov_b64 exec, 0xff")
        a("buffer_store_dword v30, v27, s[28:31], 0 offen offset:4")
    a.label("K_END")
    a("s_endpgm")
    a.label("K_WAIT")
    a("buffer_load_dword v44, v6, s[24:27], s54 offen sc1")
    if opt.get("stamps"):
        a("v_readlane_b32 s56, v31, 23")
        a("s_add_u32 s56, s56, 1")
        a("v_writelane_b32 v31, s56, 23")
    a("s_waitcnt vmcnt(0)")
    a("v_cmp_ne_u32 vcc, -1, v44")
    a("s_lshr_b32 s57, vcc_lo, 1"); a("s_and_b32 s57, s57, vcc_lo"); a("s_or_b32 s60, s60, s57")
    a("s_bitcmp1_b32 s60, s59")
    if opt.get("wsleep"):
        a("s_cbranch_scc1 K_LAST")
        a(f"s_sleep {opt['wsleep']}")
        a("s_branch K_WAIT")
    else:
        a("s_cbranch_scc0 K_WAIT")
    a.label("K_LAST")
    a("s_setpc_b64 s[68:69]")
    a("s_endpgm")

DOC = '''; ---------------------------------------------------------------------------------------------
; Phase 1: workgroup (rb, cb) computes q,k,v of 256 rows x 2 heads (x @ wqkv, 16x16x32 bf16 MFMA,
;   LDS-DMA staged operands, transposed LDS reads for the weights), phi(k), partial kv / z.
; ---------------------------------------------------------------------------------------------
'''

def build(opt):
    a = Asm()
    gen(a, opt)
    out = HEADER + "; @launch grid=(256,1,1) block=(256,1,1) lds=163840\n"
    out += DOC
    out += '.amdgcn_target "amdgcn-amd-amdhsa--gfx950"\n.text\n' + a.text() + '.section .rodata,"a"\n' + kd(KNAME, 512, 100 if opt.get('thr') or opt.get('probe') else 96, 256)
    return out

if __name__ == "__main__":
    opt = {}
    for kv in sys.argv[2:]:
        k, v = kv.split("=")
        try:
            v = eval(v)
        except Exception:
            pass
        opt[k] = v
    open(sys.argv[1], "w").write(build(opt))
```
